```python
import torch

def _softmax(x, axis=-1):
    return torch.softmax(x, dim=axis)
def _gelu(x):
    return torch.nn.functional.gelu(x, approximate="tanh")
def _silu(x):
    return torch.nn.functional.silu(x)
def _sigmoid(x):
    return torch.sigmoid(x)
def _layernorm(x, axis=-1, eps=1e-5):
    m = x.mean(dim=axis, keepdim=True)
    v = x.var(dim=axis, keepdim=True, unbiased=False)
    return (x - m) / torch.sqrt(v + eps)
def _scatter_add(tgt, idx, src, axis=0):
    return tgt.clone().index_add_(axis, idx, src)
def _segment_sum(src, seg, n):
    out = torch.zeros((n,) + src.shape[1:], dtype=src.dtype)
    return out.index_add_(0, seg, src)
def _pad(x, pw):
    flat = tuple(v for pair in reversed(pw) for v in pair)
    return torch.nn.functional.pad(x, flat)

kernel_name = 'sequential_preLN__softmax_full_mha__glu_gated_bilinear__prompt'

def setup_inputs():

    _w = (lambda a: (lambda t: t.to(torch.bfloat16) if t.is_floating_point() else t)(torch.as_tensor(a)))
    def _A_setup():
        B, S, D = 1, 2048, 576
        return {
            "x": _w((lambda *s: torch.randn(*s, dtype=torch.bfloat16) * 0.05)(B, S, D)),
            "wqkv": _w((lambda *s: torch.randn(*s, dtype=torch.bfloat16) * 0.05)(D, 3 * D)),
            "wo": _w((lambda *s: torch.randn(*s, dtype=torch.bfloat16) * 0.05)(D, D)),
        }
    _A_in = _A_setup()

    def _B_setup():
        B, S, D, F = 1, 2048, 576, 4608
        return {
            "x": _w((lambda *s: torch.randn(*s, dtype=torch.bfloat16) * 0.05)(B, S, D)),
            "w_gate": _w((lambda *s: torch.randn(*s, dtype=torch.bfloat16) * 0.4)(D, F) * (D ** -0.5)),
            "w_up": _w((lambda *s: torch.randn(*s, dtype=torch.bfloat16) * 0.4)(D, F) * (D ** -0.5)),
            "w_down": _w((lambda *s: torch.randn(*s, dtype=torch.bfloat16) * 0.4)(F, D) * (F ** -0.5)),
        }
    _B_in = _B_setup()

    return {
        "A_x": _A_in["x"],
        "A_wqkv": _A_in["wqkv"],
        "A_wo": _A_in["wo"],
        "B_x": _B_in["x"],
        "B_w_gate": _B_in["w_gate"],
        "B_w_up": _B_in["w_up"],
        "B_w_down": _B_in["w_down"],
    }

def reference(A_x, A_wqkv, A_wo, B_x, B_w_gate, B_w_up, B_w_down):
    def _A_ref(x, wqkv, wo):
        B, S, D = x.shape
        H = 32; Dh = D // H
        qkv = (lambda x, *d: x.permute(*d))((x @ wqkv).reshape(B, S, 3, H, Dh), 2, 0, 3, 1, 4)
        q, k, v = qkv[0], qkv[1], qkv[2]
        scale = Dh ** -0.5
        scores = torch.einsum("bhqd,bhkd->bhqk", q, k) * scale
        p = _softmax(scores, axis=-1)
        o = torch.einsum("bhqk,bhkd->bhqd", p, v)
        return (lambda x, *d: x.permute(*d))(o, 0, 2, 1, 3).reshape(B, S, D) @ wo

    def _B_ref(x, w_gate, w_up, w_down):
        g = torch.einsum("bsd,df->bsf", x, w_gate)
        u = torch.einsum("bsd,df->bsf", x, w_up)
        h = g * u
        return torch.einsum("bsf,fd->bsd", h, w_down)

    x = A_x
    h = x + _A_ref(_layernorm(x, axis=-1), A_wqkv, A_wo)
    h2 = h + _B_ref(_layernorm(h, axis=-1), B_w_gate, B_w_up, B_w_down)
    return h2
```

```python
import math, struct

S, D, H, DH, F = 2048, 576, 32, 18, 4608

KVBLK = 2432
KV_K0, KV_K1, KV_V0, KV_K2, KV_V1, KV_V2 = 0, 512, 1024, 1536, 1664, 2176
KVHEAD = 64 * KVBLK
QBLK = 1152
QHEAD = 64 * QBLK
KVOFF = 0
QOFF = 0x500000
OOFF = 0x800000
HCOFF = 0xB00000
MUXOFF = 0xE00000
MUHOFF = 0xE02000
SSQOFF = 0xE04000
WBAROFF = 0xE20000
WOOFF = 0xF00000
WGUOFF = 0x1000000
WDOFF = 0x1C00000
HIDOFF = 0x2200000
PARTOFF = 0x3400000
STAMPOFF = 0x8000000
WS_BYTES = 0x10000000
CH = S * 16
OOB = 0x40000000

ARG_X, ARG_WQKV, ARG_WO, ARG_BX, ARG_WG, ARG_WU, ARG_WD, ARG_OUT, ARG_DBG, ARG_WS = [8 * i for i in range(10)]


def f2u(x):
    return struct.unpack("<I", struct.pack("<f", x))[0]


def v(i, n=1):
    return f"v{i}" if n == 1 else f"v[{i}:{i+n-1}]"


def a(i, n=1):
    return f"a{i}" if n == 1 else f"a[{i}:{i+n-1}]"


def s(i, n=1):
    return f"s{i}" if n == 1 else f"s[{i}:{i+n-1}]"


class Kern:
    def __init__(self, name, grid, block, lds, vgpr, accum=None, sgpr=96, idx=0, diag=False):
        self.name, self.grid, self.block, self.lds = name, grid, block, lds
        self.vgpr, self.accum, self.sgpr = vgpr, accum, sgpr
        self.L = []
        self.idx, self.diag = idx, diag

    def __call__(self, txt):
        for ln in txt.strip("\n").split("\n"):
            ln = ln.strip()
            if not ln:
                continue
            if ln.endswith(":") or ln.startswith("."):
                self.L.append(ln)
            else:
                self.L.append("  " + ln)

    def lab(self, l):
        return f"L{self.name[:2]}_{l}"

    def label(self, l):
        self.L.append(self.lab(l) + ":")

    def srd(self, d, p, nbytes):
        self(f"s_mov_b32 s{d}, s{p}\ns_mov_b32 s{d+1}, s{p+1}\ns_mov_b32 s{d+2}, {nbytes:#x}\ns_mov_b32 s{d+3}, 0x20000")

    def stamp_start(self):
        if self.diag:
            self("s_memrealtime s[90:91]\ns_memtime s[86:87]")

    def stamp_end(self, ws_srd):
        if self.diag:
            self(f"""
s_waitcnt vmcnt(0) lgkmcnt(0)
s_memrealtime s[92:93]
s_memtime s[88:89]
s_mov_b64 exec, 1
s_waitcnt lgkmcnt(0)
s_lshl_b32 s94, s2, 4
s_add_u32 s94, s94, s95
s_lshl_b32 s94, s94, 4
s_add_u32 s94, s94, {STAMPOFF + self.idx * 0x20000}
s_sub_u32 s88, s88, s86
v_mov_b32 v0, 0
v_mov_b32 v2, s90
v_mov_b32 v3, s92
v_mov_b32 v4, s88
v_mov_b32 v5, 1
buffer_store_dwordx4 v[2:5], v0, s[{ws_srd}:{ws_srd+3}], s94 offen
s_waitcnt vmcnt(0)
""")

    def text(self):
        accum = self.accum if self.accum is not None else min(256, (self.vgpr + 3) // 4 * 4)
        t = f".globl {self.name}\n.p2align 8\n.type {self.name},@function\n{self.name}:\n"
        t += "\n".join(self.L) + "\n"
        t += f""".section .rodata,"a"
.p2align 6
.amdhsa_kernel {self.name}
  .amdhsa_next_free_vgpr {self.vgpr}
  .amdhsa_next_free_sgpr {self.sgpr}
  .amdhsa_accum_offset {accum}
  .amdhsa_group_segment_fixed_size 0
  .amdhsa_kernarg_size 80
  .amdhsa_user_sgpr_count 2
  .amdhsa_user_sgpr_kernarg_segment_ptr 1
  .amdhsa_system_sgpr_workgroup_id_x 1
.end_amdhsa_kernel
.text
"""
        return t

    def launch(self):
        return f"; @launch kernel={self.name} grid=({self.grid},1,1) block=({self.block},1,1) lds={self.lds}\n"


def interleave(main, fill, per=1, start=0):
    out = []
    fi = 0
    for i, m in enumerate(main):
        out.append(m)
        if i >= start:
            for _ in range(per):
                if fi < len(fill):
                    out.append(fill[fi]); fi += 1
    out.extend(fill[fi:])
    return out
```

```python
from common import *

SLOT = 34816
XB = 16384
EXCH = 4 * SLOT
QSCALE = (DH ** -0.5) * math.log2(math.e)
NAUX = 9

def gen_ka(diag=False, st=""):
    k = Kern("ka_kernel", 192 + NAUX, 256, EXCH + 512, vgpr=224, idx=0, diag=diag)
    k.stamp_start()
    XV0, XV1 = 1, 2
    WV = 3
    XR = 8
    WR = 10
    XA = 15
    WA = 17
    LT, LG = 22, 23
    ONE = 24
    WF = [28, 64]
    XF = [100, 108]
    ACC = 116
    CS = 188
    SUM = 200
    GR = 208
    T0 = 216
    k(f"""
s_cmp_ge_u32 s2, {192 + NAUX}
s_cbranch_scc1 {k.lab('end')}
s_load_dwordx4 s[28:31], s[0:1], {ARG_X}
s_load_dwordx2 s[32:33], s[0:1], {ARG_WO}
s_load_dwordx2 s[34:35], s[0:1], {ARG_WS}
v_lshrrev_b32 v1, 6, v0
v_and_b32 v0, 63, v0
v_readfirstlane_b32 s16, v1
v_and_b32 v{LT}, 15, v0
v_lshrrev_b32 v{LG}, 4, v0
v_mov_b32 v{ONE}, 0x3f803f80
v_mov_b32 v{ONE+1}, 0x3f803f80
v_mov_b32 v{ONE+2}, 0x3f803f80
v_mov_b32 v{ONE+3}, 0x3f803f80
s_mov_b32 s95, s16
s_waitcnt lgkmcnt(0)
""")
    k.srd(4, 28, S * D * 2)
    k.srd(8, 30, D * 3 * D * 2)
    k.srd(12, 34, WS_BYTES)
    k.srd(36, 32, D * D * 2)
    k(f"""
s_cmp_ge_u32 s2, 192
s_cbranch_scc1 {k.lab('aux')}
s_and_b32 s26, s2, 7
s_lshr_b32 s27, s2, 3
s_lshr_b32 s17, s26, 1
s_lshl_b32 s17, s17, 2
s_and_b32 s40, s27, 3
s_add_u32 s17, s17, s40          ; rb
s_and_b32 s18, s26, 1
s_mul_i32 s18, s18, 6
s_lshr_b32 s40, s27, 2
s_add_u32 s18, s18, s40          ; nb
s_lshr_b32 s19, s18, 2           ; which
s_and_b32 s20, s18, 3            ; hg
s_lshl_b32 s40, s17, 2
s_add_u32 s41, s40, s16
s_mul_i32 s21, s41, {32*1152}    ; x soffset
s_mul_i32 s22, s18, 288          ; W soffset
v_lshrrev_b32 v{T0}, 3, v0
v_mul_u32_u24 v{T0}, 1152, v{T0}
v_and_b32 v{T0+1}, 7, v0
v_xor_b32 v{T0+1}, v{T0+1}, v{LG}
v_lshl_add_u32 v{XV0}, v{T0+1}, 4, v{T0}
v_xor_b32 v{XV1}, 64, v{XV0}
""")
    k.L.pop()
    k(f"""
v_xor_b32 v{T0+1}, 4, v{T0+1}
v_lshl_add_u32 v{XV1}, v{T0+1}, 4, v{T0}
""")
    k("s_mov_b32 s43, 3641")
    for n in range(5):
        k(f"s_add_u32 s{44+n}, s16, {4*n}")
        if n == 4:
            k(f"s_add_u32 s42, s16, 12\ns_cmp_ge_u32 s48, 18\ns_cselect_b32 s48, s42, s48")
        k(f"""
s_lshl_b32 s42, s{44+n}, 6
v_add_u32 v{T0}, s42, v0
v_mul_lo_u32 v{T0+1}, v{T0}, s43
v_lshrrev_b32 v{T0+1}, 16, v{T0+1}
v_mul_u32_u24 v{T0+2}, 18, v{T0+1}
v_sub_u32 v{T0+2}, v{T0}, v{T0+2}
v_and_b32 v{T0+3}, 0x33, v{T0+1}
v_and_b32 v{T0+4}, 4, v{T0+1}
v_lshl_or_b32 v{T0+3}, v{T0+4}, 1, v{T0+3}
v_and_b32 v{T0+4}, 8, v{T0+1}
v_lshrrev_b32 v{T0+4}, 1, v{T0+4}
v_or_b32 v{T0+3}, v{T0+3}, v{T0+4}
v_mul_u32_u24 v{T0+3}, 3456, v{T0+3}
v_lshl_add_u32 v{WV+n}, v{T0+2}, 4, v{T0+3}
s_lshl_b32 s{44+n}, s{44+n}, 10
s_add_u32 s{44+n}, s{44+n}, {XB}
""")
    k("s_lshl_b32 s49, s16, 12")

    def dma(slot_s):
        g = []
        for n in range(4):
            g.append(f"s_add_u32 s50, s49, {n*1024}\ns_add_u32 m0, s50, s{slot_s}\ns_add_u32 s51, s21, {n*8*1152}\n"
                     f"buffer_load_dwordx4 v{XV0 + (n & 1)}, s[4:7], s51 offen lds")
        for n in range(5):
            g.append(f"s_add_u32 m0, s{44+n}, s{slot_s}\ns_nop 0\nbuffer_load_dwordx4 v{WV+n}, s[8:11], s22 offen lds")
        return g
    adv = f"s_add_u32 s21, s21, 128\ns_add_u32 s22, s22, {64*3456}"
    k("s_mov_b32 s23, 0")
    k.label("pro")
    for g in dma(23):
        k(g)
    k(adv)
    k(f"s_add_u32 s23, s23, {SLOT}\ns_cmp_lt_u32 s23, {4*SLOT}\ns_cbranch_scc1 {k.lab('pro')}")
    k(f"""
v_lshrrev_b32 v{T0}, 1, v{LT}
v_xor_b32 v{T0}, v{T0}, v{LG}
v_lshlrev_b32 v{T0}, 4, v{T0}
v_lshl_add_u32 v{T0}, v{LT}, 7, v{T0}
v_add_u32 v{XR}, s49, v{T0}
v_xor_b32 v{XR+1}, 64, v{XR}
v_lshrrev_b32 v{T0}, 5, v0
v_lshlrev_b32 v{T0}, 4, v{T0}
v_and_b32 v{T0+1}, 1, v{LG}
v_lshl_add_u32 v{T0}, v{T0+1}, 2, v{T0}
v_bfe_u32 v{T0+1}, v0, 2, 2
v_add_u32 v{T0}, v{T0}, v{T0+1}
v_mul_u32_u24 v{T0}, 288, v{T0}
v_add_u32 v{T0}, {XB}, v{T0}
v_bfe_u32 v{T0+1}, v0, 1, 1
v_mul_u32_u24 v{T0+1}, 40, v{T0+1}
v_and_b32 v{T0+2}, 1, v0
v_lshl_add_u32 v{T0+1}, v{T0+2}, 4, v{T0+1}
v_add_u32 v{T0+1}, v{T0}, v{T0+1}
v_and_b32 v{T0+2}, 3, v0
v_mul_u32_u24 v{T0+2}, 72, v{T0+2}
v_add3_u32 v{WR+4}, v{T0}, v{T0+2}, 32
""")
    for j in range(4):
        k(f"s_add_u32 s{52+j}, s16, {j}\ns_and_b32 s{52+j}, s{52+j}, 3\ns_mul_i32 s42, s{52+j}, 72\nv_add_u32 v{WR+j}, s42, v{T0+1}")
    for i in range(ACC, GR + 8):
        k(f"v_mov_b32 v{i}, 0")
    for i in range(2):
        k(f"v_mov_b32 v{XA+i}, v{XR+i}")
    for i in range(5):
        k(f"v_mov_b32 v{WA+i}, v{WR+i}")

    def reads(ks, buf):
        r = []
        for T in range(2):
            r.append(f"ds_read_b128 {v(XF[buf]+4*T,4)}, v{XA+ks} offset:{T*2048}")
        for t in range(9):
            for i in range(2):
                off = ks * 32 * 288 + i * 8 * 288 + ((t & 1) * 8 if t < 8 else 0)
                r.append(f"ds_read_b64_tr_b16 {v(WF[buf]+4*t+2*i,2)}, v{WA + t//2} offset:{off}")
        return r

    def mfmas(buf):
        m = []
        M = "v_mfma_f32_16x16x32_bf16"
        for T in range(2):
            x = v(XF[buf]+4*T, 4)
            m.append(f"{M} {v(SUM+4*T,4)}, {v(ONE,4)}, {x}, {v(SUM+4*T,4)}")
            m.append(f"{M} {v(GR+4*T,4)}, {x}, {x}, {v(GR+4*T,4)}")
        for t in range(9):
            w = v(WF[buf]+4*t, 4)
            for T in range(2):
                d = v(ACC + (2*t+T)*4, 4)
                m.append(f"{M} {d}, {w}, {v(XF[buf]+4*T,4)}, {d}")
            if t in (0, 1, 8):
                d = v(CS + (t if t < 8 else 2)*4, 4)
                m.append(f"{M} {d}, {w}, {v(ONE,4)}, {d}")
        return m

    k("s_waitcnt vmcnt(27)\ns_barrier")
    for r in reads(0, 0):
        k(r)
    k("s_mov_b32 s23, 0\ns_mov_b32 s25, 0")
    k(".p2align 6")
    k.label("loop")
    k("s_waitcnt lgkmcnt(0)")
    for x in interleave(mfmas(0), reads(1, 1), per=2):
        k(x)
    k(f"""
s_add_u32 s24, s23, {SLOT}
s_cmp_ge_u32 s24, {4*SLOT}
s_cselect_b32 s24, 0, s24
s_cmp_ge_u32 s25, 5
s_cselect_b32 s21, {OOB}, s21
s_waitcnt vmcnt(18) lgkmcnt(0)
s_barrier
""")
    for i in range(2):
        k(f"v_add_u32 v{XA+i}, s24, v{XR+i}")
    for i in range(5):
        k(f"v_add_u32 v{WA+i}, s24, v{WR+i}")
    rd = reads(0, 0)
    fill = [rd[2*i] + "\n" + rd[2*i+1] for i in range(10)] + dma(23)
    for x in interleave(mfmas(1), fill, per=1):
        k(x)
    k(adv)
    k(f"""
s_mov_b32 s23, s24
s_add_u32 s25, s25, 1
s_cmp_lt_u32 s25, 9
s_cbranch_scc1 {k.lab('loop')}
""")
    RS = 28
    CSX = 32
    VO, VX = 56, 57
    PK = 60
    k(f"""
s_waitcnt lgkmcnt(0)
s_lshl_b32 s42, s16, 7
s_add_u32 s42, s42, {EXCH}
v_lshlrev_b32 v{T0}, 5, v{LG}
v_add_u32 v{T0+1}, s42, v{T0}
s_nop 4
ds_write_b128 v{T0+1}, {v(CS,4)}
ds_write_b128 v{T0+1}, {v(CS+4,4)} offset:16
; stats
v_and_b32 v{T0+2}, 1, v0
v_cmp_eq_u32 s[56:57], 1, v{T0+2}
v_and_b32 v{T0+2}, 2, v0
v_cmp_eq_u32 s[58:59], 2, v{T0+2}
v_lshrrev_b32 v{T0+2}, 2, v{LT}
v_cmp_eq_u32 s[60:61], v{T0+2}, v{LG}
s_cmp_eq_u32 s19, 0
s_cselect_b32 s62, {f2u(QSCALE):#x}, 1.0
s_mov_b32 s63, {f2u(1.0/D):#x}
s_mov_b32 s64, {f2u(1e-5):#x}
""")
    for T in range(2):
        g = GR + 4*T
        k(f"""
v_cndmask_b32 v{g}, v{g}, v{g+1}, s[56:57]
v_cndmask_b32 v{g+2}, v{g+2}, v{g+3}, s[56:57]
v_cndmask_b32 v{g}, v{g}, v{g+2}, s[58:59]
v_cndmask_b32 v{g}, 0, v{g}, s[60:61]
v_mov_b32 v{g+1}, v{g}
s_nop 1
v_permlane16_swap_b32 v{g}, v{g+1}
v_add_f32 v{g}, v{g}, v{g+1}
v_mov_b32 v{g+1}, v{g}
s_nop 1
v_permlane32_swap_b32 v{g}, v{g+1}
v_add_f32 v{g}, v{g}, v{g+1}
v_mul_f32 v{SUM+4*T}, s63, v{SUM+4*T}
v_mul_f32 v{g+1}, v{SUM+4*T}, v{SUM+4*T}
v_fma_f32 v{g}, v{g}, s63, -v{g+1}
v_max_f32 v{g}, 0, v{g}
v_add_f32 v{g}, s64, v{g}
v_rsq_f32 v{g}, v{g}
s_nop 0
v_mul_f32 v{RS+2*T}, s62, v{g}
v_mul_f32 v{RS+2*T+1}, v{RS+2*T}, -v{SUM+4*T}
""")
    k(f"""
s_mov_b32 s65, {KVHEAD}
s_mov_b32 s66, {KVBLK}
s_mov_b32 s70, {KV_K2}
s_mov_b32 s69, 512
s_cmp_eq_u32 s19, 0
s_cselect_b32 s65, {QHEAD}, s65          ; HS
s_cselect_b32 s66, {QBLK}, s66           ; BS
s_cselect_b32 s67, {QOFF}, {KVOFF}       ; base
s_cselect_b32 s70, 1024, s70             ; cx
s_cmp_eq_u32 s19, 2
s_cselect_b32 s68, {KV_V0}, 0            ; c0
s_cselect_b32 s69, {KV_V1-KV_V0}, s69    ; c1-c0
s_cselect_b32 s70, {KV_V2}, s70
s_cselect_b32 s71, 3, 2
s_mul_i32 s42, s41, s66
s_add_u32 s67, s67, s42
s_lshl_b32 s42, s20, 3
s_mul_i32 s42, s42, s65
s_add_u32 s67, s67, s42
v_lshrrev_b32 v{T0+2}, 1, v{LG}
v_mul_lo_u32 v{VO}, v{T0+2}, s65
v_and_b32 v{T0+2}, 1, v{LG}
v_mul_lo_u32 v{T0+2}, v{T0+2}, s69
v_lshlrev_b32 v{T0+3}, 4, v{LT}
v_add3_u32 v{VO}, v{VO}, v{T0+2}, v{T0+3}
s_lshl_b32 s42, s65, 1
v_mul_lo_u32 v{VX}, v{LG}, s42
v_lshlrev_b32 v{T0+3}, s71, v{LT}
v_add_u32 v{VX}, v{VX}, v{T0+3}
s_waitcnt lgkmcnt(0)
s_barrier
""")
    for j in range(1, 4):
        k(f"s_lshl_b32 s42, s{52+j}, 7\ns_add_u32 s42, s42, {EXCH}\nv_add_u32 v{T0+1}, s42, v{T0}")
        k(f"ds_read_b128 {v(CSX+8*(j-1),4)}, v{T0+1}\nds_read_b128 {v(CSX+8*(j-1)+4,4)}, v{T0+1} offset:16")
    k(f"""
s_cmp_lg_u32 s18, 0
s_cbranch_scc1 {k.lab('nomu')}
s_lshl_b32 s42, s41, 7
s_add_u32 s42, s42, {MUXOFF}
v_lshlrev_b32 v{T0+2}, 2, v{LT}
s_mov_b64 exec, 0xffff
buffer_store_dword v{SUM}, v{T0+2}, s[12:15], s42 offen {st}
buffer_store_dword v{SUM+4}, v{T0+2}, s[12:15], s42 offen offset:64 {st}
s_mov_b64 exec, -1
""")
    k.label("nomu")

    def fix(acc, cs, T, dst, tmp):
        rs = v(RS+2*T, 2)
        return f"""
v_pk_mul_f32 {v(tmp,2)}, {v(cs,2)}, {rs} op_sel:[0,1] op_sel_hi:[1,1]
v_pk_mul_f32 {v(tmp+2,2)}, {v(cs+2,2)}, {rs} op_sel:[0,1] op_sel_hi:[1,1]
v_pk_fma_f32 {v(tmp,2)}, {v(acc,2)}, {rs}, {v(tmp,2)} op_sel:[0,0,0] op_sel_hi:[1,0,1]
v_pk_fma_f32 {v(tmp+2,2)}, {v(acc+2,2)}, {rs}, {v(tmp+2,2)} op_sel:[0,0,0] op_sel_hi:[1,0,1]
v_cvt_pk_bf16_f32 v{dst}, v{tmp}, v{tmp+1}
v_cvt_pk_bf16_f32 v{dst+1}, v{tmp+2}, v{tmp+3}
"""
    OUT = 76
    for j in range(4):
        if j == 1:
            k("s_waitcnt lgkmcnt(0)")
        cs = CS if j == 0 else CSX + 8*(j-1)
        k(f"s_lshl_b32 s42, s{52+j}, 1\ns_mul_i32 s42, s42, s65\ns_add_u32 s42, s42, s67\ns_add_u32 s42, s42, s68")
        for T in range(2):
            o = OUT + (2*j+T)*4
            for t in range(2):
                k(fix(ACC + (2*(2*j+t)+T)*4, cs + 4*t, T, o + 2*t, PK + 4*t))
            k(f"buffer_store_dwordx4 {v(o,4)}, v{VO}, s[12:15], s42 offen offset:{T*256} {st}")
    XO = 108
    for T in range(2):
        k(fix(ACC + (16+T)*4, CS + 8, T, XO + 4*T, PK + 4*T))
    k(f"""
s_add_u32 s42, s67, s70
s_add_u32 s43, s42, s65
s_cmp_eq_u32 s19, 2
s_cbranch_scc1 {k.lab('xv')}
buffer_store_dword v{XO}, v{VX}, s[12:15], s42 offen {st}
buffer_store_dword v{XO+1}, v{VX}, s[12:15], s43 offen {st}
buffer_store_dword v{XO+4}, v{VX}, s[12:15], s42 offen offset:64 {st}
buffer_store_dword v{XO+5}, v{VX}, s[12:15], s43 offen offset:64 {st}
s_branch {k.lab('fin')}
""")
    k.label("xv")
    k(f"""
v_mov_b32 v{XO+2}, v{XO+1}
v_mov_b32 v{XO+6}, v{XO+5}
v_mov_b32 v{XO+1}, 0x3f80
v_mov_b32 v{XO+3}, 0x3f80
v_mov_b32 v{XO+5}, 0x3f80
v_mov_b32 v{XO+7}, 0x3f80
buffer_store_dwordx2 {v(XO,2)}, v{VX}, s[12:15], s42 offen {st}
buffer_store_dwordx2 {v(XO+2,2)}, v{VX}, s[12:15], s43 offen {st}
buffer_store_dwordx2 {v(XO+4,2)}, v{VX}, s[12:15], s42 offen offset:128 {st}
buffer_store_dwordx2 {v(XO+6,2)}, v{VX}, s[12:15], s43 offen offset:128 {st}
s_branch {k.lab('fin')}
""")
    k.label("aux")
    k(f"""
s_sub_u32 s17, s2, 192
s_lshl_b32 s17, s17, 2
s_add_u32 s17, s17, s16          ; job j 0..35
s_lshr_b32 s18, s17, 1           ; ks
s_and_b32 s19, s17, 1            ; half
s_mul_i32 s20, s18, 36
s_mul_i32 s21, s19, 20
s_add_u32 s20, s20, s21
v_add_u32 v1, s20, v{LT}
s_sub_u32 s20, s17, 32
s_mul_i32 s20, s20, 144
s_add_u32 s20, s20, 16
v_lshrrev_b32 v2, 2, v{LT}
v_mul_u32_u24 v2, 36, v2
v_and_b32 v3, 3, v{LT}
v_add3_u32 v2, v2, v3, s20
s_cmp_ge_u32 s17, 32
s_cselect_b64 vcc, -1, 0
v_cndmask_b32 v1, v1, v2, vcc
v_mul_u32_u24 v1, 1152, v1
v_lshl_add_u32 v1, v{LG}, 4, v1
""")
    for n in range(18):
        k(f"buffer_load_dwordx4 {v(28+4*n,4)}, v1, s[36:39], 0 offen offset:{n*64}")
    for n in range(18):
        k(f"s_waitcnt vmcnt({17-n})")
        c = "0" if n == 0 else "v[4:7]"
        k(f"v_mfma_f32_16x16x32_bf16 v[4:7], {v(ONE,4)}, {v(28+4*n,4)}, {c}")
    k(f"""
s_mov_b32 s63, {f2u(1.0/D):#x}
s_lshl_b32 s42, s17, 5
s_add_u32 s42, s42, {WBAROFF}
v_lshlrev_b32 v2, 1, v{LT}
s_nop 7
v_mul_f32 v4, s63, v4
v_cvt_pk_bf16_f32 v5, v4, v4
v_and_b32 v6, 0xffff0000, v5
v_sub_f32 v6, v4, v6
v_cvt_pk_bf16_f32 v6, v6, v6
s_mov_b64 exec, 0xffff
buffer_store_short v5, v2, s[12:15], s42 offen
buffer_store_short v6, v2, s[12:15], s42 offen offset:1152
s_mov_b64 exec, -1
""")
    k.label("fin")
    k.stamp_end(12)
    k.label("end")
    k("s_endpgm")
    return k
```

```python
from common import *

SCR = KVHEAD

def gen_kb(diag=False, st="sc1", pst="sc1", prep=True):
    k = Kern("kb_kernel", 256, 768, 163840, vgpr=104, idx=1, diag=diag)
    k.stamp_start()
    AK1, AK2, AV = 2, 3, 4
    BK1 = 8
    SB = [16, 32]
    O, P, K1, K2, V0, V1, Q1, Q2 = 48, 64, 72, 76, 80, 84, 88, 92
    T0 = 94
    M16 = "v_mfma_f32_32x32x16_bf16"
    M8 = "v_mfma_f32_32x32x8_bf16"
    k(f"""
s_cmp_ge_u32 s2, 256
s_cbranch_scc1 {k.lab('end')}
s_load_dwordx2 s[34:35], s[0:1], {ARG_WS}
s_load_dwordx2 s[28:29], s[0:1], {ARG_WO}
s_load_dwordx4 s[40:43], s[0:1], {ARG_WG}
s_load_dwordx2 s[44:45], s[0:1], {ARG_WD}
v_lshrrev_b32 v1, 6, v0
v_and_b32 v0, 63, v0
v_readfirstlane_b32 s16, v1
v_lshlrev_b32 v1, 4, v0
s_mov_b32 s95, s16
s_waitcnt lgkmcnt(0)
""")
    k.srd(12, 34, WS_BYTES)
    k(f"""
s_cmp_ge_u32 s16, 8
s_cbranch_scc1 {k.lab('prep')}
s_and_b32 s17, s2, 7
s_lshl_b32 s17, s17, 2
s_bfe_u32 s18, s2, 0x20003
s_add_u32 s17, s17, s18          ; head
s_lshr_b32 s18, s2, 5
s_lshl_b32 s18, s18, 3
s_add_u32 s18, s18, s16          ; q tile
s_mul_i32 s19, s17, {QHEAD}
s_mul_i32 s22, s18, {QBLK}
s_add_u32 s19, s19, s22
s_add_u32 s19, s19, {QOFF}
v_and_b32 v{T0}, 31, v0
v_lshlrev_b32 v{T0+1}, 2, v{T0}
buffer_load_dwordx4 {v(Q1,4)}, v1, s[12:15], s19 offen
buffer_load_dword v{Q2}, v{T0+1}, s[12:15], s19 offen offset:1024
s_mul_i32 s22, s17, {KVHEAD}
s_lshl_b32 s23, s16, 10
s_add_u32 s22, s22, s23
s_mov_b32 s24, 19
""")
    k.label("dma")
    k(f"""
s_mov_b32 m0, s23
s_add_u32 s23, s23, 8192
buffer_load_dwordx4 v1, s[12:15], s22 offen lds
s_add_u32 s22, s22, 8192
s_sub_u32 s24, s24, 1
s_cmp_lg_u32 s24, 0
s_cbranch_scc1 {k.lab('dma')}
v_and_b32 v{T0+1}, 0x13, v{T0}
v_and_b32 v{T0+2}, 4, v{T0}
v_lshl_or_b32 v{T0+1}, v{T0+2}, 1, v{T0+1}
v_and_b32 v{T0+2}, 8, v{T0}
v_lshrrev_b32 v{T0+2}, 1, v{T0+2}
v_or_b32 v{T0+1}, v{T0+1}, v{T0+2}
v_lshrrev_b32 v{T0+2}, 5, v0              ; hh
v_lshlrev_b32 v{T0+3}, 9, v{T0+2}
v_lshl_add_u32 v{BK1}, v{T0+1}, 4, v{T0+3}
v_lshlrev_b32 v{BK1+1}, 2, v{T0+1}
v_add_u32 v{BK1+1}, {KV_K2}, v{BK1+1}
; V addresses
v_bfe_u32 v{T0+3}, v0, 2, 2               ; r
v_lshl_add_u32 v{T0+3}, v{T0+2}, 3, v{T0+3}   ; 8hh+r
v_and_b32 v{T0+4}, 1, v0
v_mul_u32_u24 v{T0+4}, {KV_V1-KV_V0}, v{T0+4}
v_bfe_u32 v{T0+5}, v0, 1, 1
v_lshl_add_u32 v{T0+4}, v{T0+5}, 3, v{T0+4}
v_add_u32 v{T0+4}, {KV_V0}, v{T0+4}
v_and_b32 v{T0+5}, 16, v0
v_cmp_eq_u32 vcc, 16, v{T0+5}
""")
    for m in range(2):
        for i in range(2):
            k(f"""
v_add_u32 v{T0+5}, {16*m+4*i}, v{T0+3}
v_lshl_add_u32 v{T0+6}, v{T0+5}, 4, v{T0+4}
v_lshlrev_b32 v{T0+5}, 3, v{T0+5}
v_add_u32 v{T0+5}, {KV_V2}, v{T0+5}
v_cndmask_b32 v{BK1+2+2*m+i}, v{T0+6}, v{T0+5}, vcc
""")
    k(f"""
v_mov_b32 v{K2+1}, 0x3f803f80
v_cmp_gt_u32 s[30:31], 32, v0
s_mov_b32 s21, 0
s_mov_b32 s25, 1
s_waitcnt vmcnt(16)
s_barrier
v_cndmask_b32 v{Q2}, 0, v{Q2}, s[30:31]
""")
    k.label("restart")
    k(f"""
v_mov_b32 v{Q2+1}, 0
v_mov_b32 v{T0}, 0xff800000
v_mov_b32 v{AK1}, v{BK1}
v_mov_b32 v{AK2}, v{BK1+1}
s_mov_b32 s24, s25
""")
    k.label("mx")
    k(f"""
ds_read_b128 {v(K1,4)}, v{AK1}
ds_read_b32 v{K2}, v{AK2}
v_add_u32 v{AK1}, {KVBLK}, v{AK1}
v_add_u32 v{AK2}, {KVBLK}, v{AK2}
s_waitcnt lgkmcnt(0)
{M16} {v(SB[0],16)}, {v(K1,4)}, {v(Q1,4)}, 0
{M8} {v(SB[0],16)}, {v(K2,2)}, {v(Q2,2)}, {v(SB[0],16)}
s_sub_u32 s24, s24, 1
s_nop 10
""")
    for i in range(8):
        k(f"v_max3_f32 v{T0}, v{T0}, v{SB[0]+2*i}, v{SB[0]+2*i+1}")
    k(f"""
s_cmp_lg_u32 s24, 0
s_cbranch_scc1 {k.lab('mx')}
v_mov_b32 v{T0+1}, v{T0}
""")
    for i in range(6):
        k(f"v_mov_b32 v{AK1+i}, v{BK1+i}")
    k(f"""
v_permlane32_swap_b32 v{T0}, v{T0+1}
ds_read_b128 {v(K1,4)}, v{AK1}
ds_read_b32 v{K2}, v{AK2}
v_max_f32 v{T0}, v{T0}, v{T0+1}
v_sub_f32 v{T0}, 0, v{T0}
v_cvt_pk_bf16_f32 v{T0+1}, v{T0}, v{T0}
v_and_b32 v{T0+1}, 0xffff0000, v{T0+1}
v_sub_f32 v{T0+2}, v{T0}, v{T0+1}
v_cvt_pk_bf16_f32 v{T0+1}, v{T0+1}, v{T0+2}
v_cndmask_b32 v{Q2+1}, 0, v{T0+1}, s[30:31]
""")
    for i in range(16):
        k(f"v_mov_b32 v{O+i}, 0")
    for i in range(4):
        k(f"v_mov_b32 v{P+4+i}, 0\nv_mov_b32 v{V1+i}, 0")
    k(f"""
s_waitcnt lgkmcnt(0)
{M16} {v(SB[0],16)}, {v(K1,4)}, {v(Q1,4)}, 0
{M8} {v(SB[0],16)}, {v(K2,2)}, {v(Q2,2)}, {v(SB[0],16)}
ds_read_b128 {v(K1,4)}, v{AK1} offset:{KVBLK}
ds_read_b32 v{K2}, v{AK2} offset:{KVBLK}
ds_read_b64_tr_b16 {v(V0,2)}, v{AV}
ds_read_b64_tr_b16 {v(V0+2,2)}, v{AV+1}
s_mov_b32 s20, 0
s_nop 7
s_waitcnt lgkmcnt(0)
.p2align 6
""")
    k.label("loop")
    for t in range(8):
        cur, nxt = SB[t & 1], SB[(t + 1) & 1]
        e = lambda i: f"v_exp_f32 v{cur+i}, v{cur+i}"
        c = lambda i: f"v_cvt_pk_bf16_f32 v{P+i}, v{cur+2*i}, v{cur+2*i+1}"
        k(f"""
{e(0)}
{e(1)}
s_waitcnt lgkmcnt(4)
{M16} {v(O,16)}, {v(V1,4)}, {v(P+4,4)}, {v(O,16)}
ds_read_b64_tr_b16 {v(V1,2)}, v{AV+2} offset:{t*KVBLK}
ds_read_b64_tr_b16 {v(V1+2,2)}, v{AV+3} offset:{t*KVBLK}
{e(2)}
{e(3)}
{c(0)}
{c(1)}
{e(4)}
{e(5)}
s_waitcnt lgkmcnt(5)
{M16} {v(nxt,16)}, {v(K1,4)}, {v(Q1,4)}, 0
ds_read_b128 {v(K1,4)}, v{AK1} offset:{(t+2)*KVBLK}
{e(6)}
{e(7)}
{c(2)}
{c(3)}
{e(8)}
{e(9)}
s_waitcnt lgkmcnt(5)
{M8} {v(nxt,16)}, {v(K2,2)}, {v(Q2,2)}, {v(nxt,16)}
ds_read_b32 v{K2}, v{AK2} offset:{(t+2)*KVBLK}
{e(10)}
{e(11)}
{c(4)}
{c(5)}
{e(12)}
{e(13)}
s_waitcnt lgkmcnt(4)
{M16} {v(O,16)}, {v(V0,4)}, {v(P,4)}, {v(O,16)}
ds_read_b64_tr_b16 {v(V0,2)}, v{AV} offset:{(t+1)*KVBLK}
ds_read_b64_tr_b16 {v(V0+2,2)}, v{AV+1} offset:{(t+1)*KVBLK}
{e(14)}
{e(15)}
{c(6)}
{c(7)}
""")
    for i in range(6):
        k(f"v_add_u32 v{AK1+i}, {8*KVBLK}, v{AK1+i}")
    k(f"""
s_add_u32 s20, s20, 1
s_cmp_lt_u32 s21, 2
s_cbranch_scc1 {k.lab('sync')}
s_cmp_lt_u32 s20, 8
s_cbranch_scc1 {k.lab('loop')}
s_waitcnt lgkmcnt(0)
{M16} {v(O,16)}, {v(V1,4)}, {v(P+4,4)}, {v(O,16)}
s_mov_b32 s26, {f2u(2.0**60):#x}
s_lshl_b32 s22, s17, 16
s_lshl_b32 s23, s18, 9
s_add_u32 s22, s22, s23
s_add_u32 s22, s22, {OOFF}
s_lshr_b32 s24, s17, 2
s_lshl_b32 s24, s24, 15
s_add_u32 s23, s23, s24
s_and_b32 s24, s17, 3
s_lshl_b32 s24, s24, 2
s_add_u32 s23, s23, s24
s_add_u32 s23, s23, {OOFF + 64*CH}
v_cmp_nlt_f32 vcc, v{O+10}, s26
""".replace(f"v_cmp_nlt_f32 vcc, v{O+10}, s26", f"v_cmp_ngt_f32 vcc, s26, v{O+10}"))
    k(f"""
v_rcp_f32 v{T0}, v{O+10}
v_and_b32 v{T0+1}, 31, v0
v_lshrrev_b32 v{T0+2}, 5, v0
v_lshlrev_b32 v{T0+1}, 4, v{T0+1}
v_lshl_add_u32 v{T0+2}, v{T0+2}, 15, v{T0+1}
s_cbranch_vccz {k.lab('ok')}
s_cmp_eq_u32 s25, 64
s_cbranch_scc1 {k.lab('ok')}
s_mov_b32 s25, 64
s_branch {k.lab('restart')}
""")
    k.label("ok")
    for i in range(10):
        k(f"v_mul_f32 v{O+i}, v{O+i}, v{T0}")
    for i in range(5):
        k(f"v_cvt_pk_bf16_f32 v{P+i}, v{O+2*i}, v{O+2*i+1}")
    k(f"""
buffer_store_dwordx4 {v(P,4)}, v{T0+2}, s[12:15], s22 offen {st}
s_mov_b64 exec, s[30:31]
buffer_store_dword v{P+4}, v{T0+1}, s[12:15], s23 offen {st}
s_mov_b64 exec, -1
s_branch {k.lab('fin')}
""")
    k.label("sync")
    k(f"""
s_cmp_eq_u32 s21, 0
s_cbranch_scc1 {k.lab('sync0')}
s_waitcnt vmcnt(0)
""")
    k.label("sync0")
    k(f"""
s_waitcnt vmcnt(13)
s_barrier
s_add_u32 s21, s21, 1
s_branch {k.lab('loop')}
""")
    k.label("prep")
    k(f"""
s_lshl_b32 s17, s2, 2
s_add_u32 s17, s17, s16
s_sub_u32 s17, s17, 8            ; W
s_mov_b32 s27, 0x20000
s_mov_b32 s56, 8
s_mov_b32 s57, 16
s_mov_b32 s58, 4
s_cmp_ge_u32 s17, 648
s_cbranch_scc1 {k.lab('p1')}
s_cmp_ge_u32 s17, 324
s_cselect_b32 s24, s42, s40
s_cselect_b32 s25, s43, s41
s_cselect_b32 s18, 324, 0
s_cselect_b32 s53, 1024, 0
s_mov_b32 s26, {D*F*2}
s_sub_u32 s18, s17, s18
s_mul_i32 s19, s18, 3641
s_lshr_b32 s19, s19, 16          ; ks
s_mul_i32 s20, s19, 18
s_sub_u32 s20, s18, s20          ; cg
s_mov_b32 s50, {F*2}
s_mul_i32 s51, s19, {32*F*2}
s_lshl_b32 s21, s20, 9
s_add_u32 s51, s51, s21
s_mov_b32 s52, 128
s_mul_i32 s21, s20, {16*36864}
s_add_u32 s53, s53, s21
s_lshl_b32 s21, s19, 11
s_add_u32 s53, s53, s21
s_add_u32 s53, s53, {WGUOFF}
s_mov_b32 s54, {4*36864}
s_mov_b32 s55, 36864
s_branch {k.lab('pgo')}
""")
    k.label("p1")
    k(f"""
s_mov_b32 s50, 1152
s_mov_b32 s54, 36864
s_mov_b32 s55, 1024
s_cmp_ge_u32 s17, 972
s_cselect_b32 s24, s28, s44
s_cselect_b32 s25, s29, s45
s_mov_b32 s26, {F*D*2}
s_cselect_b32 s26, {D*D*2}, s26
s_mov_b32 s18, 648
s_cselect_b32 s18, 972, s18
s_mov_b32 s52, {32*1152}
s_cselect_b32 s52, {36*1152}, s52
s_cselect_b32 s57, 20, 16
s_mov_b32 s53, {WDOFF}
s_cselect_b32 s53, {WOOFF}, s53
s_sub_u32 s18, s17, s18
s_mul_i32 s19, s18, 7282
s_lshr_b32 s19, s19, 16          ; kg = r/9
s_mul_i32 s20, s19, 9
s_sub_u32 s20, s18, s20          ; cs
s_lshl_b32 s21, s52, 2
s_mul_i32 s51, s19, s21
s_mul_i32 s21, s19, {4*36864}
s_add_u32 s53, s53, s21
s_lshl_b32 s21, s20, 12
s_add_u32 s53, s53, s21
s_cmp_ge_u32 s17, 1008
s_cselect_b32 s51, {16*1152}, s51
s_cselect_b32 s52, {288*1152}, s52
s_cselect_b32 s56, 72, s56
s_cselect_b32 s57, 144, s57
s_cselect_b32 s58, 36, s58
s_lshl_b32 s21, s20, 7
s_add_u32 s51, s51, s21
""")
    k.label("pgo")
    k(f"""
s_mul_i32 s57, s57, s50
s_mul_i32 s58, s58, s50
v_lshrrev_b32 v2, 5, v0
v_mul_lo_u32 v2, v2, s56
v_bfe_u32 v3, v0, 3, 2
v_add_u32 v2, v2, v3
v_mul_lo_u32 v2, v2, s50
v_and_b32 v3, 7, v0
v_lshl_add_u32 v2, v3, 4, v2
s_sub_u32 s21, s16, 8
s_lshl_b32 s21, s21, 11
s_add_u32 s21, s21, {SCR}
v_add_u32 v3, s21, v1
v_lshrrev_b32 v4, 2, v0
v_lshlrev_b32 v4, 7, v4
v_and_b32 v5, 3, v0
v_lshl_add_u32 v4, v5, 3, v4
v_add_u32 v4, s21, v4
s_barrier
s_cmp_ge_u32 s17, {1017 if prep else 0}
s_cbranch_scc1 {k.lab('pidle')}
""")
    DAT, FR = 8, 72
    for n in range(4):
        for i in range(2):
            for q in range(2):
                r = DAT + 4 * (4*n + 2*i + q)
                if i == 0 and q == 0:
                    so = "s51"
                elif i == 0:
                    k("s_add_u32 s59, s51, s57"); so = "s59"
                elif q == 0:
                    k("s_add_u32 s59, s51, s58"); so = "s59"
                else:
                    k("s_add_u32 s59, s59, s57"); so = "s59"
                k(f"buffer_load_dwordx4 {v(r,4)}, v2, s[24:27], {so} offen")
        k("s_add_u32 s51, s51, s52")
    k("s_barrier\ns_barrier")
    for n in range(4):
        fr = FR + 16 * (n & 1)
        for i in range(2):
            k(f"s_waitcnt vmcnt({16 - (4*n + 2*i + 2) + 4*n})")
            for q in range(2):
                k(f"ds_write_b128 v3, {v(DAT + 4*(4*n+2*i+q),4)} offset:{q*1024}")
            for j in range(4):
                k(f"ds_read_b64_tr_b16 {v(fr+4*j+2*i,2)}, v4 offset:{j*32}")
        k("s_waitcnt lgkmcnt(0)\ns_mov_b32 s59, s53")
        for j in range(4):
            k(f"buffer_store_dwordx4 {v(fr+4*j,4)}, v1, s[12:15], s59 offen {pst}")
            if j < 3:
                k("s_add_u32 s59, s59, s55")
        k("s_add_u32 s53, s53, s54")
    k(f"s_branch {k.lab('fin')}")
    k.label("pidle")
    k("s_barrier\ns_barrier")
    k.label("fin")
    k.stamp_end(12)
    k.label("end")
    k("s_endpgm")
    return k
```

```python
from common import *

def gen_kc(diag=False, st="sc1"):
    NV = 96
    k = Kern("kc_kernel", 256, 192, 36864 + 3072, vgpr=NV + 216, accum=NV, idx=2, diag=diag)
    k.stamp_start()
    M = "v_mfma_f32_16x16x32_bf16"
    LT, LG, L16 = 2, 3, 1
    ACC, OF, WB, X, MU = 8, 40, 56, 64, 76
    T0 = 80
    k(f"""
s_cmp_ge_u32 s2, 256
s_cbranch_scc1 {k.lab('end')}
s_load_dwordx2 s[28:29], s[0:1], {ARG_X}
s_load_dwordx2 s[34:35], s[0:1], {ARG_WS}
v_lshrrev_b32 v1, 6, v0
v_and_b32 v0, 63, v0
v_readfirstlane_b32 s16, v1
v_lshlrev_b32 v{L16}, 4, v0
v_and_b32 v{LT}, 15, v0
v_lshrrev_b32 v{LG}, 4, v0
s_and_b32 s17, s2, 7
s_lshl_b32 s17, s17, 3
s_bfe_u32 s18, s2, 0x30003
s_add_u32 s17, s17, s18
s_lshr_b32 s18, s2, 6            ; cb
s_mul_i32 s19, s18, 3
s_add_u32 s19, s19, s16          ; 3cb+w
s_mul_i32 s20, s19, 3            ; tg0
s_mov_b32 s95, s16
v_lshlrev_b32 v4, 15, v{LG}
v_lshl_add_u32 v4, v{LT}, 4, v4
v_mul_u32_u24 v5, 1152, v{LT}
v_lshl_add_u32 v5, v{LG}, 3, v5  ; x voffset
v_lshlrev_b32 v6, 2, v{LT}
s_waitcnt lgkmcnt(0)
""")
    k.srd(4, 28, S * D * 2)
    k.srd(12, 34, WS_BYTES)
    k(f"""
s_lshl_b32 s21, s17, 9
s_add_u32 s21, s21, {OOFF}
s_mov_b32 s22, s16
""")
    k.label("dma")
    k(f"""
s_lshl_b32 m0, s22, 10
s_lshr_b32 s23, s22, 1
s_lshl_b32 s23, s23, 17
s_and_b32 s24, s22, 1
s_lshl_b32 s24, s24, 8
s_add_u32 s23, s23, s24
s_add_u32 s23, s23, s21
buffer_load_dwordx4 v4, s[12:15], s23 offen lds
s_add_u32 s22, s22, 3
s_cmp_lt_u32 s22, 36
s_cbranch_scc1 {k.lab('dma')}
s_lshl_b32 m0, s22, 10
s_lshl_b32 s23, s16, 10
s_add_u32 s23, s23, {WBAROFF}
buffer_load_dwordx4 v{L16}, s[12:15], s23 offen lds
s_lshl_b32 s23, s20, 10
s_add_u32 s23, s23, {WOOFF}
""")
    for ks in range(18):
        for i in range(3):
            k(f"buffer_load_dwordx4 {a(4*(3*ks+i),4)}, v{L16}, s[12:15], s23 offen offset:{i*1024}")
        if ks < 17:
            k("s_add_u32 s23, s23, 36864")
    k(f"""
s_mul_i32 s24, s17, {32*1152}
s_lshl_b32 s25, s20, 5
s_add_u32 s24, s24, s25
s_add_u32 s25, s24, {16*1152}
s_lshl_b32 s26, s17, 7
s_add_u32 s27, s26, {MUXOFF}
""")
    for T in range(2):
        for i in range(3):
            k(f"buffer_load_dwordx2 {v(X+2*(2*i+T),2)}, v5, s[4:7], s{24+T} offen offset:{i*32}")
        k(f"buffer_load_dword v{MU+T}, v6, s[12:15], s27 offen offset:{T*64}")
    k(f"""
v_and_b32 v7, 1, v0
v_mul_u32_u24 v7, 1152, v7
v_lshl_add_u32 v7, v{LG}, 4, v7
v_add_u32 v7, 36864, v7
s_waitcnt vmcnt(62)
s_barrier
""")
    def rd(ks):
        b = ks & 1
        return [f"ds_read_b128 {v(OF+8*b+4*T,4)}, v{L16} offset:{(2*ks+T)*1024}" for T in range(2)] + \
               [f"ds_read_b128 {v(WB+4*b,4)}, v7 offset:{ks*64}"]
    for r in rd(0):
        k(r)
    for ks in range(18):
        b = ks & 1
        if ks < 17:
            for r in rd(ks + 1):
                k(r)
        k(f"s_waitcnt vmcnt({8 + 3*(17-ks)}) lgkmcnt({3 if ks < 17 else 0})")
        for i in range(4):
            w = a(4*(3*ks+i), 4) if i < 3 else v(WB+4*b, 4)
            for T in range(2):
                d = v(ACC + (2*i+T)*4, 4)
                k(f"{M} {d}, {w}, {v(OF+8*b+4*T,4)}, {'0' if ks == 0 else d}")
    SS = 78
    k(f"""
s_lshl_b32 s28, s20, 16
s_lshl_b32 s29, s17, 9
s_add_u32 s28, s28, s29
s_add_u32 s28, s28, {HCOFF}
v_lshrrev_b32 v4, 5, v0
v_lshlrev_b32 v4, 15, v4
v_and_b32 v5, 31, v0
v_lshl_add_u32 v4, v5, 4, v4
v_lshlrev_b32 v5, 2, v5
v_mov_b32 v{SS}, 0
v_mov_b32 v{SS+1}, 0
s_waitcnt vmcnt(0)
""")
    for T in range(2):
        aw = ACC + (6+T)*4
        k(f"v_add_f32 v{aw}, v{aw}, v{aw+1}\nv_add_f32 v{MU+T}, v{MU+T}, v{aw}")
    for i in range(3):
        R = OF + 4*i
        for T in range(2):
            ac = ACC + (2*i+T)*4
            x = X + 2*(2*i+T)
            k(f"""
v_lshlrev_b32 v{T0}, 16, v{x}
v_and_b32 v{T0+1}, 0xffff0000, v{x}
v_lshlrev_b32 v{T0+2}, 16, v{x+1}
v_and_b32 v{T0+3}, 0xffff0000, v{x+1}
""")
            for r in range(4):
                k(f"v_add_f32 v{ac+r}, v{ac+r}, v{T0+r}")
            for r in range(4):
                k(f"v_sub_f32 v{ac+r}, v{ac+r}, v{MU+T}")
            for r in range(4):
                k(f"v_fmac_f32 v{SS+T}, v{ac+r}, v{ac+r}")
            k(f"v_cvt_pk_bf16_f32 v{R+2*T}, v{ac}, v{ac+1}\nv_cvt_pk_bf16_f32 v{R+2*T+1}, v{ac+2}, v{ac+3}")
        k(f"""
s_nop 1
v_permlane16_swap_b32 v{R}, v{R+2}
v_permlane16_swap_b32 v{R+1}, v{R+3}
buffer_store_dwordx4 {v(R,4)}, v4, s[12:15], s28 offen {st}
s_add_u32 s28, s28, 65536
""")
    k(f"""
v_permlane16_swap_b32 v{SS}, v{SS+1}
s_lshl_b32 s29, s19, 13
s_add_u32 s29, s29, s26
s_add_u32 s29, s29, {SSQOFF}
v_add_f32 v{SS}, v{SS}, v{SS+1}
v_mov_b32 v{SS+1}, v{SS}
s_add_u32 s27, s26, {MUHOFF}
s_nop 0
v_permlane32_swap_b32 v{SS}, v{SS+1}
v_add_f32 v{SS}, v{SS}, v{SS+1}
s_mov_b32 exec_hi, 0
buffer_store_dword v{SS}, v5, s[12:15], s29 offen {st}
s_cmp_lg_u32 s19, 0
s_cbranch_scc1 {k.lab('fin')}
s_mov_b64 exec, 0xffff
buffer_store_dword v{MU}, v6, s[12:15], s27 offen {st}
buffer_store_dword v{MU+1}, v6, s[12:15], s27 offen offset:64 {st}
""")
    k.label("fin")
    k.stamp_end(12)
    k.label("end")
    k("s_endpgm")
    return k
```

```python
from common import *

UB = 36864
def gen_kd(diag=False, st="sc1", PF=6):
    k = Kern("kd_kernel", 256, 256, 4 * UB, vgpr=512, accum=256, idx=3, diag=diag)
    k.stamp_start()
    M = "v_mfma_f32_16x16x32_bf16"
    ACC = [16, 48]
    WF = 80
    PK = 112
    HV = 200
    def hreg(ks, T):
        f = 4 * ks + T
        return a(4*f, 4) if f < 64 else v(HV + 4*(f-64), 4)
    k(f"""
s_cmp_ge_u32 s2, 256
s_cbranch_scc1 {k.lab('end')}
s_load_dwordx2 s[34:35], s[0:1], {ARG_WS}
v_lshrrev_b32 v1, 6, v0
v_and_b32 v0, 63, v0
v_readfirstlane_b32 s16, v1
v_lshlrev_b32 v1, 4, v0
v_and_b32 v6, 15, v0
v_lshrrev_b32 v7, 4, v0
v_lshlrev_b32 v2, 15, v7
v_lshl_add_u32 v2, v6, 4, v2
v_lshrrev_b32 v3, 5, v0
v_lshlrev_b32 v3, 15, v3
v_and_b32 v6, 31, v0
v_lshl_add_u32 v3, v6, 4, v3
s_bfe_u32 s17, s2, 0x10002
s_lshl_b32 s17, s17, 2
s_bfe_u32 s18, s2, 0x20003
s_add_u32 s17, s17, s18          ; rb
s_and_b32 s18, s2, 3
s_lshl_b32 s18, s18, 3
s_lshr_b32 s19, s2, 5
s_add_u32 s18, s18, s19          ; fs
s_lshl_b32 s19, s17, 2
s_add_u32 s19, s19, s16
s_lshl_b32 s19, s19, 10          ; token0*16
s_add_u32 s20, s19, {HCOFF}      ; h soffset
s_mul_i32 s21, s18, {9*65536}
s_add_u32 s21, s21, s19
s_add_u32 s21, s21, {HIDOFF}
s_mul_i32 s22, s16, 9216
s_mul_i32 s23, s18, {9*UB}
s_add_u32 s23, s23, s22
s_add_u32 s23, s23, {WGUOFF}
s_mov_b32 s24, s22
s_mov_b32 s95, s16
s_waitcnt lgkmcnt(0)
""")
    k.srd(12, 34, WS_BYTES)

    def dma_ops():
        ops = []
        for n in range(9):
            if n % 4 == 0:
                ops.append((f"s_add_u32 m0, s24, {n*1024}", 0))
                ops.append((f"s_add_u32 s25, s23, {n*1024}", 0))
            ops.append((f"buffer_load_dwordx4 v1, s[12:15], s25 offen offset:{(n%4)*1024} lds", 1))
        return ops
    adv0 = [(f"s_add_u32 s23, s23, {UB}", 0), (f"s_add_u32 s24, s24, {UB}", 0)]
    def h_ops(ks):
        ops = [(f"buffer_load_dwordx4 {hreg(ks,T)}, v2, s[12:15], s20 offen offset:{T*256}", 1) for T in range(4)]
        ops.append((f"s_add_u32 s20, s20, {4*CH}", 0))
        return ops
    seq = []; mark = {}
    def push(name, ops):
        seq.extend(ops); mark[name] = sum(o[1] for o in seq)
    push("W0", dma_ops() + adv0)
    for ks in range(14): push(f"h{ks}", h_ops(ks))
    push("W1", dma_ops() + adv0)
    for ks in range(14, 18): push(f"h{ks}", h_ops(ks))
    push("W2", dma_ops() + adv0)
    push("W3", dma_ops() + [adv0[0], (f"s_mov_b32 s24, s22", 0)])
    pos = 0; issued = 0
    while issued < 57:
        k(seq[pos][0]); issued += seq[pos][1]; pos += 1
    k(f"v_mov_b32 v4, v1\nv_add_u32 v5, {UB}, v1\ns_mov_b32 s26, {UB}\ns_mov_b32 s27, 1")
    k(f"s_waitcnt vmcnt({issued - mark['W0']})\ns_barrier")
    def rd(j):
        base, jj = ("v4", j) if j < 36 else ("v5", j - 36)
        return f"ds_read_b128 {v(WF+4*(j%PF),4)}, {base} offset:{jj*1024}"
    for j in range(PF - 1):
        k(rd(j))

    def epi(p):
        A = ACC[p]
        e = []
        for pr in range(2):
            R = PK + 4*pr
            for T in (2*pr, 2*pr+1):
                for r in range(4):
                    e.append(f"v_mul_f32 v{A+4*T+r}, v{A+4*T+r}, v{A+16+4*T+r}")
                e.append(f"v_cvt_pk_bf16_f32 v{R+2*(T&1)}, v{A+4*T}, v{A+4*T+1}")
                e.append(f"v_cvt_pk_bf16_f32 v{R+2*(T&1)+1}, v{A+4*T+2}, v{A+4*T+3}")
            e.append("s_nop 1")
            e.append(f"v_permlane16_swap_b32 v{R}, v{R+2}")
            e.append(f"v_permlane16_swap_b32 v{R+1}, v{R+3}")
            e.append(f"buffer_store_dwordx4 {v(R,4)}, v3, s[12:15], s21 offen offset:{pr*512} {st}")
        e.append("s_add_u32 s21, s21, 65536")
        return e

    nxt = [f"v_mov_b32 v4, v5", f"s_add_u32 s26, s26, {UB}", f"s_cmp_ge_u32 s26, {4*UB}", "s_cselect_b32 s26, 0, s26",
           "v_add_u32 v5, s26, v1"]

    def unit(p, first=False):
        nonlocal pos, issued
        A = ACC[p]
        if not first:
            fill1 = epi(1 - p)
            fill2 = ["s_add_u32 s27, s27, 1", "s_cmp_ge_u32 s27, 7", f"s_cselect_b32 s23, {OOB}, s23"] + [o[0] for o in dma_ops()] + \
                    [f"s_add_u32 s23, s23, {UB}", f"s_add_u32 s24, s24, {UB}", f"s_cmp_ge_u32 s24, {4*UB}", "s_cselect_b32 s24, s22, s24"]
        for j in range(36):
            ks, gu = j // 2, j % 2
            if first:
                w = f"lgkmcnt({PF-2})"
                if gu == 0:
                    w = f"vmcnt({min(63, issued - mark[f'h{ks}'])}) " + w
                k("s_waitcnt " + w)
                if j == 30:
                    k(f"s_waitcnt vmcnt({min(63, issued - mark['W1'])})\ns_barrier")
            else:
                if j == 18:
                    k(f"s_waitcnt vmcnt(11) lgkmcnt({PF-2})\ns_barrier")
                else:
                    k(f"s_waitcnt lgkmcnt({PF-2})")
            for T in range(4):
                d = v(A + (gu*4+T)*4, 4)
                k(f"{M} {d}, {v(WF+4*(j%PF),4)}, {hreg(ks,T)}, {'0' if ks == 0 else d}")
                if T == 0:
                    k(rd(j + PF - 1))
                elif first:
                    n = 0
                    while pos < len(seq) and n < 1:
                        k(seq[pos][0]); issued += seq[pos][1]; n += seq[pos][1]; pos += 1
                    while pos < len(seq) and seq[pos][1] == 0 and pos >= len(seq) - 2:
                        k(seq[pos][0]); pos += 1
                else:
                    if 2 <= j < 18 and fill1:
                        k(fill1.pop(0))
                    elif j >= 18 and fill2 and (T != 2 or not fill2[0].startswith("buffer")):
                        k(fill2.pop(0))
        if first:
            assert pos == len(seq)
        else:
            assert not fill1 and not fill2, (fill1, fill2)
        for x in nxt:
            k(x)
    unit(0, first=True)
    k(".p2align 6")
    k.label("loop")
    unit(1)
    unit(0)
    k(f"s_cmp_lt_u32 s27, 9\ns_cbranch_scc1 {k.lab('loop')}")
    k("s_nop 1")
    for x in epi(0):
        k(x)
    k.stamp_end(12)
    k.label("end")
    k("s_endpgm")
    return k
```

```python
from common import *

SB = 36864
PSZ = S * D * 4
def gen_ke(diag=False, st="sc1", PF=9):
    NV = 128
    k = Kern("ke_kernel", 256, 256, 4 * SB, vgpr=NV + 96, accum=NV, idx=4, diag=diag)
    k.stamp_start()
    M = "v_mfma_f32_16x16x32_bf16"
    ACC, WF = 16, 88
    k(f"""
s_cmp_ge_u32 s2, 256
s_cbranch_scc1 {k.lab('end')}
s_load_dwordx2 s[34:35], s[0:1], {ARG_WS}
v_lshrrev_b32 v1, 6, v0
v_and_b32 v0, 63, v0
v_readfirstlane_b32 s16, v1
v_lshlrev_b32 v1, 4, v0
v_and_b32 v6, 15, v0
v_lshrrev_b32 v7, 4, v0
v_lshlrev_b32 v2, 15, v7
v_lshl_add_u32 v2, v6, 4, v2
s_and_b32 s17, s2, 1
s_lshl_b32 s17, s17, 3
s_bfe_u32 s18, s2, 0x30003
s_add_u32 s17, s17, s18          ; rb
s_lshr_b32 s18, s2, 6            ; cb
s_bfe_u32 s19, s2, 0x20001       ; kq
s_lshl_b32 s28, s17, 2
s_add_u32 s28, s28, s16          ; tb
s_lshl_b32 s20, s28, 9
s_mul_i32 s29, s19, {36*4*CH}
s_add_u32 s20, s20, s29
s_add_u32 s20, s20, {HIDOFF}
s_mul_i32 s22, s16, 9216
s_mul_i32 s23, s19, 36
s_add_u32 s23, s23, s16
s_mul_i32 s23, s23, 36864
s_mul_i32 s29, s18, 9216
s_add_u32 s23, s23, s29
s_add_u32 s23, s23, {WDOFF}      ; W src
s_mov_b32 s24, s22
s_mul_i32 s21, s28, 36
s_mul_i32 s29, s18, 9
s_add_u32 s21, s21, s29
s_lshl_b32 s21, s21, 11
s_mul_i32 s29, s19, {PSZ}
s_add_u32 s21, s21, s29
s_add_u32 s21, s21, {PARTOFF}
s_mov_b32 s95, s16
s_waitcnt lgkmcnt(0)
""")
    k.srd(12, 34, WS_BYTES)
    def hreg(set_, kk, T):
        return a(4 * (8*set_ + 2*kk + T), 4)
    def h_ops(set_, kk):
        return [(f"buffer_load_dwordx4 {hreg(set_,kk,T)}, v2, s[12:15], s20 offen offset:{T*256}", f"h{kk}") for T in range(2)] + \
               [(f"s_add_u32 s20, s20, {4*CH}", None)]
    def dma_ops():
        ops = []
        for n in range(9):
            if n % 4 == 0:
                ops.append((f"s_add_u32 m0, s24, {n*1024}", None))
                ops.append((f"s_add_u32 s25, s23, {n*1024}", None))
            ops.append((f"buffer_load_dwordx4 v1, s[12:15], s25 offen offset:{(n%4)*1024} lds", "w"))
        ops += [(f"s_add_u32 s23, s23, {4*36864}", None), (f"s_add_u32 s24, s24, {SB}", None),
                (f"s_cmp_ge_u32 s24, {4*SB}", None), ("s_cselect_b32 s24, s22, s24", None)]
        return ops
    def stage_fill(set_, H=True, W=True):
        d = dma_ops() if W else []
        cut = 9 if W else 0
        hh = [h_ops(set_, kk) if H else [] for kk in range(4)]
        f = [hh[0] + hh[1], hh[2] + hh[3], d[:cut], d[cut:]]
        return f
    order = [(kk, tag) for kk, f in enumerate(stage_fill(0)) for (_, tag) in f if tag]
    n_st = len(order)
    def cnt_before(kk):
        return sum(1 for (q, _) in order if q < kk)
    def last_idx(tag):
        return max(i for i, (_, t) in enumerate(order) if t == tag)
    vm_h = [2 * n_st + cnt_before(kk) - last_idx(f"h{kk}") - 1 for kk in range(4)]
    vm_w = 2 * n_st + cnt_before(2) - last_idx("w") - 1
    for (set_, Hh) in ((0, False), (0, True), (1, True)):
        for f in stage_fill(set_, H=Hh):
            for (t, _) in f:
                k(t)
    for i in range(72):
        k(f"v_mov_b32 v{ACC+i}, 0")
    k(f"v_mov_b32 v4, v1\nv_add_u32 v5, {SB}, v1\ns_mov_b32 s26, {SB}\ns_mov_b32 s27, 0")
    k(f"s_waitcnt vmcnt({2*n_st})\ns_barrier")
    def rd(j):
        base, jj = ("v4", j) if j < 36 else ("v5", j - 36)
        return f"ds_read_b128 {v(WF+4*(j%PF),4)}, {base} offset:{jj*1024}"
    for j in range(PF - 1):
        k(rd(j))
    k(".p2align 6")
    k.label("loop")
    for st3 in range(3):
        fills = stage_fill((st3 + 2) % 3)
        pre = [("s_cmp_ge_u32 s27, 7", None), (f"s_cselect_b32 s20, {OOB}, s20", None),
               ("s_cmp_ge_u32 s27, 6", None), (f"s_cselect_b32 s23, {OOB}, s23", None), ("s_add_u32 s27, s27, 1", None)]
        fills[0] = pre + fills[0]
        for kk in range(4):
            f = [x[0] for x in fills[kk]]
            for t in range(9):
                j = 9 * kk + t
                w = f"lgkmcnt({PF-2})"
                if t == 0:
                    n = vm_h[kk] if kk != 2 else min(vm_h[kk], vm_w)
                    w = f"vmcnt({n}) " + w
                k("s_waitcnt " + w)
                if t == 0 and kk == 2:
                    k("s_barrier")
                for T in range(2):
                    d = v(ACC + (2*t+T)*4, 4)
                    k(f"{M} {d}, {v(WF+4*(j%PF),4)}, {hreg(st3,kk,T)}, {d}")
                    if T == 0:
                        k(rd(j + PF - 1))
                    else:
                        n = 0
                        while f and n < 2:
                            x = f.pop(0); k(x); n += 2 if x.startswith("buffer") else 1
            assert not f, f
        k(f"v_mov_b32 v4, v5\ns_add_u32 s26, s26, {SB}\ns_cmp_ge_u32 s26, {4*SB}\ns_cselect_b32 s26, 0, s26\nv_add_u32 v5, s26, v1")
    k(f"s_cmp_lt_u32 s27, 9\ns_cbranch_scc1 {k.lab('loop')}")
    k("s_nop 1")
    for i in range(18):
        k(f"buffer_store_dwordx4 {v(ACC+4*i,4)}, v1, s[12:15], s21 offen offset:{(i%4)*1024} {st}")
        if i % 4 == 3:
            k("s_add_u32 s21, s21, 4096")
    k.stamp_end(12)
    k.label("end")
    k("s_endpgm")
    return k


def gen_kf(diag=False):
    k = Kern("kf_kernel", 256, 192, 0, vgpr=136, idx=5, diag=diag)
    k.stamp_start()
    LT, LG = 2, 3
    PT, HC, MU, SS, T0 = 16, 112, 124, 126, 132
    k(f"""
s_cmp_ge_u32 s2, 256
s_cbranch_scc1 {k.lab('end')}
s_load_dwordx2 s[28:29], s[0:1], {ARG_OUT}
s_load_dwordx2 s[34:35], s[0:1], {ARG_WS}
v_lshrrev_b32 v1, 6, v0
v_and_b32 v0, 63, v0
v_readfirstlane_b32 s16, v1
v_lshlrev_b32 v1, 4, v0
v_and_b32 v{LT}, 15, v0
v_lshrrev_b32 v{LG}, 4, v0
s_and_b32 s17, s2, 63            ; tb
s_lshr_b32 s18, s2, 6
s_mul_i32 s19, s18, 3
s_add_u32 s19, s19, s16
s_mul_i32 s20, s19, 3            ; tg0
s_mul_i32 s21, s17, 36
s_add_u32 s21, s21, s20
s_lshl_b32 s21, s21, 11
s_add_u32 s21, s21, {PARTOFF}
s_mov_b32 s95, s16
v_lshrrev_b32 v4, 1, v{LG}
v_lshlrev_b32 v4, 15, v4
v_lshl_add_u32 v4, v{LT}, 4, v4
v_and_b32 v5, 1, v{LG}
v_lshl_add_u32 v4, v5, 3, v4
v_lshlrev_b32 v6, 2, v{LT}
v_mul_u32_u24 v7, {3*8192}, v{LG}
v_add_u32 v7, v7, v6
s_waitcnt lgkmcnt(0)
""")
    k.srd(4, 28, S * D * 2)
    k.srd(12, 34, WS_BYTES)
    k(f"""
s_lshl_b32 s26, s17, 7
s_add_u32 s27, s26, {MUHOFF}
s_add_u32 s26, s26, {SSQOFF}
s_lshl_b32 s24, s20, 16
s_lshl_b32 s25, s17, 9
s_add_u32 s24, s24, s25
s_add_u32 s24, s24, {HCOFF}
""")
    for j in range(3):
        for T in range(2):
            k(f"buffer_load_dword v{SS+2*j+T}, v7, s[12:15], s26 offen offset:{T*64}")
        k("s_add_u32 s26, s26, 8192")
    for T in range(2):
        k(f"buffer_load_dword v{MU+T}, v6, s[12:15], s27 offen offset:{T*64}")
    for i in range(3):
        for T in range(2):
            k(f"buffer_load_dwordx2 {v(HC+2*(2*i+T),2)}, v4, s[12:15], s24 offen offset:{T*256}")
        k("s_add_u32 s24, s24, 65536")
    for i in range(3):
        for q in range(4):
            k(f"s_add_u32 s22, s21, {q*PSZ + i*2048}")
            for T in range(2):
                k(f"buffer_load_dwordx4 {v(PT+4*((2*i+T)*4+q),4)}, v1, s[12:15], s22 offen offset:{T*1024}")
    k(f"""
s_mov_b32 s63, {f2u(1.0/D):#x}
v_mov_b32 v{T0}, {f2u(1e-5):#x}
v_and_b32 v8, 31, v0
v_mul_u32_u24 v8, 1152, v8
v_lshrrev_b32 v9, 5, v0
v_lshl_add_u32 v8, v9, 4, v8
s_mul_i32 s22, s17, {32*1152}
s_lshl_b32 s23, s20, 5
s_add_u32 s22, s22, s23
s_waitcnt vmcnt(32)
""")
    for T in range(2):
        k(f"""
v_add_f32 v{SS+T}, v{SS+T}, v{SS+2+T}
v_add_f32 v{SS+T}, v{SS+T}, v{SS+4+T}
v_mov_b32 v{SS+2+T}, v{SS+T}
s_nop 1
v_permlane16_swap_b32 v{SS+T}, v{SS+2+T}
v_add_f32 v{SS+T}, v{SS+T}, v{SS+2+T}
v_mov_b32 v{SS+2+T}, v{SS+T}
s_nop 1
v_permlane32_swap_b32 v{SS+T}, v{SS+2+T}
v_add_f32 v{SS+T}, v{SS+T}, v{SS+2+T}
v_fma_f32 v{SS+T}, v{SS+T}, s63, v{T0}
v_rcp_f32 v{SS+T}, v{SS+T}
""")
    for i in range(3):
        k(f"s_waitcnt vmcnt({16 - 8*i + i})")
        R = 12
        for T in range(2):
            p = PT + 16*(2*i+T)
            x = HC + 2*(2*i+T)
            for q in range(1, 4):
                k(f"v_pk_add_f32 {v(p,2)}, {v(p,2)}, {v(p+4*q,2)}\nv_pk_add_f32 {v(p+2,2)}, {v(p+2,2)}, {v(p+4*q+2,2)}")
            k(f"""
v_lshlrev_b32 v{p+4}, 16, v{x}
v_and_b32 v{p+5}, 0xffff0000, v{x}
v_lshlrev_b32 v{p+6}, 16, v{x+1}
v_and_b32 v{p+7}, 0xffff0000, v{x+1}
""")
            for r in range(4):
                k(f"v_add_f32 v{p+4+r}, v{p+4+r}, v{MU+T}")
            for r in range(4):
                k(f"v_fmac_f32 v{p+4+r}, v{p+r}, v{SS+T}")
            R = PT + 32*i + 8
            k(f"v_cvt_pk_bf16_f32 v{R+2*T}, v{p+4}, v{p+5}\nv_cvt_pk_bf16_f32 v{R+2*T+1}, v{p+6}, v{p+7}")
        k(f"""
s_nop 1
v_permlane16_swap_b32 v{R}, v{R+2}
v_permlane16_swap_b32 v{R+1}, v{R+3}
buffer_store_dwordx4 {v(R,4)}, v8, s[4:7], s22 offen offset:{i*32}
""")
    k.stamp_end(12)
    k.label("end")
    k("s_endpgm")
    return k
```

```python
import sys
from common import *
from ka import gen_ka

HEADER = open("sequential_preLN__softmax_full_mha__glu_gated_bilinear__prompt.s.ref").read().split("; Override launch")[0] if False else ""

def build(diag=False, upto=99, **opt):
    ks = [gen_ka(diag, st=opt.get("ka_st", ""))]
    try:
        from kb import gen_kb
        ks.append(gen_kb(diag))
        from kc import gen_kc
        ks.append(gen_kc(diag))
        from kd import gen_kd
        ks.append(gen_kd(diag))
        from ke import gen_ke, gen_kf
        ks.append(gen_ke(diag))
        ks.append(gen_kf(diag))
    except ImportError as e:
        print("missing:", e, file=sys.stderr)
    ks = ks[:upto]
    t = "; generated by gen.py (own generator): LN1+QKV | attention(+weight re-layout) | Wo+residual | gate*up | down (split-K) | reduce\n"
    t += "".join(k.launch() for k in ks)
    t += '.amdgcn_target "amdgcn-amd-amdhsa--gfx950"\n.text\n'
    t += "".join(k.text() for k in ks)
    return t

if __name__ == "__main__":
    out = sys.argv[1]
    diag = "diag" in sys.argv[2:]
    open(out, "w").write(build(diag))
```

```python
import math, struct

S, D, H, DH, F = 2048, 576, 32, 18, 4608

KVBLK = 2432
KV_K0, KV_K1, KV_V0, KV_K2, KV_V1, KV_V2 = 0, 512, 1024, 1536, 1664, 2176
KVHEAD = 64 * KVBLK
QBLK = 1152
QHEAD = 64 * QBLK
KVOFF = 0
QOFF = 0x500000
OOFF = 0x800000
HCOFF = 0xB00000
MUXOFF = 0xE00000
MUHOFF = 0xE02000
SSQOFF = 0xE04000
WBAROFF = 0xE20000
WOOFF = 0xF00000
WGUOFF = 0x1000000
WDOFF = 0x1C00000
HIDOFF = 0x2200000
PARTOFF = 0x3400000
STAMPOFF = 0x8000000
WS_BYTES = 0x10000000
CH = S * 16
OOB = 0x40000000

ARG_X, ARG_WQKV, ARG_WO, ARG_BX, ARG_WG, ARG_WU, ARG_WD, ARG_OUT, ARG_DBG, ARG_WS = [8 * i for i in range(10)]


def f2u(x):
    return struct.unpack("<I", struct.pack("<f", x))[0]


def v(i, n=1):
    return f"v{i}" if n == 1 else f"v[{i}:{i+n-1}]"


def a(i, n=1):
    return f"a{i}" if n == 1 else f"a[{i}:{i+n-1}]"


def s(i, n=1):
    return f"s{i}" if n == 1 else f"s[{i}:{i+n-1}]"


class Kern:
    def __init__(self, name, grid, block, lds, vgpr, accum=None, sgpr=96, idx=0, diag=False):
        self.name, self.grid, self.block, self.lds = name, grid, block, lds
        self.vgpr, self.accum, self.sgpr = vgpr, accum, sgpr
        self.L = []
        self.idx, self.diag = idx, diag

    def __call__(self, txt):
        for ln in txt.strip("\n").split("\n"):
            ln = ln.strip()
            if not ln:
                continue
            if ln.endswith(":") or ln.startswith("."):
                self.L.append(ln)
            else:
                self.L.append("  " + ln)

    def lab(self, l):
        return f"L{self.name[:2]}_{l}"

    def label(self, l):
        self.L.append(self.lab(l) + ":")

    def srd(self, d, p, nbytes):
        self(f"s_mov_b32 s{d}, s{p}\ns_mov_b32 s{d+1}, s{p+1}\ns_mov_b32 s{d+2}, {nbytes:#x}\ns_mov_b32 s{d+3}, 0x20000")

    def stamp_start(self):
        if self.diag:
            self("s_memrealtime s[90:91]\ns_memtime s[86:87]")
            for i in range(6):
                self(f"s_mov_b64 s[{72+2*i}:{73+2*i}], 0")

    def mark(self, i):
        if self.diag:
            self(f"s_memtime s[{72+2*i}:{73+2*i}]")

    def stamp_end(self, ws_srd):
        if self.diag:
            self(f"""
s_memtime s[84:85]
s_waitcnt vmcnt(0) lgkmcnt(0)
s_memrealtime s[92:93]
s_memtime s[88:89]
s_mov_b64 exec, 1
s_waitcnt lgkmcnt(0)
s_lshl_b32 s94, s2, 4
s_add_u32 s94, s94, s95
s_lshl_b32 s94, s94, 6
s_add_u32 s94, s94, {STAMPOFF + self.idx * 0x80000}
s_sub_u32 s88, s88, s86
v_mov_b32 v0, 0
v_mov_b32 v2, s90
v_mov_b32 v3, s92
v_mov_b32 v4, s88
v_mov_b32 v5, 1
""")
            for i in range(7):
                self(f"s_sub_u32 s{72+2*i}, s{72+2*i}, s86\nv_mov_b32 v{6+i}, s{72+2*i}")
            self(f"""
v_mov_b32 v13, s95
buffer_store_dwordx4 v[2:5], v0, s[{ws_srd}:{ws_srd+3}], s94 offen
buffer_store_dwordx4 v[6:9], v0, s[{ws_srd}:{ws_srd+3}], s94 offen offset:16
buffer_store_dwordx4 v[10:13], v0, s[{ws_srd}:{ws_srd+3}], s94 offen offset:32
s_waitcnt vmcnt(0)
""")

    def code_l2(self, lab0, lab1, nmax, vt, sp, lane="v0"):
        u = f"Lpc{self.name[:2]}{len(self.L)}"
        self(f"""
s_getpc_b64 s[{sp}:{sp+1}]
{u}:
s_add_u32 s{sp}, s{sp}, {lab0}-{u}
s_addc_u32 s{sp+1}, s{sp+1}, ({lab0}-{u})>>32
v_lshlrev_b32 v{vt}, 7, {lane}
""")
        for i in range(nmax):
            self(f"v_min_u32 v{vt+1}, {lab1}-{lab0}-4, v{vt}\nglobal_load_dword v{vt+2}, v{vt+1}, s[{sp}:{sp+1}]")
            if i + 1 < nmax:
                self(f"v_add_u32 v{vt}, 8192, v{vt}")

    def text(self):
        accum = self.accum if self.accum is not None else min(256, (self.vgpr + 3) // 4 * 4)
        t = f".globl {self.name}\n.p2align 8\n.type {self.name},@function\n{self.name}:\n"
        t += "\n".join(self.L) + "\n"
        t += f""".section .rodata,"a"
.p2align 6
.amdhsa_kernel {self.name}
  .amdhsa_next_free_vgpr {self.vgpr}
  .amdhsa_next_free_sgpr {self.sgpr}
  .amdhsa_accum_offset {accum}
  .amdhsa_group_segment_fixed_size 0
  .amdhsa_kernarg_size 80
  .amdhsa_user_sgpr_count 2
  .amdhsa_user_sgpr_kernarg_segment_ptr 1
  .amdhsa_system_sgpr_workgroup_id_x 1
.end_amdhsa_kernel
.text
"""
        return t

    def launch(self):
        return f"; @launch kernel={self.name} grid=({self.grid},1,1) block=({self.block},1,1) lds={self.lds}\n"


def interleave(main, fill, per=1, start=0):
    out = []
    fi = 0
    for i, m in enumerate(main):
        out.append(m)
        if i >= start:
            for _ in range(per):
                if fi < len(fill):
                    out.append(fill[fi]); fi += 1
    out.extend(fill[fi:])
    return out
```

```python
from common import *

SLOT = 34816
XB = 16384
EXCH = 4 * SLOT
QSCALE = (DH ** -0.5) * math.log2(math.e)
NAUX = 9

def gen_ka(diag=False, st="sc1", NS=3, rot="4", l2=True, kdt=True):
    if rot == "full":
        ROT = """s_lshl_b32 s25, s42, 1
s_mul_i32 s40, s40, 7
s_add_u32 s25, s25, s40
s_lshr_b32 s40, s26, 1
s_add_u32 s25, s25, s40
s_and_b32 s40, s26, 1
s_mul_i32 s40, s40, 3
s_add_u32 s25, s25, s40
s_mul_i32 s40, s25, 7282
s_lshr_b32 s40, s40, 16
s_mul_i32 s40, s40, 9
s_sub_u32 s25, s25, s40"""
    elif rot == "3":
        ROT = """s_add_u32 s25, s42, s40
s_mul_i32 s40, s25, 21846
s_lshr_b32 s40, s40, 16
s_mul_i32 s40, s40, 3
s_sub_u32 s25, s25, s40
s_mul_i32 s25, s25, 3"""
    elif rot == "4":
        ROT = """s_add_u32 s25, s42, s40
s_and_b32 s25, s25, 3
s_mul_i32 s25, s25, 9
s_lshr_b32 s25, s25, 2"""
    elif rot == "2":
        ROT = """s_add_u32 s25, s42, s40
s_and_b32 s25, s25, 1
s_mul_i32 s25, s25, 4"""
    else:
        ROT = "s_mov_b32 s25, 0"
    global EXCH
    EXCH = NS * SLOT
    k = Kern("ka_kernel", 192 + NAUX, 512, EXCH + 512, vgpr=224, idx=0, diag=diag)
    k.stamp_start()
    XV0, XV1 = 1, 2
    WV = 3
    XR = 8
    WR = 10
    XA = 15
    WA = 17
    LT, LG = 22, 23
    ONE = 24
    WF = [28, 64]
    XF = [100, 108]
    ACC = 116
    CS = 188
    SUM = 200
    GR = 208
    T0 = 216
    k(f"""
s_cmp_ge_u32 s2, {192 + NAUX}
s_cbranch_scc1 {k.lab('end')}
s_load_dwordx4 s[28:31], s[0:1], {ARG_X}
s_load_dwordx2 s[32:33], s[0:1], {ARG_WO}
s_load_dwordx2 s[34:35], s[0:1], {ARG_WS}
v_lshrrev_b32 v1, 6, v0
v_and_b32 v0, 63, v0
v_readfirstlane_b32 s95, v1
v_and_b32 v{LT}, 15, v0
v_lshrrev_b32 v{LG}, 4, v0
s_and_b32 s16, s95, 3
s_and_b32 s26, s2, 7
s_lshr_b32 s27, s2, 3
s_lshr_b32 s17, s26, 1
s_lshl_b32 s17, s17, 2
s_and_b32 s40, s27, 3
s_add_u32 s17, s17, s40          ; rb
s_and_b32 s18, s26, 1
s_mul_i32 s18, s18, 6
s_lshr_b32 s42, s27, 2
s_add_u32 s18, s18, s42          ; nb
s_lshl_b32 s41, s17, 2
s_add_u32 s41, s41, s16
s_lshl_b32 s49, s16, 12
s_cmp_lt_u32 s95, 4
s_cbranch_scc1 {k.lab('cons')}
s_cmp_ge_u32 s2, 192
s_cbranch_scc1 {k.lab('end')}
; ---- producer ----
{ROT}
s_mul_i32 s19, s41, {32*1152}
s_mul_i32 s20, s18, 288
v_lshrrev_b32 v{T0}, 3, v0
v_mul_u32_u24 v{T0}, 1152, v{T0}
v_and_b32 v{T0+1}, 7, v0
v_xor_b32 v{T0+1}, v{T0+1}, v{LG}
v_lshl_add_u32 v{XV0}, v{T0+1}, 4, v{T0}
v_xor_b32 v{T0+1}, 4, v{T0+1}
v_lshl_add_u32 v{XV1}, v{T0+1}, 4, v{T0}
""")
    for n in range(5):
        k(f"s_add_u32 s{44+n}, s16, {4*n}")
        if n == 4:
            k(f"s_add_u32 s42, s16, 12\ns_cmp_ge_u32 s48, 18\ns_cselect_b32 s48, s42, s48")
        k(f"""
s_lshl_b32 s42, s{44+n}, 6
v_add_u32 v{T0}, s42, v0
v_mul_u32_u24 v{T0+1}, 3641, v{T0}
v_lshrrev_b32 v{T0+1}, 16, v{T0+1}
v_mul_u32_u24 v{T0+2}, 18, v{T0+1}
v_sub_u32 v{T0+2}, v{T0}, v{T0+2}
v_and_b32 v{T0+3}, 0x33, v{T0+1}
v_and_b32 v{T0+4}, 4, v{T0+1}
v_lshl_or_b32 v{T0+3}, v{T0+4}, 1, v{T0+3}
v_bfe_u32 v{T0+4}, v{T0+1}, 3, 1
v_lshl_or_b32 v{T0+3}, v{T0+4}, 2, v{T0+3}
v_mul_u32_u24 v{T0+3}, 3456, v{T0+3}
v_lshl_add_u32 v{WV+n}, v{T0+2}, 4, v{T0+3}
s_lshl_b32 s{44+n}, s{44+n}, 10
s_add_u32 s{44+n}, s{44+n}, {XB}
""")
    k("s_waitcnt lgkmcnt(0)")
    k.srd(4, 28, S * D * 2)
    k.srd(8, 30, D * 3 * D * 2)
    if diag:
        k.srd(12, 34, WS_BYTES)
    k.mark(0)
    k("s_mov_b32 s23, 0\ns_mov_b32 s24, 0")
    k.label("ploop")
    k(f"""
s_lshl_b32 s21, s25, 7
s_add_u32 s21, s21, s19
s_mul_i32 s22, s25, {64*3456}
s_add_u32 s22, s22, s20
s_add_u32 s50, s49, s23
""")
    for n in range(4):
        k(f"s_add_u32 m0, s50, {n*1024}\ns_add_u32 s51, s21, {n*8*1152}\nbuffer_load_dwordx4 v{XV0 + (n & 1)}, s[4:7], s51 offen lds")
    for n in range(5):
        k(f"s_add_u32 m0, s{44+n}, s23\ns_nop 0\nbuffer_load_dwordx4 v{WV+n}, s[8:11], s22 offen lds")
    k(f"""
s_add_u32 s25, s25, 1
s_cmp_ge_u32 s25, 9
s_cselect_b32 s25, 0, s25
s_add_u32 s23, s23, {SLOT}
s_cmp_ge_u32 s23, {NS*SLOT}
s_cselect_b32 s23, 0, s23
s_add_u32 s24, s24, 1
s_cmp_eq_u32 s24, 1
s_cbranch_scc1 {k.lab('ploop')}
s_waitcnt vmcnt(9)
s_barrier
s_cmp_lt_u32 s24, 9
s_cbranch_scc1 {k.lab('ploop')}
s_waitcnt vmcnt(0)
s_barrier
s_branch {k.lab('fin')}
""")
    k.label("cons")
    if l2:
        k.code_l2("ka_kernel", "Lkb_end", 2, 5, 66)
    if kdt:
        k.kd_touch(["kb_kernel", "kc_kernel", "kd_kernel", "ke_kernel"], 6, 66)
    k(f"""
v_mov_b32 v{ONE}, 0x3f803f80
v_mov_b32 v{ONE+1}, 0x3f803f80
v_mov_b32 v{ONE+2}, 0x3f803f80
v_mov_b32 v{ONE+3}, 0x3f803f80
s_waitcnt lgkmcnt(0)
""")
    k.srd(12, 34, WS_BYTES)
    k.srd(36, 32, D * D * 2)
    k(f"""
s_cmp_ge_u32 s2, 192
s_cbranch_scc1 {k.lab('aux')}
s_lshr_b32 s19, s18, 2           ; which
s_and_b32 s20, s18, 3            ; hg
v_lshrrev_b32 v{T0}, 1, v{LT}
v_xor_b32 v{T0}, v{T0}, v{LG}
v_lshlrev_b32 v{T0}, 4, v{T0}
v_lshl_add_u32 v{T0}, v{LT}, 7, v{T0}
v_add_u32 v{XR}, s49, v{T0}
v_xor_b32 v{XR+1}, 64, v{XR}
v_lshrrev_b32 v{T0}, 5, v0
v_lshlrev_b32 v{T0}, 4, v{T0}
v_and_b32 v{T0+1}, 1, v{LG}
v_lshl_add_u32 v{T0}, v{T0+1}, 2, v{T0}
v_bfe_u32 v{T0+1}, v0, 2, 2
v_add_u32 v{T0}, v{T0}, v{T0+1}
v_mul_u32_u24 v{T0}, 288, v{T0}
v_add_u32 v{T0}, {XB}, v{T0}
v_bfe_u32 v{T0+1}, v0, 1, 1
v_mul_u32_u24 v{T0+1}, 40, v{T0+1}
v_and_b32 v{T0+2}, 1, v0
v_lshl_add_u32 v{T0+1}, v{T0+2}, 4, v{T0+1}
v_add_u32 v{T0+1}, v{T0}, v{T0+1}
v_and_b32 v{T0+2}, 3, v0
v_mul_u32_u24 v{T0+2}, 72, v{T0+2}
v_add3_u32 v{WR+4}, v{T0}, v{T0+2}, 32
""")
    for j in range(4):
        k(f"s_add_u32 s{52+j}, s16, {j}\ns_and_b32 s{52+j}, s{52+j}, 3\ns_mul_i32 s42, s{52+j}, 72\nv_add_u32 v{WR+j}, s42, v{T0+1}")
    for i in range(ACC, GR + 8):
        k(f"v_mov_b32 v{i}, 0")
    for i in range(2):
        k(f"v_mov_b32 v{XA+i}, v{XR+i}")
    for i in range(5):
        k(f"v_mov_b32 v{WA+i}, v{WR+i}")

    def reads(ks, buf):
        r = []
        for T in range(2):
            r.append(f"ds_read_b128 {v(XF[buf]+4*T,4)}, v{XA+ks} offset:{T*2048}")
        for t in range(9):
            for i in range(2):
                off = ks * 32 * 288 + i * 8 * 288 + ((t & 1) * 8 if t < 8 else 0)
                r.append(f"ds_read_b64_tr_b16 {v(WF[buf]+4*t+2*i,2)}, v{WA + t//2} offset:{off}")
        return r

    def mfmas(buf):
        m = []
        M = "v_mfma_f32_16x16x32_bf16"
        for T in range(2):
            x = v(XF[buf]+4*T, 4)
            m.append(f"{M} {v(SUM+4*T,4)}, {v(ONE,4)}, {x}, {v(SUM+4*T,4)}")
            m.append(f"{M} {v(GR+4*T,4)}, {x}, {x}, {v(GR+4*T,4)}")
        for t in range(9):
            w = v(WF[buf]+4*t, 4)
            for T in range(2):
                d = v(ACC + (2*t+T)*4, 4)
                m.append(f"{M} {d}, {w}, {v(XF[buf]+4*T,4)}, {d}")
            if t in (0, 1, 8):
                d = v(CS + (t if t < 8 else 2)*4, 4)
                m.append(f"{M} {d}, {w}, {v(ONE,4)}, {d}")
        return m

    k.mark(1)
    k("s_barrier")
    k.mark(2)
    for r in reads(0, 0):
        k(r)
    k("s_mov_b32 s24, 0\ns_mov_b32 s25, 0")
    k(".p2align 6")
    k.label("loop")
    k("s_waitcnt lgkmcnt(0)")
    for x in interleave(mfmas(0), reads(1, 1), per=2):
        k(x)
    k(f"""
s_add_u32 s24, s24, {SLOT}
s_cmp_ge_u32 s24, {NS*SLOT}
s_cselect_b32 s24, 0, s24
""")
    for i in range(2):
        k(f"v_add_u32 v{XA+i}, s24, v{XR+i}")
    for i in range(5):
        k(f"v_add_u32 v{WA+i}, s24, v{WR+i}")
    k(f"""
s_add_u32 s25, s25, 1
s_waitcnt lgkmcnt(0)
s_barrier
""")
    for x in interleave(mfmas(1), reads(0, 0), per=2):
        k(x)
    k(f"""
s_cmp_lt_u32 s25, 9
s_cbranch_scc1 {k.lab('loop')}
""")
    k.mark(3)
    RS = 28
    CSX = 32
    VO, VX = 56, 57
    PK = 60
    k(f"""
s_waitcnt lgkmcnt(0)
s_lshl_b32 s42, s16, 7
s_add_u32 s42, s42, {EXCH}
v_lshlrev_b32 v{T0}, 5, v{LG}
v_add_u32 v{T0+1}, s42, v{T0}
s_nop 4
ds_write_b128 v{T0+1}, {v(CS,4)}
ds_write_b128 v{T0+1}, {v(CS+4,4)} offset:16
; stats
v_and_b32 v{T0+2}, 1, v0
v_cmp_eq_u32 s[56:57], 1, v{T0+2}
v_and_b32 v{T0+2}, 2, v0
v_cmp_eq_u32 s[58:59], 2, v{T0+2}
v_lshrrev_b32 v{T0+2}, 2, v{LT}
v_cmp_eq_u32 s[60:61], v{T0+2}, v{LG}
s_cmp_eq_u32 s19, 0
s_cselect_b32 s62, {f2u(QSCALE):#x}, 1.0
s_mov_b32 s63, {f2u(1.0/D):#x}
s_mov_b32 s64, {f2u(1e-5):#x}
""")
    for T in range(2):
        g = GR + 4*T
        k(f"""
v_cndmask_b32 v{g}, v{g}, v{g+1}, s[56:57]
v_cndmask_b32 v{g+2}, v{g+2}, v{g+3}, s[56:57]
v_cndmask_b32 v{g}, v{g}, v{g+2}, s[58:59]
v_cndmask_b32 v{g}, 0, v{g}, s[60:61]
v_mov_b32 v{g+1}, v{g}
s_nop 1
v_permlane16_swap_b32 v{g}, v{g+1}
v_add_f32 v{g}, v{g}, v{g+1}
v_mov_b32 v{g+1}, v{g}
s_nop 1
v_permlane32_swap_b32 v{g}, v{g+1}
v_add_f32 v{g}, v{g}, v{g+1}
v_mul_f32 v{SUM+4*T}, s63, v{SUM+4*T}
v_mul_f32 v{g+1}, v{SUM+4*T}, v{SUM+4*T}
v_fma_f32 v{g}, v{g}, s63, -v{g+1}
v_max_f32 v{g}, 0, v{g}
v_add_f32 v{g}, s64, v{g}
v_rsq_f32 v{g}, v{g}
s_nop 0
v_mul_f32 v{RS+2*T}, s62, v{g}
v_mul_f32 v{RS+2*T+1}, v{RS+2*T}, -v{SUM+4*T}
""")
    k(f"""
s_mov_b32 s65, {KVHEAD}
s_mov_b32 s66, {KVBLK}
s_mov_b32 s70, {KV_K2}
s_mov_b32 s69, 512
s_cmp_eq_u32 s19, 0
s_cselect_b32 s65, {QHEAD}, s65          ; HS
s_cselect_b32 s66, {QBLK}, s66           ; BS
s_cselect_b32 s67, {QOFF}, {KVOFF}       ; base
s_cselect_b32 s70, 1024, s70             ; cx
s_cmp_eq_u32 s19, 2
s_cselect_b32 s68, {KV_V0}, 0            ; c0
s_cselect_b32 s69, {KV_V1-KV_V0}, s69    ; c1-c0
s_cselect_b32 s70, {KV_V2}, s70
s_cselect_b32 s71, 3, 2
s_mul_i32 s42, s41, s66
s_add_u32 s67, s67, s42
s_lshl_b32 s42, s20, 3
s_mul_i32 s42, s42, s65
s_add_u32 s67, s67, s42
v_lshrrev_b32 v{T0+2}, 1, v{LG}
v_mul_lo_u32 v{VO}, v{T0+2}, s65
v_and_b32 v{T0+2}, 1, v{LG}
v_mul_lo_u32 v{T0+2}, v{T0+2}, s69
v_lshlrev_b32 v{T0+3}, 4, v{LT}
v_add3_u32 v{VO}, v{VO}, v{T0+2}, v{T0+3}
s_lshl_b32 s42, s65, 1
v_mul_lo_u32 v{VX}, v{LG}, s42
v_lshlrev_b32 v{T0+3}, s71, v{LT}
v_add_u32 v{VX}, v{VX}, v{T0+3}
s_waitcnt lgkmcnt(0)
s_barrier
""")
    for j in range(1, 4):
        k(f"s_lshl_b32 s42, s{52+j}, 7\ns_add_u32 s42, s42, {EXCH}\nv_add_u32 v{T0+1}, s42, v{T0}")
        k(f"ds_read_b128 {v(CSX+8*(j-1),4)}, v{T0+1}\nds_read_b128 {v(CSX+8*(j-1)+4,4)}, v{T0+1} offset:16")
    k(f"""
s_cmp_lg_u32 s18, 0
s_cbranch_scc1 {k.lab('nomu')}
s_lshl_b32 s42, s41, 7
s_add_u32 s42, s42, {MUXOFF}
v_lshlrev_b32 v{T0+2}, 2, v{LT}
s_mov_b64 exec, 0xffff
buffer_store_dword v{SUM}, v{T0+2}, s[12:15], s42 offen {st}
buffer_store_dword v{SUM+4}, v{T0+2}, s[12:15], s42 offen offset:64 {st}
s_mov_b64 exec, -1
""")
    k.label("nomu")

    def fix(acc, cs, T, dst, tmp):
        rs = v(RS+2*T, 2)
        return f"""
v_pk_mul_f32 {v(tmp,2)}, {v(cs,2)}, {rs} op_sel:[0,1] op_sel_hi:[1,1]
v_pk_mul_f32 {v(tmp+2,2)}, {v(cs+2,2)}, {rs} op_sel:[0,1] op_sel_hi:[1,1]
v_pk_fma_f32 {v(tmp,2)}, {v(acc,2)}, {rs}, {v(tmp,2)} op_sel:[0,0,0] op_sel_hi:[1,0,1]
v_pk_fma_f32 {v(tmp+2,2)}, {v(acc+2,2)}, {rs}, {v(tmp+2,2)} op_sel:[0,0,0] op_sel_hi:[1,0,1]
v_cvt_pk_bf16_f32 v{dst}, v{tmp}, v{tmp+1}
v_cvt_pk_bf16_f32 v{dst+1}, v{tmp+2}, v{tmp+3}
"""
    k.mark(4)
    OUT = 76
    for j in range(4):
        if j == 1:
            k("s_waitcnt lgkmcnt(0)")
        cs = CS if j == 0 else CSX + 8*(j-1)
        k(f"s_lshl_b32 s42, s{52+j}, 1\ns_mul_i32 s42, s42, s65\ns_add_u32 s42, s42, s67\ns_add_u32 s42, s42, s68")
        for T in range(2):
            o = OUT + (2*j+T)*4
            for t in range(2):
                k(fix(ACC + (2*(2*j+t)+T)*4, cs + 4*t, T, o + 2*t, PK + 4*t))
            k(f"buffer_store_dwordx4 {v(o,4)}, v{VO}, s[12:15], s42 offen offset:{T*256} {st}")
    XO = 108
    for T in range(2):
        k(fix(ACC + (16+T)*4, CS + 8, T, XO + 4*T, PK + 4*T))
    k(f"""
s_add_u32 s42, s67, s70
s_add_u32 s43, s42, s65
s_cmp_eq_u32 s19, 2
s_cbranch_scc1 {k.lab('xv')}
buffer_store_dword v{XO}, v{VX}, s[12:15], s42 offen {st}
buffer_store_dword v{XO+1}, v{VX}, s[12:15], s43 offen {st}
buffer_store_dword v{XO+4}, v{VX}, s[12:15], s42 offen offset:64 {st}
buffer_store_dword v{XO+5}, v{VX}, s[12:15], s43 offen offset:64 {st}
s_branch {k.lab('fin')}
""")
    k.label("xv")
    k(f"""
v_mov_b32 v{XO+2}, v{XO+1}
v_mov_b32 v{XO+6}, v{XO+5}
v_mov_b32 v{XO+1}, 0x3f80
v_mov_b32 v{XO+3}, 0x3f80
v_mov_b32 v{XO+5}, 0x3f80
v_mov_b32 v{XO+7}, 0x3f80
buffer_store_dwordx2 {v(XO,2)}, v{VX}, s[12:15], s42 offen {st}
buffer_store_dwordx2 {v(XO+2,2)}, v{VX}, s[12:15], s43 offen {st}
buffer_store_dwordx2 {v(XO+4,2)}, v{VX}, s[12:15], s42 offen offset:128 {st}
buffer_store_dwordx2 {v(XO+6,2)}, v{VX}, s[12:15], s43 offen offset:128 {st}
s_branch {k.lab('fin')}
""")
    k.label("aux")
    k(f"""
s_sub_u32 s17, s2, 192
s_lshl_b32 s17, s17, 2
s_add_u32 s17, s17, s16          ; job j 0..35
s_lshr_b32 s18, s17, 1           ; ks
s_and_b32 s19, s17, 1            ; half
s_mul_i32 s20, s18, 36
s_mul_i32 s21, s19, 20
s_add_u32 s20, s20, s21
v_add_u32 v1, s20, v{LT}
s_sub_u32 s20, s17, 32
s_mul_i32 s20, s20, 144
s_add_u32 s20, s20, 16
v_lshrrev_b32 v2, 2, v{LT}
v_mul_u32_u24 v2, 36, v2
v_and_b32 v3, 3, v{LT}
v_add3_u32 v2, v2, v3, s20
s_cmp_ge_u32 s17, 32
s_cselect_b64 vcc, -1, 0
v_cndmask_b32 v1, v1, v2, vcc
v_mul_u32_u24 v1, 1152, v1
v_lshl_add_u32 v1, v{LG}, 4, v1
""")
    for n in range(18):
        k(f"buffer_load_dwordx4 {v(28+4*n,4)}, v1, s[36:39], 0 offen offset:{n*64}")
    for n in range(18):
        k(f"s_waitcnt vmcnt({17-n})")
        c = "0" if n == 0 else "v[4:7]"
        k(f"v_mfma_f32_16x16x32_bf16 v[4:7], {v(ONE,4)}, {v(28+4*n,4)}, {c}")
    k(f"""
s_mov_b32 s63, {f2u(1.0/D):#x}
s_lshl_b32 s42, s17, 5
s_add_u32 s42, s42, {WBAROFF}
v_lshlrev_b32 v2, 1, v{LT}
s_nop 7
v_mul_f32 v4, s63, v4
v_cvt_pk_bf16_f32 v5, v4, v4
v_and_b32 v6, 0xffff0000, v5
v_sub_f32 v6, v4, v6
v_cvt_pk_bf16_f32 v6, v6, v6
s_mov_b64 exec, 0xffff
buffer_store_short v5, v2, s[12:15], s42 offen
buffer_store_short v6, v2, s[12:15], s42 offen offset:1152
s_mov_b64 exec, -1
""")
    k.label("fin")
    k.stamp_end(12)
    k.label("end")
    k("s_endpgm")
    return k
```

```python
from common import *

SCR = KVHEAD

def gen_kb(diag=False, st="sc1", pst="sc1", prep=True, U=4, prio=None, l2=True, kdt=True):
    k = Kern("kb_kernel", 256, 768, 163840, vgpr=128, idx=1, diag=diag)
    k.stamp_start()
    AK1, AK2, AV = 2, 3, 4
    BK1 = 8
    SS = [16, 32]
    OO = [48, 96]
    P, K1, K2, V0, V1 = 64, 72, 76, 80, 84
    Q1 = [88, 112]
    Q2 = [92, 116]
    T0 = 118
    HALF = 32 * KVBLK
    M16 = "v_mfma_f32_32x32x16_bf16"
    M8 = "v_mfma_f32_32x32x8_bf16"
    k(f"""
s_cmp_ge_u32 s2, 256
s_cbranch_scc1 {k.lab('end')}
s_load_dwordx2 s[34:35], s[0:1], {ARG_WS}
s_load_dwordx2 s[28:29], s[0:1], {ARG_WO}
s_load_dwordx4 s[40:43], s[0:1], {ARG_WG}
s_load_dwordx2 s[44:45], s[0:1], {ARG_WD}
v_lshrrev_b32 v1, 6, v0
v_and_b32 v0, 63, v0
v_readfirstlane_b32 s16, v1
v_lshlrev_b32 v1, 4, v0
s_and_b32 s17, s2, 7
s_lshl_b32 s17, s17, 2
s_bfe_u32 s18, s2, 0x20003
s_add_u32 s17, s17, s18          ; head
s_mov_b32 s95, s16
s_cmp_ge_u32 s16, 8
s_cbranch_scc1 {k.lab('prep')}
s_lshr_b32 s18, s2, 5
s_lshl_b32 s18, s18, 3
s_and_b32 s19, s16, 3
s_lshl_b32 s19, s19, 1
s_add_u32 s18, s18, s19
s_lshr_b32 s27, s16, 2           ; kh
s_mul_i32 s19, s17, {QHEAD}
s_mul_i32 s22, s18, {QBLK}
s_add_u32 s19, s19, s22
s_add_u32 s19, s19, {QOFF}
v_and_b32 v{T0}, 31, v0
v_lshlrev_b32 v{T0+1}, 2, v{T0}
s_waitcnt lgkmcnt(0)
""")
    k.srd(12, 34, WS_BYTES)
    k(f"""
buffer_load_dwordx4 {v(Q1[0],4)}, v1, s[12:15], s19 offen
buffer_load_dword v{Q2[0]}, v{T0+1}, s[12:15], s19 offen offset:1024
buffer_load_dwordx4 {v(Q1[1],4)}, v1, s[12:15], s19 offen offset:{QBLK}
buffer_load_dword v{Q2[1]}, v{T0+1}, s[12:15], s19 offen offset:{QBLK+1024}
v_and_b32 v{T0+1}, 0x13, v{T0}
v_and_b32 v{T0+2}, 4, v{T0}
v_lshl_or_b32 v{T0+1}, v{T0+2}, 1, v{T0+1}
v_bfe_u32 v{T0+2}, v{T0}, 3, 1
v_lshl_or_b32 v{T0+1}, v{T0+2}, 2, v{T0+1}
v_lshrrev_b32 v{T0+2}, 5, v0              ; hh
v_lshlrev_b32 v{T0+3}, 9, v{T0+2}
v_lshl_add_u32 v{BK1}, v{T0+1}, 4, v{T0+3}
v_lshlrev_b32 v{BK1+1}, 2, v{T0+1}
v_add_u32 v{BK1+1}, {KV_K2}, v{BK1+1}
; V addresses
v_bfe_u32 v{T0+3}, v0, 2, 2               ; r
v_lshl_add_u32 v{T0+3}, v{T0+2}, 3, v{T0+3}   ; 8hh+r
v_and_b32 v{T0+4}, 1, v0
v_mul_u32_u24 v{T0+4}, {KV_V1-KV_V0}, v{T0+4}
v_bfe_u32 v{T0+5}, v0, 1, 1
v_lshl_add_u32 v{T0+4}, v{T0+5}, 3, v{T0+4}
v_add_u32 v{T0+4}, {KV_V0}, v{T0+4}
v_and_b32 v{T0+5}, 16, v0
v_cmp_eq_u32 vcc, 16, v{T0+5}
""")
    for m in range(2):
        for i in range(2):
            k(f"""
v_add_u32 v{T0+5}, {16*m+4*i}, v{T0+3}
v_lshl_add_u32 v{T0+6}, v{T0+5}, 4, v{T0+4}
v_lshlrev_b32 v{T0+5}, 3, v{T0+5}
v_add_u32 v{T0+5}, {KV_V2}, v{T0+5}
v_cndmask_b32 v{BK1+2+2*m+i}, v{T0+6}, v{T0+5}, vcc
""")
    k(f"""
v_mov_b32 v{K2+1}, 0x3f803f80
v_cmp_gt_u32 s[30:31], 32, v0
s_mul_i32 s32, s27, {HALF}
s_mov_b32 s21, 0
s_mov_b32 s25, 1
""")
    if prio == "young":
        k(f"s_cmp_eq_u32 s27, 0\ns_cbranch_scc1 {k.lab('np')}\ns_setprio 1")
        k.label("np")
    k.mark(0)
    k("s_waitcnt vmcnt(0)\ns_barrier")
    k.mark(1)
    k(f"""
v_cndmask_b32 v{Q2[0]}, 0, v{Q2[0]}, s[30:31]
v_cndmask_b32 v{Q2[1]}, 0, v{Q2[1]}, s[30:31]
""")
    k.label("restart")
    k(f"""
v_mov_b32 v{Q2[0]+1}, 0
v_mov_b32 v{Q2[1]+1}, 0
v_mov_b32 v{T0}, 0xff800000
v_mov_b32 v{T0+1}, 0xff800000
v_mov_b32 v{AK1}, v{BK1}
v_mov_b32 v{AK2}, v{BK1+1}
s_mov_b32 s24, s25
""")
    k.label("mx")
    k(f"""
ds_read_b128 {v(K1,4)}, v{AK1}
ds_read_b32 v{K2}, v{AK2}
v_add_u32 v{AK1}, {KVBLK}, v{AK1}
v_add_u32 v{AK2}, {KVBLK}, v{AK2}
s_waitcnt lgkmcnt(0)
{M16} {v(SS[0],16)}, {v(K1,4)}, {v(Q1[0],4)}, 0
{M8} {v(SS[0],16)}, {v(K2,2)}, {v(Q2[0],2)}, {v(SS[0],16)}
{M16} {v(SS[1],16)}, {v(K1,4)}, {v(Q1[1],4)}, 0
{M8} {v(SS[1],16)}, {v(K2,2)}, {v(Q2[1],2)}, {v(SS[1],16)}
s_sub_u32 s24, s24, 1
s_nop 8
""")
    for q in range(2):
        for i in range(8):
            k(f"v_max3_f32 v{T0+q}, v{T0+q}, v{SS[q]+2*i}, v{SS[q]+2*i+1}")
    k(f"""
s_cmp_lg_u32 s24, 0
s_cbranch_scc1 {k.lab('mx')}
v_mov_b32 v{T0+2}, v{T0}
v_mov_b32 v{T0+3}, v{T0+1}
""")
    for i in range(6):
        k(f"v_add_u32 v{AK1+i}, s32, v{BK1+i}")
    k(f"""
v_permlane32_swap_b32 v{T0}, v{T0+2}
v_permlane32_swap_b32 v{T0+1}, v{T0+3}
ds_read_b128 {v(K1,4)}, v{AK1}
ds_read_b32 v{K2}, v{AK2}
ds_read_b64_tr_b16 {v(V0,2)}, v{AV}
ds_read_b64_tr_b16 {v(V0+2,2)}, v{AV+1}
""")
    for q in range(2):
        k(f"""
v_max_f32 v{T0+q}, v{T0+q}, v{T0+2+q}
v_sub_f32 v{T0+q}, 0, v{T0+q}
v_cvt_pk_bf16_f32 v{T0+4}, v{T0+q}, v{T0+q}
v_and_b32 v{T0+4}, 0xffff0000, v{T0+4}
v_sub_f32 v{T0+5}, v{T0+q}, v{T0+4}
v_cvt_pk_bf16_f32 v{T0+4}, v{T0+4}, v{T0+5}
v_cndmask_b32 v{Q2[q]+1}, 0, v{T0+4}, s[30:31]
""")
    k(f"""
s_waitcnt lgkmcnt(0)
{M16} {v(SS[0],16)}, {v(K1,4)}, {v(Q1[0],4)}, 0
{M8} {v(SS[0],16)}, {v(K2,2)}, {v(Q2[0],2)}, {v(SS[0],16)}
""")
    for q in range(2):
        for i in range(16):
            k(f"v_mov_b32 v{OO[q]+i}, 0")
    for i in range(4):
        k(f"v_mov_b32 v{P+4+i}, 0\nv_mov_b32 v{V1+i}, 0")
    k("s_mov_b32 s20, 0")
    k.mark(2)
    k(".p2align 6")
    k.label("loop")
    for t in range(U):
        for ph in range(2):
            cur, nxt = SS[ph], SS[1-ph]
            Oc, Op = OO[ph], OO[1-ph]
            e = lambda i: f"v_exp_f32 v{cur+i}, v{cur+i}"
            c = lambda i: f"v_cvt_pk_bf16_f32 v{P+i}, v{cur+2*i}, v{cur+2*i+1}"
            rdV1 = f"ds_read_b64_tr_b16 {v(V1,2)}, v{AV+2} offset:{t*KVBLK}\nds_read_b64_tr_b16 {v(V1+2,2)}, v{AV+3} offset:{t*KVBLK}" if ph == 0 else ""
            rdK1 = f"ds_read_b128 {v(K1,4)}, v{AK1} offset:{(t+1)*KVBLK}" if ph == 0 else ""
            rdK2 = f"ds_read_b32 v{K2}, v{AK2} offset:{(t+1)*KVBLK}" if ph == 0 else "s_nop 0"
            rdV0 = f"ds_read_b64_tr_b16 {v(V0,2)}, v{AV} offset:{(t+1)*KVBLK}\nds_read_b64_tr_b16 {v(V0+2,2)}, v{AV+1} offset:{(t+1)*KVBLK}" if ph == 1 else ""
            if ph == 1: rdK2 = ""
            wA = "s_waitcnt lgkmcnt(0)" if ph == 1 else ""
            wD = "s_waitcnt lgkmcnt(4)" if ph == 0 else ""
            k(f"""
{e(0)}
{e(1)}
{wA}
{M16} {v(Op,16)}, {v(V1,4)}, {v(P+4,4)}, {v(Op,16)}
{rdV1}
{e(2)}
{e(3)}
{c(0)}
{c(1)}
{e(4)}
{e(5)}
{M16} {v(nxt,16)}, {v(K1,4)}, {v(Q1[1-ph],4)}, 0
{rdK1}
{e(6)}
{e(7)}
{c(2)}
{c(3)}
{e(8)}
{e(9)}
{M8} {v(nxt,16)}, {v(K2,2)}, {v(Q2[1-ph],2)}, {v(nxt,16)}
{rdK2}
{e(10)}
{e(11)}
{c(4)}
{c(5)}
{e(12)}
{e(13)}
{wD}
{M16} {v(Oc,16)}, {v(V0,4)}, {v(P,4)}, {v(Oc,16)}
{rdV0}
{e(14)}
{e(15)}
{c(6)}
{c(7)}
""")
    for i in range(6):
        k(f"v_add_u32 v{AK1+i}, {U*KVBLK}, v{AK1+i}")
    FLAG = SCR + 8192 - 16
    k(f"""
s_add_u32 s20, s20, 1
s_cmp_eq_u32 s21, 0
s_cbranch_scc1 {k.lab('sync')}
s_cmp_lt_u32 s20, {32//U}
s_cbranch_scc1 {k.lab('loop')}
{M16} {v(OO[1],16)}, {v(V1,4)}, {v(P+4,4)}, {v(OO[1],16)}
s_mov_b32 s26, {f2u(2.0**60):#x}
s_add_u32 s18, s18, s27
s_lshl_b32 s22, s17, 16
s_lshl_b32 s23, s18, 9
s_add_u32 s22, s22, s23
s_add_u32 s22, s22, {OOFF}
s_lshr_b32 s24, s17, 2
s_lshl_b32 s24, s24, 15
s_add_u32 s23, s23, s24
s_and_b32 s24, s17, 3
s_lshl_b32 s24, s24, 2
s_add_u32 s23, s23, s24
s_add_u32 s23, s23, {OOFF + 64*CH}
s_sub_u32 s18, s18, s27
v_max_f32 v{T0}, v{OO[0]+10}, v{OO[1]+10}
v_add_f32 v{T0+1}, v{OO[0]+10}, v{OO[1]+10}
v_cmp_ngt_f32 vcc, s26, v{T0+1}
s_lshl_b32 s33, s16, 2
v_mov_b32 v{T0+2}, s33
s_cmp_lg_u64 vcc, 0
s_cselect_b32 s33, 1, 0
v_mov_b32 v{T0+3}, s33
v_mov_b32 v{T0+4}, 0
s_waitcnt lgkmcnt(0)
""")
    k.mark(5)
    k(f"""
s_barrier
ds_write_b32 v{T0+2}, v{T0+3} offset:{SCR & 0xffff}
""".replace(f"ds_write_b32 v{T0+2}, v{T0+3} offset:{SCR & 0xffff}", f"v_add_u32 v{T0+2}, {SCR}, v{T0+2}\nds_write_b32 v{T0+2}, v{T0+3}"))
    k(f"""
v_mov_b32 v{T0+4}, {SCR}
s_waitcnt lgkmcnt(0)
s_barrier
ds_read_b128 {v(K1,4)}, v{T0+4}
ds_read_b128 {v(V0,4)}, v{T0+4} offset:16
s_mul_i32 s33, s16, 3072
v_add_u32 v{T0+2}, s33, v1
s_xor_b32 s33, s16, 4
s_mul_i32 s33, s33, 3072
v_add_u32 v{T0+3}, s33, v1
s_waitcnt lgkmcnt(0)
v_or3_b32 v{K1}, v{K1}, v{K1+1}, v{K1+2}
v_or3_b32 v{V0}, v{V0}, v{V0+1}, v{V0+2}
v_or3_b32 v{K1}, v{K1}, v{K1+3}, v{V0+3}
v_or_b32 v{K1}, v{K1}, v{V0}
s_nop 0
v_readfirstlane_b32 s33, v{K1}
s_cmp_eq_u32 s33, 0
s_cbranch_scc1 {k.lab('ok')}
s_cmp_eq_u32 s25, 64
s_cbranch_scc1 {k.lab('ok')}
s_mov_b32 s25, 64
s_branch {k.lab('restart')}
""")
    k.label("ok")
    k(f"""
s_cmp_eq_u32 s27, 0
s_cbranch_scc1 {k.lab('sendb')}
""")
    for j in range(3):
        k(f"ds_write_b128 v{T0+2}, {v(OO[0]+4*j,4)} offset:{j*1024}")
    for i in range(12):
        k(f"v_mov_b32 v{SS[0]+i}, v{OO[1]+i}")
    k(f"s_branch {k.lab('sent')}")
    k.label("sendb")
    for j in range(3):
        k(f"ds_write_b128 v{T0+2}, {v(OO[1]+4*j,4)} offset:{j*1024}")
    for i in range(12):
        k(f"v_mov_b32 v{SS[0]+i}, v{OO[0]+i}")
    k.label("sent")
    k(f"""
v_and_b32 v{T0+1}, 31, v0
v_lshrrev_b32 v{T0+2}, 5, v0
v_lshlrev_b32 v{T0+1}, 4, v{T0+1}
v_lshl_add_u32 v{T0+2}, v{T0+2}, 15, v{T0+1}
s_waitcnt lgkmcnt(0)
s_barrier
""")
    for j in range(3):
        k(f"ds_read_b128 {v(SS[1]+4*j,4)}, v{T0+3} offset:{j*1024}")
    k("s_waitcnt lgkmcnt(0)")
    O = SS[0]
    k(f"v_add_f32 v{O+10}, v{O+10}, v{SS[1]+10}\nv_rcp_f32 v{T0}, v{O+10}")
    for i in range(10):
        k(f"v_add_f32 v{O+i}, v{O+i}, v{SS[1]+i}")
    for i in range(10):
        k(f"v_mul_f32 v{O+i}, v{O+i}, v{T0}")
    for i in range(5):
        k(f"v_cvt_pk_bf16_f32 v{P+i}, v{O+2*i}, v{O+2*i+1}")
    k(f"""
buffer_store_dwordx4 {v(P,4)}, v{T0+2}, s[12:15], s22 offen {st}
s_mov_b64 exec, s[30:31]
buffer_store_dword v{P+4}, v{T0+1}, s[12:15], s23 offen {st}
s_mov_b64 exec, -1
s_branch {k.lab('fin')}
""")
    k.label("sync")
    k.mark(3)
    k("s_barrier\ns_mov_b32 s21, 1")
    k.mark(4)
    k(f"s_branch {k.lab('loop')}")
    k.label("prep")
    NF = -(-((U + 1) * KVBLK) // 4096)
    k(f"""
s_sub_u32 s21, s16, 8
s_lshl_b32 s23, s21, 10
s_mul_i32 s22, s17, {KVHEAD}
s_waitcnt lgkmcnt(0)
""")
    k.srd(12, 34, WS_BYTES)
    def piece(off):
        return f"s_add_u32 m0, s23, {off}\ns_add_u32 s24, s22, m0\nbuffer_load_dwordx4 v1, s[12:15], s24 offen lds"
    for n in range(NF + 2):
        k(piece(n * 4096)); k(piece(HALF + n * 4096))
    k("s_waitcnt vmcnt(4)\ns_barrier")
    k(f"s_add_u32 s23, s23, {(NF+2)*4096}\ns_mov_b32 s25, {19 - NF - 2}")
    k.label("kv")
    k(piece(0)); k(piece(HALF))
    k(f"s_add_u32 s23, s23, 4096\ns_sub_u32 s25, s25, 1\ns_cmp_lg_u32 s25, 0\ns_cbranch_scc1 {k.lab('kv')}")
    k(f"""
s_lshl_b32 s17, s2, 2
s_add_u32 s17, s17, s16
s_sub_u32 s17, s17, 8            ; W
s_mov_b32 s27, 0x20000
s_mov_b32 s56, 8
s_mov_b32 s57, 16
s_mov_b32 s58, 4
s_cmp_ge_u32 s17, 648
s_cbranch_scc1 {k.lab('p1')}
s_cmp_ge_u32 s17, 324
s_cselect_b32 s24, s42, s40
s_cselect_b32 s25, s43, s41
s_cselect_b32 s18, 324, 0
s_cselect_b32 s53, 1024, 0
s_mov_b32 s26, {D*F*2}
s_sub_u32 s18, s17, s18
s_mul_i32 s19, s18, 3641
s_lshr_b32 s19, s19, 16          ; ks
s_mul_i32 s20, s19, 18
s_sub_u32 s20, s18, s20          ; cg
s_mov_b32 s50, {F*2}
s_mul_i32 s51, s19, {32*F*2}
s_lshl_b32 s21, s20, 9
s_add_u32 s51, s51, s21
s_mov_b32 s52, 128
s_mul_i32 s21, s20, {16*36864}
s_add_u32 s53, s53, s21
s_lshl_b32 s21, s19, 11
s_add_u32 s53, s53, s21
s_add_u32 s53, s53, {WGUOFF}
s_mov_b32 s54, {4*36864}
s_mov_b32 s55, 36864
s_branch {k.lab('pgo')}
""")
    k.label("p1")
    k(f"""
s_mov_b32 s50, 1152
s_mov_b32 s54, 36864
s_mov_b32 s55, 1024
s_cmp_ge_u32 s17, 972
s_cselect_b32 s24, s28, s44
s_cselect_b32 s25, s29, s45
s_mov_b32 s26, {F*D*2}
s_cselect_b32 s26, {D*D*2}, s26
s_mov_b32 s18, 648
s_cselect_b32 s18, 972, s18
s_mov_b32 s52, {32*1152}
s_cselect_b32 s52, {36*1152}, s52
s_cselect_b32 s57, 20, 16
s_mov_b32 s53, {WDOFF}
s_cselect_b32 s53, {WOOFF}, s53
s_sub_u32 s18, s17, s18
s_mul_i32 s19, s18, 7282
s_lshr_b32 s19, s19, 16          ; kg = r/9
s_mul_i32 s20, s19, 9
s_sub_u32 s20, s18, s20          ; cs
s_lshl_b32 s21, s52, 2
s_mul_i32 s51, s19, s21
s_mul_i32 s21, s19, {4*36864}
s_add_u32 s53, s53, s21
s_lshl_b32 s21, s20, 12
s_add_u32 s53, s53, s21
s_cmp_ge_u32 s17, 1008
s_cselect_b32 s51, {16*1152}, s51
s_cselect_b32 s52, {288*1152}, s52
s_cselect_b32 s56, 72, s56
s_cselect_b32 s57, 144, s57
s_cselect_b32 s58, 36, s58
s_lshl_b32 s21, s20, 7
s_add_u32 s51, s51, s21
""")
    k.label("pgo")
    k(f"""
s_mul_i32 s57, s57, s50
s_mul_i32 s58, s58, s50
v_lshrrev_b32 v2, 5, v0
v_mul_lo_u32 v2, v2, s56
v_bfe_u32 v3, v0, 3, 2
v_add_u32 v2, v2, v3
v_mul_lo_u32 v2, v2, s50
v_and_b32 v3, 7, v0
v_lshl_add_u32 v2, v3, 4, v2
s_sub_u32 s21, s16, 8
s_lshl_b32 s21, s21, 11
s_add_u32 s21, s21, {SCR}
v_add_u32 v3, s21, v1
v_lshrrev_b32 v4, 2, v0
v_lshlrev_b32 v4, 7, v4
v_and_b32 v5, 3, v0
v_lshl_add_u32 v4, v5, 3, v4
v_add_u32 v4, s21, v4
s_cmp_ge_u32 s17, {1017 if prep else 0}
s_cbranch_scc1 {k.lab('pidle')}
""")
    DAT, FR = 8, 72
    for n in range(4):
        for i in range(2):
            for q in range(2):
                r = DAT + 4 * (4*n + 2*i + q)
                if i == 0 and q == 0:
                    so = "s51"
                elif i == 0:
                    k("s_add_u32 s59, s51, s57"); so = "s59"
                elif q == 0:
                    k("s_add_u32 s59, s51, s58"); so = "s59"
                else:
                    k("s_add_u32 s59, s59, s57"); so = "s59"
                k(f"buffer_load_dwordx4 {v(r,4)}, v2, s[24:27], {so} offen")
        k("s_add_u32 s51, s51, s52")
        if n == 1:
            k.mark(0)
            k("s_waitcnt vmcnt(8)\ns_barrier")
            k.mark(1)
    for n in range(4):
        k.mark(2 + n)
        fr = FR + 16 * (n & 1)
        for i in range(2):
            k(f"s_waitcnt vmcnt({16 - (4*n + 2*i + 2) + 4*n})")
            for q in range(2):
                k(f"ds_write_b128 v3, {v(DAT + 4*(4*n+2*i+q),4)} offset:{q*1024}")
            for j in range(4):
                k(f"ds_read_b64_tr_b16 {v(fr+4*j+2*i,2)}, v4 offset:{j*32}")
        k("s_waitcnt lgkmcnt(0)\ns_mov_b32 s59, s53")
        for j in range(4):
            k(f"buffer_store_dwordx4 {v(fr+4*j,4)}, v1, s[12:15], s59 offen {pst}")
            if j < 3:
                k("s_add_u32 s59, s59, s55")
        k("s_add_u32 s53, s53, s54")
    k(f"s_branch {k.lab('pfill')}")
    k.label("pidle")
    k("s_waitcnt vmcnt(0)\ns_barrier")
    k.label("pfill")
    if l2:
        k.code_l2("kc_kernel", "Lke_end", 4, 8, 66)
    if kdt:
        k.kd_touch(["kc_kernel", "kd_kernel", "ke_kernel"], 9, 66)
    k(f"s_mul_i32 s59, s17, 9216\ns_add_u32 s59, s59, {PARTOFF}")
    for i in range(4):
        k(f"v_mov_b32 v{4+i}, -1")
    for i in range(9):
        k(f"buffer_store_dwordx4 v[4:7], v1, s[12:15], s59 offen offset:{(i%3)*1024} {pst}")
        if i % 3 == 2 and i < 8:
            k("s_add_u32 s59, s59, 3072")
    k.label("fin")
    k.stamp_end(12)
    k.label("end")
    k("s_endpgm")
    return k
```

```python
from common import *

def gen_kc(diag=False, st="sc1"):
    NV = 96
    k = Kern("kc_kernel", 256, 192, 36864 + 3072, vgpr=NV + 216, accum=NV, idx=2, diag=diag)
    k.stamp_start()
    M = "v_mfma_f32_16x16x32_bf16"
    LT, LG, L16 = 2, 3, 1
    ACC, OF, WB, X, MU = 8, 40, 56, 64, 76
    T0 = 80
    k(f"""
s_cmp_ge_u32 s2, 256
s_cbranch_scc1 {k.lab('end')}
s_load_dwordx2 s[28:29], s[0:1], {ARG_X}
s_load_dwordx2 s[34:35], s[0:1], {ARG_WS}
v_lshrrev_b32 v1, 6, v0
v_and_b32 v0, 63, v0
v_readfirstlane_b32 s16, v1
v_lshlrev_b32 v{L16}, 4, v0
v_and_b32 v{LT}, 15, v0
v_lshrrev_b32 v{LG}, 4, v0
s_and_b32 s17, s2, 7
s_lshl_b32 s17, s17, 3
s_bfe_u32 s18, s2, 0x30003
s_add_u32 s17, s17, s18
s_lshr_b32 s18, s2, 6            ; cb
s_mul_i32 s19, s18, 3
s_add_u32 s19, s19, s16          ; 3cb+w
s_mul_i32 s20, s19, 3            ; tg0
s_mov_b32 s95, s16
v_lshlrev_b32 v4, 15, v{LG}
v_lshl_add_u32 v4, v{LT}, 4, v4
v_mul_u32_u24 v5, 1152, v{LT}
v_lshl_add_u32 v5, v{LG}, 3, v5  ; x voffset
v_lshlrev_b32 v6, 2, v{LT}
s_waitcnt lgkmcnt(0)
""")
    k.srd(4, 28, S * D * 2)
    k.srd(12, 34, WS_BYTES)
    k(f"""
s_lshl_b32 s21, s17, 9
s_add_u32 s21, s21, {OOFF}
s_mov_b32 s22, s16
""")
    k.label("dma")
    k(f"""
s_lshl_b32 m0, s22, 10
s_lshr_b32 s23, s22, 1
s_lshl_b32 s23, s23, 17
s_and_b32 s24, s22, 1
s_lshl_b32 s24, s24, 8
s_add_u32 s23, s23, s24
s_add_u32 s23, s23, s21
buffer_load_dwordx4 v4, s[12:15], s23 offen lds
s_add_u32 s22, s22, 3
s_cmp_lt_u32 s22, 36
s_cbranch_scc1 {k.lab('dma')}
s_lshl_b32 m0, s22, 10
s_lshl_b32 s23, s16, 10
s_add_u32 s23, s23, {WBAROFF}
buffer_load_dwordx4 v{L16}, s[12:15], s23 offen lds
s_lshl_b32 s23, s20, 10
s_add_u32 s23, s23, {WOOFF}
""")
    for ks in range(18):
        for i in range(3):
            k(f"buffer_load_dwordx4 {a(4*(3*ks+i),4)}, v{L16}, s[12:15], s23 offen offset:{i*1024}")
        if ks < 17:
            k("s_add_u32 s23, s23, 36864")
    k(f"""
s_mul_i32 s24, s17, {32*1152}
s_lshl_b32 s25, s20, 5
s_add_u32 s24, s24, s25
s_add_u32 s25, s24, {16*1152}
s_lshl_b32 s26, s17, 7
s_add_u32 s27, s26, {MUXOFF}
""")
    for T in range(2):
        for i in range(3):
            k(f"buffer_load_dwordx2 {v(X+2*(2*i+T),2)}, v5, s[4:7], s{24+T} offen offset:{i*32}")
        k(f"buffer_load_dword v{MU+T}, v6, s[12:15], s27 offen offset:{T*64}")
    k(f"""
v_and_b32 v7, 1, v0
v_mul_u32_u24 v7, 1152, v7
v_lshl_add_u32 v7, v{LG}, 4, v7
v_add_u32 v7, 36864, v7
""")
    k.mark(0)
    k("s_waitcnt vmcnt(62)\ns_barrier")
    k.mark(1)
    def rd(ks):
        b = ks & 1
        return [f"ds_read_b128 {v(OF+8*b+4*T,4)}, v{L16} offset:{(2*ks+T)*1024}" for T in range(2)] + \
               [f"ds_read_b128 {v(WB+4*b,4)}, v7 offset:{ks*64}"]
    for r in rd(0):
        k(r)
    for ks in range(18):
        b = ks & 1
        if ks < 17:
            for r in rd(ks + 1):
                k(r)
        k(f"s_waitcnt vmcnt({8 + 3*(17-ks)}) lgkmcnt({3 if ks < 17 else 0})")
        for i in range(4):
            w = a(4*(3*ks+i), 4) if i < 3 else v(WB+4*b, 4)
            for T in range(2):
                d = v(ACC + (2*i+T)*4, 4)
                k(f"{M} {d}, {w}, {v(OF+8*b+4*T,4)}, {'0' if ks == 0 else d}")
    SS = 78
    k.mark(2)
    k(f"""
s_lshl_b32 s28, s20, 16
s_lshl_b32 s29, s17, 9
s_add_u32 s28, s28, s29
s_add_u32 s28, s28, {HCOFF}
v_lshrrev_b32 v4, 5, v0
v_lshlrev_b32 v4, 15, v4
v_and_b32 v5, 31, v0
v_lshl_add_u32 v4, v5, 4, v4
v_lshlrev_b32 v5, 2, v5
v_mov_b32 v{SS}, 0
v_mov_b32 v{SS+1}, 0
s_waitcnt vmcnt(0)
""")
    for T in range(2):
        aw = ACC + (6+T)*4
        k(f"v_add_f32 v{aw}, v{aw}, v{aw+1}\nv_add_f32 v{MU+T}, v{MU+T}, v{aw}")
    for i in range(3):
        R = OF + 4*i
        for T in range(2):
            ac = ACC + (2*i+T)*4
            x = X + 2*(2*i+T)
            k(f"""
v_lshlrev_b32 v{T0}, 16, v{x}
v_and_b32 v{T0+1}, 0xffff0000, v{x}
v_lshlrev_b32 v{T0+2}, 16, v{x+1}
v_and_b32 v{T0+3}, 0xffff0000, v{x+1}
""")
            for r in range(4):
                k(f"v_add_f32 v{ac+r}, v{ac+r}, v{T0+r}")
            for r in range(4):
                k(f"v_sub_f32 v{ac+r}, v{ac+r}, v{MU+T}")
            for r in range(4):
                k(f"v_fmac_f32 v{SS+T}, v{ac+r}, v{ac+r}")
            k(f"v_cvt_pk_bf16_f32 v{R+2*T}, v{ac}, v{ac+1}\nv_cvt_pk_bf16_f32 v{R+2*T+1}, v{ac+2}, v{ac+3}")
        k(f"""
s_nop 1
v_permlane16_swap_b32 v{R}, v{R+2}
v_permlane16_swap_b32 v{R+1}, v{R+3}
buffer_store_dwordx4 {v(R,4)}, v4, s[12:15], s28 offen {st}
s_add_u32 s28, s28, 65536
""")
    k(f"""
v_permlane16_swap_b32 v{SS}, v{SS+1}
s_lshl_b32 s29, s19, 13
s_add_u32 s29, s29, s26
s_add_u32 s29, s29, {SSQOFF}
v_add_f32 v{SS}, v{SS}, v{SS+1}
v_mov_b32 v{SS+1}, v{SS}
s_add_u32 s27, s26, {MUHOFF}
s_nop 0
v_permlane32_swap_b32 v{SS}, v{SS+1}
v_add_f32 v{SS}, v{SS}, v{SS+1}
s_mov_b32 exec_hi, 0
buffer_store_dword v{SS}, v5, s[12:15], s29 offen {st}
s_cmp_lg_u32 s19, 0
s_cbranch_scc1 {k.lab('fin')}
s_mov_b64 exec, 0xffff
buffer_store_dword v{MU}, v6, s[12:15], s27 offen {st}
buffer_store_dword v{MU+1}, v6, s[12:15], s27 offen offset:64 {st}
""")
    k.label("fin")
    k.stamp_end(12)
    k.label("end")
    k("s_endpgm")
    return k
```

```python
from common import *

UB = 36864
CB = 12288
def gen_kd(diag=False, st="sc1", PF=6, LA=3, rot=False, exp=""):
    k = Kern("kd_kernel", 256, 256, 4 * UB, vgpr=512, accum=256, idx=3, diag=diag)
    k.stamp_start()
    M = "v_mfma_f32_16x16x32_bf16"
    ACC = [16, 48, 80, 112]
    WF = 144
    PK = 176
    HV = 200
    def hreg(ks, T):
        f = 4 * ks + T
        return a(4*f, 4) if f < 64 else v(HV + 4*(f-64), 4)
    k(f"""
s_cmp_ge_u32 s2, 256
s_cbranch_scc1 {k.lab('end')}
s_load_dwordx2 s[34:35], s[0:1], {ARG_WS}
v_lshrrev_b32 v1, 6, v0
v_and_b32 v0, 63, v0
v_readfirstlane_b32 s16, v1
v_lshlrev_b32 v1, 4, v0
v_and_b32 v6, 15, v0
v_lshrrev_b32 v7, 4, v0
v_lshlrev_b32 v2, 15, v7
v_lshl_add_u32 v2, v6, 4, v2
s_bfe_u32 s17, s2, 0x10002
s_lshl_b32 s17, s17, 2
s_bfe_u32 s18, s2, 0x20003
s_add_u32 s17, s17, s18          ; rb
s_and_b32 s18, s2, 3
s_lshl_b32 s18, s18, 3
s_lshr_b32 s19, s2, 5
s_add_u32 s18, s18, s19          ; fs
s_add_u32 s28, s17, s18
s_mul_i32 s29, s28, 21846
s_lshr_b32 s29, s29, 16
s_mul_i32 s29, s29, 3
s_sub_u32 s28, s28, s29
{"" if rot else "s_mov_b32 s28, 0"}
s_add_u32 s29, s28, 1
s_cmp_eq_u32 s29, 3
s_cselect_b32 s29, 0, s29
s_add_u32 s30, s29, 1
s_cmp_eq_u32 s30, 3
s_cselect_b32 s30, 0, s30
s_lshl_b32 s19, s17, 2
s_add_u32 s19, s19, s16
s_lshl_b32 s19, s19, 10          ; token0*16
s_add_u32 s20, s19, {HCOFF}
s_mul_i32 s22, s16, 3072
s_mul_i32 s23, s18, {9*UB}
s_add_u32 s23, s23, s22
s_add_u32 s23, s23, {WGUOFF}
""")
    for c in range(3):
        k(f"s_mul_i32 s{40+c}, s{28+c}, {6*4*CH}\ns_add_u32 s{40+c}, s{40+c}, s20")
        k(f"s_mul_i32 s{44+c}, s{28+c}, {CB}\ns_add_u32 s{44+c}, s{44+c}, s23")
    k("s_mov_b32 s95, s16\ns_waitcnt lgkmcnt(0)")
    k.srd(12, 34, WS_BYTES)
    k.mark(4)

    def w3(lds_s, lds_c, src_s, src_c):
        ops = [(f"s_add_u32 m0, s{lds_s}, {lds_c}", 0), (f"s_add_u32 s25, s{src_s}, {src_c}", 0)]
        ops += [(f"buffer_load_dwordx4 v1, s[12:15], s25 offen offset:{n*1024} lds", 1) for n in range(3)]
        return ops
    def h_ops(ks):
        c = ks // 6
        ops = [(f"buffer_load_dwordx4 {hreg(ks,T)}, v2, s[12:15], s{40+c} offen offset:{T*256}", 1) for T in range(4)]
        if ks % 6 != 5:
            ops.append((f"s_add_u32 s{40+c}, s{40+c}, {4*CH}", 0))
        return ops
    mark = {}
    cnt = 0
    groups = {}
    def push(at, name, ops):
        groups.setdefault(at, []).append((name, ops))
    for u in range(3):
        push(-1, "Wc0", w3(22, u*UB, 44, u*UB))
    for ks in range(18):
        push(max(-1, ks - LA), f"h{ks}", h_ops(ks))
    for c in (1, 2):
        for u in range(3):
            push(6*(c-1) + u, f"Wc{c}", w3(22, u*UB + c*CB, 44+c, u*UB))
    for c in range(3):
        push(11 + c, "W3", w3(22, 3*UB + c*CB, 44+c, 3*UB))
    issued = 0
    def emit(op):
        nonlocal issued
        k(op[0]); issued += op[1]
    for name, ops in groups[-1]:
        for o in ops: emit(o)
        mark[name] = issued
    k(f"""
v_lshrrev_b32 v3, 5, v0
v_lshlrev_b32 v3, 15, v3
v_and_b32 v6, 31, v0
v_lshl_add_u32 v3, v6, 4, v3
s_mul_i32 s21, s18, {9*65536}
s_add_u32 s21, s21, s19
s_add_u32 s21, s21, {HIDOFF}
v_add_u32 v4, {UB}, v1
v_add_u32 v5, {3*UB}, v1
v_add_u32 v6, {2*UB}, v1
""")
    k.mark(0)
    k(f"s_waitcnt vmcnt({issued - mark['Wc0']})\ns_barrier")
    k.mark(1)
    def rdR(n):
        if n >= 108:
            return f"ds_read_b128 {v(WF+4*(n%PF),4)}, v5 offset:{(n-108)*1024}"
        ks, u, gu = n // 6, (n % 6) // 2, n % 2
        base = ["v1", "v4", "v6"][u]
        return f"ds_read_b128 {v(WF+4*(n%PF),4)}, {base} offset:{(2*ks+gu)*1024}"
    for n in range(PF - 1):
        k(rdR(n))
    for ks in range(18):
        pend = [(name, o) for name, ops in groups.get(ks, []) for o in ops]
        for q in range(6):
            n = ks * 6 + q
            u, gu = q // 2, q % 2
            w = f"lgkmcnt({PF-2})"
            if q == 0:
                w = f"vmcnt({min(63, issued - mark[f'h{ks}'])}) " + w
            k("s_waitcnt " + w)
            if (n + PF - 1) % 36 == 0:
                nm = {36: "Wc1", 72: "Wc2", 108: "W3"}[n + PF - 1]
                k(f"s_waitcnt vmcnt({min(63, issued - mark[nm])})\ns_barrier")
            for T in range(4):
                d = v(ACC[u] + (gu*4+T)*4, 4)
                k(f"{M} {d}, {v(WF+4*(n%PF),4)}, {hreg(ks,T)}, {'0' if ks == 0 else d}")
                if T == 0:
                    k(rdR(n + PF - 1))
                elif pend and T != 2:
                    while pend:
                        name, o = pend.pop(0)
                        emit(o); mark[name] = issued
                        if o[1]: break
                    while pend and not pend[0][1][1] and "m0" not in pend[0][1][0]:
                        name, o = pend.pop(0); emit(o)
        assert not pend
    k.mark(2)

    def rd(j):
        base, jj = ("v4", j) if j < 36 else ("v5", j - 36)
        return f"ds_read_b128 {v(WF+4*(j%PF),4)}, {base} offset:{jj*1024}"

    def epi(p):
        A = ACC[p]
        e = []
        for pr in range(2):
            R = PK + 4*pr
            for T in (2*pr, 2*pr+1):
                for r in range(4):
                    e.append(f"v_mul_f32 v{A+4*T+r}, v{A+4*T+r}, v{A+16+4*T+r}")
                e.append(f"v_cvt_pk_bf16_f32 v{R+2*(T&1)}, v{A+4*T}, v{A+4*T+1}")
                e.append(f"v_cvt_pk_bf16_f32 v{R+2*(T&1)+1}, v{A+4*T+2}, v{A+4*T+3}")
            e.append("s_nop 1")
            e.append(f"v_permlane16_swap_b32 v{R}, v{R+2}")
            e.append(f"v_permlane16_swap_b32 v{R+1}, v{R+3}")
            e.append(f"buffer_store_dwordx4 {v(R,4)}, v3, s[12:15], s21 offen offset:{pr*512} {st}")
        e.append("s_add_u32 s21, s21, 65536")
        return e

    nxt = [f"v_mov_b32 v4, v5", f"s_add_u32 s26, s26, {UB}", f"s_cmp_ge_u32 s26, {4*UB}", "s_cselect_b32 s26, 0, s26",
           "v_add_u32 v5, s26, v1"]
    def wunit():
        ops = []
        for c in range(3):
            ops += [f"s_add_u32 m0, s24, {c*CB}", f"s_add_u32 s25, s{44+c}, s47"]
            ops += [f"buffer_load_dwordx4 v1, s[12:15], s25 offen offset:{n*1024} lds" for n in range(3)]
        ops += [f"s_add_u32 s47, s47, {UB}", f"s_cmp_ge_u32 s47, {9*UB}", f"s_cselect_b32 s47, {OOB}, s47",
                f"s_add_u32 s24, s24, {UB}", f"s_cmp_ge_u32 s24, {4*UB}", "s_cselect_b32 s24, s22, s24"]
        return ops

    def unit(p, fills, bars):
        A = ACC[p]
        nvm = 0
        for j in range(36):
            ks, gu = j // 2, j % 2
            if j in bars:
                b = bars[j]
                if b == "after9":
                    assert nvm >= 9
                    b = nvm - 9
                w = "" if b is None else f"vmcnt({b}) "
                k(f"s_waitcnt {w}lgkmcnt({PF-2})\ns_barrier")
            else:
                k(f"s_waitcnt lgkmcnt({PF-2})")
            for T in range(4):
                d = v(A + (gu*4+T)*4, 4)
                k(f"{M} {d}, {v(WF+4*(j%PF),4)}, {hreg(ks,T)}, {'0' if ks == 0 else d}")
                if T == 0:
                    k(rd(j + PF - 1))
                else:
                    for (s0, lst, per) in fills:
                        if j >= s0 and lst:
                            for _ in range(per):
                                if lst:
                                    x = lst.pop(0); k(x)
                                    if x.startswith("buffer"):
                                        nvm += 1
                                        break
                            break
        for (_, lst, _) in fills:
            assert not lst, lst
        for x in nxt:
            k(x)
    k(f"v_mov_b32 v4, v5\nv_mov_b32 v5, v1\ns_mov_b32 s26, 0\ns_mov_b32 s24, s22\ns_mov_b32 s47, {4*UB}\ns_mov_b32 s27, 0")
    unit(3, [(1, wunit(), 2), (2, epi(0) + epi(1) + epi(2), 2), (20, wunit(), 2)], {1: None, 30: 'after9'})
    k.mark(5)
    k(".p2align 6")
    k.label("loop")
    unit(0, [(18, wunit(), 1), (2, epi(3), 1)], {18: 2})
    k(f"s_cmp_eq_u32 s27, 2\ns_cbranch_scc1 {k.lab('done')}")
    unit(3, [(18, wunit(), 1), (2, epi(0), 1)], {18: 2})
    k(f"s_add_u32 s27, s27, 1\ns_branch {k.lab('loop')}")
    k.label("done")
    k.mark(3)
    k("s_nop 1")
    for x in epi(0):
        k(x)
    if exp:
        i0 = max(i for i, l in enumerate(k.L) if "s_memtime s[76:77]" in l)
        for i in range(i0, len(k.L)):
            l = k.L[i]
            if "nostore" in exp and "buffer_store" in l: k.L[i] = "  s_nop 0"
            if "nodma" in exp and " lds" in l: k.L[i] = "  s_nop 0"
            if "nobar" in exp and "s_barrier" in l: k.L[i] = "  s_nop 0"
            if "novm" in exp and "vmcnt" in l: k.L[i] = f"  s_waitcnt lgkmcnt({PF-2})"
            if "novalu" in exp and l.strip().startswith(("v_mul", "v_cvt", "v_perm")): k.L[i] = "  s_nop 0"
    k.stamp_end(12)
    k.label("end")
    k("s_endpgm")
    return k
```

```python
from common import *

SB = 36864
EXOFF = PARTOFF
def gen_ke(diag=False, PF=9, WG=3, exch=True, exp='', sleep=0):
    NV = 128
    k = Kern("ke_kernel", 256, 512, 4 * SB, vgpr=NV + 96, accum=NV, idx=4, diag=diag)
    k.stamp_start()
    M = "v_mfma_f32_16x16x32_bf16"
    ACC, WF = 16, 88
    XL = 2 * SB
    k(f"""
s_cmp_ge_u32 s2, 256
s_cbranch_scc1 {k.lab('end')}
s_load_dwordx2 s[34:35], s[0:1], {ARG_WS}
s_load_dwordx2 s[36:37], s[0:1], {ARG_OUT}
v_lshrrev_b32 v1, 6, v0
v_and_b32 v0, 63, v0
v_readfirstlane_b32 s95, v1
v_lshlrev_b32 v1, 4, v0
s_and_b32 s16, s95, 3
s_and_b32 s17, s2, 1
s_lshl_b32 s17, s17, 3
s_bfe_u32 s18, s2, 0x30003
s_add_u32 s17, s17, s18          ; rb
s_lshr_b32 s18, s2, 6            ; cb
s_bfe_u32 s19, s2, 0x20001       ; kq
s_lshl_b32 s28, s17, 2
s_add_u32 s28, s28, s16          ; tb
""")
    for t in range(4):
        k(f"s_add_u32 s{40+t}, s19, {t}\ns_and_b32 s{40+t}, s{40+t}, 3\ns_lshl_b32 s{44+t}, s{40+t}, 10")
    k(f"""
s_cmp_lt_u32 s95, 4
s_cbranch_scc1 {k.lab('cons')}
s_mul_i32 s23, s19, 36
s_add_u32 s23, s23, s16
s_mul_i32 s23, s23, 36864
s_mul_i32 s29, s18, 9216
s_add_u32 s23, s23, s29
s_add_u32 s23, s23, {WDOFF}
s_mul_i32 s22, s16, 9216
s_mov_b32 s24, s22
s_mov_b32 s27, 0
s_waitcnt lgkmcnt(0)
""")
    k.srd(12, 34, WS_BYTES)
    k.srd(4, 36, S * D * 2)
    k.mark(3)
    k.label("pl")
    for n in range(9):
        if n < 4:
            k(f"s_add_u32 m0, s24, {n*1024}\ns_add_u32 s{48+n}, s23, s{44+n}\nbuffer_load_dwordx4 v1, s[12:15], s{48+n} offen lds")
        elif n < 8:
            k(f"s_add_u32 m0, s24, {n*1024}\ns_add_u32 s25, s{48+n-4}, 4096\nbuffer_load_dwordx4 v1, s[12:15], s25 offen lds")
        else:
            k(f"s_add_u32 m0, s24, {n*1024}\ns_add_u32 s25, s23, 8192\nbuffer_load_dwordx4 v1, s[12:15], s25 offen lds")
    k(f"""
s_add_u32 s23, s23, {4*36864}
s_add_u32 s24, s24, {SB}
s_cmp_ge_u32 s24, {4*SB}
s_cselect_b32 s24, s22, s24
s_add_u32 s27, s27, 1
s_cmp_eq_u32 s27, 1
s_cbranch_scc1 {k.lab('pl')}
s_waitcnt vmcnt(9)
s_barrier
s_cmp_lt_u32 s27, 9
s_cbranch_scc1 {k.lab('pl')}
""")
    HC, SS, MU, OWN, RX, T0 = 16, 28, 34, 40, 64, 100
    k(f"""
v_and_b32 v6, 31, v0
v_lshrrev_b32 v7, 5, v0
v_lshlrev_b32 v3, 15, v7
v_lshl_add_u32 v3, v6, 4, v3
v_mul_u32_u24 v8, {6*8192}, v7
v_lshl_add_u32 v8, v6, 2, v8
v_lshlrev_b32 v9, 2, v6
s_mul_i32 s54, s18, 9
s_add_u32 s55, s54, s19
s_lshl_b32 s56, s55, 16
s_lshl_b32 s57, s28, 9
s_add_u32 s57, s57, {HCOFF}
s_add_u32 s56, s56, s57
buffer_load_dwordx4 {v(HC,4)}, v3, s[12:15], s56 offen
s_add_u32 s56, s56, {4*65536}
buffer_load_dwordx4 {v(HC+4,4)}, v3, s[12:15], s56 offen
s_add_u32 s54, s54, 8
s_lshl_b32 s56, s54, 16
s_add_u32 s56, s56, s57
buffer_load_dwordx4 {v(HC+8,4)}, v3, s[12:15], s56 offen
s_lshl_b32 s56, s28, 7
s_add_u32 s57, s56, {MUHOFF}
s_add_u32 s56, s56, {SSQOFF}
buffer_load_dword v{MU}, v9, s[12:15], s57 offen
""")
    for j in range(6):
        k(f"buffer_load_dword v{SS+j}, v8, s[12:15], s56 offen")
        if j < 5: k("s_add_u32 s56, s56, 8192")
    k(f"""
s_waitcnt vmcnt(10)
s_barrier
s_mul_i32 s51, s28, 36
s_mul_i32 s29, s18, 9
s_add_u32 s51, s51, s29
s_lshl_b32 s51, s51, 12
s_add_u32 s51, s51, {EXOFF}
s_lshl_b32 s58, s19, 12
s_add_u32 s58, s58, s51
s_add_u32 s59, s58, 16384
s_add_u32 s60, s51, 32768
s_cmp_eq_u32 s19, s16
s_cselect_b32 s60, s60, {OOB}
s_mov_b32 s61, 0
s_mul_i32 s29, s16, 6144
s_add_u32 s29, s29, {XL}
v_add_u32 v4, s29, v1
v_mul_u32_u24 v8, 1152, v6
v_lshl_add_u32 v8, v7, 4, v8
s_mul_i32 s56, s28, {32*1152}
s_lshl_b32 s57, s55, 5
s_add_u32 s57, s57, s56
s_lshl_b32 s54, s54, 5
s_add_u32 s56, s56, s54
s_mov_b32 s63, {f2u(1.0/D):#x}
s_waitcnt vmcnt(0)
v_add_f32 v{SS}, v{SS}, v{SS+1}
v_add_f32 v{SS+2}, v{SS+2}, v{SS+3}
v_add_f32 v{SS+4}, v{SS+4}, v{SS+5}
v_add_f32 v{SS}, v{SS}, v{SS+2}
v_add_f32 v{SS}, v{SS}, v{SS+4}
v_mov_b32 v{SS+1}, v{SS}
v_mov_b32 v{SS+2}, {f2u(1e-5):#x}
s_nop 0
v_permlane32_swap_b32 v{SS}, v{SS+1}
v_add_f32 v{SS}, v{SS}, v{SS+1}
v_fma_f32 v{SS}, v{SS}, s63, v{SS+2}
v_rcp_f32 v{SS}, v{SS}
""")
    BS = 104
    for i in range(3):
        for d in range(4):
            x = HC + 4*i + d
            k(f"v_lshlrev_b32 v{BS+8*i+2*d}, 16, v{x}\nv_and_b32 v{BS+8*i+2*d+1}, 0xffff0000, v{x}")
    for i in range(24):
        k(f"v_add_f32 v{BS+i}, v{BS+i}, v{MU}")
    k("s_barrier\ns_barrier")
    k.mark(4)
    for i in range(6):
        k(f"ds_read_b128 {v(OWN+4*i,4)}, v4 offset:{i*1024}")
    if sleep:
        k(f"s_sleep {sleep}")
    k.label("poll")
    for i in range(3):
        for q in range(1, 4):
            k(f"s_add_u32 s29, s{58+i}, s{44+q}\nbuffer_load_dwordx4 {v(RX+12*i+4*(q-1),4)}, v1, s[12:15], s29 offen sc1")
    k("s_waitcnt vmcnt(0)")
    k(f"v_max3_u32 v{T0}, v{RX}, v{RX+1}, v{RX+2}")
    k(f"v_max3_u32 v{T0+1}, v{RX+3}, v{RX+4}, v{RX+5}")
    for n, j in enumerate(range(6, 36, 2)):
        k(f"v_max3_u32 v{T0+(n&1)}, v{T0+(n&1)}, v{RX+j}, v{RX+j+1}")
    k(f"""
v_max_u32 v{T0}, v{T0}, v{T0+1}
v_cmp_eq_u32 vcc, -1, v{T0}
s_add_u32 s61, s61, 1
s_cmp_ge_u32 s61, {200000 if exch else 1}
s_cbranch_scc1 {k.lab('got')}
s_cbranch_vccnz {k.lab('poll')}
""")
    k.label("got")
    k.mark(5)
    if diag:
        k("s_waitcnt lgkmcnt(0)\ns_add_u32 s72, s86, s61")
    k("s_waitcnt lgkmcnt(0)")
    for i in range(3):
        if i == 2:
            k(f"s_cmp_lg_u32 s19, s16\ns_cbranch_scc1 {k.lab('fin')}")
        A = OWN + 8*i
        for r in range(4):
            k(f"v_permlane16_swap_b32 v{A+r}, v{A+4+r}")
        for q in range(3):
            for d in range(4):
                x = RX + 12*i + 4*q + d
                tt = T0 + 2*(d & 1)
                k(f"v_lshlrev_b32 v{tt}, 16, v{x}\nv_and_b32 v{tt+1}, 0xffff0000, v{x}\nv_pk_add_f32 {v(A+2*d,2)}, {v(A+2*d,2)}, {v(tt,2)}")
        for d in range(4):
            b = BS + 8*i + 2*d
            k(f"v_pk_fma_f32 {v(b,2)}, {v(A+2*d,2)}, {v(SS,2)}, {v(b,2)} op_sel_hi:[1,0,1]")
            k(f"v_cvt_pk_bf16_f32 v{HC+4*i+d}, v{b}, v{b+1}")
        so, off = [("s57", 0), ("s57", 128), ("s56", 0)][i]
        k(f"buffer_store_dwordx4 {v(HC+4*i,4)}, v8, s[4:7], {so} offen offset:{off}")
    k(f"s_branch {k.lab('fin')}")

    k.label("cons")
    k(f"""
v_and_b32 v6, 15, v0
v_lshrrev_b32 v7, 4, v0
v_lshlrev_b32 v2, 15, v7
v_lshl_add_u32 v2, v6, 4, v2
s_lshl_b32 s20, s28, 9
s_mul_i32 s29, s19, {36*4*CH}
s_add_u32 s20, s20, s29
s_add_u32 s20, s20, {HIDOFF}
s_waitcnt lgkmcnt(0)
""")
    k.srd(12, 34, WS_BYTES)
    k.mark(3)
    def hreg(set_, kk, T):
        return a(4 * (8*set_ + 2*kk + T), 4)
    def h_ops(p):
        return [f"buffer_load_dwordx4 {hreg(p//4,p%4,T)}, v2, s[12:15], s20 offen offset:{T*256}" for T in range(2)] + \
               [f"s_add_u32 s20, s20, {4*CH}"]
    LA = 5
    for p in range(LA):
        for x in h_ops(p): k(x)
    for i in range(72):
        k(f"v_mov_b32 v{ACC+i}, 0")
    k(f"""
v_mov_b32 v4, v1
v_add_u32 v5, {SB}, v1
s_mov_b32 s26, {SB}
s_mov_b32 s27, 0
s_mul_i32 s51, s28, 36
s_mul_i32 s29, s18, 9
s_add_u32 s51, s51, s29
s_lshl_b32 s51, s51, 12
s_add_u32 s51, s51, {EXOFF}
s_add_u32 s52, s44, s51
s_mov_b32 s53, 0xfffefffe
s_mul_i32 s29, s16, 6144
s_add_u32 s29, s29, {XL}
v_add_u32 v3, s29, v1
""")
    k.mark(0)
    k("s_barrier")
    k.mark(1)
    def rd(j):
        base, jj = ("v4", j) if j < 36 else ("v5", j - 36)
        return f"ds_read_b128 {v(WF+4*(j%PF),4)}, {base} offset:{jj*1024}"
    for j in range(PF - 1):
        k(rd(j))
    k(".p2align 6")
    k.label("loop")
    for st3 in range(3):
        for kk in range(4):
            p = 4 * st3 + kk
            f = h_ops((p + LA) % 12)
            if p + LA == 12:
                f = [f"s_add_u32 s27, s27, 1\ns_cmp_ge_u32 s27, {0 if 'noh' in exp else 3}", f"s_cselect_b32 s20, {OOB}, s20"] + f
            if kk == 3:
                f = f + [f"s_add_u32 s26, s26, {SB}\ns_cmp_ge_u32 s26, {4*SB}", "s_cselect_b32 s26, 0, s26"]
            for t in range(9):
                j = 9 * kk + t
                if t % WG == 0:
                    w = f"lgkmcnt({PF-1-WG})"
                    if t == 0:
                        w = f"vmcnt({2*(LA-1)}) " + w
                    k("s_waitcnt " + w)
                if t == 0 and kk == 3:
                    k("s_barrier")
                for T in range(2):
                    d = v(ACC + (2*t+T)*4, 4)
                    k(f"{M} {d}, {v(WF+4*(j%PF),4)}, {hreg(st3,kk,T)}, {d}")
                    if T == 0:
                        k(rd(j + PF - 1))
                    elif f and t >= 1:
                        k(f.pop(0))
            assert not f, f
        k(f"v_mov_b32 v4, v5\nv_add_u32 v5, s26, v1")
    k(f"s_cmp_lt_u32 s27, 3\ns_cbranch_scc1 {k.lab('loop')}")
    k.mark(2)
    PKR = WF
    def pack(t, R):
        A0, A1 = ACC + 8*t, ACC + 8*t + 4
        return f"""
v_cvt_pk_bf16_f32 v{R}, v{A0}, v{A0+1}
v_cvt_pk_bf16_f32 v{R+2}, v{A1}, v{A1+1}
v_cvt_pk_bf16_f32 v{R+1}, v{A0+2}, v{A0+3}
v_cvt_pk_bf16_f32 v{R+3}, v{A1+2}, v{A1+3}
v_min_u32 v{R}, s53, v{R}
v_min_u32 v{R+2}, s53, v{R+2}
v_min_u32 v{R+1}, s53, v{R+1}
v_min_u32 v{R+3}, s53, v{R+3}
v_permlane16_swap_b32 v{R}, v{R+2}
s_nop 0
v_permlane16_swap_b32 v{R+1}, v{R+3}
"""
    k("s_waitcnt lgkmcnt(0)")
    i = 0
    for t in (1, 2, 3, 5, 6, 7):
        R = PKR + 4*i; i += 1
        k(f"s_lshl_b32 s29, s{40 + (t & 3)}, 12\ns_add_u32 s29, s29, s52")
        if t >= 4: k("s_add_u32 s29, s29, 16384")
        k(pack(t, R))
        k(f"buffer_store_dwordx4 {v(R,4)}, v1, s[12:15], s29 offen sc1")
    k(f"s_cmp_eq_u32 s19, s16\ns_cbranch_scc1 {k.lab('own8')}")
    R = PKR + 24
    k(pack(8, R))
    k(f"s_add_u32 s29, s52, 32768\nbuffer_store_dwordx4 {v(R,4)}, v1, s[12:15], s29 offen sc1")
    k.label("own8")
    for i, t in enumerate((0, 4, 8)):
        for T in range(2):
            k(f"ds_write_b128 v3, {v(ACC+8*t+4*T,4)} offset:{(2*i+T)*1024}")
    k("s_waitcnt lgkmcnt(0)\ns_barrier")
    k.mark(4)
    k.label("fin")
    k.stamp_end(12)
    k.label("end")
    k("s_endpgm")
    return k
```

```python
import sys
from common import *
from ka import gen_ka

HEADER = open("sequential_preLN__softmax_full_mha__glu_gated_bilinear__prompt.s.ref").read().split("; Override launch")[0] if False else ""

def build(diag=False, upto=99, **opt):
    ks = [gen_ka(diag, **opt.get('ka', {}))]
    try:
        from kb import gen_kb
        ks.append(gen_kb(diag, **opt.get('kb', {})))
        from kc import gen_kc
        ks.append(gen_kc(diag, **opt.get('kc', {})))
        from kd import gen_kd
        ks.append(gen_kd(diag, **opt.get('kd', {})))
        from ke import gen_ke
        ks.append(gen_ke(diag, **opt.get('ke', {})))
    except ImportError as e:
        print("missing:", e, file=sys.stderr)
    ks = ks[:upto]
    t = "; generated by gen.py (own generator): LN1+QKV | attention(+weight re-layout) | Wo+residual | gate*up | down (split-K) | reduce\n"
    t += "".join(k.launch() for k in ks)
    t += '.amdgcn_target "amdgcn-amd-amdhsa--gfx950"\n.text\n'
    t += "".join(k.text() for k in ks)
    return t

if __name__ == "__main__":
    out = sys.argv[1]
    diag = "diag" in sys.argv[2:]
    opt = {}
    upto = 99
    for a_ in sys.argv[2:]:
        if a_.startswith("upto="):
            upto = int(a_[5:])
        elif "=" in a_:
            key, val = a_.split("=")
            kn, pn = key.split(".")
            try: val = eval(val)
            except Exception: pass
            opt.setdefault(kn, {})[pn] = val
    open(out, "w").write(build(diag, upto, **opt))
```

```python
import math, struct

S, D, H, DH, F = 2048, 576, 32, 18, 4608

KVBLK = 2432
KV_K0, KV_K1, KV_V0, KV_K2, KV_V1, KV_V2 = 0, 512, 1024, 1536, 1664, 2176
KVHEAD = 64 * KVBLK
QBLK = 1152
QHEAD = 64 * QBLK
KVOFF = 0
QOFF = 0x500000
OOFF = 0x800000
HCOFF = 0xB00000
MUXOFF = 0xE00000
MUHOFF = 0xE02000
SSQOFF = 0xE04000
WBAROFF = 0xE20000
WOOFF = 0xF00000
WGUOFF = 0x1000000
WDOFF = 0x1C00000
HIDOFF = 0x2200000
PARTOFF = 0x3400000
STAMPOFF = 0x8000000
WS_BYTES = 0x10000000
CH = S * 16
OOB = 0x40000000

ARG_X, ARG_WQKV, ARG_WO, ARG_BX, ARG_WG, ARG_WU, ARG_WD, ARG_OUT, ARG_DBG, ARG_WS = [8 * i for i in range(10)]


def f2u(x):
    return struct.unpack("<I", struct.pack("<f", x))[0]


def v(i, n=1):
    return f"v{i}" if n == 1 else f"v[{i}:{i+n-1}]"


def a(i, n=1):
    return f"a{i}" if n == 1 else f"a[{i}:{i+n-1}]"


def s(i, n=1):
    return f"s{i}" if n == 1 else f"s[{i}:{i+n-1}]"


class Kern:
    def __init__(self, name, grid, block, lds, vgpr, accum=None, sgpr=96, idx=0, diag=False):
        self.name, self.grid, self.block, self.lds = name, grid, block, lds
        self.vgpr, self.accum, self.sgpr = vgpr, accum, sgpr
        self.L = []
        self.idx, self.diag = idx, diag

    def __call__(self, txt):
        for ln in txt.strip("\n").split("\n"):
            ln = ln.strip()
            if not ln:
                continue
            if ln.endswith(":") or ln.startswith("."):
                self.L.append(ln)
            else:
                self.L.append("  " + ln)

    def lab(self, l):
        return f"L{self.name[:2]}_{l}"

    def label(self, l):
        self.L.append(self.lab(l) + ":")

    def srd(self, d, p, nbytes):
        self(f"s_mov_b32 s{d}, s{p}\ns_mov_b32 s{d+1}, s{p+1}\ns_mov_b32 s{d+2}, {nbytes:#x}\ns_mov_b32 s{d+3}, 0x20000")

    def stamp_start(self):
        if self.diag:
            self("s_memrealtime s[90:91]\ns_memtime s[86:87]")
            for i in range(6):
                self(f"s_mov_b64 s[{72+2*i}:{73+2*i}], 0")

    def mark(self, i):
        if self.diag:
            self(f"s_memtime s[{72+2*i}:{73+2*i}]")

    def stamp_end(self, ws_srd):
        if self.diag:
            self(f"""
s_memtime s[84:85]
s_waitcnt vmcnt(0) lgkmcnt(0)
s_memrealtime s[92:93]
s_memtime s[88:89]
s_mov_b64 exec, 1
s_waitcnt lgkmcnt(0)
s_lshl_b32 s94, s2, 4
s_add_u32 s94, s94, s95
s_lshl_b32 s94, s94, 6
s_add_u32 s94, s94, {STAMPOFF + self.idx * 0x80000}
s_sub_u32 s88, s88, s86
v_mov_b32 v0, 0
v_mov_b32 v2, s90
v_mov_b32 v3, s92
v_mov_b32 v4, s88
v_mov_b32 v5, 1
""")
            for i in range(7):
                self(f"s_sub_u32 s{72+2*i}, s{72+2*i}, s86\nv_mov_b32 v{6+i}, s{72+2*i}")
            self(f"""
v_mov_b32 v13, s95
buffer_store_dwordx4 v[2:5], v0, s[{ws_srd}:{ws_srd+3}], s94 offen
buffer_store_dwordx4 v[6:9], v0, s[{ws_srd}:{ws_srd+3}], s94 offen offset:16
buffer_store_dwordx4 v[10:13], v0, s[{ws_srd}:{ws_srd+3}], s94 offen offset:32
s_waitcnt vmcnt(0)
""")

    def code_l2(self, lab0, lab1, nmax, vt, sp, lane="v0"):
        u = f"Lpc{self.name[:2]}{len(self.L)}"
        self(f"""
s_getpc_b64 s[{sp}:{sp+1}]
{u}:
s_add_u32 s{sp}, s{sp}, {lab0}-{u}
s_addc_u32 s{sp+1}, s{sp+1}, ({lab0}-{u})>>32
v_lshlrev_b32 v{vt}, 7, {lane}
""")
        for i in range(nmax):
            self(f"v_min_u32 v{vt+1}, {lab1}-{lab0}-4, v{vt}\nglobal_load_dword v{vt+2}, v{vt+1}, s[{sp}:{sp+1}]")
            if i + 1 < nmax:
                self(f"v_add_u32 v{vt}, 8192, v{vt}")

    def kd_touch(self, names, vt, sp):
        self(f"v_mov_b32 v{vt}, 0")
        for n in names:
            self(f"""
s_getpc_b64 s[{sp}:{sp+1}]
s_add_u32 s{sp}, s{sp}, Ldesc_{n}@rel32@lo+4
s_addc_u32 s{sp+1}, s{sp+1}, Ldesc_{n}@rel32@hi+12
global_load_dword v{vt+1}, v{vt}, s[{sp}:{sp+1}]
""")

    def text(self):
        accum = self.accum if self.accum is not None else min(256, (self.vgpr + 3) // 4 * 4)
        t = f".globl {self.name}\n.p2align 8\n.type {self.name},@function\n{self.name}:\n"
        t += "\n".join(self.L) + "\n"
        t += f""".section .rodata,"a"
.p2align 6
Ldesc_{self.name}:
.amdhsa_kernel {self.name}
  .amdhsa_next_free_vgpr {self.vgpr}
  .amdhsa_next_free_sgpr {self.sgpr}
  .amdhsa_accum_offset {accum}
  .amdhsa_group_segment_fixed_size 0
  .amdhsa_kernarg_size 80
  .amdhsa_user_sgpr_count 2
  .amdhsa_user_sgpr_kernarg_segment_ptr 1
  .amdhsa_system_sgpr_workgroup_id_x 1
.end_amdhsa_kernel
.text
"""
        return t

    def launch(self):
        return f"; @launch kernel={self.name} grid=({self.grid},1,1) block=({self.block},1,1) lds={self.lds}\n"


def interleave(main, fill, per=1, start=0):
    out = []
    fi = 0
    for i, m in enumerate(main):
        out.append(m)
        if i >= start:
            for _ in range(per):
                if fi < len(fill):
                    out.append(fill[fi]); fi += 1
    out.extend(fill[fi:])
    return out
```

```python
import math, struct

S, D, H, DH, F = 2048, 576, 32, 18, 4608

KVBLK = 2432
KV_K0, KV_K1, KV_V0, KV_K2, KV_V1, KV_V2 = 0, 512, 1024, 1536, 1664, 2176
KVHEAD = 64 * KVBLK
QBLK = 1152
QHEAD = 64 * QBLK
KVOFF = 0
QOFF = 32 * KVHEAD
OOFF = 0x800000
HCOFF = 0xB00000
MUXOFF = 0xE00000
MUHOFF = 0xE02000
SSQOFF = 0xE04000
WBAROFF = 0xE40000
WOOFF = 0xF00000
WGUOFF = 0x1000000
WDOFF = 0x1C00000
HIDOFF = 0x2200000
PARTOFF = 0x3400000
EXOFF = 0x3600000
FLS = 128
FBOFF = 0x3000000 + 0x400000
FCOFF = FBOFF + 2048 * FLS
FDOFF = FCOFF + 2048 * FLS
FPOFF = FDOFF + 2048 * FLS
FXOFF = FPOFF + 4096
FLEND = FXOFF + 8192
STAMPOFF = 0x8000000
WS_BYTES = 0x10000000
CH = S * 16
OOB = 0x40000000

ARG_X, ARG_WQKV, ARG_WO, ARG_BX, ARG_WG, ARG_WU, ARG_WD, ARG_OUT, ARG_DBG, ARG_WS = [8 * i for i in range(10)]


def f2u(x):
    return struct.unpack("<I", struct.pack("<f", x))[0]


def v(i, n=1):
    return f"v{i}" if n == 1 else f"v[{i}:{i+n-1}]"


def a(i, n=1):
    return f"a{i}" if n == 1 else f"a[{i}:{i+n-1}]"


def s(i, n=1):
    return f"s{i}" if n == 1 else f"s[{i}:{i+n-1}]"


class Kern:
    def __init__(self, name, grid, block, lds, vgpr, accum=None, sgpr=96, idx=0, diag=False, nm=7, mb=72):
        self.nm, self.mb = nm, mb
        if diag: sgpr = 102
        self.name, self.grid, self.block, self.lds = name, grid, block, lds
        self.vgpr, self.accum, self.sgpr = vgpr, accum, sgpr
        self.L = []
        self.idx, self.diag = idx, diag

    def __call__(self, txt):
        for ln in txt.strip("\n").split("\n"):
            ln = ln.strip()
            if not ln:
                continue
            if ln.endswith(":") or ln.startswith("."):
                self.L.append(ln)
            else:
                self.L.append("  " + ln)

    def lab(self, l):
        return f"L{self.name[:2]}_{l}"

    def label(self, l):
        self.L.append(self.lab(l) + ":")

    def srd(self, d, p, nbytes):
        self(f"s_mov_b32 s{d}, s{p}\ns_mov_b32 s{d+1}, s{p+1}\ns_mov_b32 s{d+2}, {nbytes:#x}\ns_mov_b32 s{d+3}, 0x20000")

    NM = 14
    MB = 64
    def stamp_start(self):
        if self.diag:
            self("s_memrealtime s[96:97]\ns_memtime s[92:93]")
            for i in range(self.nm):
                self(f"s_mov_b64 s[{self.mb+2*i}:{self.mb+1+2*i}], 0")

    def mark(self, i):
        if self.diag:
            assert i < self.nm - 1
            self(f"s_memtime s[{self.mb+2*i}:{self.mb+1+2*i}]")

    def stamp_end(self, ws_srd):
        if self.diag:
            e = self.mb + 2 * (self.nm - 1)
            self(f"""
s_memtime s[{e}:{e+1}]
s_waitcnt vmcnt(0) lgkmcnt(0)
s_memrealtime s[98:99]
s_memtime s[100:101]
s_mov_b64 exec, 1
s_waitcnt lgkmcnt(0)
s_lshl_b32 s94, s2, 4
s_add_u32 s94, s94, s95
s_lshl_b32 s94, s94, 7
s_add_u32 s94, s94, {STAMPOFF + self.idx * 0x100000}
s_sub_u32 s100, s100, s92
v_mov_b32 v0, 0
v_mov_b32 v4, s96
v_mov_b32 v5, s98
v_mov_b32 v6, s100
v_mov_b32 v7, 1
v_mov_b32 v8, s95
v_mov_b32 v9, {self.nm}
""")
            for i in range(14):
                if i < self.nm:
                    self(f"s_sub_u32 s{self.mb+2*i}, s{self.mb+2*i}, s92\nv_mov_b32 v{10+i}, s{self.mb+2*i}")
                else:
                    self(f"v_mov_b32 v{10+i}, 0")
            for i in range(5):
                self(f"buffer_store_dwordx4 v[{4+4*i}:{7+4*i}], v0, s[{ws_srd}:{ws_srd+3}], s94 offen offset:{16*i}")
            self("s_waitcnt vmcnt(0)")

    def code_l2(self, lab0, lab1, nmax, vt, sp, lane="v0"):
        u = f"Lpc{self.name[:2]}{len(self.L)}"
        self(f"""
s_getpc_b64 s[{sp}:{sp+1}]
{u}:
s_add_u32 s{sp}, s{sp}, {lab0}-{u}
s_addc_u32 s{sp+1}, s{sp+1}, ({lab0}-{u})>>32
v_lshlrev_b32 v{vt}, 7, {lane}
""")
        for i in range(nmax):
            self(f"v_min_u32 v{vt+1}, {lab1}-{lab0}-4, v{vt}\nglobal_load_dword v{vt+2}, v{vt+1}, s[{sp}:{sp+1}]")
            if i + 1 < nmax:
                self(f"v_add_u32 v{vt}, 8192, v{vt}")

    def kd_touch(self, names, vt, sp):
        self(f"v_mov_b32 v{vt}, 0")
        for n in names:
            self(f"""
s_getpc_b64 s[{sp}:{sp+1}]
s_add_u32 s{sp}, s{sp}, Ldesc_{n}@rel32@lo+4
s_addc_u32 s{sp+1}, s{sp+1}, Ldesc_{n}@rel32@hi+12
global_load_dword v{vt+1}, v{vt}, s[{sp}:{sp+1}]
""")

    def text(self):
        accum = self.accum if self.accum is not None else min(256, (self.vgpr + 3) // 4 * 4)
        t = f".globl {self.name}\n.p2align 8\n.type {self.name},@function\n{self.name}:\n"
        t += "\n".join(self.L) + "\n"
        t += f""".section .rodata,"a"
.p2align 6
Ldesc_{self.name}:
.amdhsa_kernel {self.name}
  .amdhsa_next_free_vgpr {self.vgpr}
  .amdhsa_next_free_sgpr {self.sgpr}
  .amdhsa_accum_offset {accum}
  .amdhsa_group_segment_fixed_size 0
  .amdhsa_kernarg_size 80
  .amdhsa_user_sgpr_count 2
  .amdhsa_user_sgpr_kernarg_segment_ptr 1
  .amdhsa_system_sgpr_workgroup_id_x 1
.end_amdhsa_kernel
.text
"""
        return t

    def launch(self):
        return f"; @launch kernel={self.name} grid=({self.grid},1,1) block=({self.block},1,1) lds={self.lds}\n"


def interleave(main, fill, per=1, start=0):
    out = []
    fi = 0
    for i, m in enumerate(main):
        out.append(m)
        if i >= start:
            for _ in range(per):
                if fi < len(fill):
                    out.append(fill[fi]); fi += 1
    out.extend(fill[fi:])
    return out
```

```python
from common import *
from prep import *

SLOT = 34816
XB = 16384
EXCH = 4 * SLOT
QSCALE = (DH ** -0.5) * math.log2(math.e)
NAUX = 64

def gen_ka(diag=False, st="sc1", NS=3, rot="4", l2=True, kdt=True, nxt=("kb_kernel", "kc_kernel", "kd_kernel", "ke_kernel"), l2end="Lkb_end", l2n=2):
    if rot == "full":
        ROT = """s_lshl_b32 s25, s42, 1
s_mul_i32 s40, s40, 7
s_add_u32 s25, s25, s40
s_lshr_b32 s40, s26, 1
s_add_u32 s25, s25, s40
s_and_b32 s40, s26, 1
s_mul_i32 s40, s40, 3
s_add_u32 s25, s25, s40
s_mul_i32 s40, s25, 7282
s_lshr_b32 s40, s40, 16
s_mul_i32 s40, s40, 9
s_sub_u32 s25, s25, s40"""
    elif rot == "3":
        ROT = """s_add_u32 s25, s42, s40
s_mul_i32 s40, s25, 21846
s_lshr_b32 s40, s40, 16
s_mul_i32 s40, s40, 3
s_sub_u32 s25, s25, s40
s_mul_i32 s25, s25, 3"""
    elif rot == "4":
        ROT = """s_add_u32 s25, s42, s40
s_and_b32 s25, s25, 3
s_mul_i32 s25, s25, 9
s_lshr_b32 s25, s25, 2"""
    elif rot == "2":
        ROT = """s_add_u32 s25, s42, s40
s_and_b32 s25, s25, 1
s_mul_i32 s25, s25, 4"""
    else:
        ROT = "s_mov_b32 s25, 0"
    global EXCH
    EXCH = NS * SLOT
    k = Kern("ka_kernel", 192 + NAUX, 512, EXCH + 512, vgpr=224, idx=0, diag=diag)
    k.stamp_start()
    XV0, XV1 = 1, 2
    WV = 3
    XR = 8
    WR = 10
    XA = 15
    WA = 17
    LT, LG = 22, 23
    ONE = 24
    WF = [28, 64]
    XF = [100, 108]
    ACC = 116
    CS = 188
    SUM = 200
    GR = 208
    T0 = 216
    k(f"""
s_cmp_ge_u32 s2, {192 + NAUX}
s_cbranch_scc1 {k.lab('end')}
s_load_dwordx4 s[28:31], s[0:1], {ARG_X}
s_load_dwordx2 s[32:33], s[0:1], {ARG_WO}
s_load_dwordx2 s[34:35], s[0:1], {ARG_WS}
v_lshrrev_b32 v1, 6, v0
v_and_b32 v0, 63, v0
v_readfirstlane_b32 s95, v1
v_and_b32 v{LT}, 15, v0
v_lshrrev_b32 v{LG}, 4, v0
s_and_b32 s16, s95, 3
s_and_b32 s26, s2, 7
s_lshr_b32 s27, s2, 3
s_lshr_b32 s17, s26, 1
s_lshl_b32 s17, s17, 2
s_and_b32 s40, s27, 3
s_add_u32 s17, s17, s40          ; rb
s_and_b32 s18, s26, 1
s_mul_i32 s18, s18, 6
s_lshr_b32 s42, s27, 2
s_add_u32 s18, s18, s42          ; nb
s_lshl_b32 s41, s17, 2
s_add_u32 s41, s41, s16
s_lshl_b32 s49, s16, 12
s_cmp_lt_u32 s95, 4
s_cbranch_scc1 {k.lab('cons')}
s_cmp_ge_u32 s2, 192
s_cbranch_scc1 {k.lab('cons')}
; ---- producer ----
{ROT}
s_mul_i32 s19, s41, {32*1152}
s_mul_i32 s20, s18, 288
v_lshrrev_b32 v{T0}, 3, v0
v_mul_u32_u24 v{T0}, 1152, v{T0}
v_and_b32 v{T0+1}, 7, v0
v_xor_b32 v{T0+1}, v{T0+1}, v{LG}
v_lshl_add_u32 v{XV0}, v{T0+1}, 4, v{T0}
v_xor_b32 v{T0+1}, 4, v{T0+1}
v_lshl_add_u32 v{XV1}, v{T0+1}, 4, v{T0}
""")
    for n in range(5):
        k(f"s_add_u32 s{44+n}, s16, {4*n}")
        if n == 4:
            k(f"s_add_u32 s42, s16, 12\ns_cmp_ge_u32 s48, 18\ns_cselect_b32 s48, s42, s48")
        k(f"""
s_lshl_b32 s42, s{44+n}, 6
v_add_u32 v{T0}, s42, v0
v_mul_u32_u24 v{T0+1}, 3641, v{T0}
v_lshrrev_b32 v{T0+1}, 16, v{T0+1}
v_mul_u32_u24 v{T0+2}, 18, v{T0+1}
v_sub_u32 v{T0+2}, v{T0}, v{T0+2}
v_and_b32 v{T0+3}, 0x33, v{T0+1}
v_and_b32 v{T0+4}, 4, v{T0+1}
v_lshl_or_b32 v{T0+3}, v{T0+4}, 1, v{T0+3}
v_bfe_u32 v{T0+4}, v{T0+1}, 3, 1
v_lshl_or_b32 v{T0+3}, v{T0+4}, 2, v{T0+3}
v_mul_u32_u24 v{T0+3}, 3456, v{T0+3}
v_lshl_add_u32 v{WV+n}, v{T0+2}, 4, v{T0+3}
s_lshl_b32 s{44+n}, s{44+n}, 10
s_add_u32 s{44+n}, s{44+n}, {XB}
""")
    k("s_waitcnt lgkmcnt(0)")
    k.srd(4, 28, S * D * 2)
    k.srd(8, 30, D * 3 * D * 2)
    if diag:
        k.srd(12, 34, WS_BYTES)
    k.mark(0)
    k("s_mov_b32 s23, 0\ns_mov_b32 s24, 0")
    k.label("ploop")
    k(f"""
s_lshl_b32 s21, s25, 7
s_add_u32 s21, s21, s19
s_mul_i32 s22, s25, {64*3456}
s_add_u32 s22, s22, s20
s_add_u32 s50, s49, s23
""")
    for n in range(4):
        k(f"s_add_u32 m0, s50, {n*1024}\ns_add_u32 s51, s21, {n*8*1152}\nbuffer_load_dwordx4 v{XV0 + (n & 1)}, s[4:7], s51 offen lds")
    for n in range(5):
        k(f"s_add_u32 m0, s{44+n}, s23\ns_nop 0\nbuffer_load_dwordx4 v{WV+n}, s[8:11], s22 offen lds")
    k(f"""
s_add_u32 s25, s25, 1
s_cmp_ge_u32 s25, 9
s_cselect_b32 s25, 0, s25
s_add_u32 s23, s23, {SLOT}
s_cmp_ge_u32 s23, {NS*SLOT}
s_cselect_b32 s23, 0, s23
s_add_u32 s24, s24, 1
s_cmp_eq_u32 s24, 1
s_cbranch_scc1 {k.lab('ploop')}
s_waitcnt vmcnt(9)
s_barrier
s_cmp_lt_u32 s24, 9
s_cbranch_scc1 {k.lab('ploop')}
s_waitcnt vmcnt(0)
s_barrier
s_branch {k.lab('fin')}
""")
    k.label("cons")
    if l2:
        k.code_l2("ka_kernel", l2end, l2n, 5, 66)
    if kdt:
        k.kd_touch(nxt, 6, 66)
    k(f"""
v_mov_b32 v{ONE}, 0x3f803f80
v_mov_b32 v{ONE+1}, 0x3f803f80
v_mov_b32 v{ONE+2}, 0x3f803f80
v_mov_b32 v{ONE+3}, 0x3f803f80
s_waitcnt lgkmcnt(0)
""")
    k.srd(12, 34, WS_BYTES)
    k.srd(36, 32, D * D * 2)
    k(f"""
s_cmp_ge_u32 s2, 192
s_cbranch_scc1 {k.lab('aux')}
s_lshr_b32 s19, s18, 2           ; which
s_and_b32 s20, s18, 3            ; hg
v_lshrrev_b32 v{T0}, 1, v{LT}
v_xor_b32 v{T0}, v{T0}, v{LG}
v_lshlrev_b32 v{T0}, 4, v{T0}
v_lshl_add_u32 v{T0}, v{LT}, 7, v{T0}
v_add_u32 v{XR}, s49, v{T0}
v_xor_b32 v{XR+1}, 64, v{XR}
v_lshrrev_b32 v{T0}, 5, v0
v_lshlrev_b32 v{T0}, 4, v{T0}
v_and_b32 v{T0+1}, 1, v{LG}
v_lshl_add_u32 v{T0}, v{T0+1}, 2, v{T0}
v_bfe_u32 v{T0+1}, v0, 2, 2
v_add_u32 v{T0}, v{T0}, v{T0+1}
v_mul_u32_u24 v{T0}, 288, v{T0}
v_add_u32 v{T0}, {XB}, v{T0}
v_bfe_u32 v{T0+1}, v0, 1, 1
v_mul_u32_u24 v{T0+1}, 40, v{T0+1}
v_and_b32 v{T0+2}, 1, v0
v_lshl_add_u32 v{T0+1}, v{T0+2}, 4, v{T0+1}
v_add_u32 v{T0+1}, v{T0}, v{T0+1}
v_and_b32 v{T0+2}, 3, v0
v_mul_u32_u24 v{T0+2}, 72, v{T0+2}
v_add3_u32 v{WR+4}, v{T0}, v{T0+2}, 32
""")
    for j in range(4):
        k(f"s_add_u32 s{52+j}, s16, {j}\ns_and_b32 s{52+j}, s{52+j}, 3\ns_mul_i32 s42, s{52+j}, 72\nv_add_u32 v{WR+j}, s42, v{T0+1}")
    for i in range(ACC, GR + 8):
        k(f"v_mov_b32 v{i}, 0")
    for i in range(2):
        k(f"v_mov_b32 v{XA+i}, v{XR+i}")
    for i in range(5):
        k(f"v_mov_b32 v{WA+i}, v{WR+i}")

    def reads(ks, buf):
        r = []
        for T in range(2):
            r.append(f"ds_read_b128 {v(XF[buf]+4*T,4)}, v{XA+ks} offset:{T*2048}")
        for t in range(9):
            for i in range(2):
                off = ks * 32 * 288 + i * 8 * 288 + ((t & 1) * 8 if t < 8 else 0)
                r.append(f"ds_read_b64_tr_b16 {v(WF[buf]+4*t+2*i,2)}, v{WA + t//2} offset:{off}")
        return r

    def mfmas(buf):
        m = []
        M = "v_mfma_f32_16x16x32_bf16"
        for T in range(2):
            x = v(XF[buf]+4*T, 4)
            m.append(f"{M} {v(SUM+4*T,4)}, {v(ONE,4)}, {x}, {v(SUM+4*T,4)}")
            m.append(f"{M} {v(GR+4*T,4)}, {x}, {x}, {v(GR+4*T,4)}")
        for t in range(9):
            w = v(WF[buf]+4*t, 4)
            for T in range(2):
                d = v(ACC + (2*t+T)*4, 4)
                m.append(f"{M} {d}, {w}, {v(XF[buf]+4*T,4)}, {d}")
            if t in (0, 1, 8):
                d = v(CS + (t if t < 8 else 2)*4, 4)
                m.append(f"{M} {d}, {w}, {v(ONE,4)}, {d}")
        return m

    k.mark(1)
    k("s_barrier")
    k.mark(2)
    for r in reads(0, 0):
        k(r)
    k("s_mov_b32 s24, 0\ns_mov_b32 s25, 0")
    k(".p2align 6")
    k.label("loop")
    k("s_waitcnt lgkmcnt(0)")
    for x in interleave(mfmas(0), reads(1, 1), per=2):
        k(x)
    k(f"""
s_add_u32 s24, s24, {SLOT}
s_cmp_ge_u32 s24, {NS*SLOT}
s_cselect_b32 s24, 0, s24
""")
    for i in range(2):
        k(f"v_add_u32 v{XA+i}, s24, v{XR+i}")
    for i in range(5):
        k(f"v_add_u32 v{WA+i}, s24, v{WR+i}")
    k(f"""
s_add_u32 s25, s25, 1
s_waitcnt lgkmcnt(0)
s_barrier
""")
    for x in interleave(mfmas(1), reads(0, 0), per=2):
        k(x)
    k(f"""
s_cmp_lt_u32 s25, 9
s_cbranch_scc1 {k.lab('loop')}
""")
    k.mark(3)
    RS = 28
    CSX = 32
    VO, VX = 56, 57
    PK = 60
    k(f"""
s_waitcnt lgkmcnt(0)
s_lshl_b32 s42, s16, 7
s_add_u32 s42, s42, {EXCH}
v_lshlrev_b32 v{T0}, 5, v{LG}
v_add_u32 v{T0+1}, s42, v{T0}
s_nop 4
ds_write_b128 v{T0+1}, {v(CS,4)}
ds_write_b128 v{T0+1}, {v(CS+4,4)} offset:16
; stats
v_and_b32 v{T0+2}, 1, v0
v_cmp_eq_u32 s[56:57], 1, v{T0+2}
v_and_b32 v{T0+2}, 2, v0
v_cmp_eq_u32 s[58:59], 2, v{T0+2}
v_lshrrev_b32 v{T0+2}, 2, v{LT}
v_cmp_eq_u32 s[60:61], v{T0+2}, v{LG}
s_cmp_eq_u32 s19, 0
s_cselect_b32 s62, {f2u(QSCALE):#x}, 1.0
s_mov_b32 s63, {f2u(1.0/D):#x}
s_mov_b32 s64, {f2u(1e-5):#x}
""")
    for T in range(2):
        g = GR + 4*T
        k(f"""
v_cndmask_b32 v{g}, v{g}, v{g+1}, s[56:57]
v_cndmask_b32 v{g+2}, v{g+2}, v{g+3}, s[56:57]
v_cndmask_b32 v{g}, v{g}, v{g+2}, s[58:59]
v_cndmask_b32 v{g}, 0, v{g}, s[60:61]
v_mov_b32 v{g+1}, v{g}
s_nop 1
v_permlane16_swap_b32 v{g}, v{g+1}
v_add_f32 v{g}, v{g}, v{g+1}
v_mov_b32 v{g+1}, v{g}
s_nop 1
v_permlane32_swap_b32 v{g}, v{g+1}
v_add_f32 v{g}, v{g}, v{g+1}
v_mul_f32 v{SUM+4*T}, s63, v{SUM+4*T}
v_mul_f32 v{g+1}, v{SUM+4*T}, v{SUM+4*T}
v_fma_f32 v{g}, v{g}, s63, -v{g+1}
v_max_f32 v{g}, 0, v{g}
v_add_f32 v{g}, s64, v{g}
v_rsq_f32 v{g}, v{g}
s_nop 0
v_mul_f32 v{RS+2*T}, s62, v{g}
v_mul_f32 v{RS+2*T+1}, v{RS+2*T}, -v{SUM+4*T}
""")
    k(f"""
s_mov_b32 s65, {KVHEAD}
s_mov_b32 s66, {KVBLK}
s_mov_b32 s70, {KV_K2}
s_mov_b32 s69, 512
s_cmp_eq_u32 s19, 0
s_cselect_b32 s65, {QHEAD}, s65          ; HS
s_cselect_b32 s66, {QBLK}, s66           ; BS
s_cselect_b32 s67, {QOFF}, {KVOFF}       ; base
s_cselect_b32 s70, 1024, s70             ; cx
s_cmp_eq_u32 s19, 2
s_cselect_b32 s68, {KV_V0}, 0            ; c0
s_cselect_b32 s69, {KV_V1-KV_V0}, s69    ; c1-c0
s_cselect_b32 s70, {KV_V2}, s70
s_cselect_b32 s71, 3, 2
s_mul_i32 s42, s41, s66
s_add_u32 s67, s67, s42
s_lshl_b32 s42, s20, 3
s_mul_i32 s42, s42, s65
s_add_u32 s67, s67, s42
v_lshrrev_b32 v{T0+2}, 1, v{LG}
v_mul_lo_u32 v{VO}, v{T0+2}, s65
v_and_b32 v{T0+2}, 1, v{LG}
v_mul_lo_u32 v{T0+2}, v{T0+2}, s69
v_lshlrev_b32 v{T0+3}, 4, v{LT}
v_add3_u32 v{VO}, v{VO}, v{T0+2}, v{T0+3}
s_lshl_b32 s42, s65, 1
v_mul_lo_u32 v{VX}, v{LG}, s42
v_lshlrev_b32 v{T0+3}, s71, v{LT}
v_add_u32 v{VX}, v{VX}, v{T0+3}
s_waitcnt lgkmcnt(0)
s_barrier
""")
    for j in range(1, 4):
        k(f"s_lshl_b32 s42, s{52+j}, 7\ns_add_u32 s42, s42, {EXCH}\nv_add_u32 v{T0+1}, s42, v{T0}")
        k(f"ds_read_b128 {v(CSX+8*(j-1),4)}, v{T0+1}\nds_read_b128 {v(CSX+8*(j-1)+4,4)}, v{T0+1} offset:16")
    k(f"""
s_cmp_lg_u32 s18, 0
s_cbranch_scc1 {k.lab('nomu')}
s_lshl_b32 s42, s41, 7
s_add_u32 s42, s42, {MUXOFF}
v_lshlrev_b32 v{T0+2}, 2, v{LT}
s_mov_b64 exec, 0xffff
buffer_store_dword v{SUM}, v{T0+2}, s[12:15], s42 offen {st}
buffer_store_dword v{SUM+4}, v{T0+2}, s[12:15], s42 offen offset:64 {st}
s_mov_b64 exec, -1
""")
    k.label("nomu")

    def fix(acc, cs, T, dst, tmp):
        rs = v(RS+2*T, 2)
        return f"""
v_pk_mul_f32 {v(tmp,2)}, {v(cs,2)}, {rs} op_sel:[0,1] op_sel_hi:[1,1]
v_pk_mul_f32 {v(tmp+2,2)}, {v(cs+2,2)}, {rs} op_sel:[0,1] op_sel_hi:[1,1]
v_pk_fma_f32 {v(tmp,2)}, {v(acc,2)}, {rs}, {v(tmp,2)} op_sel:[0,0,0] op_sel_hi:[1,0,1]
v_pk_fma_f32 {v(tmp+2,2)}, {v(acc+2,2)}, {rs}, {v(tmp+2,2)} op_sel:[0,0,0] op_sel_hi:[1,0,1]
v_cvt_pk_bf16_f32 v{dst}, v{tmp}, v{tmp+1}
v_cvt_pk_bf16_f32 v{dst+1}, v{tmp+2}, v{tmp+3}
"""
    k.mark(4)
    OUT = 76
    for j in range(4):
        if j == 1:
            k("s_waitcnt lgkmcnt(0)")
        cs = CS if j == 0 else CSX + 8*(j-1)
        k(f"s_lshl_b32 s42, s{52+j}, 1\ns_mul_i32 s42, s42, s65\ns_add_u32 s42, s42, s67\ns_add_u32 s42, s42, s68")
        for T in range(2):
            o = OUT + (2*j+T)*4
            for t in range(2):
                k(fix(ACC + (2*(2*j+t)+T)*4, cs + 4*t, T, o + 2*t, PK + 4*t))
            k(f"buffer_store_dwordx4 {v(o,4)}, v{VO}, s[12:15], s42 offen offset:{T*256} {st}")
    XO = 108
    for T in range(2):
        k(fix(ACC + (16+T)*4, CS + 8, T, XO + 4*T, PK + 4*T))
    k(f"""
s_add_u32 s42, s67, s70
s_add_u32 s43, s42, s65
s_cmp_eq_u32 s19, 2
s_cbranch_scc1 {k.lab('xv')}
buffer_store_dword v{XO}, v{VX}, s[12:15], s42 offen {st}
buffer_store_dword v{XO+1}, v{VX}, s[12:15], s43 offen {st}
buffer_store_dword v{XO+4}, v{VX}, s[12:15], s42 offen offset:64 {st}
buffer_store_dword v{XO+5}, v{VX}, s[12:15], s43 offen offset:64 {st}
s_branch {k.lab('fin')}
""")
    k.label("xv")
    k(f"""
v_mov_b32 v{XO+2}, v{XO+1}
v_mov_b32 v{XO+6}, v{XO+5}
v_mov_b32 v{XO+1}, 0x3f80
v_mov_b32 v{XO+3}, 0x3f80
v_mov_b32 v{XO+5}, 0x3f80
v_mov_b32 v{XO+7}, 0x3f80
buffer_store_dwordx2 {v(XO,2)}, v{VX}, s[12:15], s42 offen {st}
buffer_store_dwordx2 {v(XO+2,2)}, v{VX}, s[12:15], s43 offen {st}
buffer_store_dwordx2 {v(XO+4,2)}, v{VX}, s[12:15], s42 offen offset:128 {st}
buffer_store_dwordx2 {v(XO+6,2)}, v{VX}, s[12:15], s43 offen offset:128 {st}
s_branch {k.lab('fin')}
""")
    k.label("aux")
    k(f"""
s_sub_u32 s17, s2, 192
s_lshl_b32 s18, s95, 6
s_add_u32 s17, s17, s18          ; job J 0..511
v_lshlrev_b32 v1, 4, v0
v_mov_b32 v8, 0
v_mov_b32 v9, 0
v_mov_b32 v10, 0
v_mov_b32 v11, 0
s_lshl_b32 s18, s17, 10
s_add_u32 s18, s18, {FBOFF}
buffer_store_dwordx4 v[8:11], v1, s[12:15], s18 offen sc1
s_add_u32 s18, s18, {512*1024}
s_cmp_ge_u32 s18, {FLEND}
s_cselect_b32 s18, {OOB}, s18
buffer_store_dwordx4 v[8:11], v1, s[12:15], s18 offen sc1
s_cmp_ge_u32 s17, 81
s_cbranch_scc1 {k.lab('fin')}
s_cmp_lt_u32 s17, 36
s_cbranch_scc1 {k.lab('wbar')}
s_sub_u32 s18, s17, 36
s_mov_b32 s24, s36
s_mov_b32 s25, s37
s_mov_b32 s26, s38
s_mov_b32 s27, 0x20000
s_mov_b32 s50, 1152
s_mov_b32 s54, 36864
s_mov_b32 s55, 1024
s_mov_b32 s52, {36*1152}
s_mov_b32 s56, 8
s_mov_b32 s57, 20
s_mov_b32 s58, 4
s_mul_i32 s19, s18, 7282
s_lshr_b32 s19, s19, 16          ; kg = r/9
s_mul_i32 s20, s19, 9
s_sub_u32 s20, s18, s20          ; cs
s_mul_i32 s51, s19, {4*36*1152}
s_mul_i32 s53, s19, {4*36864}
s_add_u32 s53, s53, {WOOFF}
s_lshl_b32 s21, s20, 12
s_add_u32 s53, s53, s21
s_cmp_ge_u32 s18, 36
s_cselect_b32 s51, {16*1152}, s51
s_cselect_b32 s52, {288*1152}, s52
s_cselect_b32 s56, 72, s56
s_cselect_b32 s57, 144, s57
s_cselect_b32 s58, 36, s58
s_lshl_b32 s21, s20, 7
s_add_u32 s51, s51, s21
s_lshl_b32 s21, s95, 11
""")
    prep_addr(k, 2, 3, 4, 12, 21)
    prep_loads(k, range(4), 28, 2)
    prep_process(k, 28, 92, 3, 4)
    k(f"s_branch {k.lab('fin')}")
    k.label("wbar")
    k(f"""
s_lshr_b32 s18, s17, 1           ; ks
s_and_b32 s19, s17, 1            ; half
s_mul_i32 s20, s18, 36
s_mul_i32 s21, s19, 20
s_add_u32 s20, s20, s21
v_add_u32 v1, s20, v{LT}
s_sub_u32 s20, s17, 32
s_mul_i32 s20, s20, 144
s_add_u32 s20, s20, 16
v_lshrrev_b32 v2, 2, v{LT}
v_mul_u32_u24 v2, 36, v2
v_and_b32 v3, 3, v{LT}
v_add3_u32 v2, v2, v3, s20
s_cmp_ge_u32 s17, 32
s_cselect_b64 vcc, -1, 0
v_cndmask_b32 v1, v1, v2, vcc
v_mul_u32_u24 v1, 1152, v1
v_lshl_add_u32 v1, v{LG}, 4, v1
""")
    for n in range(18):
        k(f"buffer_load_dwordx4 {v(28+4*n,4)}, v1, s[36:39], 0 offen offset:{n*64}")
    for n in range(18):
        k(f"s_waitcnt vmcnt({17-n})")
        c = "0" if n == 0 else "v[4:7]"
        k(f"v_mfma_f32_16x16x32_bf16 v[4:7], {v(ONE,4)}, {v(28+4*n,4)}, {c}")
    k(f"""
s_mov_b32 s63, {f2u(1.0/D):#x}
s_lshl_b32 s42, s17, 5
s_add_u32 s42, s42, {WBAROFF}
v_lshlrev_b32 v2, 1, v{LT}
s_nop 7
v_mul_f32 v4, s63, v4
v_cvt_pk_bf16_f32 v5, v4, v4
v_and_b32 v6, 0xffff0000, v5
v_sub_f32 v6, v4, v6
v_cvt_pk_bf16_f32 v6, v6, v6
s_mov_b64 exec, 0xffff
buffer_store_short v5, v2, s[12:15], s42 offen
buffer_store_short v6, v2, s[12:15], s42 offen offset:1152
s_mov_b64 exec, -1
""")
    k.label("fin")
    k.stamp_end(12)
    k.label("end")
    k("s_endpgm")
    return k
```

```python
from common import *
from prep import *

SCR = KVHEAD
UB = 36864
HALF = 32 * KVBLK
MRG = 3 * UB - 24576 - 1024
OST = 3 * UB
MUL = 4 * UB
POLLMAX = 400000
M16 = "v_mfma_f32_32x32x16_bf16"
M8 = "v_mfma_f32_32x32x8_bf16"
M = "v_mfma_f32_16x16x32_bf16"


def set_flag(k, soff, vt):
    k(f"""
v_mov_b32 v{vt}, 0
v_mov_b32 v{vt+1}, 1
s_mov_b64 exec, 1
buffer_store_dword v{vt+1}, v{vt}, s[12:15], s{soff} offen sc1
s_mov_b64 exec, -1
""")


def poll(k, name, soff, voff, vt, cnt_s, sleep=1):
    k(f"s_mov_b32 s{cnt_s}, 0")
    k.label(name)
    k(f"""
buffer_load_dword v{vt}, v{voff}, s[12:15], s{soff} offen sc1
s_add_u32 s{cnt_s}, s{cnt_s}, 1
s_waitcnt vmcnt(0)
v_cmp_eq_u32 vcc, 0, v{vt}
s_cmp_ge_u32 s{cnt_s}, {POLLMAX}
s_cbranch_scc1 {k.lab(name + 'x')}
s_cbranch_vccz {k.lab(name + 'x')}
s_sleep {sleep}
s_branch {k.lab(name)}
""")
    k.label(name + "x")


def gen_km(diag=False, U=4, upto=9, ld="sc1"):
    k = Kern("km_kernel", 256, 512, 163840, vgpr=256, idx=1, diag=diag, nm=14, mb=64)
    k.stamp_start()
    AK1, AK2, AV = 2, 3, 4
    BK1 = 8
    SS = [16, 32]
    OO = [48, 96]
    P, K1, K2, V0, V1 = 64, 72, 76, 80, 84
    Q1 = [88, 112]
    Q2 = [92, 116]
    T0 = 118
    DAT, FR, PVS, PVW, PVR = 128, 192, 224, 225, 226
    k(f"""
s_cmp_ge_u32 s2, 256
s_cbranch_scc1 {k.lab('end')}
s_load_dwordx2 s[34:35], s[0:1], {ARG_WS}
s_load_dwordx2 s[28:29], s[0:1], {ARG_X}
s_load_dwordx4 s[40:43], s[0:1], {ARG_WG}
s_load_dwordx4 s[44:47], s[0:1], {ARG_WD}
v_lshrrev_b32 v1, 6, v0
v_and_b32 v0, 63, v0
v_readfirstlane_b32 s16, v1
v_lshlrev_b32 v1, 4, v0
s_and_b32 s17, s2, 7
s_lshl_b32 s17, s17, 2
s_bfe_u32 s18, s2, 0x20003
s_add_u32 s17, s17, s18          ; head
s_mov_b32 s95, s16
s_lshr_b32 s18, s2, 5
s_lshl_b32 s18, s18, 3
s_and_b32 s19, s16, 3
s_lshl_b32 s19, s19, 1
s_add_u32 s18, s18, s19
s_lshr_b32 s33, s16, 2           ; kh
s_mul_i32 s19, s17, {QHEAD}
s_mul_i32 s22, s18, {QBLK}
s_add_u32 s19, s19, s22
s_add_u32 s19, s19, {QOFF}
s_mul_i32 s22, s17, {KVHEAD}
s_lshl_b32 s23, s16, 10
v_and_b32 v{T0}, 31, v0
v_lshlrev_b32 v{T0+1}, 2, v{T0}
s_waitcnt lgkmcnt(0)
""")
    k.srd(12, 34, WS_BYTES)
    def piece(off, base="s23"):
        return f"s_add_u32 m0, {base}, {off}\ns_add_u32 s24, s22, m0\nbuffer_load_dwordx4 v1, s[12:15], s24 offen lds"
    k(piece(0))
    k(f"""
buffer_load_dwordx4 {v(Q1[0],4)}, v1, s[12:15], s19 offen
buffer_load_dword v{Q2[0]}, v{T0+1}, s[12:15], s19 offen offset:1024
buffer_load_dwordx4 {v(Q1[1],4)}, v1, s[12:15], s19 offen offset:{QBLK}
buffer_load_dword v{Q2[1]}, v{T0+1}, s[12:15], s19 offen offset:{QBLK+1024}
""")
    k(piece(8192)); k(piece(16384))
    assert (2 * U + 1) * KVBLK <= 24576
    k(f"""
v_and_b32 v{T0+1}, 0x13, v{T0}
v_and_b32 v{T0+2}, 4, v{T0}
v_lshl_or_b32 v{T0+1}, v{T0+2}, 1, v{T0+1}
v_bfe_u32 v{T0+2}, v{T0}, 3, 1
v_lshl_or_b32 v{T0+1}, v{T0+2}, 2, v{T0+1}
v_lshrrev_b32 v{T0+2}, 5, v0
v_lshlrev_b32 v{T0+3}, 9, v{T0+2}
v_lshl_add_u32 v{BK1}, v{T0+1}, 4, v{T0+3}
v_lshlrev_b32 v{BK1+1}, 2, v{T0+1}
v_add_u32 v{BK1+1}, {KV_K2}, v{BK1+1}
v_bfe_u32 v{T0+3}, v0, 2, 2
v_lshl_add_u32 v{T0+3}, v{T0+2}, 3, v{T0+3}
v_and_b32 v{T0+4}, 1, v0
v_mul_u32_u24 v{T0+4}, {KV_V1-KV_V0}, v{T0+4}
v_bfe_u32 v{T0+5}, v0, 1, 1
v_lshl_add_u32 v{T0+4}, v{T0+5}, 3, v{T0+4}
v_add_u32 v{T0+4}, {KV_V0}, v{T0+4}
v_and_b32 v{T0+5}, 16, v0
v_cmp_eq_u32 vcc, 16, v{T0+5}
""")
    for m in range(2):
        for i in range(2):
            k(f"""
v_add_u32 v{T0+5}, {16*m+4*i}, v{T0+3}
v_lshl_add_u32 v{T0+6}, v{T0+5}, 4, v{T0+4}
v_lshlrev_b32 v{T0+5}, 3, v{T0+5}
v_add_u32 v{T0+5}, {KV_V2}, v{T0+5}
v_cndmask_b32 v{BK1+2+2*m+i}, v{T0+6}, v{T0+5}, vcc
""")
    k(f"""
v_mov_b32 v{K2+1}, 0x3f803f80
v_cmp_gt_u32 s[30:31], 32, v0
s_mul_i32 s32, s33, {HALF}
s_mov_b32 s48, 1
s_mov_b32 s21, 2
s_mov_b32 s36, s46
s_mov_b32 s37, s47
s_waitcnt vmcnt(0)
s_barrier
""")
    k.mark(0)
    k(f"""
v_cndmask_b32 v{Q2[0]}, 0, v{Q2[0]}, s[30:31]
v_cndmask_b32 v{Q2[1]}, 0, v{Q2[1]}, s[30:31]
s_setprio 1
s_cmp_eq_u32 s33, 0
s_cbranch_scc1 {k.lab('restart')}
s_setprio 0
s_mov_b32 s21, 99
s_add_u32 s23, s23, {24576 - 4096}
""")
    k.label("kv")
    k(piece(0))
    k(f"""
s_add_u32 s23, s23, 4096
s_cmp_lt_u32 s23, {KVHEAD}
s_cbranch_scc1 {k.lab('kv')}
s_waitcnt vmcnt(0)
s_barrier
""")
    k.label("restart")
    k(f"""
v_mov_b32 v{Q2[0]+1}, 0
v_mov_b32 v{Q2[1]+1}, 0
v_mov_b32 v{T0}, 0xff800000
v_mov_b32 v{T0+1}, 0xff800000
v_mov_b32 v{AK1}, v{BK1}
v_mov_b32 v{AK2}, v{BK1+1}
s_mov_b32 s20, s48
""")
    k.label("mx")
    k(f"""
ds_read_b128 {v(K1,4)}, v{AK1}
ds_read_b32 v{K2}, v{AK2}
v_add_u32 v{AK1}, {KVBLK}, v{AK1}
v_add_u32 v{AK2}, {KVBLK}, v{AK2}
s_waitcnt lgkmcnt(0)
{M16} {v(SS[0],16)}, {v(K1,4)}, {v(Q1[0],4)}, 0
{M8} {v(SS[0],16)}, {v(K2,2)}, {v(Q2[0],2)}, {v(SS[0],16)}
{M16} {v(SS[1],16)}, {v(K1,4)}, {v(Q1[1],4)}, 0
{M8} {v(SS[1],16)}, {v(K2,2)}, {v(Q2[1],2)}, {v(SS[1],16)}
s_sub_u32 s20, s20, 1
s_nop 8
""")
    for q in range(2):
        for i in range(8):
            k(f"v_max3_f32 v{T0+q}, v{T0+q}, v{SS[q]+2*i}, v{SS[q]+2*i+1}")
    k(f"""
s_cmp_lg_u32 s20, 0
s_cbranch_scc1 {k.lab('mx')}
v_mov_b32 v{T0+2}, v{T0}
v_mov_b32 v{T0+3}, v{T0+1}
""")
    for i in range(6):
        k(f"v_add_u32 v{AK1+i}, s32, v{BK1+i}")
    k(f"""
v_permlane32_swap_b32 v{T0}, v{T0+2}
v_permlane32_swap_b32 v{T0+1}, v{T0+3}
ds_read_b128 {v(K1,4)}, v{AK1}
ds_read_b32 v{K2}, v{AK2}
ds_read_b64_tr_b16 {v(V0,2)}, v{AV}
ds_read_b64_tr_b16 {v(V0+2,2)}, v{AV+1}
""")
    for q in range(2):
        k(f"""
v_max_f32 v{T0+q}, v{T0+q}, v{T0+2+q}
v_sub_f32 v{T0+q}, 0, v{T0+q}
v_cvt_pk_bf16_f32 v{T0+4}, v{T0+q}, v{T0+q}
v_and_b32 v{T0+4}, 0xffff0000, v{T0+4}
v_sub_f32 v{T0+5}, v{T0+q}, v{T0+4}
v_cvt_pk_bf16_f32 v{T0+4}, v{T0+4}, v{T0+5}
v_cndmask_b32 v{Q2[q]+1}, 0, v{T0+4}, s[30:31]
""")
    k(f"""
s_waitcnt lgkmcnt(0)
{M16} {v(SS[0],16)}, {v(K1,4)}, {v(Q1[0],4)}, 0
{M8} {v(SS[0],16)}, {v(K2,2)}, {v(Q2[0],2)}, {v(SS[0],16)}
""")
    for q in range(2):
        for i in range(16):
            k(f"v_mov_b32 v{OO[q]+i}, 0")
    for i in range(4):
        k(f"v_mov_b32 v{P+4+i}, 0\nv_mov_b32 v{V1+i}, 0")
    k.mark(1)
    k(".p2align 6")
    k.label("loop")
    for t in range(U):
        for ph in range(2):
            cur, nxt = SS[ph], SS[1-ph]
            Oc, Op = OO[ph], OO[1-ph]
            e = lambda i: f"v_exp_f32 v{cur+i}, v{cur+i}"
            c = lambda i: f"v_cvt_pk_bf16_f32 v{P+i}, v{cur+2*i}, v{cur+2*i+1}"
            rdV1 = f"ds_read_b64_tr_b16 {v(V1,2)}, v{AV+2} offset:{t*KVBLK}\nds_read_b64_tr_b16 {v(V1+2,2)}, v{AV+3} offset:{t*KVBLK}" if ph == 0 else ""
            rdK1 = f"ds_read_b128 {v(K1,4)}, v{AK1} offset:{(t+1)*KVBLK}" if ph == 0 else ""
            rdK2 = f"ds_read_b32 v{K2}, v{AK2} offset:{(t+1)*KVBLK}" if ph == 0 else ""
            rdV0 = f"ds_read_b64_tr_b16 {v(V0,2)}, v{AV} offset:{(t+1)*KVBLK}\nds_read_b64_tr_b16 {v(V0+2,2)}, v{AV+1} offset:{(t+1)*KVBLK}" if ph == 1 else ""
            wA = "s_waitcnt lgkmcnt(0)" if ph == 1 else ""
            wD = "s_waitcnt lgkmcnt(4)" if ph == 0 else ""
            k(f"""
{e(0)}
{e(1)}
{wA}
{M16} {v(Op,16)}, {v(V1,4)}, {v(P+4,4)}, {v(Op,16)}
{rdV1}
{e(2)}
{e(3)}
{c(0)}
{c(1)}
{e(4)}
{e(5)}
{M16} {v(nxt,16)}, {v(K1,4)}, {v(Q1[1-ph],4)}, 0
{rdK1}
{e(6)}
{e(7)}
{c(2)}
{c(3)}
{e(8)}
{e(9)}
{M8} {v(nxt,16)}, {v(K2,2)}, {v(Q2[1-ph],2)}, {v(nxt,16)}
{rdK2}
{e(10)}
{e(11)}
{c(4)}
{c(5)}
{e(12)}
{e(13)}
{wD}
{M16} {v(Oc,16)}, {v(V0,4)}, {v(P,4)}, {v(Oc,16)}
{rdV0}
{e(14)}
{e(15)}
{c(6)}
{c(7)}
""")
    for i in range(6):
        k(f"v_add_u32 v{AK1+i}, {U*KVBLK}, v{AK1+i}")
    k(f"""
s_add_u32 s20, s20, 1
s_cmp_eq_u32 s20, s21
s_cbranch_scc1 {k.lab('stub')}
s_cmp_lt_u32 s20, {32//U}
s_cbranch_scc1 {k.lab('loop')}
{M16} {v(OO[1],16)}, {v(V1,4)}, {v(P+4,4)}, {v(OO[1],16)}
""")
    k.mark(2)
    k(f"""
s_setprio 0
s_and_b32 s38, s2, 7
s_lshl_b32 s38, s38, 3
s_bfe_u32 s39, s2, 0x30003
s_add_u32 s38, s38, s39
s_lshr_b32 s39, s2, 6
s_mul_i32 s49, s39, 9
s_lshl_b32 s19, s16, 1
s_add_u32 s49, s49, s19
s_waitcnt lgkmcnt(0)
s_cmp_lg_u32 s21, 98
s_cbranch_scc1 {k.lab('x1')}
s_mov_b32 s21, 99
s_cmp_ge_u32 s61, 972
s_cbranch_scc1 {k.lab('pdone')}
""")
    prep_process(k, DAT, FR, PVW, PVR)
    k.label("pdone")
    k(f"s_lshl_b32 s59, s61, 2\ns_add_u32 s59, s59, {FPOFF}\ns_waitcnt vmcnt(0)")
    set_flag(k, 59, T0 + 6)
    WC = 112
    def wcreg(ks, sl):
        i = 2 * ks + sl
        return 128 + 4 * i if i < 32 else WC + 4 * (i - 32)
    k(f"s_lshl_b32 s59, s49, 10\ns_add_u32 s59, s59, {WOOFF}")
    for ks in range(16):
        for sl in range(2):
            k(f"buffer_load_dwordx4 {v(wcreg(ks,sl),4)}, v1, s[12:15], s59 offen offset:{sl*1024}")
        k("s_add_u32 s59, s59, 36864")
    k(f"s_lshl_b32 s59, s16, 10\ns_add_u32 s59, s59, {FPOFF}\ns_mov_b32 s60, 0")
    k.label("fp")
    k(f"""
buffer_load_dwordx4 {v(K1,4)}, v1, s[12:15], s59 offen sc1
s_add_u32 s60, s60, 1
s_waitcnt vmcnt(0)
v_min_u32 v{K1}, v{K1}, v{K1+1}
v_min3_u32 v{K1}, v{K1}, v{K1+2}, v{K1+3}
v_cmp_eq_u32 vcc, 0, v{K1}
s_cmp_ge_u32 s60, {POLLMAX}
s_cbranch_scc1 {k.lab('x1')}
s_cbranch_vccz {k.lab('x1')}
s_sleep 8
s_branch {k.lab('fp')}
""")
    k.label("x1")
    k(f"""
s_bfe_u32 s8, s2, 0x10002
s_lshl_b32 s8, s8, 2
s_bfe_u32 s9, s2, 0x20003
s_add_u32 s8, s8, s9
s_and_b32 s9, s2, 3
s_lshl_b32 s9, s9, 3
s_lshr_b32 s10, s2, 5
s_add_u32 s9, s9, s10
s_mul_i32 s10, s9, {9*UB}
s_add_u32 s10, s10, {WGUOFF}
s_mov_b32 s26, {f2u(2.0**60):#x}
v_add_f32 v{T0+1}, v{OO[0]+10}, v{OO[1]+10}
s_mul_i32 s19, s16, 3072
s_add_u32 s19, s19, {MRG + 1024}
v_add_u32 v{T0+2}, s19, v1
v_cmp_ngt_f32 vcc, s26, v{T0+1}
s_xor_b32 s19, s16, 4
s_mul_i32 s19, s19, 3072
s_add_u32 s19, s19, {MRG + 1024}
v_add_u32 v{T0+3}, s19, v1
s_lshl_b32 s19, s16, 2
s_add_u32 s19, s19, {MRG}
v_mov_b32 v{T0+4}, s19
s_cmp_lg_u64 vcc, 0
s_cselect_b32 s19, 1, 0
v_mov_b32 v{T0+5}, s19
""")
    k.mark(3)
    k(f"""
s_barrier
ds_write_b32 v{T0+4}, v{T0+5}
s_cmp_eq_u32 s33, 0
s_cbranch_scc1 {k.lab('sendb')}
""")
    for j in range(3):
        k(f"ds_write_b128 v{T0+2}, {v(OO[0]+4*j,4)} offset:{j*1024}")
    for i in range(11):
        k(f"v_mov_b32 v{SS[0]+i}, v{OO[1]+i}")
    k(f"s_branch {k.lab('sent')}")
    k.label("sendb")
    for j in range(3):
        k(f"ds_write_b128 v{T0+2}, {v(OO[1]+4*j,4)} offset:{j*1024}")
    for i in range(11):
        k(f"v_mov_b32 v{SS[0]+i}, v{OO[0]+i}")
    k.label("sent")
    k(f"""
s_add_u32 s19, s18, s33
s_lshl_b32 s24, s17, 16
s_lshl_b32 s25, s19, 9
s_add_u32 s24, s24, s25
s_add_u32 s24, s24, {OOFF}
s_lshr_b32 s26, s17, 2
s_lshl_b32 s26, s26, 15
s_add_u32 s25, s25, s26
s_and_b32 s26, s17, 3
s_lshl_b32 s26, s26, 2
s_add_u32 s25, s25, s26
s_add_u32 s25, s25, {OOFF + 64*CH}
s_lshl_b32 s19, s19, 5
s_add_u32 s19, s19, s17
s_mul_i32 s19, s19, {FLS}
s_add_u32 s19, s19, {FBOFF}
v_and_b32 v{T0+1}, 31, v0
v_lshrrev_b32 v{T0+2}, 5, v0
v_lshlrev_b32 v{T0+1}, 4, v{T0+1}
v_lshl_add_u32 v{T0+2}, v{T0+2}, 15, v{T0+1}
v_mov_b32 v{T0+4}, {MRG}
s_waitcnt lgkmcnt(0)
s_barrier
ds_read_b128 {v(K1,4)}, v{T0+4}
ds_read_b128 {v(V0,4)}, v{T0+4} offset:16
""")
    for j in range(3):
        k(f"ds_read_b128 {v(SS[1]+4*j,4)}, v{T0+3} offset:{j*1024}")
    O = SS[0]
    k(f"""
s_waitcnt lgkmcnt(3)
v_or3_b32 v{K1}, v{K1}, v{K1+1}, v{K1+2}
v_or3_b32 v{V0}, v{V0}, v{V0+1}, v{V0+2}
v_or3_b32 v{K1}, v{K1}, v{K1+3}, v{V0+3}
v_or_b32 v{K1}, v{K1}, v{V0}
s_waitcnt lgkmcnt(0)
v_readfirstlane_b32 s26, v{K1}
v_add_f32 v{O+10}, v{O+10}, v{SS[1]+10}
v_rcp_f32 v{T0}, v{O+10}
s_and_b32 s26, s26, s48
s_cmp_eq_u32 s26, 1
s_cbranch_scc1 {k.lab('fallback')}
""")
    for i in range(10):
        k(f"v_add_f32 v{O+i}, v{O+i}, v{SS[1]+i}")
    for i in range(10):
        k(f"v_mul_f32 v{O+i}, v{O+i}, v{T0}")
    for i in range(5):
        k(f"v_cvt_pk_bf16_f32 v{P+i}, v{O+2*i}, v{O+2*i+1}")
    k(f"""
buffer_store_dwordx4 {v(P,4)}, v{T0+2}, s[12:15], s24 offen sc1
s_mov_b64 exec, s[30:31]
buffer_store_dword v{P+4}, v{T0+1}, s[12:15], s25 offen sc1
s_mov_b64 exec, -1
""")
    LT, LG = 2, 3
    GV = 4
    XV, W1V, FV = 5, 6, 7
    ACC, OF, X, MU = 16, 32, 48, 56
    TC = 60
    k.srd(4, 28, S * D * 2)
    k(f"""
v_and_b32 v{LT}, 15, v0
v_lshrrev_b32 v{LG}, 4, v0
v_lshlrev_b32 v{GV}, 15, v{LG}
v_lshl_add_u32 v{GV}, v{LT}, 4, v{GV}
v_and_b32 v{FV}, 31, v0
v_mul_u32_u24 v{FV}, {FLS}, v{FV}
s_lshl_b32 s23, s16, 10
s_mov_b32 s22, s10
""")
    NW0 = 4
    for n in range(NW0):
        k(piece(n * 8192))
    k(f"s_waitcnt vmcnt({NW0})")
    set_flag(k, 19, TC)
    k.mark(4)
    k(f"s_cmp_gt_u32 s16, 4\ns_cbranch_scc1 {k.lab('cfeed')}")
    k(f"""
s_lshl_b32 s59, s49, 10
s_add_u32 s59, s59, {WOOFF}
s_cmp_lt_u32 s16, 4
s_cbranch_scc1 {k.lab('clate')}
v_and_b32 v{W1V}, 1, v0
v_mul_u32_u24 v{W1V}, 1152, v{W1V}
v_lshl_add_u32 v{W1V}, v{LG}, 4, v{W1V}
s_mov_b32 s60, {WBAROFF}
""")
    for ks in range(18):
        k(f"buffer_load_dwordx4 {v(wcreg(ks,0),4)}, v1, s[12:15], s59 offen")
        k(f"buffer_load_dwordx4 {v(wcreg(ks,1),4)}, v{W1V}, s[12:15], s60 offen offset:{ks*64}")
        k("s_add_u32 s59, s59, 36864")
    k(f"s_branch {k.lab('cx')}")
    k.label("clate")
    k(f"s_add_u32 s59, s59, {16*36864}")
    for ks in (16, 17):
        for sl in range(2):
            k(f"buffer_load_dwordx4 {v(wcreg(ks,sl),4)}, v1, s[12:15], s59 offen offset:{sl*1024}")
        k("s_add_u32 s59, s59, 36864")
    k.label("cx")
    k(f"""
v_mul_u32_u24 v{XV}, 1152, v{LT}
v_lshl_add_u32 v{XV}, v{LG}, 3, v{XV}
v_lshlrev_b32 v{W1V}, 2, v{LT}
s_mul_i32 s24, s38, {32*1152}
s_lshl_b32 s25, s49, 5
s_add_u32 s24, s24, s25
s_add_u32 s25, s24, {16*1152}
s_lshl_b32 s26, s38, 7
s_add_u32 s27, s26, {MUXOFF}
""")
    for T in range(2):
        for i in range(2):
            k(f"buffer_load_dwordx2 {v(X+2*(2*i+T),2)}, v{XV}, s[4:7], s{24+T} offen offset:{i*32}")
        k(f"buffer_load_dword v{MU+T}, v{W1V}, s[12:15], s27 offen offset:{T*64}")
    k(f"s_branch {k.lab('cpoll')}")
    k.label("cfeed")
    NFEED = (MRG // 1024 - 8 * NW0) // 3
    k(f"s_sub_u32 s23, s16, 5\ns_lshl_b32 s23, s23, 10\ns_add_u32 s23, s23, {8*NW0*1024}")
    k.label("cf1")
    k(piece(0))
    k(f"s_add_u32 s23, s23, 3072\ns_cmp_lt_u32 s23, {(8*NW0 + 3*NFEED)*1024}\ns_cbranch_scc1 {k.lab('cf1')}")
    k.label("cpoll")
    k(f"s_mul_i32 s59, s38, {32*FLS}\ns_add_u32 s59, s59, {FBOFF}")
    poll(k, "pb", 59, FV, TC, 60)
    k.mark(5)
    k(f"""
s_lshl_b32 s59, s38, 9
s_add_u32 s59, s59, {OOFF}
s_lshr_b32 s60, s16, 1
s_lshl_b32 s60, s60, 17
s_add_u32 s59, s59, s60
s_and_b32 s60, s16, 1
s_lshl_b32 s60, s60, 8
s_add_u32 s59, s59, s60
s_lshl_b32 s60, s16, 10
s_add_u32 s60, s60, {OST}
""")
    for n in range(5):
        if n == 4:
            k(f"s_cmp_ge_u32 s16, 4\ns_cbranch_scc1 {k.lab('co')}")
        k(f"s_add_u32 m0, s60, {n*8192}\ns_add_u32 s62, s59, {n*4*4*CH}\nbuffer_load_dwordx4 v{GV}, s[12:15], s62 offen {ld} lds")
    k.label("co")
    k(f"v_add_u32 v{XV}, {OST}, v1\ns_waitcnt vmcnt(0)\ns_barrier")
    k.mark(6)
    k(f"s_cmp_gt_u32 s16, 4\ns_cbranch_scc1 {k.lab('cfeed2')}")
    def rdo(ks):
        return [f"ds_read_b128 {v(OF+8*(ks&1)+4*T,4)}, v{XV} offset:{(2*ks+T)*1024}" for T in range(2)]
    for r in rdo(0): k(r)
    for ks in range(18):
        if ks < 17:
            for r in rdo(ks + 1): k(r)
        k(f"s_waitcnt lgkmcnt({2 if ks < 17 else 0})")
        for sl in range(2):
            for T in range(2):
                d = v(ACC + (2*sl+T)*4, 4)
                k(f"{M} {d}, {v(wcreg(ks,sl),4)}, {v(OF+8*(ks&1)+4*T,4)}, {'0' if ks == 0 else d}")
    SQ = 58
    k(f"""
s_lshl_b32 s24, s49, 16
s_lshl_b32 s25, s38, 9
s_add_u32 s24, s24, s25
s_add_u32 s24, s24, {HCOFF}
v_lshrrev_b32 v8, 5, v0
v_lshlrev_b32 v8, 15, v8
v_and_b32 v9, 31, v0
v_lshl_add_u32 v8, v9, 4, v8
v_lshlrev_b32 v9, 2, v9
v_add_u32 v10, {MUL}, v{W1V}
v_mov_b32 v{SQ}, 0
v_mov_b32 v{SQ+1}, 0
s_cmp_lt_u32 s16, 4
s_cbranch_scc1 {k.lab('cmu')}
""")
    for T in range(2):
        aw = ACC + (2+T)*4
        k(f"v_add_f32 v{aw}, v{aw}, v{aw+1}\nv_add_f32 v{aw}, v{MU+T}, v{aw}\nds_write_b32 v10, v{aw} offset:{T*64}")
    k.label("cmu")
    for sl in range(2):
        for T in range(2):
            x = X + 2*(2*sl+T)
            r = OF + 4*(2*sl+T)
            k(f"v_lshlrev_b32 v{r}, 16, v{x}\nv_and_b32 v{r+1}, 0xffff0000, v{x}\nv_lshlrev_b32 v{r+2}, 16, v{x+1}\nv_and_b32 v{r+3}, 0xffff0000, v{x+1}")
    k("s_waitcnt lgkmcnt(0)\ns_barrier")
    for T in range(2):
        k(f"ds_read_b32 v{MU+T}, v10 offset:{T*64}")
    for i in range(8):
        k(f"v_pk_add_f32 {v(ACC+2*i,2)}, {v(ACC+2*i,2)}, {v(OF+2*i,2)}")
    k("s_waitcnt lgkmcnt(0)")
    for sl in range(2):
        if sl == 1:
            k(f"s_cmp_eq_u32 s16, 4\ns_cbranch_scc1 {k.lab('cq')}")
        R = X + 4*sl
        for T in range(2):
            ac = ACC + (2*sl+T)*4
            for r in range(4):
                k(f"v_sub_f32 v{ac+r}, v{ac+r}, v{MU+T}")
            k(f"v_cvt_pk_bf16_f32 v{R+2*T}, v{ac}, v{ac+1}\nv_cvt_pk_bf16_f32 v{R+2*T+1}, v{ac+2}, v{ac+3}")
            for r in range(4):
                k(f"v_fmac_f32 v{SQ+T}, v{ac+r}, v{ac+r}")
        k(f"""
v_permlane16_swap_b32 v{R}, v{R+2}
v_permlane16_swap_b32 v{R+1}, v{R+3}
buffer_store_dwordx4 {v(R,4)}, v8, s[12:15], s24 offen sc1
s_add_u32 s24, s24, 65536
""")
    k.label("cq")
    k(f"""
s_mul_i32 s25, s39, 5
s_add_u32 s25, s25, s16
v_permlane16_swap_b32 v{SQ}, v{SQ+1}
s_lshl_b32 s27, s25, 13
s_add_u32 s27, s27, s26
s_add_u32 s27, s27, {SSQOFF}
v_add_f32 v{SQ}, v{SQ}, v{SQ+1}
v_mov_b32 v{SQ+1}, v{SQ}
s_add_u32 s26, s26, {MUHOFF}
s_cmp_lg_u32 s25, 0
s_cselect_b32 s26, {OOB}, s26
v_permlane32_swap_b32 v{SQ}, v{SQ+1}
v_add_f32 v{SQ}, v{SQ}, v{SQ+1}
s_mov_b32 exec_hi, 0
buffer_store_dword v{SQ}, v9, s[12:15], s27 offen sc1
s_mov_b64 exec, 0xffff
buffer_store_dword v{MU}, v{W1V}, s[12:15], s26 offen sc1
buffer_store_dword v{MU+1}, v{W1V}, s[12:15], s26 offen offset:64 sc1
s_mov_b64 exec, -1
s_lshl_b32 s59, s38, 5
s_add_u32 s59, s59, s25
s_mul_i32 s59, s59, {FLS}
s_add_u32 s59, s59, {FCOFF}
s_waitcnt vmcnt(0)
""")
    set_flag(k, 59, TC)
    k(f"s_branch {k.lab('dstart')}")
    k.label("cfeed2")
    k(piece(0))
    k(f"s_add_u32 s23, s23, 3072\ns_cmp_lt_u32 s23, {3*UB}\ns_cbranch_scc1 {k.lab('cfeed2')}\ns_barrier")
    k.label("dstart")
    k.mark(7)
    if upto >= 4:
        phase_d(k, GV, FV, ld)
    if upto >= 5:
        phase_e(k, GV, ld)
    k(f"s_branch {k.lab('fin')}")
    k.label("stub")
    k(f"s_cmp_eq_u32 s21, 4\ns_cbranch_scc1 {k.lab('stub2')}")
    k(f"""
s_barrier
s_mov_b32 s21, 4
s_lshl_b32 s61, s2, 2
s_add_u32 s61, s61, s16
s_mov_b32 s27, 0x20000
s_mov_b32 s56, 8
s_mov_b32 s57, 16
s_mov_b32 s58, 4
s_mov_b32 s26, {D*F*2}
s_cmp_ge_u32 s61, 648
s_cbranch_scc1 {k.lab('p1')}
s_cmp_ge_u32 s61, 324
s_cselect_b32 s24, s42, s40
s_cselect_b32 s25, s43, s41
s_cselect_b32 s60, 324, 0
s_cselect_b32 s53, 1024, 0
s_sub_u32 s60, s61, s60
s_mul_i32 s19, s60, 3641
s_lshr_b32 s19, s19, 16          ; ks
s_mul_i32 s59, s19, 18
s_sub_u32 s60, s60, s59          ; cg
s_mov_b32 s50, {F*2}
s_mul_i32 s51, s19, {32*F*2}
s_lshl_b32 s59, s60, 9
s_add_u32 s51, s51, s59
s_mov_b32 s52, 128
s_mul_i32 s59, s60, {16*36864}
s_add_u32 s53, s53, s59
s_lshl_b32 s59, s19, 11
s_add_u32 s53, s53, s59
s_add_u32 s53, s53, {WGUOFF}
s_mov_b32 s54, {4*36864}
s_mov_b32 s55, 36864
s_branch {k.lab('pgo')}
""")
    k.label("p1")
    k(f"""
s_mov_b32 s50, 1152
s_mov_b32 s54, 36864
s_mov_b32 s55, 1024
s_mov_b32 s24, s44
s_mov_b32 s25, s45
s_mov_b32 s52, {32*1152}
s_sub_u32 s60, s61, 648
s_mul_i32 s19, s60, 7282
s_lshr_b32 s19, s19, 16          ; kg = r/9
s_mul_i32 s59, s19, 9
s_sub_u32 s60, s60, s59          ; cs
s_mul_i32 s51, s19, {4*32*1152}
s_mul_i32 s53, s19, {4*36864}
s_add_u32 s53, s53, {WDOFF}
s_lshl_b32 s59, s60, 12
s_add_u32 s53, s53, s59
s_lshl_b32 s59, s60, 7
s_add_u32 s51, s51, s59
""")
    k.label("pgo")
    k(f"s_lshl_b32 s19, s16, 11\ns_add_u32 s19, s19, {SCR}")
    prep_addr(k, PVS, PVW, PVR, PVR + 1, 19)
    prep_loads(k, (0, 1), DAT, PVS)
    k(f"s_branch {k.lab('loop')}")
    k.label("stub2")
    k("s_mov_b32 s21, 98")
    prep_loads(k, (2, 3), DAT, PVS)
    k(f"s_branch {k.lab('loop')}")
    k.label("fallback")
    k(f"""
s_barrier
s_mov_b32 s48, 64
s_mul_i32 s22, s17, {KVHEAD}
s_lshl_b32 s23, s16, 10
""")
    k.label("fb1")
    k(piece(0))
    k(f"""
s_add_u32 s23, s23, 8192
s_cmp_lt_u32 s23, {KVHEAD}
s_cbranch_scc1 {k.lab('fb1')}
s_waitcnt vmcnt(0)
s_barrier
s_branch {k.lab('restart')}
""")
    k.label("fin")
    k.stamp_end(12)
    k.label("end")
    k("s_endpgm")
    return k


def phase_d(k, GV, FV, ld, PF=6, LA=4, WG=2):
    ACC = [16, 32, 48]
    WF, PK, FILL, HV = 64, 96, 104, 112
    SV, A0, A1, A2 = 3, 5, 6, 8
    hreg = lambda ks, T: v(HV + 4*(2*ks+T), 4)
    k(f"""
s_lshl_b32 s11, s8, 3
s_add_u32 s11, s11, s16
s_lshl_b32 s21, s11, 9
s_add_u32 s20, s21, {HCOFF}      ; h soffset
s_mul_i32 s22, s9, {9*65536}
s_add_u32 s21, s21, s22
s_add_u32 s21, s21, {HIDOFF}
s_and_b32 s17, s2, 1
s_lshl_b32 s17, s17, 3
s_bfe_u32 s18, s2, 0x30003
s_add_u32 s17, s17, s18
s_lshr_b32 s18, s2, 6
s_bfe_u32 s19, s2, 0x20001
""")
    for n in range(5):
        k(f"s_add_u32 s28, s16, {8*n}")
        if n == 4:
            k("s_add_u32 s29, s16, 24\ns_cmp_ge_u32 s28, 36\ns_cselect_b32 s28, s29, s28")
        k(f"""
s_lshl_b32 s{45+n}, s28, 10
s_mov_b32 s{40+n}, s{45+n}
s_mul_i32 s29, s28, 7282
s_lshr_b32 s29, s29, 16
s_mul_i32 s30, s29, 9
s_sub_u32 s28, s28, s30
s_add_u32 s30, s28, s19
s_and_b32 s30, s30, 3
s_and_b32 s31, s28, 4
s_or_b32 s30, s30, s31
s_cmp_eq_u32 s28, 8
s_cselect_b32 s30, 8, s30
s_lshl_b32 s30, s30, 10
s_mul_i32 s29, s29, 36864
s_add_u32 s{54+n}, s29, s30
""")
    def wunit_ops():
        ops = []
        for n in range(5):
            ops += [f"s_add_u32 m0, s{45+n}, s24\ns_add_u32 s25, s{40+n}, s51", f"buffer_load_dwordx4 v1, s[12:15], s25 offen lds"]
        ops += [f"s_add_u32 s51, s51, s50", f"s_add_u32 s24, s24, {UB}\ns_cmp_ge_u32 s24, {4*UB}\ns_cselect_b32 s24, 0, s24"]
        return ops
    k(f"""
s_add_u32 s51, s10, {3*UB}
s_mov_b32 s50, {UB}
s_mov_b32 s24, {3*UB}
s_mul_i32 s53, s19, {36*36864}
s_mul_i32 s29, s18, 9216
s_add_u32 s53, s53, s29
s_add_u32 s53, s53, {WDOFF}
v_lshrrev_b32 v{SV}, 5, v0
v_lshlrev_b32 v{SV}, 15, v{SV}
v_and_b32 v{A0}, 31, v0
v_lshl_add_u32 v{SV}, v{A0}, 4, v{SV}
v_add_u32 v{A0}, {UB}, v1
v_add_u32 v{A1}, {3*UB}, v1
v_add_u32 v{A2}, {2*UB}, v1
v_min_u32 v{FV}, 19, v0
v_mul_u32_u24 v{FV}, {FLS}, v{FV}
s_mul_i32 s59, s11, {32*FLS}
s_add_u32 s59, s59, {FCOFF}
s_lshl_b32 s28, s17, 2
s_and_b32 s29, s16, 3
s_add_u32 s28, s28, s29
s_mul_i32 s52, s28, 36
s_mul_i32 s29, s18, 9
s_add_u32 s52, s52, s29
s_mul_i32 s52, s52, 3072
s_add_u32 s62, s52, {EXOFF}
s_and_b32 s29, s16, 4
s_add_u32 s29, s29, s19
s_mul_i32 s29, s29, 3072
s_add_u32 s52, s62, s29
s_add_u32 s63, s62, {8*3072}
s_cmp_eq_u32 s16, s19
s_cselect_b32 s63, s63, {OOB}
s_waitcnt vmcnt(0)
s_barrier
""")
    for x in wunit_ops(): k(x)
    def rdR(n):
        if n >= 108:
            return f"ds_read_b128 {v(WF+4*(n%PF),4)}, v{A1} offset:{(n-108)*1024}"
        ks, u, gu = n // 6, (n % 6) // 2, n % 2
        return f"ds_read_b128 {v(WF+4*(n%PF),4)}, v{[1,A0,A2][u]} offset:{(2*ks+gu)*1024}"
    for n in range(PF - 1):
        k(rdR(n))
    for i in range(4):
        k(f"v_mov_b32 v{FILL+i}, -1")
    poll(k, "pc", 59, FV, PK, 60)
    k.mark(8)
    def h_ops(ks):
        return [f"buffer_load_dwordx4 {hreg(ks,T)}, v{GV}, s[12:15], s20 offen offset:{T*256} {ld}" for T in range(2)] + \
               [f"s_add_u32 s20, s20, {4*CH}"]
    for ks in range(LA):
        for x in h_ops(ks): k(x)
    for ks in range(18):
        pend = h_ops(ks + LA) if ks + LA < 18 else []
        for q in range(6):
            n = ks * 6 + q
            u, gu = q // 2, q % 2
            if q % WG == 0:
                w = f"lgkmcnt({PF-1-WG})"
                if q == 0:
                    w = f"vmcnt({2*(min(ks+LA,18)-ks-1)}) " + w
                k("s_waitcnt " + w)
            if n + PF - 1 == 108:
                k("s_barrier")
            for T in range(2):
                d = v(ACC[u] + (gu*2+T)*4, 4)
                k(f"{M} {d}, {v(WF+4*(n%PF),4)}, {hreg(ks,T)}, {'0' if ks == 0 else d}")
                if T == 0:
                    k(rdR(n + PF - 1))
                elif pend:
                    k(pend.pop(0))
    k.mark(9)
    def epi(A, R):
        e = []
        for T in range(2):
            for r in range(4):
                e.append(f"v_mul_f32 v{A+4*T+r}, v{A+4*T+r}, v{A+8+4*T+r}")
            e.append(f"v_cvt_pk_bf16_f32 v{R+2*T}, v{A+4*T}, v{A+4*T+1}")
            e.append(f"v_cvt_pk_bf16_f32 v{R+2*T+1}, v{A+4*T+2}, v{A+4*T+3}")
        e.append("s_nop 1")
        e.append(f"v_permlane16_swap_b32 v{R}, v{R+2}")
        e.append(f"v_permlane16_swap_b32 v{R+1}, v{R+3}")
        e.append(f"buffer_store_dwordx4 {v(R,4)}, v{SV}, s[12:15], s21 offen sc1")
        e.append("s_add_u32 s21, s21, 65536")
        return e
    k(f"v_mov_b32 v{A0}, v{A1}\nv_mov_b32 v{A1}, v1\ns_mov_b32 s26, 0\ns_mov_b32 s27, 3")
    k(f"s_waitcnt lgkmcnt({PF-1})\ns_barrier")
    for x in wunit_ops(): k(x)
    for u in range(3):
        for x in epi(ACC[u], PK + 4*(u & 1)): k(x)
    def rd(j):
        base, jj = (A0, j) if j < 36 else (A1, j - 36)
        return f"ds_read_b128 {v(WF+4*(j%PF),4)}, v{base} offset:{jj*1024}"
    k(".p2align 6")
    k.label("dloop")
    A = ACC[0]
    f1 = wunit_ops() + [f"buffer_store_dwordx4 {v(FILL,4)}, v1, s[12:15], s52 offen sc1",
                        f"s_add_u32 s52, s52, 1024\ns_cmp_eq_u32 s27, 5\ns_cselect_b32 s52, s63, s52",
                        f"s_add_u32 s26, s26, {UB}\ns_cmp_ge_u32 s26, {4*UB}\ns_cselect_b32 s26, 0, s26",
                        f"s_cmp_eq_u32 s27, 6\ns_cselect_b32 s51, s53, s51\ns_cselect_b32 s50, {4*36864}, s50",
                        "s_cselect_b32 s40, s54, s40\ns_cselect_b32 s41, s55, s41\ns_cselect_b32 s42, s56, s42",
                        "s_cselect_b32 s43, s57, s43\ns_cselect_b32 s44, s58, s44\ns_add_u32 s27, s27, 1"]
    for j in range(36):
        ks, gu = j // 2, j % 2
        if j == 30:
            k(f"s_waitcnt vmcnt(6) lgkmcnt({PF-1-WG})\ns_barrier")
        elif j % WG == 0:
            k(f"s_waitcnt lgkmcnt({PF-1-WG})")
        for T in range(2):
            d = v(A + (gu*2+T)*4, 4)
            k(f"{M} {d}, {v(WF+4*(j%PF),4)}, {hreg(ks,T)}, {'0' if ks == 0 else d}")
            if T == 0:
                k(rd(j + PF - 1))
            elif f1 and j >= 2:
                k(f1.pop(0))
    assert not f1
    k(f"v_mov_b32 v{A0}, v{A1}\nv_add_u32 v{A1}, s26, v1\ns_nop 5")
    for x in epi(A, PK): k(x)
    k(f"s_cmp_lt_u32 s27, 9\ns_cbranch_scc1 {k.lab('dloop')}")
    k.mark(10)
    k(f"""
s_lshl_b32 s59, s11, 5
s_add_u32 s59, s59, s9
s_mul_i32 s59, s59, {FLS}
s_add_u32 s59, s59, {FDOFF}
s_lshl_b32 s60, s2, 3
s_add_u32 s60, s60, s16
s_lshl_b32 s60, s60, 2
s_add_u32 s60, s60, {FXOFF}
v_mov_b32 v{PK+4}, 0
v_mov_b32 v{PK+5}, 1
s_waitcnt vmcnt(0) lgkmcnt(0)
s_mov_b64 exec, 1
buffer_store_dword v{PK+5}, v{PK+4}, s[12:15], s59 offen sc1
buffer_store_dword v{PK+5}, v{PK+4}, s[12:15], s60 offen sc1
s_mov_b64 exec, -1
""")


def phase_e(k, GV, ld, PF=9, WG=3, LA=5):
    SB = UB
    ACC, WF, HV = 16, 88, 128
    XL = 3 * SB
    k("s_and_b32 s33, s16, 3")
    for t in range(4):
        k(f"s_add_u32 s{40+t}, s19, {t}\ns_and_b32 s{40+t}, s{40+t}, 3\ns_lshl_b32 s{44+t}, s{40+t}, 10")
    k(f"""
s_mul_i32 s29, s33, 6144
s_add_u32 s29, s29, {XL}
v_add_u32 v3, s29, v1
s_cmp_lt_u32 s16, 4
s_cbranch_scc1 {k.lab('econs')}
s_mul_i32 s23, s33, 36864
s_add_u32 s23, s23, s53
s_add_u32 s23, s23, {8*36864}
s_mul_i32 s22, s33, 9216
s_add_u32 s24, s22, {3*SB}
s_mov_b32 s27, 2
""")
    k.srd(4, 36, S * D * 2)
    k("s_barrier")
    k.label("pl")
    for n in range(9):
        if n < 4:
            k(f"s_add_u32 m0, s24, {n*1024}\ns_add_u32 s{48+n}, s23, s{44+n}\nbuffer_load_dwordx4 v1, s[12:15], s{48+n} offen lds")
        elif n < 8:
            k(f"s_add_u32 m0, s24, {n*1024}\ns_add_u32 s25, s{48+n-4}, 4096\nbuffer_load_dwordx4 v1, s[12:15], s25 offen lds")
        else:
            k(f"s_add_u32 m0, s24, {n*1024}\ns_add_u32 s25, s23, 8192\nbuffer_load_dwordx4 v1, s[12:15], s25 offen lds")
    k(f"""
s_add_u32 s23, s23, {4*36864}
s_add_u32 s24, s24, {SB}
s_cmp_ge_u32 s24, {4*SB}
s_cselect_b32 s24, s22, s24
s_add_u32 s27, s27, 1
s_waitcnt vmcnt(9)
s_barrier
s_cmp_lt_u32 s27, 9
s_cbranch_scc1 {k.lab('pl')}
""")
    HC, SS, MU, OWN, RX, T0, BS = 16, 28, 38, 40, 64, 100, 104
    k(f"""
v_and_b32 v6, 31, v0
v_lshrrev_b32 v7, 5, v0
v_lshlrev_b32 v5, 15, v7
v_lshl_add_u32 v5, v6, 4, v5
v_mul_u32_u24 v8, {10*8192}, v7
v_lshl_add_u32 v8, v6, 2, v8
v_lshlrev_b32 v9, 2, v6
s_mul_i32 s54, s18, 9
s_add_u32 s55, s54, s19
s_lshl_b32 s56, s55, 16
s_lshl_b32 s57, s28, 9
s_add_u32 s57, s57, {HCOFF}
s_add_u32 s56, s56, s57
buffer_load_dwordx4 {v(HC,4)}, v5, s[12:15], s56 offen {ld}
s_add_u32 s56, s56, {4*65536}
buffer_load_dwordx4 {v(HC+4,4)}, v5, s[12:15], s56 offen {ld}
s_add_u32 s54, s54, 8
s_lshl_b32 s56, s54, 16
s_add_u32 s56, s56, s57
buffer_load_dwordx4 {v(HC+8,4)}, v5, s[12:15], s56 offen {ld}
s_lshl_b32 s56, s28, 7
s_add_u32 s57, s56, {MUHOFF}
s_add_u32 s56, s56, {SSQOFF}
buffer_load_dword v{MU}, v9, s[12:15], s57 offen {ld}
""")
    for j in range(10):
        k(f"buffer_load_dword v{SS+j}, v8, s[12:15], s56 offen {ld}")
        if j < 9: k("s_add_u32 s56, s56, 8192")
    k(f"""
v_bfe_u32 v10, v0, 3, 2
v_lshlrev_b32 v10, 6, v10
v_and_b32 v11, 7, v0
v_lshl_add_u32 v10, v11, 2, v10
s_andn2_b32 s59, s2, 6
s_lshl_b32 s59, s59, 5
s_add_u32 s59, s59, {FXOFF}
""")
    poll(k, "px", 59, 10, 11, 60)
    k(f"""
s_barrier
s_mul_i32 s58, s19, 3072
s_add_u32 s58, s58, s62
s_add_u32 s59, s58, {4*3072}
s_add_u32 s60, s62, {8*3072}
s_cmp_eq_u32 s19, s33
s_cselect_b32 s60, s60, {OOB}
s_mov_b32 s61, 0
v_mul_u32_u24 v8, 1152, v6
v_lshl_add_u32 v8, v7, 4, v8
s_mul_i32 s56, s28, {32*1152}
s_lshl_b32 s57, s55, 5
s_add_u32 s57, s57, s56
s_lshl_b32 s54, s54, 5
s_add_u32 s56, s56, s54
s_mov_b32 s63, {f2u(1.0/D):#x}
""")
    for j in range(1, 10):
        k(f"v_add_f32 v{SS}, v{SS}, v{SS+j}")
    k(f"""
v_mov_b32 v{SS+1}, v{SS}
v_mov_b32 v{SS+2}, {f2u(1e-5):#x}
s_nop 0
v_permlane32_swap_b32 v{SS}, v{SS+1}
v_add_f32 v{SS}, v{SS}, v{SS+1}
v_fma_f32 v{SS}, v{SS}, s63, v{SS+2}
v_rcp_f32 v{SS}, v{SS}
""")
    for i in range(3):
        for d in range(4):
            x = HC + 4*i + d
            k(f"v_lshlrev_b32 v{BS+8*i+2*d}, 16, v{x}\nv_and_b32 v{BS+8*i+2*d+1}, 0xffff0000, v{x}")
    for i in range(24):
        k(f"v_add_f32 v{BS+i}, v{BS+i}, v{MU}")
    k("s_barrier\ns_barrier")
    k.mark(11)
    for i in range(6):
        k(f"ds_read_b128 {v(OWN+4*i,4)}, v3 offset:{i*1024}")
    k.label("poll")
    for i in range(3):
        for q in range(3):
            k(f"buffer_load_dwordx4 {v(RX+12*i+4*q,4)}, v1, s[12:15], s{58+i} offen offset:{q*1024} sc1")
    k("s_waitcnt vmcnt(0)")
    k(f"v_max3_u32 v{T0}, v{RX}, v{RX+1}, v{RX+2}")
    k(f"v_max3_u32 v{T0+1}, v{RX+3}, v{RX+4}, v{RX+5}")
    for n, j in enumerate(range(6, 36, 2)):
        k(f"v_max3_u32 v{T0+(n&1)}, v{T0+(n&1)}, v{RX+j}, v{RX+j+1}")
    k(f"""
v_max_u32 v{T0}, v{T0}, v{T0+1}
v_cmp_eq_u32 vcc, -1, v{T0}
s_add_u32 s61, s61, 1
s_cmp_ge_u32 s61, {POLLMAX}
s_cbranch_scc1 {k.lab('got')}
s_cbranch_vccnz {k.lab('poll')}
""")
    k.label("got")
    k.mark(12)
    k("s_waitcnt lgkmcnt(0)")
    for i in range(3):
        if i == 2:
            k(f"s_cmp_lg_u32 s19, s33\ns_cbranch_scc1 {k.lab('fin')}")
        A = OWN + 8*i
        for r in range(4):
            k(f"v_permlane16_swap_b32 v{A+r}, v{A+4+r}")
        for q in range(3):
            for d in range(4):
                x = RX + 12*i + 4*q + d
                tt = T0 + 2*(d & 1)
                k(f"v_lshlrev_b32 v{tt}, 16, v{x}\nv_and_b32 v{tt+1}, 0xffff0000, v{x}\nv_pk_add_f32 {v(A+2*d,2)}, {v(A+2*d,2)}, {v(tt,2)}")
        for d in range(4):
            b = BS + 8*i + 2*d
            k(f"v_pk_fma_f32 {v(b,2)}, {v(A+2*d,2)}, {v(SS,2)}, {v(b,2)} op_sel_hi:[1,0,1]")
            k(f"v_cvt_pk_bf16_f32 v{HC+4*i+d}, v{b}, v{b+1}")
        so, off = [("s57", 0), ("s57", 128), ("s56", 0)][i]
        k(f"buffer_store_dwordx4 {v(HC+4*i,4)}, v8, s[4:7], {so} offen offset:{off}")
    k(f"s_branch {k.lab('fin')}")
    k.label("econs")
    k(f"""
s_lshl_b32 s20, s28, 9
s_mul_i32 s29, s19, {36*4*CH}
s_add_u32 s20, s20, s29
s_add_u32 s20, s20, {HIDOFF}
v_add_u32 v5, {SB}, v1
v_add_u32 v6, {2*SB}, v1
s_mov_b32 s26, {2*SB}
s_mov_b32 s27, 0
s_sub_u32 s52, s33, s19
s_and_b32 s52, s52, 3
s_lshl_b32 s52, s52, 10
s_add_u32 s52, s52, s62
s_add_u32 s52, s52, {8*3072-1024}
s_mov_b32 s53, 0xfffefffe
v_and_b32 v7, 7, v0
v_mul_u32_u24 v7, {FLS}, v7
s_lshl_b32 s59, s28, 2
s_add_u32 s59, s59, s19
s_mul_i32 s59, s59, {8*FLS}
s_add_u32 s59, s59, {FDOFF}
s_barrier
""")
    hreg = lambda set_, kk, T: v(HV + 4 * (8*set_ + 2*kk + T), 4)
    def h_ops(p):
        return [f"buffer_load_dwordx4 {hreg(p//4,p%4,T)}, v{GV}, s[12:15], s20 offen offset:{T*256} {ld}" for T in range(2)] + \
               [f"s_add_u32 s20, s20, {4*CH}"]
    def rd(j):
        base, jj = ("v5", j) if j < 36 else ("v6", j - 36)
        return f"ds_read_b128 {v(WF+4*(j%PF),4)}, {base} offset:{jj*1024}"
    for j in range(PF - 1):
        k(rd(j))
    for i in range(72):
        k(f"v_mov_b32 v{ACC+i}, 0")
    poll(k, "pd", 59, 7, 8, 60)
    k.mark(11)
    for p in range(LA):
        for x in h_ops(p): k(x)
    k(".p2align 6")
    k.label("eloop")
    for st3 in range(3):
        for kk in range(4):
            p = 4 * st3 + kk
            f = h_ops((p + LA) % 12)
            if p + LA == 12:
                f = [f"s_add_u32 s27, s27, 1\ns_cmp_ge_u32 s27, 3", f"s_cselect_b32 s20, {OOB}, s20"] + f
            if kk == 3:
                f = f + [f"s_add_u32 s26, s26, {SB}\ns_cmp_ge_u32 s26, {4*SB}", "s_cselect_b32 s26, 0, s26"]
            for t in range(9):
                j = 9 * kk + t
                if t % WG == 0:
                    w = f"lgkmcnt({PF-1-WG})"
                    if t == 0:
                        w = f"vmcnt({2*(LA-1)}) " + w
                    k("s_waitcnt " + w)
                if t == 0 and kk == 3:
                    k("s_barrier")
                for T in range(2):
                    d = v(ACC + (2*t+T)*4, 4)
                    k(f"{M} {d}, {v(WF+4*(j%PF),4)}, {hreg(st3,kk,T)}, {d}")
                    if T == 0:
                        k(rd(j + PF - 1))
                    elif f and t >= 1:
                        k(f.pop(0))
            assert not f, f
        k(f"v_mov_b32 v5, v6\nv_add_u32 v6, s26, v1")
    k(f"s_cmp_lt_u32 s27, 3\ns_cbranch_scc1 {k.lab('eloop')}")
    k.mark(12)
    PKR = WF
    def pack(t, R):
        A0, A1 = ACC + 8*t, ACC + 8*t + 4
        return f"""
v_cvt_pk_bf16_f32 v{R}, v{A0}, v{A0+1}
v_cvt_pk_bf16_f32 v{R+2}, v{A1}, v{A1+1}
v_cvt_pk_bf16_f32 v{R+1}, v{A0+2}, v{A0+3}
v_cvt_pk_bf16_f32 v{R+3}, v{A1+2}, v{A1+3}
v_min_u32 v{R}, s53, v{R}
v_min_u32 v{R+2}, s53, v{R+2}
v_min_u32 v{R+1}, s53, v{R+1}
v_min_u32 v{R+3}, s53, v{R+3}
v_permlane16_swap_b32 v{R}, v{R+2}
s_nop 0
v_permlane16_swap_b32 v{R+1}, v{R+3}
"""
    k("s_waitcnt lgkmcnt(0)")
    i = 0
    for t in (1, 2, 3, 5, 6, 7):
        R = PKR + 4*i; i += 1
        k(f"s_mul_i32 s29, s{40 + (t & 3)}, 3072\ns_add_u32 s29, s29, s62")
        if t >= 4: k(f"s_add_u32 s29, s29, {4*3072}")
        k(pack(t, R))
        k(f"buffer_store_dwordx4 {v(R,4)}, v1, s[12:15], s29 offen offset:{((t & 3) - 1)*1024} sc1")
    k(f"s_cmp_eq_u32 s19, s33\ns_cbranch_scc1 {k.lab('own8')}")
    R = PKR + 24
    k(pack(8, R))
    k(f"buffer_store_dwordx4 {v(R,4)}, v1, s[12:15], s52 offen sc1")
    k.label("own8")
    for i, t in enumerate((0, 4, 8)):
        for T in range(2):
            k(f"ds_write_b128 v3, {v(ACC+8*t+4*T,4)} offset:{(2*i+T)*1024}")
    k("s_waitcnt lgkmcnt(0)\ns_barrier")
```

```python
from common import *

def prep_addr(k, VS, VW, VR, VT, scr_s):
    k(f"""
s_mul_i32 s57, s57, s50
s_mul_i32 s58, s58, s50
v_lshrrev_b32 v{VS}, 5, v0
v_mul_lo_u32 v{VS}, v{VS}, s56
v_bfe_u32 v{VT}, v0, 3, 2
v_add_u32 v{VS}, v{VS}, v{VT}
v_mul_lo_u32 v{VS}, v{VS}, s50
v_and_b32 v{VT}, 7, v0
v_lshl_add_u32 v{VS}, v{VT}, 4, v{VS}
v_add_u32 v{VW}, s{scr_s}, v1
v_lshrrev_b32 v{VR}, 2, v0
v_lshlrev_b32 v{VR}, 7, v{VR}
v_and_b32 v{VT}, 3, v0
v_lshl_add_u32 v{VR}, v{VT}, 3, v{VR}
v_add_u32 v{VR}, s{scr_s}, v{VR}
""")

def prep_loads(k, ns, DAT, VS):
    for n in ns:
        for i in range(2):
            for q in range(2):
                r = DAT + 4 * (4*n + 2*i + q)
                if i == 0 and q == 0:
                    so = "s51"
                elif i == 0:
                    k("s_add_u32 s59, s51, s57"); so = "s59"
                elif q == 0:
                    k("s_add_u32 s59, s51, s58"); so = "s59"
                else:
                    k("s_add_u32 s59, s59, s57"); so = "s59"
                k(f"buffer_load_dwordx4 {v(r,4)}, v{VS}, s[24:27], {so} offen")
        k("s_add_u32 s51, s51, s52")

def prep_process(k, DAT, FR, VW, VR, pst="sc1"):
    for n in range(4):
        fr = FR + 16 * (n & 1)
        for i in range(2):
            k(f"s_waitcnt vmcnt({16 - (4*n + 2*i + 2) + 4*n})")
            for q in range(2):
                k(f"ds_write_b128 v{VW}, {v(DAT + 4*(4*n+2*i+q),4)} offset:{q*1024}")
            for j in range(4):
                k(f"ds_read_b64_tr_b16 {v(fr+4*j+2*i,2)}, v{VR} offset:{j*32}")
        k("s_waitcnt lgkmcnt(0)\ns_mov_b32 s59, s53")
        for j in range(4):
            k(f"buffer_store_dwordx4 {v(fr+4*j,4)}, v1, s[12:15], s59 offen {pst}")
            if j < 3:
                k("s_add_u32 s59, s59, s55")
        k("s_add_u32 s53, s53, s54")
```

```python
import sys
from common import *
from ka import gen_ka
from km import gen_km

def build(diag=False, **opt):
    ka = dict(nxt=("km_kernel",), l2end="Lkm_end", l2n=4); ka.update(opt.get('ka', {}))
    ks = [gen_ka(diag, **ka), gen_km(diag, **opt.get('km', {}))]
    t = "; generated by own generator scripts: launch 1 = LN1+QKV, launch 2 = attention -> Wo+residual -> gate*up -> down\n"
    t += "".join(k.launch() for k in ks)
    t += '.amdgcn_target "amdgcn-amd-amdhsa--gfx950"\n.text\n'
    t += "".join(k.text() for k in ks)
    return t

if __name__ == "__main__":
    out = sys.argv[1]
    diag = "diag" in sys.argv[2:]
    opt = {}
    DBG[0] = 2 if "dbg2" in sys.argv[2:] else (1 if "dbg1" in sys.argv[2:] else 0)
    REAL[0] = "real" in sys.argv[2:]
    for a_ in sys.argv[2:]:
        if a_.startswith("probe:"):
            PROBE[0] = eval(a_[6:])
        elif "=" in a_:
            key, val = a_.split("=", 1)
            kn, pn = key.split(".")
            try: val = eval(val)
            except Exception: pass
            opt.setdefault(kn, {})[pn] = val
    open(out, "w").write(build(diag, **opt))
```

```python
import math, struct

S, D, H, DH, F = 2048, 576, 32, 18, 4608

KVBLK = 2432
KV_K0, KV_K1, KV_V0, KV_K2, KV_V1, KV_V2 = 0, 512, 1024, 1536, 1664, 2176
KVHEAD = 64 * KVBLK
QBLK = 1152
QHEAD = 64 * QBLK
KVOFF = 0
QOFF = 32 * KVHEAD
OOFF = 0x800000
HCOFF = 0xB00000
MUXOFF = 0xE00000
MUHOFF = 0xE02000
SSQOFF = 0xE04000
WBAROFF = 0xE40000
WOOFF = 0xF00000
WGUOFF = 0x1000000
WDOFF = 0x1C00000
HIDOFF = 0x2200000
PARTOFF = 0x3400000
EXOFF = 0x3600000
FLS = 128
FBOFF = 0x3000000 + 0x400000
FCOFF = FBOFF + 2048 * FLS
FDOFF = FCOFF + 2048 * FLS
FXOFF = FDOFF + 2048 * FLS
FPOFF = FXOFF + 2048 * FLS
FLEND = FPOFF + 1024 * FLS
STAMPOFF = 0x8000000
WS_BYTES = 0x10000000
CH = S * 16
OOB = 0x40000000

ARG_X, ARG_WQKV, ARG_WO, ARG_BX, ARG_WG, ARG_WU, ARG_WD, ARG_OUT, ARG_DBG, ARG_WS = [8 * i for i in range(10)]


def f2u(x):
    return struct.unpack("<I", struct.pack("<f", x))[0]


def v(i, n=1):
    return f"v{i}" if n == 1 else f"v[{i}:{i+n-1}]"


def a(i, n=1):
    return f"a{i}" if n == 1 else f"a[{i}:{i+n-1}]"


def s(i, n=1):
    return f"s{i}" if n == 1 else f"s[{i}:{i+n-1}]"


REAL = [False]

class Kern:
    def __init__(self, name, grid, block, lds, vgpr, accum=None, sgpr=96, idx=0, diag=False, nm=7, mb=72):
        self.nm, self.mb = nm, mb
        if diag: sgpr = 102
        self.name, self.grid, self.block, self.lds = name, grid, block, lds
        self.vgpr, self.accum, self.sgpr = vgpr, accum, sgpr
        self.L = []
        self.idx, self.diag = idx, diag

    def __call__(self, txt):
        for ln in txt.strip("\n").split("\n"):
            ln = ln.strip()
            if not ln:
                continue
            if ln.endswith(":") or ln.startswith("."):
                self.L.append(ln)
            else:
                self.L.append("  " + ln)

    def lab(self, l):
        return f"L{self.name[:2]}_{l}"

    def label(self, l):
        self.L.append(self.lab(l) + ":")

    def srd(self, d, p, nbytes):
        self(f"s_mov_b32 s{d}, s{p}\ns_mov_b32 s{d+1}, s{p+1}\ns_mov_b32 s{d+2}, {nbytes:#x}\ns_mov_b32 s{d+3}, 0x20000")

    NM = 14
    MB = 64
    def stamp_start(self):
        if self.diag:
            self("s_memrealtime s[96:97]\ns_memtime s[92:93]")
            for i in range(self.nm):
                self(f"s_mov_b64 s[{self.mb+2*i}:{self.mb+1+2*i}], 0")

    def mark(self, i):
        if self.diag:
            assert i < self.nm - 1
            self(f"{'s_memrealtime' if REAL[0] else 's_memtime'} s[{self.mb+2*i}:{self.mb+1+2*i}]")

    def stamp_end(self, ws_srd):
        if self.diag:
            e = self.mb + 2 * (self.nm - 1)
            self(f"""
{'s_memrealtime' if REAL[0] else 's_memtime'} s[{e}:{e+1}]
s_waitcnt vmcnt(0) lgkmcnt(0)
s_memrealtime s[98:99]
s_memtime s[100:101]
s_mov_b64 exec, 1
s_waitcnt lgkmcnt(0)
s_lshl_b32 s94, s2, 4
s_add_u32 s94, s94, s95
s_lshl_b32 s94, s94, 7
s_add_u32 s94, s94, {STAMPOFF + self.idx * 0x100000}
s_sub_u32 s100, s100, s92
v_mov_b32 v0, 0
v_mov_b32 v4, s96
v_mov_b32 v5, s98
v_mov_b32 v6, s100
v_mov_b32 v7, 1
v_mov_b32 v8, s95
v_mov_b32 v9, {self.nm}
""")
            for i in range(14):
                if i < self.nm:
                    self(f"s_sub_u32 s{self.mb+2*i}, s{self.mb+2*i}, {'s96' if REAL[0] else 's92'}\nv_mov_b32 v{10+i}, s{self.mb+2*i}")
                else:
                    self(f"v_mov_b32 v{10+i}, 0")
            for i in range(5):
                self(f"buffer_store_dwordx4 v[{4+4*i}:{7+4*i}], v0, s[{ws_srd}:{ws_srd+3}], s94 offen offset:{16*i}")
            self("s_waitcnt vmcnt(0)")

    def code_l2(self, lab0, lab1, nmax, vt, sp, lane="v0"):
        u = f"Lpc{self.name[:2]}{len(self.L)}"
        self(f"""
s_getpc_b64 s[{sp}:{sp+1}]
{u}:
s_add_u32 s{sp}, s{sp}, {lab0}-{u}
s_addc_u32 s{sp+1}, s{sp+1}, ({lab0}-{u})>>32
v_lshlrev_b32 v{vt}, 7, {lane}
""")
        for i in range(nmax):
            self(f"v_min_u32 v{vt+1}, {lab1}-{lab0}-4, v{vt}\nglobal_load_dword v{vt+2}, v{vt+1}, s[{sp}:{sp+1}]")
            if i + 1 < nmax:
                self(f"v_add_u32 v{vt}, 8192, v{vt}")

    def kd_touch(self, names, vt, sp):
        self(f"v_mov_b32 v{vt}, 0")
        for n in names:
            self(f"""
s_getpc_b64 s[{sp}:{sp+1}]
s_add_u32 s{sp}, s{sp}, Ldesc_{n}@rel32@lo+4
s_addc_u32 s{sp+1}, s{sp+1}, Ldesc_{n}@rel32@hi+12
global_load_dword v{vt+1}, v{vt}, s[{sp}:{sp+1}]
""")

    def text(self):
        accum = self.accum if self.accum is not None else min(256, (self.vgpr + 3) // 4 * 4)
        t = f".globl {self.name}\n.p2align 8\n.type {self.name},@function\n{self.name}:\n"
        t += "\n".join(self.L) + "\n"
        t += f""".section .rodata,"a"
.p2align 6
Ldesc_{self.name}:
.amdhsa_kernel {self.name}
  .amdhsa_next_free_vgpr {self.vgpr}
  .amdhsa_next_free_sgpr {self.sgpr}
  .amdhsa_accum_offset {accum}
  .amdhsa_group_segment_fixed_size 0
  .amdhsa_kernarg_size 80
  .amdhsa_user_sgpr_count 2
  .amdhsa_user_sgpr_kernarg_segment_ptr 1
  .amdhsa_system_sgpr_workgroup_id_x 1
.end_amdhsa_kernel
.text
"""
        return t

    def launch(self):
        return f"; @launch kernel={self.name} grid=({self.grid},1,1) block=({self.block},1,1) lds={self.lds}\n"


def interleave(main, fill, per=1, start=0):
    out = []
    fi = 0
    for i, m in enumerate(main):
        out.append(m)
        if i >= start:
            for _ in range(per):
                if fi < len(fill):
                    out.append(fill[fi]); fi += 1
    out.extend(fill[fi:])
    return out
```

```python
from common import *
from prep import *

SLOT = 34816
XB = 16384
EXCH = 4 * SLOT
QSCALE = (DH ** -0.5) * math.log2(math.e)
NAUX = 64

def gen_ka(diag=False, st="sc1", NS=3, rot="4", l2=True, kdt=True, nxt=("kb_kernel", "kc_kernel", "kd_kernel", "ke_kernel"), l2end="Lkb_end", l2n=2, touch=0):
    if rot == "full":
        ROT = """s_lshl_b32 s25, s42, 1
s_mul_i32 s40, s40, 7
s_add_u32 s25, s25, s40
s_lshr_b32 s40, s26, 1
s_add_u32 s25, s25, s40
s_and_b32 s40, s26, 1
s_mul_i32 s40, s40, 3
s_add_u32 s25, s25, s40
s_mul_i32 s40, s25, 7282
s_lshr_b32 s40, s40, 16
s_mul_i32 s40, s40, 9
s_sub_u32 s25, s25, s40"""
    elif rot == "3":
        ROT = """s_add_u32 s25, s42, s40
s_mul_i32 s40, s25, 21846
s_lshr_b32 s40, s40, 16
s_mul_i32 s40, s40, 3
s_sub_u32 s25, s25, s40
s_mul_i32 s25, s25, 3"""
    elif rot == "4":
        ROT = """s_add_u32 s25, s42, s40
s_and_b32 s25, s25, 3
s_mul_i32 s25, s25, 9
s_lshr_b32 s25, s25, 2"""
    elif rot == "2":
        ROT = """s_add_u32 s25, s42, s40
s_and_b32 s25, s25, 1
s_mul_i32 s25, s25, 4"""
    else:
        ROT = "s_mov_b32 s25, 0"
    global EXCH
    EXCH = NS * SLOT
    k = Kern("ka_kernel", 192 + NAUX, 512, EXCH + 512, vgpr=224, idx=0, diag=diag)
    k.stamp_start()
    XV0, XV1 = 1, 2
    WV = 3
    XR = 8
    WR = 10
    XA = 15
    WA = 17
    LT, LG = 22, 23
    ONE = 24
    WF = [28, 64]
    XF = [100, 108]
    ACC = 116
    CS = 188
    SUM = 200
    GR = 208
    T0 = 216
    k(f"""
s_cmp_ge_u32 s2, {192 + NAUX}
s_cbranch_scc1 {k.lab('end')}
s_load_dwordx4 s[28:31], s[0:1], {ARG_X}
s_load_dwordx2 s[32:33], s[0:1], {ARG_WO}
s_load_dwordx2 s[34:35], s[0:1], {ARG_WS}
s_load_dwordx4 s[60:63], s[0:1], {ARG_WG}
s_load_dwordx2 s[64:65], s[0:1], {ARG_WD}
v_lshrrev_b32 v1, 6, v0
v_and_b32 v0, 63, v0
v_readfirstlane_b32 s95, v1
v_and_b32 v{LT}, 15, v0
v_lshrrev_b32 v{LG}, 4, v0
s_and_b32 s16, s95, 3
s_and_b32 s26, s2, 7
s_lshr_b32 s27, s2, 3
s_lshr_b32 s17, s26, 1
s_lshl_b32 s17, s17, 2
s_and_b32 s40, s27, 3
s_add_u32 s17, s17, s40          ; rb
s_and_b32 s18, s26, 1
s_mul_i32 s18, s18, 6
s_lshr_b32 s42, s27, 2
s_add_u32 s18, s18, s42          ; nb
s_lshl_b32 s41, s17, 2
s_add_u32 s41, s41, s16
s_lshl_b32 s49, s16, 12
s_cmp_lt_u32 s95, 4
s_cbranch_scc1 {k.lab('cons')}
s_cmp_ge_u32 s2, 192
s_cbranch_scc1 {k.lab('cons')}
; ---- producer ----
{ROT}
s_mul_i32 s19, s41, {32*1152}
s_mul_i32 s20, s18, 288
v_lshrrev_b32 v{T0}, 3, v0
v_mul_u32_u24 v{T0}, 1152, v{T0}
v_and_b32 v{T0+1}, 7, v0
v_xor_b32 v{T0+1}, v{T0+1}, v{LG}
v_lshl_add_u32 v{XV0}, v{T0+1}, 4, v{T0}
v_xor_b32 v{T0+1}, 4, v{T0+1}
v_lshl_add_u32 v{XV1}, v{T0+1}, 4, v{T0}
""")
    for n in range(5):
        k(f"s_add_u32 s{44+n}, s16, {4*n}")
        if n == 4:
            k(f"s_add_u32 s42, s16, 12\ns_cmp_ge_u32 s48, 18\ns_cselect_b32 s48, s42, s48")
        k(f"""
s_lshl_b32 s42, s{44+n}, 6
v_add_u32 v{T0}, s42, v0
v_mul_u32_u24 v{T0+1}, 3641, v{T0}
v_lshrrev_b32 v{T0+1}, 16, v{T0+1}
v_mul_u32_u24 v{T0+2}, 18, v{T0+1}
v_sub_u32 v{T0+2}, v{T0}, v{T0+2}
v_and_b32 v{T0+3}, 0x33, v{T0+1}
v_and_b32 v{T0+4}, 4, v{T0+1}
v_lshl_or_b32 v{T0+3}, v{T0+4}, 1, v{T0+3}
v_bfe_u32 v{T0+4}, v{T0+1}, 3, 1
v_lshl_or_b32 v{T0+3}, v{T0+4}, 2, v{T0+3}
v_mul_u32_u24 v{T0+3}, 3456, v{T0+3}
v_lshl_add_u32 v{WV+n}, v{T0+2}, 4, v{T0+3}
s_lshl_b32 s{44+n}, s{44+n}, 10
s_add_u32 s{44+n}, s{44+n}, {XB}
""")
    k("s_waitcnt lgkmcnt(0)")
    k.srd(4, 28, S * D * 2)
    k.srd(8, 30, D * 3 * D * 2)
    if diag:
        k.srd(12, 34, WS_BYTES)
    k.mark(0)
    k("s_mov_b32 s23, 0\ns_mov_b32 s24, 0")
    k.label("ploop")
    k(f"""
s_lshl_b32 s21, s25, 7
s_add_u32 s21, s21, s19
s_mul_i32 s22, s25, {64*3456}
s_add_u32 s22, s22, s20
s_add_u32 s50, s49, s23
""")
    for n in range(4):
        k(f"s_add_u32 m0, s50, {n*1024}\ns_add_u32 s51, s21, {n*8*1152}\nbuffer_load_dwordx4 v{XV0 + (n & 1)}, s[4:7], s51 offen lds")
    for n in range(5):
        k(f"s_add_u32 m0, s{44+n}, s23\ns_nop 0\nbuffer_load_dwordx4 v{WV+n}, s[8:11], s22 offen lds")
    k(f"""
s_add_u32 s25, s25, 1
s_cmp_ge_u32 s25, 9
s_cselect_b32 s25, 0, s25
s_add_u32 s23, s23, {SLOT}
s_cmp_ge_u32 s23, {NS*SLOT}
s_cselect_b32 s23, 0, s23
s_add_u32 s24, s24, 1
s_cmp_eq_u32 s24, 1
s_cbranch_scc1 {k.lab('ploop')}
s_waitcnt vmcnt(9)
s_barrier
s_cmp_lt_u32 s24, 9
s_cbranch_scc1 {k.lab('ploop')}
s_waitcnt vmcnt(0)
s_barrier
s_branch {k.lab('fin')}
""")
    k.label("cons")
    if l2:
        k.code_l2("ka_kernel", l2end, l2n, 5, 66)
    if kdt:
        k.kd_touch(nxt, 6, 66)
    k(f"""
v_mov_b32 v{ONE}, 0x3f803f80
v_mov_b32 v{ONE+1}, 0x3f803f80
v_mov_b32 v{ONE+2}, 0x3f803f80
v_mov_b32 v{ONE+3}, 0x3f803f80
s_waitcnt lgkmcnt(0)
""")
    k.srd(12, 34, WS_BYTES)
    k.srd(36, 32, D * D * 2)
    k(f"""
s_cmp_ge_u32 s2, 192
s_cbranch_scc1 {k.lab('aux')}
s_lshr_b32 s19, s18, 2           ; which
s_and_b32 s20, s18, 3            ; hg
v_lshrrev_b32 v{T0}, 1, v{LT}
v_xor_b32 v{T0}, v{T0}, v{LG}
v_lshlrev_b32 v{T0}, 4, v{T0}
v_lshl_add_u32 v{T0}, v{LT}, 7, v{T0}
v_add_u32 v{XR}, s49, v{T0}
v_xor_b32 v{XR+1}, 64, v{XR}
v_lshrrev_b32 v{T0}, 5, v0
v_lshlrev_b32 v{T0}, 4, v{T0}
v_and_b32 v{T0+1}, 1, v{LG}
v_lshl_add_u32 v{T0}, v{T0+1}, 2, v{T0}
v_bfe_u32 v{T0+1}, v0, 2, 2
v_add_u32 v{T0}, v{T0}, v{T0+1}
v_mul_u32_u24 v{T0}, 288, v{T0}
v_add_u32 v{T0}, {XB}, v{T0}
v_bfe_u32 v{T0+1}, v0, 1, 1
v_mul_u32_u24 v{T0+1}, 40, v{T0+1}
v_and_b32 v{T0+2}, 1, v0
v_lshl_add_u32 v{T0+1}, v{T0+2}, 4, v{T0+1}
v_add_u32 v{T0+1}, v{T0}, v{T0+1}
v_and_b32 v{T0+2}, 3, v0
v_mul_u32_u24 v{T0+2}, 72, v{T0+2}
v_add3_u32 v{WR+4}, v{T0}, v{T0+2}, 32
""")
    for j in range(4):
        k(f"s_add_u32 s{52+j}, s16, {j}\ns_and_b32 s{52+j}, s{52+j}, 3\ns_mul_i32 s42, s{52+j}, 72\nv_add_u32 v{WR+j}, s42, v{T0+1}")
    for i in range(ACC, GR + 8):
        k(f"v_mov_b32 v{i}, 0")
    for i in range(2):
        k(f"v_mov_b32 v{XA+i}, v{XR+i}")
    for i in range(5):
        k(f"v_mov_b32 v{WA+i}, v{WR+i}")

    def reads(ks, buf):
        r = []
        for T in range(2):
            r.append(f"ds_read_b128 {v(XF[buf]+4*T,4)}, v{XA+ks} offset:{T*2048}")
        for t in range(9):
            for i in range(2):
                off = ks * 32 * 288 + i * 8 * 288 + ((t & 1) * 8 if t < 8 else 0)
                r.append(f"ds_read_b64_tr_b16 {v(WF[buf]+4*t+2*i,2)}, v{WA + t//2} offset:{off}")
        return r

    def mfmas(buf):
        m = []
        M = "v_mfma_f32_16x16x32_bf16"
        for T in range(2):
            x = v(XF[buf]+4*T, 4)
            m.append(f"{M} {v(SUM+4*T,4)}, {v(ONE,4)}, {x}, {v(SUM+4*T,4)}")
            m.append(f"{M} {v(GR+4*T,4)}, {x}, {x}, {v(GR+4*T,4)}")
        for t in range(9):
            w = v(WF[buf]+4*t, 4)
            for T in range(2):
                d = v(ACC + (2*t+T)*4, 4)
                m.append(f"{M} {d}, {w}, {v(XF[buf]+4*T,4)}, {d}")
            if t in (0, 1, 8):
                d = v(CS + (t if t < 8 else 2)*4, 4)
                m.append(f"{M} {d}, {w}, {v(ONE,4)}, {d}")
        return m

    k.mark(1)
    k("s_barrier")
    k.mark(2)
    for r in reads(0, 0):
        k(r)
    k("s_mov_b32 s24, 0\ns_mov_b32 s25, 0")
    k(".p2align 6")
    k.label("loop")
    k("s_waitcnt lgkmcnt(0)")
    for x in interleave(mfmas(0), reads(1, 1), per=2):
        k(x)
    k(f"""
s_add_u32 s24, s24, {SLOT}
s_cmp_ge_u32 s24, {NS*SLOT}
s_cselect_b32 s24, 0, s24
""")
    for i in range(2):
        k(f"v_add_u32 v{XA+i}, s24, v{XR+i}")
    for i in range(5):
        k(f"v_add_u32 v{WA+i}, s24, v{WR+i}")
    k(f"""
s_add_u32 s25, s25, 1
s_waitcnt lgkmcnt(0)
s_barrier
""")
    for x in interleave(mfmas(1), reads(0, 0), per=2):
        k(x)
    k(f"""
s_cmp_lt_u32 s25, 9
s_cbranch_scc1 {k.lab('loop')}
""")
    k.mark(3)
    RS = 28
    CSX = 32
    VO, VX = 56, 57
    PK = 60
    k(f"""
s_waitcnt lgkmcnt(0)
s_lshl_b32 s42, s16, 7
s_add_u32 s42, s42, {EXCH}
v_lshlrev_b32 v{T0}, 5, v{LG}
v_add_u32 v{T0+1}, s42, v{T0}
s_nop 4
ds_write_b128 v{T0+1}, {v(CS,4)}
ds_write_b128 v{T0+1}, {v(CS+4,4)} offset:16
; stats
v_and_b32 v{T0+2}, 1, v0
v_cmp_eq_u32 s[56:57], 1, v{T0+2}
v_and_b32 v{T0+2}, 2, v0
v_cmp_eq_u32 s[58:59], 2, v{T0+2}
v_lshrrev_b32 v{T0+2}, 2, v{LT}
v_cmp_eq_u32 s[60:61], v{T0+2}, v{LG}
s_cmp_eq_u32 s19, 0
s_cselect_b32 s62, {f2u(QSCALE):#x}, 1.0
s_mov_b32 s63, {f2u(1.0/D):#x}
s_mov_b32 s64, {f2u(1e-5):#x}
""")
    for T in range(2):
        g = GR + 4*T
        k(f"""
v_cndmask_b32 v{g}, v{g}, v{g+1}, s[56:57]
v_cndmask_b32 v{g+2}, v{g+2}, v{g+3}, s[56:57]
v_cndmask_b32 v{g}, v{g}, v{g+2}, s[58:59]
v_cndmask_b32 v{g}, 0, v{g}, s[60:61]
v_mov_b32 v{g+1}, v{g}
s_nop 1
v_permlane16_swap_b32 v{g}, v{g+1}
v_add_f32 v{g}, v{g}, v{g+1}
v_mov_b32 v{g+1}, v{g}
s_nop 1
v_permlane32_swap_b32 v{g}, v{g+1}
v_add_f32 v{g}, v{g}, v{g+1}
v_mul_f32 v{SUM+4*T}, s63, v{SUM+4*T}
v_mul_f32 v{g+1}, v{SUM+4*T}, v{SUM+4*T}
v_fma_f32 v{g}, v{g}, s63, -v{g+1}
v_max_f32 v{g}, 0, v{g}
v_add_f32 v{g}, s64, v{g}
v_rsq_f32 v{g}, v{g}
s_nop 0
v_mul_f32 v{RS+2*T}, s62, v{g}
v_mul_f32 v{RS+2*T+1}, v{RS+2*T}, -v{SUM+4*T}
""")
    k(f"""
s_mov_b32 s65, {KVHEAD}
s_mov_b32 s66, {KVBLK}
s_mov_b32 s70, {KV_K2}
s_mov_b32 s69, 512
s_cmp_eq_u32 s19, 0
s_cselect_b32 s65, {QHEAD}, s65          ; HS
s_cselect_b32 s66, {QBLK}, s66           ; BS
s_cselect_b32 s67, {QOFF}, {KVOFF}       ; base
s_cselect_b32 s70, 1024, s70             ; cx
s_cmp_eq_u32 s19, 2
s_cselect_b32 s68, {KV_V0}, 0            ; c0
s_cselect_b32 s69, {KV_V1-KV_V0}, s69    ; c1-c0
s_cselect_b32 s70, {KV_V2}, s70
s_cselect_b32 s71, 3, 2
s_mul_i32 s42, s41, s66
s_add_u32 s67, s67, s42
s_lshl_b32 s42, s20, 3
s_mul_i32 s42, s42, s65
s_add_u32 s67, s67, s42
v_lshrrev_b32 v{T0+2}, 1, v{LG}
v_mul_lo_u32 v{VO}, v{T0+2}, s65
v_and_b32 v{T0+2}, 1, v{LG}
v_mul_lo_u32 v{T0+2}, v{T0+2}, s69
v_lshlrev_b32 v{T0+3}, 4, v{LT}
v_add3_u32 v{VO}, v{VO}, v{T0+2}, v{T0+3}
s_lshl_b32 s42, s65, 1
v_mul_lo_u32 v{VX}, v{LG}, s42
v_lshlrev_b32 v{T0+3}, s71, v{LT}
v_add_u32 v{VX}, v{VX}, v{T0+3}
s_waitcnt lgkmcnt(0)
s_barrier
""")
    for j in range(1, 4):
        k(f"s_lshl_b32 s42, s{52+j}, 7\ns_add_u32 s42, s42, {EXCH}\nv_add_u32 v{T0+1}, s42, v{T0}")
        k(f"ds_read_b128 {v(CSX+8*(j-1),4)}, v{T0+1}\nds_read_b128 {v(CSX+8*(j-1)+4,4)}, v{T0+1} offset:16")
    k(f"""
s_cmp_lg_u32 s18, 0
s_cbranch_scc1 {k.lab('nomu')}
s_lshl_b32 s42, s41, 7
s_add_u32 s42, s42, {MUXOFF}
v_lshlrev_b32 v{T0+2}, 2, v{LT}
s_mov_b64 exec, 0xffff
buffer_store_dword v{SUM}, v{T0+2}, s[12:15], s42 offen {st}
buffer_store_dword v{SUM+4}, v{T0+2}, s[12:15], s42 offen offset:64 {st}
s_mov_b64 exec, -1
""")
    k.label("nomu")

    def fix(acc, cs, T, dst, tmp):
        rs = v(RS+2*T, 2)
        return f"""
v_pk_mul_f32 {v(tmp,2)}, {v(cs,2)}, {rs} op_sel:[0,1] op_sel_hi:[1,1]
v_pk_mul_f32 {v(tmp+2,2)}, {v(cs+2,2)}, {rs} op_sel:[0,1] op_sel_hi:[1,1]
v_pk_fma_f32 {v(tmp,2)}, {v(acc,2)}, {rs}, {v(tmp,2)} op_sel:[0,0,0] op_sel_hi:[1,0,1]
v_pk_fma_f32 {v(tmp+2,2)}, {v(acc+2,2)}, {rs}, {v(tmp+2,2)} op_sel:[0,0,0] op_sel_hi:[1,0,1]
v_cvt_pk_bf16_f32 v{dst}, v{tmp}, v{tmp+1}
v_cvt_pk_bf16_f32 v{dst+1}, v{tmp+2}, v{tmp+3}
"""
    k.mark(4)
    OUT = 76
    for j in range(4):
        if j == 1:
            k("s_waitcnt lgkmcnt(0)")
        cs = CS if j == 0 else CSX + 8*(j-1)
        k(f"s_lshl_b32 s42, s{52+j}, 1\ns_mul_i32 s42, s42, s65\ns_add_u32 s42, s42, s67\ns_add_u32 s42, s42, s68")
        for T in range(2):
            o = OUT + (2*j+T)*4
            for t in range(2):
                k(fix(ACC + (2*(2*j+t)+T)*4, cs + 4*t, T, o + 2*t, PK + 4*t))
            k(f"buffer_store_dwordx4 {v(o,4)}, v{VO}, s[12:15], s42 offen offset:{T*256} {st}")
    XO = 108
    for T in range(2):
        k(fix(ACC + (16+T)*4, CS + 8, T, XO + 4*T, PK + 4*T))
    k(f"""
s_add_u32 s42, s67, s70
s_add_u32 s43, s42, s65
s_cmp_eq_u32 s19, 2
s_cbranch_scc1 {k.lab('xv')}
buffer_store_dword v{XO}, v{VX}, s[12:15], s42 offen {st}
buffer_store_dword v{XO+1}, v{VX}, s[12:15], s43 offen {st}
buffer_store_dword v{XO+4}, v{VX}, s[12:15], s42 offen offset:64 {st}
buffer_store_dword v{XO+5}, v{VX}, s[12:15], s43 offen offset:64 {st}
s_branch {k.lab('fin')}
""")
    k.label("xv")
    k(f"""
v_mov_b32 v{XO+2}, v{XO+1}
v_mov_b32 v{XO+6}, v{XO+5}
v_mov_b32 v{XO+1}, 0x3f80
v_mov_b32 v{XO+3}, 0x3f80
v_mov_b32 v{XO+5}, 0x3f80
v_mov_b32 v{XO+7}, 0x3f80
buffer_store_dwordx2 {v(XO,2)}, v{VX}, s[12:15], s42 offen {st}
buffer_store_dwordx2 {v(XO+2,2)}, v{VX}, s[12:15], s43 offen {st}
buffer_store_dwordx2 {v(XO+4,2)}, v{VX}, s[12:15], s42 offen offset:128 {st}
buffer_store_dwordx2 {v(XO+6,2)}, v{VX}, s[12:15], s43 offen offset:128 {st}
s_branch {k.lab('fin')}
""")
    k.label("aux")
    k(f"""
s_sub_u32 s17, s2, 192
s_lshl_b32 s18, s95, 6
s_add_u32 s17, s17, s18          ; job J 0..511
v_lshlrev_b32 v1, 4, v0
v_mov_b32 v8, 0
v_mov_b32 v9, 0
v_mov_b32 v10, 0
v_mov_b32 v11, 0
s_lshl_b32 s18, s17, 10
s_add_u32 s18, s18, {FBOFF}
buffer_store_dwordx4 v[8:11], v1, s[12:15], s18 offen sc1
s_add_u32 s18, s18, {512*1024}
buffer_store_dwordx4 v[8:11], v1, s[12:15], s18 offen sc1
s_add_u32 s18, s18, {512*1024}
s_cmp_ge_u32 s18, {FLEND}
s_cselect_b32 s18, {OOB}, s18
buffer_store_dwordx4 v[8:11], v1, s[12:15], s18 offen sc1
s_cmp_ge_u32 s17, 81
s_cbranch_scc1 {k.lab('touch')}
s_cmp_lt_u32 s17, 36
s_cbranch_scc1 {k.lab('wbar')}
s_sub_u32 s18, s17, 36
s_mov_b32 s24, s36
s_mov_b32 s25, s37
s_mov_b32 s26, s38
s_mov_b32 s27, 0x20000
s_mov_b32 s50, 1152
s_mov_b32 s54, 36864
s_mov_b32 s55, 1024
s_mov_b32 s52, {36*1152}
s_mov_b32 s56, 8
s_mov_b32 s57, 20
s_mov_b32 s58, 4
s_mul_i32 s19, s18, 7282
s_lshr_b32 s19, s19, 16          ; kg = r/9
s_mul_i32 s20, s19, 9
s_sub_u32 s20, s18, s20          ; cs
s_mul_i32 s51, s19, {4*36*1152}
s_mul_i32 s53, s19, {4*36864}
s_add_u32 s53, s53, {WOOFF}
s_lshl_b32 s21, s20, 12
s_add_u32 s53, s53, s21
s_cmp_ge_u32 s18, 36
s_cselect_b32 s51, {16*1152}, s51
s_cselect_b32 s52, {288*1152}, s52
s_cselect_b32 s56, 72, s56
s_cselect_b32 s57, 144, s57
s_cselect_b32 s58, 36, s58
s_lshl_b32 s21, s20, 7
s_add_u32 s51, s51, s21
s_lshl_b32 s21, s95, 11
""")
    prep_addr(k, 2, 3, 4, 12, 21)
    prep_loads(k, range(4), 28, 2)
    prep_process(k, 28, 92, 3, 4)
    k(f"s_branch {k.lab('touch')}")
    k.label("wbar")
    k(f"""
s_lshr_b32 s18, s17, 1           ; ks
s_and_b32 s19, s17, 1            ; half
s_mul_i32 s20, s18, 36
s_mul_i32 s21, s19, 20
s_add_u32 s20, s20, s21
v_add_u32 v1, s20, v{LT}
s_sub_u32 s20, s17, 32
s_mul_i32 s20, s20, 144
s_add_u32 s20, s20, 16
v_lshrrev_b32 v2, 2, v{LT}
v_mul_u32_u24 v2, 36, v2
v_and_b32 v3, 3, v{LT}
v_add3_u32 v2, v2, v3, s20
s_cmp_ge_u32 s17, 32
s_cselect_b64 vcc, -1, 0
v_cndmask_b32 v1, v1, v2, vcc
v_mul_u32_u24 v1, 1152, v1
v_lshl_add_u32 v1, v{LG}, 4, v1
""")
    for n in range(18):
        k(f"buffer_load_dwordx4 {v(28+4*n,4)}, v1, s[36:39], 0 offen offset:{n*64}")
    for n in range(18):
        k(f"s_waitcnt vmcnt({17-n})")
        c = "0" if n == 0 else "v[4:7]"
        k(f"v_mfma_f32_16x16x32_bf16 v[4:7], {v(ONE,4)}, {v(28+4*n,4)}, {c}")
    k(f"""
s_mov_b32 s43, {f2u(1.0/D):#x}
s_lshl_b32 s42, s17, 5
s_add_u32 s42, s42, {WBAROFF}
v_lshlrev_b32 v2, 1, v{LT}
s_nop 7
v_mul_f32 v4, s43, v4
v_cvt_pk_bf16_f32 v5, v4, v4
v_and_b32 v6, 0xffff0000, v5
v_sub_f32 v6, v4, v6
v_cvt_pk_bf16_f32 v6, v6, v6
s_mov_b64 exec, 0xffff
buffer_store_short v5, v2, s[12:15], s42 offen
buffer_store_short v6, v2, s[12:15], s42 offen offset:1152
s_mov_b64 exec, -1
""")
    k.label("touch")
    if touch:
        k.srd(4, 28, S * D * 2)
        k.srd(8, 30, D * 3 * D * 2)
        k(f"""
v_lshlrev_b32 v1, 7, v0
s_lshl_b32 s18, s17, 13
s_sub_u32 s19, s18, {288*8192}
buffer_load_dword v2, v1, s[4:7], s18 offen
buffer_load_dword v3, v1, s[8:11], s19 offen
""")
        k.srd(4, 60, D * F * 2)
        k.srd(8, 62, D * F * 2)
        k.srd(20, 64, D * F * 2)
        k(f"""
s_add_u32 s19, s18, {512*8192}
s_waitcnt vmcnt(0)
buffer_load_dword v2, v1, s[4:7], s18 offen
buffer_load_dword v3, v1, s[8:11], s18 offen
buffer_load_dword v4, v1, s[20:23], s18 offen
buffer_load_dword v5, v1, s[4:7], s19 offen
buffer_load_dword v6, v1, s[8:11], s19 offen
buffer_load_dword v7, v1, s[20:23], s19 offen
""")
    k.label("fin")
    k.stamp_end(12)
    k.label("end")
    k("s_endpgm")
    return k
```

```python
from common import *
from prep import *

SCR = KVHEAD
UB = 36864
CB = 12288
HALF = 32 * KVBLK
OST = 163840 - UB
MRG = OST - 25600
MUL = OST - 1024
O2OFF = OOFF + 64 * CH
POLLMAX = 400000
M16 = "v_mfma_f32_32x32x16_bf16"
M8 = "v_mfma_f32_32x32x8_bf16"
M = "v_mfma_f32_16x16x32_bf16"


def set_flag(k, soff, vt):
    k(f"""
v_mov_b32 v{vt}, 0
v_mov_b32 v{vt+1}, 1
s_mov_b64 exec, 1
buffer_store_dword v{vt+1}, v{vt}, s[12:15], s{soff} offen sc1
s_mov_b64 exec, -1
""")


SLEEP = 1
def poll(k, name, soff, voff, vt, cnt_s, sleep=None, need='1'):
    sleep = sleep or SLEEP
    k(f"s_mov_b32 s{cnt_s}, 0")
    k.label(name)
    k(f"""
buffer_load_dword v{vt}, v{voff}, s[12:15], s{soff} offen sc1
s_add_u32 s{cnt_s}, s{cnt_s}, 1
s_waitcnt vmcnt(0)
v_cmp_gt_u32 vcc, {need}, v{vt}
s_cmp_ge_u32 s{cnt_s}, {POLLMAX}
s_cbranch_scc1 {k.lab(name + 'x')}
s_cbranch_vccz {k.lab(name + 'x')}
s_sleep {sleep}
s_branch {k.lab(name)}
""")
    k.label(name + "x")


def gen_km(diag=False, U=4, upto=9, ld="sc1", dbg="", NO=10, ST=(4, 5, 8, 9), NPRE=8, NF1=20, SL=2, one=True, CR=6, dopt={}, eopt={}):
    assert ST[3] < NO and ST[0] > 2
    k = Kern("km_kernel", 256, 512, 163840, vgpr=256, idx=1, diag=diag, nm=14, mb=64)
    k.stamp_start()
    AK1, AK2, AV = 2, 3, 4
    BK1 = 8
    SS = [16, 32]
    OO = [48, 96]
    P, K1, K2, V0, V1 = 64, 72, 76, 80, 84
    Q1 = [88, 112]
    Q2 = [92, 116]
    T0 = 118
    DAT, FR, PVS, PVW, PVR = 128, 192, 224, 225, 226
    WV = 14
    k(f"""
s_cmp_ge_u32 s2, 256
s_cbranch_scc1 {k.lab('end')}
s_load_dwordx2 s[34:35], s[0:1], {ARG_WS}
s_load_dwordx2 s[28:29], s[0:1], {ARG_X}
s_load_dwordx4 s[40:43], s[0:1], {ARG_WG}
s_load_dwordx4 s[44:47], s[0:1], {ARG_WD}
v_lshrrev_b32 v1, 6, v0
v_and_b32 v0, 63, v0
v_readfirstlane_b32 s16, v1
v_lshlrev_b32 v1, 4, v0
s_and_b32 s17, s2, 7
s_lshl_b32 s17, s17, 2
s_bfe_u32 s18, s2, 0x20003
s_add_u32 s17, s17, s18          ; head
s_mov_b32 s95, s16
s_lshr_b32 s18, s2, 5
s_lshl_b32 s18, s18, 3
s_and_b32 s19, s16, 3
s_lshl_b32 s19, s19, 1
s_add_u32 s18, s18, s19
s_lshr_b32 s33, s16, 2           ; kh
s_mul_i32 s19, s17, {QHEAD}
s_mul_i32 s22, s18, {QBLK}
s_add_u32 s19, s19, s22
s_add_u32 s19, s19, {QOFF}
s_mul_i32 s22, s17, {KVHEAD}
s_lshl_b32 s23, s16, 10
v_and_b32 v{T0}, 31, v0
v_lshlrev_b32 v{T0+1}, 2, v{T0}
s_waitcnt lgkmcnt(0)
""")
    k.srd(12, 34, WS_BYTES)
    def piece(off, base="s23"):
        return f"s_add_u32 m0, {base}, {off}\ns_add_u32 s24, s22, m0\nbuffer_load_dwordx4 v1, s[12:15], s24 offen lds"
    k(piece(0))
    k(f"""
buffer_load_dwordx4 {v(Q1[0],4)}, v1, s[12:15], s19 offen
buffer_load_dword v{Q2[0]}, v{T0+1}, s[12:15], s19 offen offset:1024
buffer_load_dwordx4 {v(Q1[1],4)}, v1, s[12:15], s19 offen offset:{QBLK}
buffer_load_dword v{Q2[1]}, v{T0+1}, s[12:15], s19 offen offset:{QBLK+1024}
""")
    k(piece(8192)); k(piece(16384))
    assert (2 * U + 1) * KVBLK <= 24576
    k(f"""
v_and_b32 v{T0+1}, 0x13, v{T0}
v_and_b32 v{T0+2}, 4, v{T0}
v_lshl_or_b32 v{T0+1}, v{T0+2}, 1, v{T0+1}
v_bfe_u32 v{T0+2}, v{T0}, 3, 1
v_lshl_or_b32 v{T0+1}, v{T0+2}, 2, v{T0+1}
v_lshrrev_b32 v{T0+2}, 5, v0
v_lshlrev_b32 v{T0+3}, 9, v{T0+2}
v_lshl_add_u32 v{BK1}, v{T0+1}, 4, v{T0+3}
v_lshlrev_b32 v{BK1+1}, 2, v{T0+1}
v_add_u32 v{BK1+1}, {KV_K2}, v{BK1+1}
v_bfe_u32 v{T0+3}, v0, 2, 2
v_lshl_add_u32 v{T0+3}, v{T0+2}, 3, v{T0+3}
v_and_b32 v{T0+4}, 1, v0
v_mul_u32_u24 v{T0+4}, {KV_V1-KV_V0}, v{T0+4}
v_bfe_u32 v{T0+5}, v0, 1, 1
v_lshl_add_u32 v{T0+4}, v{T0+5}, 3, v{T0+4}
v_add_u32 v{T0+4}, {KV_V0}, v{T0+4}
v_and_b32 v{T0+5}, 16, v0
v_cmp_eq_u32 vcc, 16, v{T0+5}
""")
    for m in range(2):
        for i in range(2):
            k(f"""
v_add_u32 v{T0+5}, {16*m+4*i}, v{T0+3}
v_lshl_add_u32 v{T0+6}, v{T0+5}, 4, v{T0+4}
v_lshlrev_b32 v{T0+5}, 3, v{T0+5}
v_add_u32 v{T0+5}, {KV_V2}, v{T0+5}
v_cndmask_b32 v{BK1+2+2*m+i}, v{T0+6}, v{T0+5}, vcc
""")
    k(f"""
v_mov_b32 v{K2+1}, 0x3f803f80
v_cmp_gt_u32 s[30:31], 32, v0
s_mul_i32 s32, s33, {NO*U*KVBLK}
s_mul_i32 s3, s33, {(64//U - 2*NO) & 0xffffffff}
s_add_u32 s3, s3, {NO}
s_mov_b32 s48, 1
s_mov_b32 s21, 2
s_mov_b32 s36, s46
s_mov_b32 s37, s47
s_and_b32 s38, s2, 7
s_lshl_b32 s38, s38, 3
s_bfe_u32 s39, s2, 0x30003
s_add_u32 s38, s38, s39
s_lshr_b32 s39, s2, 6
s_xor_b32 s11, s16, 4
s_mul_i32 s49, s39, 9
s_lshl_b32 s19, s11, 1
s_add_u32 s49, s49, s19
s_lshl_b32 s62, s49, 10
s_add_u32 s62, s62, {WOOFF}
s_bfe_u32 s8, s2, 0x10002
s_lshl_b32 s8, s8, 2
s_bfe_u32 s9, s2, 0x20003
s_add_u32 s8, s8, s9
s_and_b32 s9, s2, 3
s_lshl_b32 s9, s9, 3
s_lshr_b32 s10, s2, 5
s_add_u32 s9, s9, s10
s_mul_i32 s10, s9, {9*UB}
s_add_u32 s10, s10, {WGUOFF}
s_lshl_b32 s61, s2, 2
s_add_u32 s61, s61, s16
s_mov_b32 s7, 0x20000
s_mov_b32 s56, 8
s_mov_b32 s57, 16
s_mov_b32 s58, 4
s_mov_b32 s6, {D*F*2}
s_cmp_ge_u32 s61, 648
s_cbranch_scc1 {k.lab('p1')}
s_cmp_ge_u32 s61, 324
s_cselect_b32 s4, s42, s40
s_cselect_b32 s5, s43, s41
s_cselect_b32 s60, 324, 0
s_cselect_b32 s53, 1024, 0
s_sub_u32 s60, s61, s60
s_mul_i32 s19, s60, 3641
s_lshr_b32 s19, s19, 16          ; ks
s_mul_i32 s59, s19, 18
s_sub_u32 s60, s60, s59          ; cg
s_mov_b32 s50, {F*2}
s_mul_i32 s51, s19, {32*F*2}
s_lshl_b32 s59, s60, 9
s_add_u32 s51, s51, s59
s_mov_b32 s52, 128
s_mul_i32 s59, s60, {16*36864}
s_add_u32 s53, s53, s59
s_lshl_b32 s59, s19, 11
s_add_u32 s53, s53, s59
s_add_u32 s53, s53, {WGUOFF}
s_mov_b32 s54, {4*36864}
s_mov_b32 s55, 36864
""")
    for e in range(8):
        k(f"s_add_u32 s{40+e}, s51, {(e//2)*128 + (e&1)*16*F*2}")
    k(f"s_branch {k.lab('pgo')}")
    k.label("p1")
    k(f"""
s_mov_b32 s50, 1152
s_mov_b32 s54, 36864
s_mov_b32 s55, 1024
s_mov_b32 s4, s44
s_mov_b32 s5, s45
s_mov_b32 s52, {32*1152}
s_sub_u32 s60, s61, 648
s_mul_i32 s19, s60, 7282
s_lshr_b32 s19, s19, 16          ; kg = r/9
s_mul_i32 s59, s19, 9
s_sub_u32 s60, s60, s59          ; cs
s_mul_i32 s53, s19, {4*36864}
s_add_u32 s53, s53, {WDOFF}
s_lshl_b32 s59, s60, 12
s_add_u32 s53, s53, s59
; k-slot order: position pos (16 rows) of quarter kq holds unit 72kq + 9*((pos%24)/3) + 3*(pos/24) + pos%3
s_lshl_b32 s51, s60, 7
s_mul_i32 s59, s19, 7282
s_lshr_b32 s59, s59, 16
s_mul_i32 s60, s59, 9
s_sub_u32 s19, s19, s60          ; kg%9
s_mul_i32 s59, s59, {72*16*1152}
s_add_u32 s51, s51, s59
s_mul_i32 s59, s19, 86
s_lshr_b32 s59, s59, 8           ; gamma = (kg%9)/3
s_mul_i32 s60, s59, 3
s_sub_u32 s19, s19, s60
s_lshl_b32 s19, s19, 3           ; pos%24 of the first half block
s_mul_i32 s60, s60, {16*1152}
s_add_u32 s51, s51, s60
""")
    for e in range(8):
        k(f"""
s_add_u32 s59, s19, {e}
s_mul_i32 s60, s59, 86
s_lshr_b32 s60, s60, 8
s_mul_i32 s60, s60, 6
s_add_u32 s59, s59, s60
s_mul_i32 s59, s59, {16*1152}
s_add_u32 s{40+e}, s51, s59
""")
    k.label("pgo")
    k(f"s_lshl_b32 s19, s16, 11\ns_add_u32 s19, s19, {SCR}")
    prep_addr(k, PVS, PVW, PVR, PVR + 1, 19)
    k("s_waitcnt vmcnt(0)\ns_barrier")
    k.mark(0)
    k(f"""
v_cndmask_b32 v{Q2[0]}, 0, v{Q2[0]}, s[30:31]
v_cndmask_b32 v{Q2[1]}, 0, v{Q2[1]}, s[30:31]
s_setprio 1
s_cmp_eq_u32 s33, 0
s_cbranch_scc1 {k.lab('restart')}
s_setprio 0
s_mov_b32 s21, 99
s_add_u32 s23, s23, {24576 - 4096}
""")
    for n in range(NPRE):
        k(piece(n * 4096))
    k(f"s_add_u32 s23, s23, {NPRE*4096}")
    k.label("restart")
    k(f"""
v_mov_b32 v{Q2[0]+1}, 0
v_mov_b32 v{Q2[1]+1}, 0
v_mov_b32 v{T0}, 0xff800000
v_mov_b32 v{T0+1}, 0xff800000
v_mov_b32 v{AK1}, v{BK1}
v_mov_b32 v{AK2}, v{BK1+1}
s_mov_b32 s20, s48
""")
    k.label("mx")
    k(f"""
ds_read_b128 {v(K1,4)}, v{AK1}
ds_read_b32 v{K2}, v{AK2}
v_add_u32 v{AK1}, {KVBLK}, v{AK1}
v_add_u32 v{AK2}, {KVBLK}, v{AK2}
s_waitcnt lgkmcnt(0)
{M16} {v(SS[0],16)}, {v(K1,4)}, {v(Q1[0],4)}, 0
{M8} {v(SS[0],16)}, {v(K2,2)}, {v(Q2[0],2)}, {v(SS[0],16)}
{M16} {v(SS[1],16)}, {v(K1,4)}, {v(Q1[1],4)}, 0
{M8} {v(SS[1],16)}, {v(K2,2)}, {v(Q2[1],2)}, {v(SS[1],16)}
s_sub_u32 s20, s20, 1
s_nop 8
""")
    for q in range(2):
        for i in range(8):
            k(f"v_max3_f32 v{T0+q}, v{T0+q}, v{SS[q]+2*i}, v{SS[q]+2*i+1}")
    k(f"""
s_cmp_lg_u32 s20, 0
s_cbranch_scc1 {k.lab('mx')}
v_mov_b32 v{T0+2}, v{T0}
v_mov_b32 v{T0+3}, v{T0+1}
""")
    for i in range(6):
        k(f"v_add_u32 v{AK1+i}, s32, v{BK1+i}")
    k(f"""
v_permlane32_swap_b32 v{T0}, v{T0+2}
v_permlane32_swap_b32 v{T0+1}, v{T0+3}
s_and_b32 s19, s33, s48
s_cbranch_scc0 {k.lab('kvx')}
""")
    k.label("kv")
    k(piece(0))
    k(f"""
s_add_u32 s23, s23, 4096
s_cmp_lt_u32 s23, {KVHEAD}
s_cbranch_scc1 {k.lab('kv')}
s_waitcnt vmcnt(0)
s_barrier
""")
    WC = 112
    def wcreg(ks, sl):
        i = 2 * ks + sl
        return 128 + 4 * i if i < 32 else WC + 4 * (i - 32)
    for ks in range(16):
        for sl in range(2):
            k(f"buffer_load_dwordx4 {v(wcreg(ks,sl),4)}, v1, s[12:15], s62 offen offset:{sl*1024}")
        k("s_add_u32 s62, s62, 36864")
    k.label("kvx")
    k(f"""
ds_read_b128 {v(K1,4)}, v{AK1}
ds_read_b32 v{K2}, v{AK2}
ds_read_b64_tr_b16 {v(V0,2)}, v{AV}
ds_read_b64_tr_b16 {v(V0+2,2)}, v{AV+1}
""")
    for q in range(2):
        k(f"""
v_max_f32 v{T0+q}, v{T0+q}, v{T0+2+q}
v_sub_f32 v{T0+q}, 0, v{T0+q}
v_cvt_pk_bf16_f32 v{T0+4}, v{T0+q}, v{T0+q}
v_and_b32 v{T0+4}, 0xffff0000, v{T0+4}
v_sub_f32 v{T0+5}, v{T0+q}, v{T0+4}
v_cvt_pk_bf16_f32 v{T0+4}, v{T0+4}, v{T0+5}
v_cndmask_b32 v{Q2[q]+1}, 0, v{T0+4}, s[30:31]
""")
    k(f"""
s_waitcnt lgkmcnt(0)
{M16} {v(SS[0],16)}, {v(K1,4)}, {v(Q1[0],4)}, 0
{M8} {v(SS[0],16)}, {v(K2,2)}, {v(Q2[0],2)}, {v(SS[0],16)}
""")
    for q in range(2):
        for i in range(16):
            k(f"v_mov_b32 v{OO[q]+i}, 0")
    for i in range(4):
        k(f"v_mov_b32 v{P+4+i}, 0\nv_mov_b32 v{V1+i}, 0")
    k.mark(1)
    k(".p2align 6")
    k.label("loop")
    for t in range(U):
        for ph in range(2):
            cur, nxt = SS[ph], SS[1-ph]
            Oc, Op = OO[ph], OO[1-ph]
            e = lambda i: f"v_exp_f32 v{cur+i}, v{cur+i}"
            c = lambda i: f"v_cvt_pk_bf16_f32 v{P+i}, v{cur+2*i}, v{cur+2*i+1}"
            rdV1 = f"ds_read_b64_tr_b16 {v(V1,2)}, v{AV+2} offset:{t*KVBLK}\nds_read_b64_tr_b16 {v(V1+2,2)}, v{AV+3} offset:{t*KVBLK}" if ph == 0 else ""
            rdK1 = f"ds_read_b128 {v(K1,4)}, v{AK1} offset:{(t+1)*KVBLK}" if ph == 0 else ""
            rdK2 = f"ds_read_b32 v{K2}, v{AK2} offset:{(t+1)*KVBLK}" if ph == 0 else ""
            rdV0 = f"ds_read_b64_tr_b16 {v(V0,2)}, v{AV} offset:{(t+1)*KVBLK}\nds_read_b64_tr_b16 {v(V0+2,2)}, v{AV+1} offset:{(t+1)*KVBLK}" if ph == 1 else ""
            wA = "s_waitcnt lgkmcnt(0)" if ph == 1 else ""
            wD = "s_waitcnt lgkmcnt(4)" if ph == 0 else ""
            k(f"""
{e(0)}
{e(1)}
{wA}
{M16} {v(Op,16)}, {v(V1,4)}, {v(P+4,4)}, {v(Op,16)}
{rdV1}
{e(2)}
{e(3)}
{c(0)}
{c(1)}
{e(4)}
{e(5)}
{M16} {v(nxt,16)}, {v(K1,4)}, {v(Q1[1-ph],4)}, 0
{rdK1}
{e(6)}
{e(7)}
{c(2)}
{c(3)}
{e(8)}
{e(9)}
{M8} {v(nxt,16)}, {v(K2,2)}, {v(Q2[1-ph],2)}, {v(nxt,16)}
{rdK2}
{e(10)}
{e(11)}
{c(4)}
{c(5)}
{e(12)}
{e(13)}
{wD}
{M16} {v(Oc,16)}, {v(V0,4)}, {v(P,4)}, {v(Oc,16)}
{rdV0}
{e(14)}
{e(15)}
{c(6)}
{c(7)}
""")
    for i in range(6):
        k(f"v_add_u32 v{AK1+i}, {U*KVBLK}, v{AK1+i}")
    k(f"""
s_add_u32 s20, s20, 1
s_cmp_eq_u32 s20, s21
s_cbranch_scc1 {k.lab('stub')}
s_cmp_lt_u32 s20, s3
s_cbranch_scc1 {k.lab('loop')}
{M16} {v(OO[1],16)}, {v(V1,4)}, {v(P+4,4)}, {v(OO[1],16)}
""")
    k.mark(2)
    k(f"""
s_setprio 0
s_waitcnt lgkmcnt(0)
s_cmp_lg_u32 s21, 98
s_cbranch_scc1 {k.lab('x1')}
s_mov_b32 s21, 99
s_mul_i32 s59, s61, {FLS}
s_add_u32 s59, s59, {FPOFF}
s_waitcnt vmcnt(0)
""")
    set_flag(k, 59, T0 + 6)
    if dbg == "b": k.mark(8)
    k(f"""
s_cmp_lg_u32 s16, 0
s_cbranch_scc1 {k.lab('x1')}
v_and_b32 v{T0+6}, 1, v0
v_mul_u32_u24 v{T0+6}, 1152, v{T0+6}
v_lshrrev_b32 v{T0+7}, 4, v0
v_lshl_add_u32 v{T0+6}, v{T0+7}, 4, v{T0+6}
s_mov_b32 s60, {WBAROFF}
""")
    for ks in range(16):
        k(f"buffer_load_dwordx4 {v(wcreg(ks,0),4)}, v1, s[12:15], s62 offen")
        k(f"buffer_load_dwordx4 {v(wcreg(ks,1),4)}, v{T0+6}, s[12:15], s60 offen offset:{ks*64}")
        k("s_add_u32 s62, s62, 36864")
    k.label("x1")
    k(f"""
s_mov_b32 s26, {f2u(2.0**60):#x}
s_nop 7
v_add_f32 v{T0+1}, v{OO[0]+10}, v{OO[1]+10}
s_mul_i32 s19, s16, 3072
s_add_u32 s19, s19, {MRG + 1024}
v_add_u32 v{T0+2}, s19, v1
v_cmp_ngt_f32 vcc, s26, v{T0+1}
s_xor_b32 s19, s16, 4
s_mul_i32 s19, s19, 3072
s_add_u32 s19, s19, {MRG + 1024}
v_add_u32 v{T0+3}, s19, v1
s_lshl_b32 s19, s16, 2
s_add_u32 s19, s19, {MRG}
v_mov_b32 v{T0+4}, s19
s_cmp_lg_u64 vcc, 0
s_cselect_b32 s19, 1, 0
v_mov_b32 v{T0+5}, s19
""")
    k.mark(3)
    k(f"""
s_barrier
ds_write_b32 v{T0+4}, v{T0+5}
s_cmp_eq_u32 s33, 0
s_cbranch_scc1 {k.lab('sendb')}
""")
    for j in range(3):
        k(f"ds_write_b128 v{T0+2}, {v(OO[0]+4*j,4)} offset:{j*1024}")
    for i in range(11):
        k(f"v_mov_b32 v{SS[0]+i}, v{OO[1]+i}")
    k(f"s_branch {k.lab('sent')}")
    k.label("sendb")
    for j in range(3):
        k(f"ds_write_b128 v{T0+2}, {v(OO[1]+4*j,4)} offset:{j*1024}")
    for i in range(11):
        k(f"v_mov_b32 v{SS[0]+i}, v{OO[0]+i}")
    k.label("sent")
    k(f"""
s_add_u32 s19, s18, s33
s_lshl_b32 s24, s17, 16
s_lshl_b32 s23, s19, 9
s_add_u32 s24, s24, s23
s_add_u32 s24, s24, {OOFF}
s_lshl_b32 s19, s19, 5
s_add_u32 s19, s19, s17
s_lshl_b32 s23, s19, 7
s_add_u32 s23, s23, {O2OFF}
s_mul_i32 s19, s19, {FLS}
s_add_u32 s19, s19, {FBOFF}
v_and_b32 v{T0+1}, 31, v0
v_lshrrev_b32 v{T0+2}, 5, v0
v_lshlrev_b32 v{T0+1}, 4, v{T0+1}
v_lshl_add_u32 v{T0+2}, v{T0+2}, 15, v{T0+1}
v_lshlrev_b32 v{T0+1}, 2, v0
v_mov_b32 v{T0+4}, {MRG}
s_waitcnt lgkmcnt(0)
s_barrier
ds_read_b128 {v(K1,4)}, v{T0+4}
ds_read_b128 {v(V0,4)}, v{T0+4} offset:16
""")
    if dbg == "b": k.mark(11)
    for j in range(3):
        k(f"ds_read_b128 {v(SS[1]+4*j,4)}, v{T0+3} offset:{j*1024}")
    O = SS[0]
    k(f"""
s_waitcnt lgkmcnt(3)
v_or3_b32 v{K1}, v{K1}, v{K1+1}, v{K1+2}
v_or3_b32 v{V0}, v{V0}, v{V0+1}, v{V0+2}
v_or3_b32 v{K1}, v{K1}, v{K1+3}, v{V0+3}
v_or_b32 v{K1}, v{K1}, v{V0}
s_waitcnt lgkmcnt(0)
v_readfirstlane_b32 s26, v{K1}
v_add_f32 v{O+10}, v{O+10}, v{SS[1]+10}
v_rcp_f32 v{T0}, v{O+10}
s_and_b32 s26, s26, s48
s_cmp_eq_u32 s26, 1
s_cbranch_scc1 {k.lab('fallback')}
""")
    for i in range(10):
        k(f"v_add_f32 v{O+i}, v{O+i}, v{SS[1]+i}")
    for i in range(10):
        k(f"v_mul_f32 v{O+i}, v{O+i}, v{T0}")
    for i in range(5):
        k(f"v_cvt_pk_bf16_f32 v{P+i}, v{O+2*i}, v{O+2*i+1}")
    k(f"""
buffer_store_dwordx4 {v(P,4)}, v{T0+2}, s[12:15], s24 offen sc1
s_mov_b64 exec, s[30:31]
buffer_store_dword v{P+4}, v{T0+1}, s[12:15], s23 offen sc1
s_mov_b64 exec, -1
""")
    LT, LG = 2, 3
    GV = 4
    XV, W1V, FV = 5, 6, 7
    ACC, OF, X, MU = 16, 32, 48, 56
    TC = 60
    k.srd(4, 28, S * D * 2)
    k(f"""
v_and_b32 v{LT}, 15, v0
v_lshrrev_b32 v{LG}, 4, v0
v_lshlrev_b32 v{GV}, 15, v{LG}
v_lshl_add_u32 v{GV}, v{LT}, 4, v{GV}
v_and_b32 v{FV}, 31, v0
v_mul_u32_u24 v{FV}, {FLS}, v{FV}
v_mul_u32_u24 v{XV}, 1152, v{LT}
v_lshl_add_u32 v{XV}, v{LG}, 3, v{XV}
v_lshlrev_b32 v{W1V}, 2, v{LT}
s_mul_i32 s24, s38, {32*1152}
s_lshl_b32 s23, s49, 5
s_add_u32 s24, s24, s23
s_add_u32 s23, s24, {16*1152}
s_lshl_b32 s26, s38, 7
s_add_u32 s27, s26, {MUXOFF}
s_cmp_gt_u32 s11, 4
s_cbranch_scc1 {k.lab('cidle')}
s_cmp_lt_u32 s11, 4
s_cbranch_scc1 {k.lab('clate')}
v_and_b32 v8, 1, v0
v_mul_u32_u24 v8, 1152, v8
v_lshl_add_u32 v8, v{LG}, 4, v8
s_mov_b32 s60, {WBAROFF}
""")
    for ks in (16, 17):
        k(f"buffer_load_dwordx4 {v(wcreg(ks,0),4)}, v1, s[12:15], s62 offen")
        k(f"buffer_load_dwordx4 {v(wcreg(ks,1),4)}, v8, s[12:15], s60 offen offset:{ks*64}")
        k("s_add_u32 s62, s62, 36864")
    k(f"s_branch {k.lab('cx')}")
    k.label("clate")
    for ks in (16, 17):
        for sl in range(2):
            k(f"buffer_load_dwordx4 {v(wcreg(ks,sl),4)}, v1, s[12:15], s62 offen offset:{sl*1024}")
        k("s_add_u32 s62, s62, 36864")
    k.label("cx")
    for T in range(2):
        for i in range(2):
            k(f"buffer_load_dwordx2 {v(X+2*(2*i+T),2)}, v{XV}, s[4:7], s{[24,23][T]} offen offset:{i*32}")
        k(f"buffer_load_dword v{MU+T}, v{W1V}, s[12:15], s27 offen offset:{T*64}")
    k(f"s_waitcnt vmcnt(10)\ns_branch {k.lab('cflag')}")
    k.label("cidle")
    k("s_waitcnt vmcnt(0)")
    k.label("cflag")
    set_flag(k, 19, TC)

    k.mark(4)
    k(f"""
s_mul_i32 s59, s38, {32*FLS}
s_add_u32 s59, s59, {FBOFF}
s_lshl_b32 s57, s38, 9
s_add_u32 s57, s57, {OOFF}
s_lshr_b32 s58, s16, 1
s_lshl_b32 s58, s58, 17
s_add_u32 s57, s57, s58
s_and_b32 s58, s16, 1
s_lshl_b32 s58, s58, 8
s_add_u32 s57, s57, s58
s_lshl_b32 s58, s16, 10
s_lshl_b32 s56, s38, 12
s_add_u32 s56, s56, s58
s_add_u32 s56, s56, {O2OFF}
s_add_u32 s58, s58, {OST}
v_add_u32 v{XV}, {OST}, v1
v_lshlrev_b32 v8, 9, v{LG}
v_add3_u32 v8, v8, v{W1V}, s58
""".replace("v_add3_u32 v8, v8, v{W1V}, s58".format(W1V=W1V), f"v_add_u32 v8, v8, v{W1V}\nv_add_u32 v8, {OST + 32768}, v8"))
    global SLEEP
    SLEEP = SL
    k(f"""
s_cmp_le_u32 s11, 4
s_cbranch_scc1 {k.lab('pbx')}
s_cmp_eq_u32 s16, 1
s_cbranch_scc1 {k.lab('pb0')}
; waves 2,3: re-layout jobs read by phases D/E.  lanes 0..35: job = lane*18 + cg ; lanes 36..: 648 + (9kq + j/3)*9 + cs0 + j%3
s_mul_i32 s59, s9, 9
s_sub_u32 s60, s16, 2
s_lshl_b32 s60, s60, 3
s_add_u32 s59, s59, s60
s_lshr_b32 s55, s59, 4           ; cg
s_bfe_u32 s59, s2, 0x20001
s_mul_i32 s59, s59, 81
s_mul_i32 s60, s39, 9
s_lshr_b32 s60, s60, 2
s_add_u32 s59, s59, s60
s_add_u32 s59, s59, 648
v_subrev_u32 v9, 36, v0
v_min_u32 v9, 26, v9
v_mul_u32_u24 v10, 21846, v9
v_lshrrev_b32 v10, 16, v10
v_mad_u32_u24 v9, v10, 6, v9
v_add_u32 v9, s59, v9
v_mul_u32_u24 v10, 18, v0
v_add_u32 v10, s55, v10
v_cmp_gt_u32 vcc, 36, v0
s_mov_b32 s59, {FPOFF}
s_nop 0
v_cndmask_b32 v{FV}, v9, v10, vcc
v_mul_u32_u24 v{FV}, {FLS}, v{FV}
""")
    k.label("pb0")
    poll(k, "pb", 59, FV, TC, 60)
    k("s_barrier")
    k.mark(5)
    for n in range(4):
        k(f"s_add_u32 m0, s58, {n*8192}\ns_add_u32 s62, s57, {n*4*4*CH}\nbuffer_load_dwordx4 v{GV}, s[12:15], s62 offen {ld} lds")
    k(f"s_cmp_ge_u32 s16, 4\ns_cbranch_scc1 {k.lab('co')}")
    k(f"s_add_u32 m0, s58, {4*8192}\ns_nop 0\nbuffer_load_dwordx4 v1, s[12:15], s56 offen {ld} lds")
    k.label("co")
    k(f"s_waitcnt vmcnt(0)\ns_barrier")
    k.mark(6)
    k(f"s_cmp_gt_u32 s11, 4\ns_cbranch_scc1 {k.lab('cfeed')}")
    OR = 64
    def rdo(ks):
        b = OR + 8 * (ks % CR)
        if ks >= 16:
            r = []
            if ks == 17: r.append("v_add_u32 v8, 2048, v8")
            for T in range(2):
                for h in range(2):
                    r.append(f"ds_read2_b32 {v(b+4*T+2*h,2)}, v8 offset0:{16*T+64*h} offset1:{16*T+64*h+32}")
            return r
        return [f"ds_read_b128 {v(b+4*T,4)}, v{XV} offset:{(2*ks+T)*1024}" for T in range(2)]
    nrd = lambda ks: 4 if ks >= 16 else 2
    for ks in range(CR - 1):
        for r in rdo(ks): k(r)
    for ks in range(18):
        k(f"s_waitcnt lgkmcnt({sum(nrd(q) for q in range(ks + 1, min(ks + CR - 1, 18)))})")
        r = rdo(ks + CR - 1) if ks + CR - 1 < 18 else []
        for sl in range(2):
            for T in range(2):
                d = v(ACC + (2*sl+T)*4, 4)
                k(f"{M} {d}, {v(wcreg(ks,sl),4)}, {v(OR+8*(ks%CR)+4*T,4)}, {'0' if ks == 0 else d}")
                if r: k(r.pop(0))
        for x in r: k(x)
    SQ = 58
    k(f"""
s_lshl_b32 s24, s49, 16
s_lshl_b32 s23, s38, 9
s_add_u32 s24, s24, s23
s_add_u32 s24, s24, {HCOFF}
v_lshrrev_b32 v8, 5, v0
v_lshlrev_b32 v8, 15, v8
v_and_b32 v9, 31, v0
v_lshl_add_u32 v8, v9, 4, v8
v_lshlrev_b32 v9, 2, v9
v_add_u32 v10, {MUL}, v{W1V}
v_mov_b32 v{SQ}, 0
v_mov_b32 v{SQ+1}, 0
s_cmp_lt_u32 s11, 4
s_cbranch_scc1 {k.lab('cmu')}
""")
    for T in range(2):
        aw = ACC + (2+T)*4
        k(f"v_add_f32 v{aw}, v{aw}, v{aw+1}\nv_add_f32 v{aw}, v{MU+T}, v{aw}\nds_write_b32 v10, v{aw} offset:{T*64}")
    k.label("cmu")
    for sl in range(2):
        for T in range(2):
            x = X + 2*(2*sl+T)
            r = OF + 4*(2*sl+T)
            k(f"v_lshlrev_b32 v{r}, 16, v{x}\nv_and_b32 v{r+1}, 0xffff0000, v{x}\nv_lshlrev_b32 v{r+2}, 16, v{x+1}\nv_and_b32 v{r+3}, 0xffff0000, v{x+1}")
    k("s_waitcnt lgkmcnt(0)\ns_barrier")
    for T in range(2):
        k(f"ds_read_b32 v{MU+T}, v10 offset:{T*64}")
    for i in range(8):
        k(f"v_pk_add_f32 {v(ACC+2*i,2)}, {v(ACC+2*i,2)}, {v(OF+2*i,2)}")
    k("s_waitcnt lgkmcnt(0)")
    for sl in range(2):
        if sl == 1:
            k(f"s_cmp_eq_u32 s11, 4\ns_cbranch_scc1 {k.lab('cq')}")
        R = X + 4*sl
        for T in range(2):
            ac = ACC + (2*sl+T)*4
            for r in range(4):
                k(f"v_sub_f32 v{ac+r}, v{ac+r}, v{MU+T}")
            k(f"v_cvt_pk_bf16_f32 v{R+2*T}, v{ac}, v{ac+1}\nv_cvt_pk_bf16_f32 v{R+2*T+1}, v{ac+2}, v{ac+3}")
            for r in range(4):
                k(f"v_fmac_f32 v{SQ+T}, v{ac+r}, v{ac+r}")
        k(f"""
v_permlane16_swap_b32 v{R}, v{R+2}
v_permlane16_swap_b32 v{R+1}, v{R+3}
buffer_store_dwordx4 {v(R,4)}, v8, s[12:15], s24 offen sc1
s_add_u32 s24, s24, 65536
""")
    k.label("cq")
    k(f"""
s_mul_i32 s23, s39, 5
s_add_u32 s23, s23, s11
v_permlane16_swap_b32 v{SQ}, v{SQ+1}
s_lshl_b32 s27, s23, 13
s_add_u32 s27, s27, s26
s_add_u32 s27, s27, {SSQOFF}
v_add_f32 v{SQ}, v{SQ}, v{SQ+1}
v_mov_b32 v{SQ+1}, v{SQ}
s_add_u32 s26, s26, {MUHOFF}
s_cmp_lg_u32 s23, 0
s_cselect_b32 s26, {OOB}, s26
v_permlane32_swap_b32 v{SQ}, v{SQ+1}
v_add_f32 v{SQ}, v{SQ}, v{SQ+1}
s_mov_b32 exec_hi, 0
buffer_store_dword v{SQ}, v9, s[12:15], s27 offen sc1
s_mov_b64 exec, 0xffff
buffer_store_dword v{MU}, v{W1V}, s[12:15], s26 offen sc1
buffer_store_dword v{MU+1}, v{W1V}, s[12:15], s26 offen offset:64 sc1
s_mov_b64 exec, -1
s_lshl_b32 s59, s38, 5
s_add_u32 s59, s59, s23
s_mul_i32 s59, s59, {FLS}
s_add_u32 s59, s59, {FCOFF}
s_waitcnt vmcnt(0)
""")
    set_flag(k, 59, TC)
    k(f"s_branch {k.lab('dstart')}")
    k.label("cfeed")
    k(f"""
s_sub_u32 s23, s16, 1
s_mul_i32 s22, s23, {UB}
s_add_u32 s22, s22, s10
s_mul_i32 s23, s23, {CB}
""")
    for p_ in range(36):
        if p_ % 4 == 0:
            k(f"s_add_u32 m0, s23, {(p_//12)*UB + (p_%12)*1024}\ns_add_u32 s24, s22, {p_*1024}")
        k(f"buffer_load_dwordx4 v1, s[12:15], s24 offen offset:{(p_%4)*1024} lds")
        if p_ + 1 == NF1:
            k("s_barrier")
    k.label("dstart")
    k.mark(7)
    if upto >= 4:
        tails = phase_d(k, GV, FV, WV, ld, **dopt)
    if upto >= 5:
        phase_e(k, GV, ld, tails, **eopt)
    k(f"s_branch {k.lab('fin')}")
    k.label("stub")
    k(f"""
s_cmp_eq_u32 s21, 2
s_cbranch_scc1 {k.lab('stub0')}
s_cmp_eq_u32 s21, {ST[1]}
s_cbranch_scc1 {k.lab('stub2')}
s_cmp_eq_u32 s21, {ST[2]}
s_cbranch_scc1 {k.lab('stub3')}
s_cmp_eq_u32 s21, {ST[3]}
s_cbranch_scc1 {k.lab('stub4')}
s_mov_b32 s21, {ST[1]}
""")
    prep_loads_tab(k, (0, 1), DAT, PVS, 4, 40)
    k(f"s_branch {k.lab('loop')}")
    k.label("stub2")
    k(f"s_mov_b32 s21, {ST[2]}")
    prep_loads_tab(k, (2, 3), DAT, PVS, 4, 40)
    k(f"s_branch {k.lab('loop')}")
    k.label("stub3")
    k(f"s_mov_b32 s21, {ST[3]}")
    prep_process(k, DAT, FR, PVW, PVR, ns=(0, 1))
    k(f"s_branch {k.lab('loop')}")
    k.label("stub4")
    k(f"s_mov_b32 s21, 98")
    prep_process(k, DAT, FR, PVW, PVR, ns=(2, 3))
    k(f"s_branch {k.lab('loop')}")
    k.label("stub0")
    k(f"s_barrier\ns_cmp_ge_u32 s61, 972\ns_cselect_b32 s21, 98, {ST[0]}\ns_branch {k.lab('loop')}")
    k.label("fallback")
    k(f"""
s_waitcnt vmcnt(0)
s_barrier
s_mov_b32 s48, 64
s_mul_i32 s22, s17, {KVHEAD}
s_lshl_b32 s23, s16, 10
""")
    k.label("fb1")
    k(piece(0))
    k(f"""
s_add_u32 s23, s23, 8192
s_cmp_lt_u32 s23, {KVHEAD}
s_cbranch_scc1 {k.lab('fb1')}
s_waitcnt vmcnt(0)
s_barrier
s_branch {k.lab('restart')}
""")
    k.label("fin")
    k.stamp_end(12)
    k.label("end")
    k("s_endpgm")
    return k


def phase_d(k, GV, FV, WV, ld, PF=6, LA=4, WG=2, exp='', prio=0, DS=5):
    ACC = [16, 32, 48]
    WF, PR, HV = 64, 88, 112
    SV, A0, A1, AB, FILL = 3, 5, 6, 2, 8
    hreg = lambda ks, T: v(HV + 4*(2*ks+T), 4)
    k(f"""
s_lshl_b32 s11, s8, 3
s_add_u32 s11, s11, s16
s_lshl_b32 s21, s11, 9
s_add_u32 s20, s21, {HCOFF}      ; h soffset
s_lshr_b32 s22, s9, 3
s_mul_i32 s22, s22, {72*65536}
s_add_u32 s21, s21, s22
s_and_b32 s22, s9, 7
s_mul_i32 s22, s22, {3*65536}
s_add_u32 s21, s21, s22
s_add_u32 s21, s21, {HIDOFF}
s_and_b32 s17, s2, 1
s_lshl_b32 s17, s17, 3
s_bfe_u32 s18, s2, 0x30003
s_add_u32 s17, s17, s18
s_lshr_b32 s18, s2, 6
s_bfe_u32 s19, s2, 0x20001
""")
    for n in range(5):
        k(f"s_add_u32 s28, s16, {8*n}")
        if n == 4:
            k("s_add_u32 s29, s16, 24\ns_cmp_ge_u32 s28, 36\ns_cselect_b32 s28, s29, s28")
        k(f"""
s_lshl_b32 s{44+n}, s28, 10
s_mul_i32 s29, s28, 21846
s_lshr_b32 s29, s29, 18
s_mul_i32 s29, s29, {UB - CB}
s_add_u32 s{54+n}, s{44+n}, s29
s_mul_i32 s29, s28, 7282
s_lshr_b32 s29, s29, 16
s_mul_i32 s30, s29, 9
s_sub_u32 s28, s28, s30
s_add_u32 s30, s28, s19
s_and_b32 s30, s30, 3
s_and_b32 s31, s28, 4
s_or_b32 s30, s30, s31
s_cmp_eq_u32 s28, 8
s_cselect_b32 s30, 8, s30
s_lshl_b32 s30, s30, 10
s_mul_i32 s29, s29, 36864
s_add_u32 s{38+n}, s29, s30
""")
    k(f"""
s_add_u32 s51, s10, {3*UB}
s_mov_b32 s50, {CB}
s_mov_b32 s49, {3*UB - 2*CB}
s_mov_b32 s24, {3*UB}
s_mul_i32 s53, s19, {36*36864}
s_mul_i32 s29, s18, 9216
s_add_u32 s53, s53, s29
s_add_u32 s53, s53, {WDOFF}
v_lshrrev_b32 v{SV}, 5, v0
v_lshlrev_b32 v{SV}, 15, v{SV}
v_and_b32 v{A0}, 31, v0
v_lshl_add_u32 v{SV}, v{A0}, 4, v{SV}
v_mov_b32 v{A0}, v1
v_add_u32 v{A1}, {UB}, v1
s_mov_b32 s26, {UB}
v_min_u32 v{FV}, 19, v0
v_mul_u32_u24 v{FV}, {FLS}, v{FV}
s_mul_i32 s61, s11, {32*FLS}
s_add_u32 s61, s61, {FCOFF}
s_lshl_b32 s28, s17, 2
s_and_b32 s29, s16, 3
s_add_u32 s28, s28, s29
s_mul_i32 s52, s28, 36
s_mul_i32 s29, s18, 9
s_add_u32 s52, s52, s29
s_mul_i32 s52, s52, 3072
s_add_u32 s62, s52, {EXOFF}
s_and_b32 s29, s16, 4
s_add_u32 s29, s29, s19
s_mul_i32 s29, s29, 3072
s_add_u32 s52, s62, s29
s_add_u32 s63, s62, {8*3072}
s_cmp_eq_u32 s16, s19
s_cselect_b32 s63, s63, {OOB}
s_mov_b32 s27, 0
s_lshl_b32 s30, s11, 5
s_add_u32 s30, s30, s9
s_mul_i32 s30, s30, {FLS}
s_add_u32 s30, s30, {FDOFF}
s_lshl_b32 s31, s2, 3
s_add_u32 s31, s31, s16
s_mul_i32 s31, s31, {FLS}
s_add_u32 s31, s31, {FXOFF}
s_lshl_b32 s32, s28, 2
s_add_u32 s32, s32, s19
s_mul_i32 s32, s32, {8*FLS}
s_add_u32 s32, s32, {FDOFF}
v_and_b32 v2, 7, v0
v_mul_u32_u24 v2, {FLS}, v2
v_mov_b32 v14, 0
s_waitcnt vmcnt(0)
s_barrier
""")
    def rd(n):
        base = A0 if n < 36 else A1
        j = n % 36
        ks, u, m = j // 6, (j % 6) // 2, j % 2
        return [f"ds_read_b128 {v(WF+4*(n%PF),4)}, v{base} offset:{u*CB + (2*ks+m)*1024}", ""]
    for n in range(PF - 1):
        for x in rd(n): k(x)
    for i in range(4):
        k(f"v_mov_b32 v{FILL+i}, -1")
    if prio:
        k(f"s_cmp_lt_u32 s16, 4\ns_cbranch_scc1 {k.lab('dp')}\ns_setprio 1")
        k.label("dp")
    poll(k, "pc", 61, FV, 12, 60)
    k.mark(8)
    def h_ops(ks):
        return [f"buffer_load_dwordx4 {hreg(ks,T)}, v{GV}, s[12:15], s20 offen offset:{T*256} {ld}" for T in range(2)] + \
               [f"s_add_u32 s20, s20, {4*CH}"]
    def tail(u):
        R = PR + 8*u
        return [f"v_cvt_pk_bf16_f32 v{R}, v{R}, v{R+1}", f"v_cvt_pk_bf16_f32 v{R+1}, v{R+2}, v{R+3}",
                f"v_cvt_pk_bf16_f32 v{R+2}, v{R+4}, v{R+5}", f"v_cvt_pk_bf16_f32 v{R+3}, v{R+6}, v{R+7}\ns_nop 0",
                f"v_permlane16_swap_b32 v{R}, v{R+2}", f"v_permlane16_swap_b32 v{R+1}, v{R+3}",
                f"buffer_store_dwordx4 {v(R,4)}, v{SV}, s[12:15], s21 offen sc1", f"s_add_u32 s21, s21, {65536 if u < 2 else 22*65536}"]
    def dma(c):
        ops = [f"s_add_u32 m0, s24, s{44+n}\ns_add_u32 s22, s51, s{54+n}\nbuffer_load_dwordx4 v1, s[12:15], s22 offen lds" for n in range(5)]
        ops.append(f"s_add_u32 s51, s51, s{49 if c == 0 else 50}")
        ops.append(f"s_add_u32 s24, s24, {UB}\ns_cmp_ge_u32 s24, {4*UB}\ns_cselect_b32 s24, 0, s24")
        return ops
    sw = [f"s_cmp_eq_u32 s27, 2\ns_cselect_b32 s51, s53, s51\ns_cselect_b32 s50, {4*36864}, s50",
          f"s_cselect_b64 s[54:55], s[38:39], s[54:55]\ns_cselect_b64 s[56:57], s[40:41], s[56:57]\ns_cselect_b32 s58, s42, s58"]
    def group(first):
        pend = []
        tot = [2 * LA]; hm = {ks: 2 * ks + 2 for ks in range(LA)}
        for c in range(3):
            f1 = []
            if not first and 'nost' not in exp:
                if c == 0:
                    tl = tail(0) + tail(1) + tail(2)
                    f1 += [tl[2*i] + "\n" + tl[2*i+1] for i in range(12)]
                if c == 2:
                    f1 += ["v_mov_b32 v15, s27\ns_mov_b64 exec, 1\nbuffer_store_dword v15, v14, s[12:15], s30 offen sc1\ns_mov_b64 exec, -1",
                           "buffer_load_dword v12, v2, s[12:15], s32 offen sc1"]
                if 'nofill' not in exp:
                    f1 += [f"buffer_store_dwordx4 {v(FILL,4)}, v1, s[12:15], s52 offen offset:{c*1024} sc1"]
            f2 = dma(c) if not (first and c == 0) else []
            f3 = f2[5:] + [f"s_add_u32 s26, s26, {UB}\ns_cmp_ge_u32 s26, {4*UB}\ns_cselect_b32 s26, 0, s26"]
            if c == 0 and not first:
                f3 += sw
            f2 = f2[:5] if 'nodma' not in exp else []
            nvm = 0
            for j in range(36):
                ks = 6 * c + j // 6
                u, m = (j % 6) // 2, j % 2
                if first and j % 6 == 0 and ks + LA < 18:
                    pend += h_ops(ks + LA)
                if j % WG == 0:
                    w = f"lgkmcnt({PF-1-WG})"
                    vm = []
                    if first and j % 6 == 0: vm.append(tot[0] - hm[ks])
                    if j == 30 and 'novm' not in exp: vm.append(nvm)
                    if vm: w = f"vmcnt({min(vm)}) " + w
                    k("s_waitcnt " + w)
                if j == 30 and 'nobar' not in exp:
                    k("s_barrier")
                r = rd(j + PF - 1)
                for T in range(2):
                    d = v(ACC[u] + (m*2+T)*4, 4)
                    k(f"{M} {d}, {v(WF+4*(j%PF),4)}, {hreg(ks,T)}, {'0' if ks == 0 else d}")
                    k(r[T])
                    if T == 1:
                        x = None
                        if f2 and j % DS == DS - 1: x = f2.pop(0)
                        elif pend: x = pend.pop(0)
                        elif f1: x = f1.pop(0)
                        elif not f2 and f3: x = f3.pop(0)
                        if x:
                            k(x); nvm += x.count("buffer_"); tot[0] += x.count("buffer_")
                            if x.startswith("buffer_load") and "offset:256" in x: hm[len(hm)] = tot[0]
            assert not f1 and not f2 and not f3 and not pend, (f1, f2, f3, pend)
            k(f"v_mov_b32 v{A0}, v{A1}\nv_add_u32 v{A1}, s26, v1")
        k("s_add_u32 s27, s27, 1\ns_nop 1")
        for u in range(3):
            if u == 2: k("s_nop 1")
            for h in range(4):
                k(f"v_pk_mul_f32 {v(PR+8*u+2*h,2)}, {v(ACC[u]+2*h,2)}, {v(ACC[u]+8+2*h,2)}")
    for ks in range(LA):
        for x in h_ops(ks): k(x)
    group(True)
    k.mark(9)
    k(".p2align 6")
    k.label("dloop")
    group(False)
    k("s_mov_b32 s52, s63")
    k(f"s_cmp_lt_u32 s27, 3\ns_cbranch_scc1 {k.lab('dloop')}")
    k.mark(10)
    return [x for u in range(3) for x in tail(u)]


def phase_e(k, GV, ld, tails, PF=9, WG=3, LA=5):
    SB = UB
    ACC, WF, HV, XV = 16, 112, 148, 13
    FLG = "v_mov_b32 v15, 3\ns_mov_b64 exec, 1\nbuffer_store_dword v15, v14, s[12:15], s30 offen sc1\nbuffer_store_dword v15, v14, s[12:15], s31 offen sc1\ns_mov_b64 exec, -1"
    XL = 3 * SB
    k(f"s_cmp_lt_u32 s16, 4\ns_cbranch_scc1 {k.lab('econs')}")
    def head():
        k("s_and_b32 s33, s16, 3")
        for t in range(4):
            k(f"s_add_u32 s{40+t}, s19, {t}\ns_and_b32 s{40+t}, s{40+t}, 3\ns_lshl_b32 s{44+t}, s{40+t}, 10")
        k(f"s_mul_i32 s29, s33, 6144\ns_add_u32 s29, s29, {XL}\nv_add_u32 v{XV}, s29, v1")
    for x in tails: k(x)
    head()
    k(f"""
s_mul_i32 s23, s33, 36864
s_add_u32 s23, s23, s53
s_add_u32 s23, s23, {8*36864}
s_mul_i32 s22, s33, 9216
s_add_u32 s24, s22, {3*SB}
s_mov_b32 s27, 2
""")
    k.srd(4, 36, S * D * 2)
    k.label("pl")
    for n in range(9):
        if n < 4:
            k(f"s_add_u32 m0, s24, {n*1024}\ns_add_u32 s{48+n}, s23, s{44+n}\nbuffer_load_dwordx4 v1, s[12:15], s{48+n} offen lds")
        elif n < 8:
            k(f"s_add_u32 m0, s24, {n*1024}\ns_add_u32 s25, s{48+n-4}, 4096\nbuffer_load_dwordx4 v1, s[12:15], s25 offen lds")
        else:
            k(f"s_add_u32 m0, s24, {n*1024}\ns_add_u32 s25, s23, 8192\nbuffer_load_dwordx4 v1, s[12:15], s25 offen lds")
    k(f"""
s_add_u32 s23, s23, {4*36864}
s_add_u32 s24, s24, {SB}
s_cmp_ge_u32 s24, {4*SB}
s_cselect_b32 s24, s22, s24
s_add_u32 s27, s27, 1
s_waitcnt vmcnt(9)
s_barrier
s_cmp_eq_u32 s27, 3
s_cbranch_scc1 {k.lab('pf')}
s_cmp_eq_u32 s27, 6
s_cbranch_scc1 {k.lab('pg')}
s_cmp_lt_u32 s27, 9
s_cbranch_scc1 {k.lab('pl')}
""")
    HC, SS, MU, OWN, RX, T0, BS = 16, 28, 38, 40, 64, 100, 104
    k(f"""
v_and_b32 v6, 31, v0
v_lshrrev_b32 v7, 5, v0
v_lshlrev_b32 v5, 15, v7
v_lshl_add_u32 v5, v6, 4, v5
v_mul_u32_u24 v8, {10*8192}, v7
v_lshl_add_u32 v8, v6, 2, v8
v_lshlrev_b32 v9, 2, v6
s_mul_i32 s54, s18, 9
s_add_u32 s55, s54, s19
s_lshl_b32 s56, s55, 16
s_lshl_b32 s57, s28, 9
s_add_u32 s57, s57, {HCOFF}
s_add_u32 s56, s56, s57
buffer_load_dwordx4 {v(HC,4)}, v5, s[12:15], s56 offen {ld}
s_add_u32 s56, s56, {4*65536}
buffer_load_dwordx4 {v(HC+4,4)}, v5, s[12:15], s56 offen {ld}
s_add_u32 s54, s54, 8
s_lshl_b32 s56, s54, 16
s_add_u32 s56, s56, s57
buffer_load_dwordx4 {v(HC+8,4)}, v5, s[12:15], s56 offen {ld}
s_lshl_b32 s56, s28, 7
s_add_u32 s57, s56, {MUHOFF}
s_add_u32 s56, s56, {SSQOFF}
buffer_load_dword v{MU}, v9, s[12:15], s57 offen {ld}
""")
    for j in range(10):
        k(f"buffer_load_dword v{SS+j}, v8, s[12:15], s56 offen {ld}")
        if j < 9: k("s_add_u32 s56, s56, 8192")
    k(f"""
v_bfe_u32 v10, v0, 3, 2
v_and_b32 v11, 7, v0
v_lshl_add_u32 v10, v10, 4, v11
v_mul_u32_u24 v10, {FLS}, v10
s_andn2_b32 s59, s2, 6
s_mul_i32 s59, s59, {8*FLS}
s_add_u32 s59, s59, {FXOFF}
""")
    poll(k, "px", 59, 10, 11, 60)
    k(f"""
s_barrier
s_mul_i32 s58, s19, 3072
s_add_u32 s58, s58, s62
s_add_u32 s59, s58, {4*3072}
s_add_u32 s60, s62, {8*3072}
s_cmp_eq_u32 s19, s33
s_cselect_b32 s60, s60, {OOB}
s_mov_b32 s61, 0
v_mul_u32_u24 v8, 1152, v6
v_lshl_add_u32 v8, v7, 4, v8
s_mul_i32 s56, s28, {32*1152}
s_lshl_b32 s57, s55, 5
s_add_u32 s57, s57, s56
s_lshl_b32 s54, s54, 5
s_add_u32 s56, s56, s54
s_mov_b32 s63, {f2u(1.0/D):#x}
""")
    for j in range(1, 10):
        k(f"v_add_f32 v{SS}, v{SS}, v{SS+j}")
    k(f"""
v_mov_b32 v{SS+1}, v{SS}
v_mov_b32 v{SS+2}, {f2u(1e-5):#x}
s_nop 0
v_permlane32_swap_b32 v{SS}, v{SS+1}
v_add_f32 v{SS}, v{SS}, v{SS+1}
v_fma_f32 v{SS}, v{SS}, s63, v{SS+2}
v_rcp_f32 v{SS}, v{SS}
""")
    for i in range(3):
        for d in range(4):
            x = HC + 4*i + d
            k(f"v_lshlrev_b32 v{BS+8*i+2*d}, 16, v{x}\nv_and_b32 v{BS+8*i+2*d+1}, 0xffff0000, v{x}")
    for i in range(24):
        k(f"v_add_f32 v{BS+i}, v{BS+i}, v{MU}")
    k("s_barrier\ns_barrier")
    k.mark(11)
    for i in range(6):
        k(f"ds_read_b128 {v(OWN+4*i,4)}, v{XV} offset:{i*1024}")
    k.label("poll")
    for i in range(3):
        for q in range(3):
            k(f"buffer_load_dwordx4 {v(RX+12*i+4*q,4)}, v1, s[12:15], s{58+i} offen offset:{q*1024} sc1")
    k("s_waitcnt vmcnt(0)")
    k(f"v_max3_u32 v{T0}, v{RX}, v{RX+1}, v{RX+2}")
    k(f"v_max3_u32 v{T0+1}, v{RX+3}, v{RX+4}, v{RX+5}")
    for n, j in enumerate(range(6, 36, 2)):
        k(f"v_max3_u32 v{T0+(n&1)}, v{T0+(n&1)}, v{RX+j}, v{RX+j+1}")
    k(f"""
v_max_u32 v{T0}, v{T0}, v{T0+1}
v_cmp_eq_u32 vcc, -1, v{T0}
s_add_u32 s61, s61, 1
s_cmp_ge_u32 s61, {POLLMAX}
s_cbranch_scc1 {k.lab('got')}
s_cbranch_vccnz {k.lab('poll')}
""")
    k.label("got")
    k.mark(12)
    k("s_waitcnt lgkmcnt(0)")
    for i in range(3):
        if i == 2:
            k(f"s_cmp_lg_u32 s19, s33\ns_cbranch_scc1 {k.lab('fin')}")
        A = OWN + 8*i
        for r in range(4):
            k(f"v_permlane16_swap_b32 v{A+r}, v{A+4+r}")
        for q in range(3):
            for d in range(4):
                x = RX + 12*i + 4*q + d
                tt = T0 + 2*(d & 1)
                k(f"v_lshlrev_b32 v{tt}, 16, v{x}\nv_and_b32 v{tt+1}, 0xffff0000, v{x}\nv_pk_add_f32 {v(A+2*d,2)}, {v(A+2*d,2)}, {v(tt,2)}")
        for d in range(4):
            b = BS + 8*i + 2*d
            k(f"v_pk_fma_f32 {v(b,2)}, {v(A+2*d,2)}, {v(SS,2)}, {v(b,2)} op_sel_hi:[1,0,1]")
            k(f"v_cvt_pk_bf16_f32 v{HC+4*i+d}, v{b}, v{b+1}")
        so, off = [("s57", 0), ("s57", 128), ("s56", 0)][i]
        k(f"buffer_store_dwordx4 {v(HC+4*i,4)}, v8, s[4:7], {so} offen offset:{off}")
    k(f"s_branch {k.lab('fin')}")
    k.label("pf")
    k(FLG)
    k.label("pg")
    k("s_add_u32 s25, s27, 3\ns_mul_i32 s25, s25, 86\ns_lshr_b32 s25, s25, 8")
    poll(k, "pe", 32, 2, 12, 60, need="s25")
    k(f"s_branch {k.lab('pl')}")
    k.label("econs")
    hreg = lambda set_, kk, T: v(HV + 4 * (8*set_ + 2*kk + T), 4)
    def h_ops(p):
        return [f"buffer_load_dwordx4 {hreg(p//4,p%4,T)}, v{GV}, s[12:15], s20 offen offset:{T*256} {ld}" for T in range(2)] + \
               [f"s_add_u32 s20, s20, {4*CH}"]
    def rd(j):
        base, jj = ("v5", j) if j < 36 else ("v6", j - 36)
        return f"ds_read_b128 {v(WF+4*(j%PF),4)}, {base} offset:{jj*1024}"
    k(f"""
s_lshl_b32 s20, s28, 9
s_mul_i32 s29, s19, {36*4*CH}
s_add_u32 s20, s20, s29
s_add_u32 s20, s20, {HIDOFF}
s_waitcnt vmcnt(6)
v_cmp_gt_u32 vcc, 1, v12
v_add_u32 v5, {SB}, v1
v_add_u32 v6, {2*SB}, v1
s_cbranch_vccz {k.lab('pdx')}
""")
    poll(k, "pd", 32, 2, 12, 60)
    for p in range(LA):
        for x in h_ops(p): k(x)
    for j in range(PF - 1):
        k(rd(j))
    for x in tails: k(x)
    head()
    k(f"""
s_mov_b32 s26, {2*SB}
s_mov_b32 s27, 0
s_sub_u32 s52, s33, s19
s_and_b32 s52, s52, 3
s_lshl_b32 s52, s52, 10
s_add_u32 s52, s52, s62
s_add_u32 s52, s52, {8*3072-1024}
s_mov_b32 s53, 0xfffefffe
s_waitcnt lgkmcnt(8)
""")
    for i in range(36):
        k(f"v_pk_mul_f32 {v(ACC+2*i,2)}, {v(14,2)}, {v(14,2)} op_sel_hi:[0,0]")
    k.mark(11)
    k(".p2align 6")
    k.label("eloop")
    for st3 in range(3):
        for kk in range(4):
            p = 4 * st3 + kk
            f = h_ops((p + LA) % 12)
            if p + LA == 12:
                f = [f"s_add_u32 s27, s27, 1\ns_cmp_ge_u32 s27, 3", f"s_cselect_b32 s20, {OOB}, s20"] + f
            if p == LA + 1:
                f = f + [FLG, f"s_mov_b32 s30, {OOB}\ns_mov_b32 s31, {OOB}"]
            if kk == 3:
                f = f + [f"s_add_u32 s26, s26, {SB}\ns_cmp_ge_u32 s26, {4*SB}", "s_cselect_b32 s26, 0, s26"]
            for t in range(9):
                j = 9 * kk + t
                if t % WG == 0:
                    w = f"lgkmcnt({PF-1-WG})"
                    if t == 0:
                        w = f"vmcnt({2*(LA-1)}) " + w
                    k("s_waitcnt " + w)
                if t == 0 and kk == 3:
                    k("s_barrier")
                for T in range(2):
                    d = v(ACC + (2*t+T)*4, 4)
                    k(f"{M} {d}, {v(WF+4*(j%PF),4)}, {hreg(st3,kk,T)}, {d}")
                    if T == 0:
                        k(rd(j + PF - 1))
                    elif f and t >= 1:
                        k(f.pop(0))
            assert not f, f
        k(f"v_mov_b32 v5, v6\nv_add_u32 v6, s26, v1")
    k(f"s_cmp_lt_u32 s27, 3\ns_cbranch_scc1 {k.lab('eloop')}")
    k.mark(12)
    PKR = WF
    def pack(t, R):
        A0, A1 = ACC + 8*t, ACC + 8*t + 4
        return f"""
v_cvt_pk_bf16_f32 v{R}, v{A0}, v{A0+1}
v_cvt_pk_bf16_f32 v{R+2}, v{A1}, v{A1+1}
v_cvt_pk_bf16_f32 v{R+1}, v{A0+2}, v{A0+3}
v_cvt_pk_bf16_f32 v{R+3}, v{A1+2}, v{A1+3}
v_min_u32 v{R}, s53, v{R}
v_min_u32 v{R+2}, s53, v{R+2}
v_min_u32 v{R+1}, s53, v{R+1}
v_min_u32 v{R+3}, s53, v{R+3}
v_permlane16_swap_b32 v{R}, v{R+2}
s_nop 0
v_permlane16_swap_b32 v{R+1}, v{R+3}
"""
    k("s_waitcnt lgkmcnt(0)")
    i = 0
    for t in (1, 2, 3, 5, 6, 7):
        R = PKR + 4*i; i += 1
        k(f"s_mul_i32 s29, s{40 + (t & 3)}, 3072\ns_add_u32 s29, s29, s62")
        if t >= 4: k(f"s_add_u32 s29, s29, {4*3072}")
        k(pack(t, R))
        k(f"buffer_store_dwordx4 {v(R,4)}, v1, s[12:15], s29 offen offset:{((t & 3) - 1)*1024} sc1")
    k(f"s_cmp_eq_u32 s19, s33\ns_cbranch_scc1 {k.lab('own8')}")
    R = PKR + 24
    k(pack(8, R))
    k(f"buffer_store_dwordx4 {v(R,4)}, v1, s[12:15], s52 offen sc1")
    k.label("own8")
    for i, t in enumerate((0, 4, 8)):
        for T in range(2):
            k(f"ds_write_b128 v{XV}, {v(ACC+8*t+4*T,4)} offset:{(2*i+T)*1024}")
    k("s_waitcnt lgkmcnt(0)\ns_barrier")
```

```python
from common import *

def prep_addr(k, VS, VW, VR, VT, scr_s):
    k(f"""
s_mul_i32 s57, s57, s50
s_mul_i32 s58, s58, s50
v_lshrrev_b32 v{VS}, 5, v0
v_mul_lo_u32 v{VS}, v{VS}, s56
v_bfe_u32 v{VT}, v0, 3, 2
v_add_u32 v{VS}, v{VS}, v{VT}
v_mul_lo_u32 v{VS}, v{VS}, s50
v_and_b32 v{VT}, 7, v0
v_lshl_add_u32 v{VS}, v{VT}, 4, v{VS}
v_add_u32 v{VW}, s{scr_s}, v1
v_lshrrev_b32 v{VR}, 2, v0
v_lshlrev_b32 v{VR}, 7, v{VR}
v_and_b32 v{VT}, 3, v0
v_lshl_add_u32 v{VR}, v{VT}, 3, v{VR}
v_add_u32 v{VR}, s{scr_s}, v{VR}
""")

def prep_loads(k, ns, DAT, VS, srd=24):
    for n in ns:
        for i in range(2):
            for q in range(2):
                r = DAT + 4 * (4*n + 2*i + q)
                if i == 0 and q == 0:
                    so = "s51"
                elif i == 0:
                    k("s_add_u32 s59, s51, s57"); so = "s59"
                elif q == 0:
                    k("s_add_u32 s59, s51, s58"); so = "s59"
                else:
                    k("s_add_u32 s59, s59, s57"); so = "s59"
                k(f"buffer_load_dwordx4 {v(r,4)}, v{VS}, s[{srd}:{srd+3}], {so} offen")
        k("s_add_u32 s51, s51, s52")

def prep_process(k, DAT, FR, VW, VR, pst="sc1", ns=range(4), total=16, dbl=True):
    for n in ns:
        fr = FR + (16 * (n & 1) if dbl else 0)
        for i in range(2):
            k(f"s_waitcnt vmcnt({total - (4*n + 2*i + 2) + 4*n})")
            for q in range(2):
                k(f"ds_write_b128 v{VW}, {v(DAT + 4*(4*n+2*i+q),4)} offset:{q*1024}")
            for j in range(4):
                k(f"ds_read_b64_tr_b16 {v(fr+4*j+2*i,2)}, v{VR} offset:{j*32}")
        k("s_waitcnt lgkmcnt(0)\ns_mov_b32 s59, s53")
        for j in range(4):
            k(f"buffer_store_dwordx4 {v(fr+4*j,4)}, v1, s[12:15], s59 offen {pst}")
            if j < 3:
                k("s_add_u32 s59, s59, s55")
        k("s_add_u32 s53, s53, s54")


def prep_loads_tab(k, ns, DAT, VS, srd, tab):
    for n in ns:
        for i in range(2):
            for q in range(2):
                r = DAT + 4 * (4*n + 2*i + q)
                so = f"s{tab + 2*n + q}"
                if i:
                    k(f"s_add_u32 s59, {so}, s58"); so = "s59"
                k(f"buffer_load_dwordx4 {v(r,4)}, v{VS}, s[{srd}:{srd+3}], {so} offen")
```

```python
import math, struct

S, D, H, DH, F = 2048, 576, 32, 18, 4608

KVBLK = 2432
KV_K0, KV_K1, KV_V0, KV_K2, KV_V1, KV_V2 = 0, 512, 1024, 1536, 1664, 2176
KVHEAD = 64 * KVBLK
QBLK = 1152
QHEAD = 64 * QBLK
KVOFF = 0
QOFF = 32 * KVHEAD
OOFF = 0x800000
HCOFF = 0xB00000
MUXOFF = 0xE00000
MUHOFF = 0xE02000
SSQOFF = 0xE04000
WBAROFF = 0xE40000
WOOFF = 0xF00000
WGUOFF = 0x1000000
WDOFF = 0x1C00000
HIDOFF = 0x2200000
PARTOFF = 0x3400000
EXOFF = 0x3600000
FLS = 128
FBOFF = 0x3000000 + 0x400000
FCOFF = FBOFF + 2048 * FLS
FDOFF = FCOFF + 2048 * FLS
FXOFF = FDOFF + 2048 * FLS
FPOFF = FXOFF + 2048 * FLS
FLEND = FPOFF + 1024 * FLS
STAMPOFF = 0x8000000
WS_BYTES = 0x10000000
CH = S * 16
OOB = 0x40000000

ARG_X, ARG_WQKV, ARG_WO, ARG_BX, ARG_WG, ARG_WU, ARG_WD, ARG_OUT, ARG_DBG, ARG_WS = [8 * i for i in range(10)]


def f2u(x):
    return struct.unpack("<I", struct.pack("<f", x))[0]


def v(i, n=1):
    return f"v{i}" if n == 1 else f"v[{i}:{i+n-1}]"


def a(i, n=1):
    return f"a{i}" if n == 1 else f"a[{i}:{i+n-1}]"


def s(i, n=1):
    return f"s{i}" if n == 1 else f"s[{i}:{i+n-1}]"


REAL = [False]
DBG = [0]

class Kern:
    def __init__(self, name, grid, block, lds, vgpr, accum=None, sgpr=96, idx=0, diag=False, nm=7, mb=72):
        self.nm, self.mb = nm, mb
        if diag: sgpr = 102
        self.name, self.grid, self.block, self.lds = name, grid, block, lds
        self.vgpr, self.accum, self.sgpr = vgpr, accum, sgpr
        self.L = []
        self.idx, self.diag = idx, diag

    def __call__(self, txt):
        for ln in txt.strip("\n").split("\n"):
            ln = ln.strip()
            if not ln:
                continue
            if ln.endswith(":") or ln.startswith("."):
                self.L.append(ln)
            else:
                self.L.append("  " + ln)

    def lab(self, l):
        return f"L{self.name[:2]}_{l}"

    def label(self, l):
        self.L.append(self.lab(l) + ":")

    def srd(self, d, p, nbytes):
        self(f"s_mov_b32 s{d}, s{p}\ns_mov_b32 s{d+1}, s{p+1}\ns_mov_b32 s{d+2}, {nbytes:#x}\ns_mov_b32 s{d+3}, 0x20000")

    NM = 14
    MB = 64
    def stamp_start(self):
        if self.diag:
            self("s_memrealtime s[96:97]\ns_memtime s[92:93]")
            for i in range(self.nm):
                self(f"s_mov_b64 s[{self.mb+2*i}:{self.mb+1+2*i}], 0")

    def mark(self, i):
        if self.diag:
            assert i < self.nm - 1
            self(f"{'s_memrealtime' if REAL[0] else 's_memtime'} s[{self.mb+2*i}:{self.mb+1+2*i}]")

    def stamp_end(self, ws_srd):
        if self.diag:
            e = self.mb + 2 * (self.nm - 1)
            self(f"""
{'s_memrealtime' if REAL[0] else 's_memtime'} s[{e}:{e+1}]
s_waitcnt vmcnt(0) lgkmcnt(0)
s_memrealtime s[98:99]
s_memtime s[100:101]
s_mov_b64 exec, 1
s_waitcnt lgkmcnt(0)
s_lshl_b32 s94, s2, 4
s_add_u32 s94, s94, s95
s_lshl_b32 s94, s94, 7
s_add_u32 s94, s94, {STAMPOFF + self.idx * 0x100000}
s_sub_u32 s100, s100, s92
v_mov_b32 v0, 0
v_mov_b32 v4, s96
v_mov_b32 v5, s98
v_mov_b32 v6, s100
v_mov_b32 v7, 1
v_mov_b32 v8, s95
v_mov_b32 v9, {self.nm}
""")
            if DBG[0]:
                self(f"s_load_dwordx2 s[0:1], s[0:1], {ARG_DBG}\ns_waitcnt lgkmcnt(0)")
                if self.idx == 1 and DBG[0] == 2:
                    self("s_sub_u32 s0, s0, 512\ns_subb_u32 s1, s1, 0")
                sl = [(0, "s96", True), (1, "s98", False)] if self.idx == 0 else \
                     [(2, "s96", True)] + [(3 + j, f"s{self.mb+2*i}", False) for j, i in enumerate((1, 2, 3, 4, 5, 6, 7, 8, 9, 10, 11, 12))] + [(15, "s98", False)]
                for (d, r, neg) in sl:
                    self(f"v_mov_b32 v10, {r}")
                    if neg: self("v_not_b32 v10, v10")
                    self(f"global_atomic_umax v0, v10, s[0:1] offset:{4*d}")
            for i in range(14):
                if i < self.nm:
                    self(f"s_sub_u32 s{self.mb+2*i}, s{self.mb+2*i}, {'s96' if REAL[0] else 's92'}\nv_mov_b32 v{10+i}, s{self.mb+2*i}")
                else:
                    self(f"v_mov_b32 v{10+i}, 0")
            for i in range(5):
                self(f"buffer_store_dwordx4 v[{4+4*i}:{7+4*i}], v0, s[{ws_srd}:{ws_srd+3}], s94 offen offset:{16*i}")
            self("s_waitcnt vmcnt(0)")

    def code_l2(self, lab0, lab1, nmax, vt, sp, lane="v0"):
        u = f"Lpc{self.name[:2]}{len(self.L)}"
        self(f"""
s_getpc_b64 s[{sp}:{sp+1}]
{u}:
s_add_u32 s{sp}, s{sp}, {lab0}-{u}
s_addc_u32 s{sp+1}, s{sp+1}, ({lab0}-{u})>>32
v_lshlrev_b32 v{vt}, 7, {lane}
""")
        for i in range(nmax):
            self(f"v_min_u32 v{vt+1}, {lab1}-{lab0}-4, v{vt}\nglobal_load_dword v{vt+2}, v{vt+1}, s[{sp}:{sp+1}]")
            if i + 1 < nmax:
                self(f"v_add_u32 v{vt}, 8192, v{vt}")

    def kd_touch(self, names, vt, sp):
        self(f"v_mov_b32 v{vt}, 0")
        for n in names:
            self(f"""
s_getpc_b64 s[{sp}:{sp+1}]
s_add_u32 s{sp}, s{sp}, Ldesc_{n}@rel32@lo+4
s_addc_u32 s{sp+1}, s{sp+1}, Ldesc_{n}@rel32@hi+12
global_load_dword v{vt+1}, v{vt}, s[{sp}:{sp+1}]
""")

    def text(self):
        accum = self.accum if self.accum is not None else min(256, (self.vgpr + 3) // 4 * 4)
        t = f".globl {self.name}\n.p2align 8\n.type {self.name},@function\n{self.name}:\n"
        t += "\n".join(self.L) + "\n"
        t += f""".section .rodata,"a"
.p2align 6
Ldesc_{self.name}:
.amdhsa_kernel {self.name}
  .amdhsa_next_free_vgpr {self.vgpr}
  .amdhsa_next_free_sgpr {self.sgpr}
  .amdhsa_accum_offset {accum}
  .amdhsa_group_segment_fixed_size 0
  .amdhsa_kernarg_size 80
  .amdhsa_user_sgpr_count 2
  .amdhsa_user_sgpr_kernarg_segment_ptr 1
  .amdhsa_system_sgpr_workgroup_id_x 1
.end_amdhsa_kernel
.text
"""
        return t

    def launch(self):
        return f"; @launch kernel={self.name} grid=({self.grid},1,1) block=({self.block},1,1) lds={self.lds}\n"


def interleave(main, fill, per=1, start=0):
    out = []
    fi = 0
    for i, m in enumerate(main):
        out.append(m)
        if i >= start:
            for _ in range(per):
                if fi < len(fill):
                    out.append(fill[fi]); fi += 1
    out.extend(fill[fi:])
    return out
```

```python
import math, struct

S, D, H, DH, F = 2048, 576, 32, 18, 4608

KVBLK = 2432
KV_K0, KV_K1, KV_V0, KV_K2, KV_V1, KV_V2 = 0, 512, 1024, 1536, 1664, 2176
KVHEAD = 64 * KVBLK
QBLK = 1152
QHEAD = 64 * QBLK
KVOFF = 0
QOFF = 32 * KVHEAD
OOFF = 0x800000
HCOFF = 0xB00000
MUXOFF = 0xE00000
MUHOFF = 0xE02000
SSQOFF = 0xE04000
WBAROFF = 0xE40000
WOOFF = 0xF00000
WGUOFF = 0x1000000
WDOFF = 0x1C00000
HIDOFF = 0x2200000
PARTOFF = 0x3400000
EXOFF = 0x3600000
FLS = 128
FBOFF = 0x3000000 + 0x400000
FCOFF = FBOFF + 2048 * FLS
FDOFF = FCOFF + 2048 * FLS
FXOFF = FDOFF + 2048 * FLS
FPOFF = FXOFF + 2048 * FLS
FLEND = FPOFF + 1024 * FLS
STAMPOFF = 0x8000000
WS_BYTES = 0x10000000
CH = S * 16
OOB = 0x40000000

ARG_X, ARG_WQKV, ARG_WO, ARG_BX, ARG_WG, ARG_WU, ARG_WD, ARG_OUT, ARG_DBG, ARG_WS = [8 * i for i in range(10)]


def f2u(x):
    return struct.unpack("<I", struct.pack("<f", x))[0]


def v(i, n=1):
    return f"v{i}" if n == 1 else f"v[{i}:{i+n-1}]"


def a(i, n=1):
    return f"a{i}" if n == 1 else f"a[{i}:{i+n-1}]"


def s(i, n=1):
    return f"s{i}" if n == 1 else f"s[{i}:{i+n-1}]"


REAL = [False]
DBG = [0]
PROBE = [None]

class Kern:
    def __init__(self, name, grid, block, lds, vgpr, accum=None, sgpr=96, idx=0, diag=False, nm=7, mb=72):
        self.nm, self.mb = nm, mb
        if diag: sgpr = 102
        self.name, self.grid, self.block, self.lds = name, grid, block, lds
        self.vgpr, self.accum, self.sgpr = vgpr, accum, sgpr
        self.L = []
        self.idx, self.diag = idx, diag

    def __call__(self, txt):
        for ln in txt.strip("\n").split("\n"):
            ln = ln.strip()
            if not ln:
                continue
            if ln.endswith(":") or ln.startswith("."):
                self.L.append(ln)
            else:
                self.L.append("  " + ln)

    def lab(self, l):
        return f"L{self.name[:2]}_{l}"

    def label(self, l):
        self.L.append(self.lab(l) + ":")

    def srd(self, d, p, nbytes):
        self(f"s_mov_b32 s{d}, s{p}\ns_mov_b32 s{d+1}, s{p+1}\ns_mov_b32 s{d+2}, {nbytes:#x}\ns_mov_b32 s{d+3}, 0x20000")

    NM = 14
    MB = 64
    def stamp_start(self):
        if self.diag:
            self("s_memrealtime s[96:97]\ns_memtime s[92:93]")
            for i in range(self.nm):
                self(f"s_mov_b64 s[{self.mb+2*i}:{self.mb+1+2*i}], 0")

    def mark(self, i):
        if self.diag:
            assert i < self.nm - 1
            self(f"{'s_memrealtime' if REAL[0] else 's_memtime'} s[{self.mb+2*i}:{self.mb+1+2*i}]")

    def stamp_end(self, ws_srd):
        if self.diag and PROBE[0]:
            a_, b_ = PROBE[0]
            L = self.lab("prb")
            self(f"s_waitcnt vmcnt(0) lgkmcnt(0)\ns_cmp_lg_u32 s2, 100\ns_cbranch_scc1 {L}x\ns_cmp_lg_u32 s95, {0 if self.idx == 0 else 4}\ns_cbranch_scc1 {L}x")
            if self.idx == 0:
                self(f"s_memrealtime s[98:99]\ns_waitcnt lgkmcnt(0)\nv_mov_b32 v0, 0\nv_mov_b32 v4, s96\nv_mov_b32 v5, s98\ns_mov_b32 s94, {STAMPOFF}\nbuffer_store_dwordx2 v[4:5], v0, s[{ws_srd}:{ws_srd+3}], s94 offen\ns_waitcnt vmcnt(0)")
            else:
                self(f"v_mov_b32 v0, 0\ns_mov_b32 s94, {STAMPOFF}\nbuffer_load_dwordx2 v[4:5], v0, s[{ws_srd}:{ws_srd+3}], s94 offen\ns_memrealtime s[98:99]\ns_waitcnt vmcnt(0) lgkmcnt(0)\nv_readfirstlane_b32 s92, v4\nv_readfirstlane_b32 s93, v5")
                nm = lambda x: {"a0": "s92", "a1": "s93", "m0": "s96", "m1": "s98"}.get(x) or f"s{self.mb+2*x}"
                self(f"s_nop 3\ns_sub_u32 s94, {nm(b_)}, {nm(a_)}\ns_lshl_b32 s94, s94, 3\ns_min_u32 s94, s94, 200000\n{L}:\ns_memrealtime s[100:101]\ns_waitcnt lgkmcnt(0)\ns_sub_u32 s100, s100, s98\ns_cmp_lt_u32 s100, s94\ns_cbranch_scc1 {L}")
            self(f"{L}x:")
            return
        if self.diag:
            e = self.mb + 2 * (self.nm - 1)
            self(f"""
{'s_memrealtime' if REAL[0] else 's_memtime'} s[{e}:{e+1}]
s_waitcnt vmcnt(0) lgkmcnt(0)
s_memrealtime s[98:99]
s_memtime s[100:101]
s_mov_b64 exec, 1
s_waitcnt lgkmcnt(0)
s_lshl_b32 s94, s2, 4
s_add_u32 s94, s94, s95
s_lshl_b32 s94, s94, 7
s_add_u32 s94, s94, {STAMPOFF + self.idx * 0x100000}
s_sub_u32 s100, s100, s92
v_mov_b32 v0, 0
v_mov_b32 v4, s96
v_mov_b32 v5, s98
v_mov_b32 v6, s100
v_mov_b32 v7, 1
v_mov_b32 v8, s95
v_mov_b32 v9, {self.nm}
""")
            if DBG[0]:
                self(f"s_load_dwordx2 s[0:1], s[0:1], {ARG_DBG}\ns_waitcnt lgkmcnt(0)")
                if self.idx == 1 and DBG[0] == 2:
                    self("s_sub_u32 s0, s0, 512\ns_subb_u32 s1, s1, 0")
                sl = [(0, "s96", True), (1, "s98", False)] if self.idx == 0 else \
                     [(2, "s96", True)] + [(3 + j, f"s{self.mb+2*i}", False) for j, i in enumerate((1, 2, 3, 4, 5, 6, 7, 8, 9, 10, 11, 12))] + [(15, "s98", False)]
                for (d, r, neg) in sl:
                    self(f"v_mov_b32 v10, {r}")
                    if neg: self("v_not_b32 v10, v10")
                    self(f"global_atomic_umax v0, v10, s[0:1] offset:{4*d}")
            for i in range(14):
                if i < self.nm:
                    self(f"s_sub_u32 s{self.mb+2*i}, s{self.mb+2*i}, {'s96' if REAL[0] else 's92'}\nv_mov_b32 v{10+i}, s{self.mb+2*i}")
                else:
                    self(f"v_mov_b32 v{10+i}, 0")
            for i in range(5):
                self(f"buffer_store_dwordx4 v[{4+4*i}:{7+4*i}], v0, s[{ws_srd}:{ws_srd+3}], s94 offen offset:{16*i}")
            self("s_waitcnt vmcnt(0)")

    def code_l2(self, lab0, lab1, nmax, vt, sp, lane="v0"):
        u = f"Lpc{self.name[:2]}{len(self.L)}"
        self(f"""
s_getpc_b64 s[{sp}:{sp+1}]
{u}:
s_add_u32 s{sp}, s{sp}, {lab0}-{u}
s_addc_u32 s{sp+1}, s{sp+1}, ({lab0}-{u})>>32
v_lshlrev_b32 v{vt}, 7, {lane}
""")
        for i in range(nmax):
            self(f"v_min_u32 v{vt+1}, {lab1}-{lab0}-4, v{vt}\nglobal_load_dword v{vt+2}, v{vt+1}, s[{sp}:{sp+1}]")
            if i + 1 < nmax:
                self(f"v_add_u32 v{vt}, 8192, v{vt}")

    def kd_touch(self, names, vt, sp):
        self(f"v_mov_b32 v{vt}, 0")
        for n in names:
            self(f"""
s_getpc_b64 s[{sp}:{sp+1}]
s_add_u32 s{sp}, s{sp}, Ldesc_{n}@rel32@lo+4
s_addc_u32 s{sp+1}, s{sp+1}, Ldesc_{n}@rel32@hi+12
global_load_dword v{vt+1}, v{vt}, s[{sp}:{sp+1}]
""")

    def text(self):
        accum = self.accum if self.accum is not None else min(256, (self.vgpr + 3) // 4 * 4)
        t = f".globl {self.name}\n.p2align 8\n.type {self.name},@function\n{self.name}:\n"
        t += "\n".join(self.L) + "\n"
        t += f""".section .rodata,"a"
.p2align 6
Ldesc_{self.name}:
.amdhsa_kernel {self.name}
  .amdhsa_next_free_vgpr {self.vgpr}
  .amdhsa_next_free_sgpr {self.sgpr}
  .amdhsa_accum_offset {accum}
  .amdhsa_group_segment_fixed_size 0
  .amdhsa_kernarg_size 80
  .amdhsa_user_sgpr_count 2
  .amdhsa_user_sgpr_kernarg_segment_ptr 1
  .amdhsa_system_sgpr_workgroup_id_x 1
.end_amdhsa_kernel
.text
"""
        return t

    def launch(self):
        return f"; @launch kernel={self.name} grid=({self.grid},1,1) block=({self.block},1,1) lds={self.lds}\n"


def interleave(main, fill, per=1, start=0):
    out = []
    fi = 0
    for i, m in enumerate(main):
        out.append(m)
        if i >= start:
            for _ in range(per):
                if fi < len(fill):
                    out.append(fill[fi]); fi += 1
    out.extend(fill[fi:])
    return out
```

```python
import math, struct

S, D, H, DH, F = 2048, 576, 32, 18, 4608

KVBLK = 2432
KV_K0, KV_K1, KV_V0, KV_K2, KV_V1, KV_V2 = 0, 512, 1024, 1536, 1664, 2176
KVHEAD = 64 * KVBLK
QBLK = 1152
QHEAD = 64 * QBLK
KVOFF = 0
QOFF = 32 * KVHEAD
OOFF = 0x800000
HCOFF = 0xB00000
MUXOFF = 0xE00000
MUHOFF = 0xE02000
SSQOFF = 0xE04000
WBAROFF = 0xE40000
WOOFF = 0xF00000
WGUOFF = 0x1000000
WDOFF = 0x1C00000
HIDOFF = 0x2200000
PARTOFF = 0x3400000
EXOFF = 0x3600000
FLS = 128
FBOFF = 0x3000000 + 0x400000
FCOFF = FBOFF + 2048 * FLS
FDOFF = FCOFF + 2048 * FLS
FXOFF = FDOFF + 2048 * FLS
FPOFF = FXOFF + 2048 * FLS
FAOFF = FPOFF + 1024 * FLS
FSOFF = FAOFF + 192 * FLS
FLEND = FSOFF + 256 * FLS
STOFF = 0xE50000
CSOFF = 0xE58000
STAMPOFF = 0x8000000
WS_BYTES = 0x10000000
CH = S * 16
OOB = 0x40000000

ARG_X, ARG_WQKV, ARG_WO, ARG_BX, ARG_WG, ARG_WU, ARG_WD, ARG_OUT, ARG_DBG, ARG_WS = [8 * i for i in range(10)]


def f2u(x):
    return struct.unpack("<I", struct.pack("<f", x))[0]


def v(i, n=1):
    return f"v{i}" if n == 1 else f"v[{i}:{i+n-1}]"


def a(i, n=1):
    return f"a{i}" if n == 1 else f"a[{i}:{i+n-1}]"


def s(i, n=1):
    return f"s{i}" if n == 1 else f"s[{i}:{i+n-1}]"


REAL = [False]
DBG = [0]
PROBE = [None]

class Kern:
    def __init__(self, name, grid, block, lds, vgpr, accum=None, sgpr=96, idx=0, diag=False, nm=7, mb=72):
        self.nm, self.mb = nm, mb
        if diag: sgpr = 102
        self.name, self.grid, self.block, self.lds = name, grid, block, lds
        self.vgpr, self.accum, self.sgpr = vgpr, accum, sgpr
        self.L = []
        self.idx, self.diag = idx, diag

    def __call__(self, txt):
        for ln in txt.strip("\n").split("\n"):
            ln = ln.strip()
            if not ln:
                continue
            if ln.endswith(":") or ln.startswith("."):
                self.L.append(ln)
            else:
                self.L.append("  " + ln)

    def lab(self, l):
        return f"L{self.name[:2]}_{l}"

    def label(self, l):
        self.L.append(self.lab(l) + ":")

    def srd(self, d, p, nbytes):
        self(f"s_mov_b32 s{d}, s{p}\ns_mov_b32 s{d+1}, s{p+1}\ns_mov_b32 s{d+2}, {nbytes:#x}\ns_mov_b32 s{d+3}, 0x20000")

    NM = 14
    MB = 64
    def stamp_start(self):
        if self.diag:
            self("s_memrealtime s[96:97]\ns_memtime s[92:93]")
            for i in range(self.nm):
                self(f"s_mov_b64 s[{self.mb+2*i}:{self.mb+1+2*i}], 0")

    def mark(self, i):
        if self.diag:
            assert i < self.nm - 1
            self(f"{'s_memrealtime' if REAL[0] else 's_memtime'} s[{self.mb+2*i}:{self.mb+1+2*i}]")

    def stamp_end(self, ws_srd):
        if self.diag and PROBE[0]:
            a_, b_ = PROBE[0]
            L = self.lab("prb")
            self(f"s_waitcnt vmcnt(0) lgkmcnt(0)\ns_cmp_lg_u32 s2, 100\ns_cbranch_scc1 {L}x\ns_cmp_lg_u32 s95, {0 if self.idx == 0 else 4}\ns_cbranch_scc1 {L}x")
            if self.idx == 0:
                self(f"s_memrealtime s[98:99]\ns_waitcnt lgkmcnt(0)\nv_mov_b32 v0, 0\nv_mov_b32 v4, s96\nv_mov_b32 v5, s98\ns_mov_b32 s94, {STAMPOFF}\nbuffer_store_dwordx2 v[4:5], v0, s[{ws_srd}:{ws_srd+3}], s94 offen\ns_waitcnt vmcnt(0)")
            else:
                self(f"v_mov_b32 v0, 0\ns_mov_b32 s94, {STAMPOFF}\nbuffer_load_dwordx2 v[4:5], v0, s[{ws_srd}:{ws_srd+3}], s94 offen\ns_memrealtime s[98:99]\ns_waitcnt vmcnt(0) lgkmcnt(0)\nv_readfirstlane_b32 s92, v4\nv_readfirstlane_b32 s93, v5")
                nm = lambda x: {"a0": "s92", "a1": "s93", "m0": "s96", "m1": "s98"}.get(x) or f"s{self.mb+2*x}"
                self(f"s_nop 3\ns_sub_u32 s94, {nm(b_)}, {nm(a_)}\ns_lshl_b32 s94, s94, 3\ns_min_u32 s94, s94, 200000\n{L}:\ns_memrealtime s[100:101]\ns_waitcnt lgkmcnt(0)\ns_sub_u32 s100, s100, s98\ns_cmp_lt_u32 s100, s94\ns_cbranch_scc1 {L}")
            self(f"{L}x:")
            return
        if self.diag:
            e = self.mb + 2 * (self.nm - 1)
            self(f"""
{'s_memrealtime' if REAL[0] else 's_memtime'} s[{e}:{e+1}]
s_waitcnt vmcnt(0) lgkmcnt(0)
s_memrealtime s[98:99]
s_memtime s[100:101]
s_mov_b64 exec, 1
s_waitcnt lgkmcnt(0)
s_lshl_b32 s94, s2, 4
s_add_u32 s94, s94, s95
s_lshl_b32 s94, s94, 7
s_add_u32 s94, s94, {STAMPOFF + self.idx * 0x100000}
s_sub_u32 s100, s100, s92
v_mov_b32 v0, 0
v_mov_b32 v4, s96
v_mov_b32 v5, s98
v_mov_b32 v6, s100
v_mov_b32 v7, 1
v_mov_b32 v8, s95
v_mov_b32 v9, {self.nm}
""")
            if DBG[0]:
                self(f"s_load_dwordx2 s[0:1], s[0:1], {ARG_DBG}\ns_waitcnt lgkmcnt(0)")
                if self.idx == 1 and DBG[0] == 2:
                    self("s_sub_u32 s0, s0, 512\ns_subb_u32 s1, s1, 0")
                sl = [(0, "s96", True), (1, "s98", False)] if self.idx == 0 else \
                     [(2, "s96", True)] + [(3 + j, f"s{self.mb+2*i}", False) for j, i in enumerate((1, 2, 3, 4, 5, 6, 7, 8, 9, 10, 11, 12))] + [(15, "s98", False)]
                for (d, r, neg) in sl:
                    self(f"v_mov_b32 v10, {r}")
                    if neg: self("v_not_b32 v10, v10")
                    self(f"global_atomic_umax v0, v10, s[0:1] offset:{4*d}")
            for i in range(14):
                if i < self.nm:
                    self(f"s_sub_u32 s{self.mb+2*i}, s{self.mb+2*i}, {'s96' if REAL[0] else 's92'}\nv_mov_b32 v{10+i}, s{self.mb+2*i}")
                else:
                    self(f"v_mov_b32 v{10+i}, 0")
            for i in range(5):
                self(f"buffer_store_dwordx4 v[{4+4*i}:{7+4*i}], v0, s[{ws_srd}:{ws_srd+3}], s94 offen offset:{16*i}")
            self("s_waitcnt vmcnt(0)")

    def code_l2(self, lab0, lab1, nmax, vt, sp, lane="v0"):
        u = f"Lpc{self.name[:2]}{len(self.L)}"
        self(f"""
s_getpc_b64 s[{sp}:{sp+1}]
{u}:
s_add_u32 s{sp}, s{sp}, {lab0}-{u}
s_addc_u32 s{sp+1}, s{sp+1}, ({lab0}-{u})>>32
v_lshlrev_b32 v{vt}, 7, {lane}
""")
        for i in range(nmax):
            self(f"v_min_u32 v{vt+1}, {lab1}-{lab0}-4, v{vt}\nglobal_load_dword v{vt+2}, v{vt+1}, s[{sp}:{sp+1}]")
            if i + 1 < nmax:
                self(f"v_add_u32 v{vt}, 8192, v{vt}")

    def kd_touch(self, names, vt, sp):
        self(f"v_mov_b32 v{vt}, 0")
        for n in names:
            self(f"""
s_getpc_b64 s[{sp}:{sp+1}]
s_add_u32 s{sp}, s{sp}, Ldesc_{n}@rel32@lo+4
s_addc_u32 s{sp+1}, s{sp+1}, Ldesc_{n}@rel32@hi+12
global_load_dword v{vt+1}, v{vt}, s[{sp}:{sp+1}]
""")

    def text(self):
        accum = self.accum if self.accum is not None else min(256, (self.vgpr + 3) // 4 * 4)
        t = f".globl {self.name}\n.p2align 8\n.type {self.name},@function\n{self.name}:\n"
        t += "\n".join(self.L) + "\n"
        t += f""".section .rodata,"a"
.p2align 6
Ldesc_{self.name}:
.amdhsa_kernel {self.name}
  .amdhsa_next_free_vgpr {self.vgpr}
  .amdhsa_next_free_sgpr {self.sgpr}
  .amdhsa_accum_offset {accum}
  .amdhsa_group_segment_fixed_size 0
  .amdhsa_kernarg_size 80
  .amdhsa_user_sgpr_count 2
  .amdhsa_user_sgpr_kernarg_segment_ptr 1
  .amdhsa_system_sgpr_workgroup_id_x 1
.end_amdhsa_kernel
.text
"""
        return t

    def launch(self):
        return f"; @launch kernel={self.name} grid=({self.grid},1,1) block=({self.block},1,1) lds={self.lds}\n"


def interleave(main, fill, per=1, start=0):
    out = []
    fi = 0
    for i, m in enumerate(main):
        out.append(m)
        if i >= start:
            for _ in range(per):
                if fi < len(fill):
                    out.append(fill[fi]); fi += 1
    out.extend(fill[fi:])
    return out


POLLMAX = 400000
SLEEP = [2]
NLO, NHI = 0, 1

def set_flag(k, soff, vt, level="1"):
    k(flag_txt([soff], vt, level))

def flag_txt(soffs, vt, level="1"):
    t = f"v_mov_b32 v{vt}, {level}\nv_mov_b32 v{vt+1}, s{NHI}\nv_add_u32 v{vt}, s{NLO}, v{vt}\nv_mov_b32 v{vt+2}, 0\ns_mov_b64 exec, 1\n"
    for so in soffs:
        t += f"buffer_store_dwordx2 v[{vt}:{vt+1}], v{vt+2}, s[12:15], s{so} offen sc1\n"
    return t + "s_mov_b64 exec, -1"

def flag_check(vt, need="1"):
    return (f"v_subrev_u32 v{vt}, s{NLO}, v{vt}\nv_xor_b32 v{vt+1}, s{NHI}, v{vt+1}\nv_subrev_u32 v{vt}, {need}, v{vt}\n"
            f"v_and_or_b32 v{vt}, v{vt}, -4, v{vt+1}\nv_cmp_ne_u32 vcc, 0, v{vt}")

def poll(k, name, soff, voff, vt, cnt_s, sleep=None, need="1"):
    sleep = sleep or SLEEP[0]
    k(f"s_mov_b32 s{cnt_s}, 0")
    k.label(name)
    k(f"""
buffer_load_dwordx2 v[{vt}:{vt+1}], v{voff}, s[12:15], s{soff} offen sc1
s_add_u32 s{cnt_s}, s{cnt_s}, 1
s_waitcnt vmcnt(0)
{flag_check(vt, need)}
s_cmp_ge_u32 s{cnt_s}, {POLLMAX}
s_cbranch_scc1 {k.lab(name + 'x')}
s_cbranch_vccz {k.lab(name + 'x')}
s_sleep {sleep}
s_branch {k.lab(name)}
""")
    k.label(name + "x")
```

```python
from common import *
from prep import *
from pa import phase_a
KNAME = 'sequential_preLN__softmax_full_mha__glu_gated_bilinear__prompt_kernel'

SCR = KVHEAD
UB = 36864
CB = 12288
HALF = 32 * KVBLK
OST = 163840 - UB
MRG = OST - 25600
MUL = OST - 1024
O2OFF = OOFF + 64 * CH
M16 = "v_mfma_f32_32x32x16_bf16"
M8 = "v_mfma_f32_32x32x8_bf16"
M = "v_mfma_f32_16x16x32_bf16"


def gen_km(diag=False, U=4, upto=9, ld="sc1", dbg="", NO=10, ST=(4, 5, 8, 9), NPRE=8, NF1=20, SL=2, one=True, CR=6, dopt={}, eopt={}, aopt={}):
    assert ST[3] < NO and ST[0] > 2
    k = Kern(KNAME, 256, 512, 163840, vgpr=256, idx=1, diag=diag, nm=14, mb=64)
    SLEEP[0] = SL
    mk = k.mark
    if dbg == "a":
        late = lambda i: mk(i + 4) if i < 3 else None
    else:
        late = mk
    k.stamp_start()
    AK1, AK2, AV = 2, 3, 4
    BK1 = 8
    SS = [16, 32]
    OO = [48, 96]
    P, K1, K2, V0, V1 = 64, 72, 76, 80, 84
    Q1 = [88, 112]
    Q2 = [92, 116]
    T0 = 118
    DAT, FR, PVS, PVW, PVR = 128, 192, 224, 225, 226
    WV = 14
    k(f"""
s_cmp_ge_u32 s2, 256
s_cbranch_scc1 {k.lab('end')}
s_load_dwordx4 s[28:31], s[0:1], {ARG_X}
s_load_dwordx2 s[32:33], s[0:1], {ARG_WO}
s_load_dwordx2 s[34:35], s[0:1], {ARG_WS}
s_load_dwordx2 s[38:39], s[0:1], {ARG_DBG}
s_load_dwordx8 s[40:47], s[0:1], {ARG_WG}
v_lshrrev_b32 v1, 6, v0
v_and_b32 v0, 63, v0
v_readfirstlane_b32 s16, v1
v_lshlrev_b32 v1, 4, v0
s_mov_b32 s95, s16
""")
    if dbg != "a":
        k.mark = lambda i: None
    phase_a(k, **aopt)
    k.mark = late
    k(f"""
s_and_b32 s17, s2, 7
s_lshl_b32 s17, s17, 2
s_bfe_u32 s18, s2, 0x20003
s_add_u32 s17, s17, s18          ; head
s_lshr_b32 s18, s2, 5
s_lshl_b32 s18, s18, 3
s_and_b32 s19, s16, 3
s_lshl_b32 s19, s19, 1
s_add_u32 s18, s18, s19
s_lshr_b32 s33, s16, 2           ; kh
s_mul_i32 s63, s17, {QHEAD}
s_mul_i32 s22, s18, {QBLK}
s_add_u32 s63, s63, s22
s_add_u32 s63, s63, {QOFF}
s_mul_i32 s22, s17, {KVHEAD}
s_lshl_b32 s23, s16, 10
v_and_b32 v{T0}, 31, v0
v_lshlrev_b32 v{T0+8}, 2, v{T0}
""")
    def piece(off, base="s23"):
        return f"s_add_u32 m0, {base}, {off}\ns_add_u32 s24, s22, m0\nbuffer_load_dwordx4 v1, s[12:15], s24 offen {ld} lds"
    assert (2 * U + 1) * KVBLK <= 24576
    k(f"""
v_and_b32 v{T0+1}, 0x13, v{T0}
v_and_b32 v{T0+2}, 4, v{T0}
v_lshl_or_b32 v{T0+1}, v{T0+2}, 1, v{T0+1}
v_bfe_u32 v{T0+2}, v{T0}, 3, 1
v_lshl_or_b32 v{T0+1}, v{T0+2}, 2, v{T0+1}
v_lshrrev_b32 v{T0+2}, 5, v0
v_lshlrev_b32 v{T0+3}, 9, v{T0+2}
v_lshl_add_u32 v{BK1}, v{T0+1}, 4, v{T0+3}
v_lshlrev_b32 v{BK1+1}, 2, v{T0+1}
v_add_u32 v{BK1+1}, {KV_K2}, v{BK1+1}
v_bfe_u32 v{T0+3}, v0, 2, 2
v_lshl_add_u32 v{T0+3}, v{T0+2}, 3, v{T0+3}
v_and_b32 v{T0+4}, 1, v0
v_mul_u32_u24 v{T0+4}, {KV_V1-KV_V0}, v{T0+4}
v_bfe_u32 v{T0+5}, v0, 1, 1
v_lshl_add_u32 v{T0+4}, v{T0+5}, 3, v{T0+4}
v_add_u32 v{T0+4}, {KV_V0}, v{T0+4}
v_and_b32 v{T0+5}, 16, v0
v_cmp_eq_u32 vcc, 16, v{T0+5}
""")
    for m in range(2):
        for i in range(2):
            k(f"""
v_add_u32 v{T0+5}, {16*m+4*i}, v{T0+3}
v_lshl_add_u32 v{T0+6}, v{T0+5}, 4, v{T0+4}
v_lshlrev_b32 v{T0+5}, 3, v{T0+5}
v_add_u32 v{T0+5}, {KV_V2}, v{T0+5}
v_cndmask_b32 v{BK1+2+2*m+i}, v{T0+6}, v{T0+5}, vcc
""")
    k(f"""
v_mov_b32 v{K2+1}, 0x3f803f80
v_cmp_gt_u32 s[30:31], 32, v0
s_mul_i32 s32, s33, {NO*U*KVBLK}
s_mul_i32 s3, s33, {(64//U - 2*NO) & 0xffffffff}
s_add_u32 s3, s3, {NO}
s_mov_b32 s48, 1
s_mov_b32 s21, 2
s_mov_b32 s36, s46
s_mov_b32 s37, s47
s_and_b32 s38, s2, 7
s_lshl_b32 s38, s38, 3
s_bfe_u32 s39, s2, 0x30003
s_add_u32 s38, s38, s39
s_lshr_b32 s39, s2, 6
s_xor_b32 s11, s16, 4
s_mul_i32 s49, s39, 9
s_lshl_b32 s19, s11, 1
s_add_u32 s49, s49, s19
s_lshl_b32 s62, s49, 10
s_add_u32 s62, s62, {WOOFF}
s_bfe_u32 s8, s2, 0x10002
s_lshl_b32 s8, s8, 2
s_bfe_u32 s9, s2, 0x20003
s_add_u32 s8, s8, s9
s_and_b32 s9, s2, 3
s_lshl_b32 s9, s9, 3
s_lshr_b32 s10, s2, 5
s_add_u32 s9, s9, s10
s_mul_i32 s10, s9, {9*UB}
s_add_u32 s10, s10, {WGUOFF}
s_lshl_b32 s61, s2, 2
s_add_u32 s61, s61, s16
s_mov_b32 s7, 0x20000
s_mov_b32 s56, 8
s_mov_b32 s57, 16
s_mov_b32 s58, 4
s_mov_b32 s6, {D*F*2}
s_cmp_ge_u32 s61, 648
s_cbranch_scc1 {k.lab('p1')}
s_cmp_ge_u32 s61, 324
s_cselect_b32 s4, s42, s40
s_cselect_b32 s5, s43, s41
s_cselect_b32 s60, 324, 0
s_cselect_b32 s53, 1024, 0
s_sub_u32 s60, s61, s60
s_mul_i32 s19, s60, 3641
s_lshr_b32 s19, s19, 16          ; ks
s_mul_i32 s59, s19, 18
s_sub_u32 s60, s60, s59          ; cg
s_mov_b32 s50, {F*2}
s_mul_i32 s51, s19, {32*F*2}
s_lshl_b32 s59, s60, 9
s_add_u32 s51, s51, s59
s_mov_b32 s52, 128
s_mul_i32 s59, s60, {16*36864}
s_add_u32 s53, s53, s59
s_lshl_b32 s59, s19, 11
s_add_u32 s53, s53, s59
s_add_u32 s53, s53, {WGUOFF}
s_mov_b32 s54, {4*36864}
s_mov_b32 s55, 36864
""")
    for e in range(8):
        k(f"s_add_u32 s{40+e}, s51, {(e//2)*128 + (e&1)*16*F*2}")
    k(f"s_branch {k.lab('pgo')}")
    k.label("p1")
    k(f"""
s_mov_b32 s50, 1152
s_mov_b32 s54, 36864
s_mov_b32 s55, 1024
s_mov_b32 s4, s44
s_mov_b32 s5, s45
s_mov_b32 s52, {32*1152}
s_sub_u32 s60, s61, 648
s_mul_i32 s19, s60, 7282
s_lshr_b32 s19, s19, 16          ; kg = r/9
s_mul_i32 s59, s19, 9
s_sub_u32 s60, s60, s59          ; cs
s_mul_i32 s53, s19, {4*36864}
s_add_u32 s53, s53, {WDOFF}
s_lshl_b32 s59, s60, 12
s_add_u32 s53, s53, s59
; k-slot order: position pos (16 rows) of quarter kq holds unit 72kq + 9*((pos%24)/3) + 3*(pos/24) + pos%3
s_lshl_b32 s51, s60, 7
s_mul_i32 s59, s19, 7282
s_lshr_b32 s59, s59, 16
s_mul_i32 s60, s59, 9
s_sub_u32 s19, s19, s60          ; kg%9
s_mul_i32 s59, s59, {72*16*1152}
s_add_u32 s51, s51, s59
s_mul_i32 s59, s19, 86
s_lshr_b32 s59, s59, 8           ; gamma = (kg%9)/3
s_mul_i32 s60, s59, 3
s_sub_u32 s19, s19, s60
s_lshl_b32 s19, s19, 3           ; pos%24 of the first half block
s_mul_i32 s60, s60, {16*1152}
s_add_u32 s51, s51, s60
""")
    for e in range(8):
        k(f"""
s_add_u32 s59, s19, {e}
s_mul_i32 s60, s59, 86
s_lshr_b32 s60, s60, 8
s_mul_i32 s60, s60, 6
s_add_u32 s59, s59, s60
s_mul_i32 s59, s59, {16*1152}
s_add_u32 s{40+e}, s51, s59
""")
    k.label("pgo")
    k(f"s_lshl_b32 s19, s16, 11\ns_add_u32 s19, s19, {SCR}")
    prep_addr(k, PVS, PVW, PVR, PVR + 1, 19)
    k(f"""
s_cmp_eq_u32 s16, 5
s_cbranch_scc1 {k.lab('q5')}
s_cmp_lg_u32 s16, 4
s_cbranch_scc1 {k.lab('pqx')}
s_lshr_b32 s59, s17, 3
s_lshl_b32 s59, s59, 4           ; hg*16
v_and_b32 v{T0}, 15, v0
v_bfe_u32 v{T0+1}, v0, 4, 1
v_lshl_add_u32 v{T0}, v{T0+1}, 6, v{T0}
v_add_u32 v{T0}, 64, v{T0}
s_lshr_b32 s60, s2, 5
s_lshl_b32 s60, s60, 1
v_and_b32 v{T0+1}, 1, v0
v_add_u32 v{T0+1}, s60, v{T0+1}
s_mul_i32 s59, s59, {FLS}
s_add_u32 s59, s59, {FAOFF}
v_cndmask_b32 v{T0}, v{T0+1}, v{T0}, s[30:31]
s_branch {k.lab('q6')}
""")
    k.label("q5")
    k(f"""
; lanes 0..14: Wo jobs 128 + (l/3)*9 + cs0 + l%3 ; 15..50: wbar jobs ; 51..: statistics 2tb + (l&1)
s_mul_i32 s60, s39, 9
s_lshr_b32 s60, s60, 2
s_add_u32 s60, s60, 128
v_mul_u32_u24 v{T0}, 21846, v0
v_lshrrev_b32 v{T0}, 16, v{T0}
v_mad_u32_u24 v{T0}, v{T0}, 6, v0
v_add_u32 v{T0}, s60, v{T0}
v_add_u32 v{T0+1}, {173-15}, v0
v_cmp_gt_u32 vcc, 15, v0
s_lshl_b32 s60, s38, 1
v_and_b32 v{T0+2}, 1, v0
v_cndmask_b32 v{T0}, v{T0+1}, v{T0}, vcc
v_cmp_gt_u32 vcc, 51, v0
v_add_u32 v{T0+2}, s60, v{T0+2}
s_mov_b32 s59, {FSOFF}
v_cndmask_b32 v{T0}, v{T0+2}, v{T0}, vcc
""")
    k.label("q6")
    k(f"v_mul_u32_u24 v{T0}, {FLS}, v{T0}")
    poll(k, "pq", 59, T0, T0 + 2, 60)
    k("s_barrier")
    if dbg == "a": mk(7)
    k(piece(0))
    k(f"""
buffer_load_dwordx4 {v(Q1[0],4)}, v1, s[12:15], s63 offen {ld}
buffer_load_dword v{Q2[0]}, v{T0+8}, s[12:15], s63 offen offset:1024 {ld}
buffer_load_dwordx4 {v(Q1[1],4)}, v1, s[12:15], s63 offen offset:{QBLK} {ld}
buffer_load_dword v{Q2[1]}, v{T0+8}, s[12:15], s63 offen offset:{QBLK+1024} {ld}
""")
    k(piece(8192)); k(piece(16384))
    k("s_waitcnt vmcnt(0)\ns_barrier")
    k.mark(0)
    k(f"""
v_cndmask_b32 v{Q2[0]}, 0, v{Q2[0]}, s[30:31]
v_cndmask_b32 v{Q2[1]}, 0, v{Q2[1]}, s[30:31]
s_setprio 1
s_cmp_eq_u32 s33, 0
s_cbranch_scc1 {k.lab('restart')}
s_setprio 0
s_mov_b32 s21, 99
s_add_u32 s23, s23, {24576 - 4096}
""")
    for n in range(NPRE):
        k(piece(n * 4096))
    k(f"s_add_u32 s23, s23, {NPRE*4096}")
    k.label("restart")
    k(f"""
v_mov_b32 v{Q2[0]+1}, 0
v_mov_b32 v{Q2[1]+1}, 0
v_mov_b32 v{T0}, 0xff800000
v_mov_b32 v{T0+1}, 0xff800000
v_mov_b32 v{AK1}, v{BK1}
v_mov_b32 v{AK2}, v{BK1+1}
s_mov_b32 s20, s48
""")
    k.label("mx")
    k(f"""
ds_read_b128 {v(K1,4)}, v{AK1}
ds_read_b32 v{K2}, v{AK2}
v_add_u32 v{AK1}, {KVBLK}, v{AK1}
v_add_u32 v{AK2}, {KVBLK}, v{AK2}
s_waitcnt lgkmcnt(0)
{M16} {v(SS[0],16)}, {v(K1,4)}, {v(Q1[0],4)}, 0
{M8} {v(SS[0],16)}, {v(K2,2)}, {v(Q2[0],2)}, {v(SS[0],16)}
{M16} {v(SS[1],16)}, {v(K1,4)}, {v(Q1[1],4)}, 0
{M8} {v(SS[1],16)}, {v(K2,2)}, {v(Q2[1],2)}, {v(SS[1],16)}
s_sub_u32 s20, s20, 1
s_nop 8
""")
    for q in range(2):
        for i in range(8):
            k(f"v_max3_f32 v{T0+q}, v{T0+q}, v{SS[q]+2*i}, v{SS[q]+2*i+1}")
    k(f"""
s_cmp_lg_u32 s20, 0
s_cbranch_scc1 {k.lab('mx')}
v_mov_b32 v{T0+2}, v{T0}
v_mov_b32 v{T0+3}, v{T0+1}
""")
    for i in range(6):
        k(f"v_add_u32 v{AK1+i}, s32, v{BK1+i}")
    k(f"""
v_permlane32_swap_b32 v{T0}, v{T0+2}
v_permlane32_swap_b32 v{T0+1}, v{T0+3}
s_and_b32 s19, s33, s48
s_cbranch_scc0 {k.lab('kvx')}
""")
    k.label("kv")
    k(piece(0))
    k(f"""
s_add_u32 s23, s23, 4096
s_cmp_lt_u32 s23, {KVHEAD}
s_cbranch_scc1 {k.lab('kv')}
s_waitcnt vmcnt(0)
s_barrier
""")
    WC = 112
    def wcreg(ks, sl):
        i = 2 * ks + sl
        return 128 + 4 * i if i < 32 else WC + 4 * (i - 32)
    for ks in range(16):
        for sl in range(2):
            k(f"buffer_load_dwordx4 {v(wcreg(ks,sl),4)}, v1, s[12:15], s62 offen offset:{sl*1024}")
        k("s_add_u32 s62, s62, 36864")
    k.label("kvx")
    k(f"""
ds_read_b128 {v(K1,4)}, v{AK1}
ds_read_b32 v{K2}, v{AK2}
ds_read_b64_tr_b16 {v(V0,2)}, v{AV}
ds_read_b64_tr_b16 {v(V0+2,2)}, v{AV+1}
""")
    for q in range(2):
        k(f"""
v_max_f32 v{T0+q}, v{T0+q}, v{T0+2+q}
v_sub_f32 v{T0+q}, 0, v{T0+q}
v_cvt_pk_bf16_f32 v{T0+4}, v{T0+q}, v{T0+q}
v_and_b32 v{T0+4}, 0xffff0000, v{T0+4}
v_sub_f32 v{T0+5}, v{T0+q}, v{T0+4}
v_cvt_pk_bf16_f32 v{T0+4}, v{T0+4}, v{T0+5}
v_cndmask_b32 v{Q2[q]+1}, 0, v{T0+4}, s[30:31]
""")
    k(f"""
s_waitcnt lgkmcnt(0)
{M16} {v(SS[0],16)}, {v(K1,4)}, {v(Q1[0],4)}, 0
{M8} {v(SS[0],16)}, {v(K2,2)}, {v(Q2[0],2)}, {v(SS[0],16)}
""")
    for q in range(2):
        for i in range(16):
            k(f"v_mov_b32 v{OO[q]+i}, 0")
    for i in range(4):
        k(f"v_mov_b32 v{P+4+i}, 0\nv_mov_b32 v{V1+i}, 0")
    k.mark(1)
    k(".p2align 6")
    k.label("loop")
    for t in range(U):
        for ph in range(2):
            cur, nxt = SS[ph], SS[1-ph]
            Oc, Op = OO[ph], OO[1-ph]
            e = lambda i: f"v_exp_f32 v{cur+i}, v{cur+i}"
            c = lambda i: f"v_cvt_pk_bf16_f32 v{P+i}, v{cur+2*i}, v{cur+2*i+1}"
            rdV1 = f"ds_read_b64_tr_b16 {v(V1,2)}, v{AV+2} offset:{t*KVBLK}\nds_read_b64_tr_b16 {v(V1+2,2)}, v{AV+3} offset:{t*KVBLK}" if ph == 0 else ""
            rdK1 = f"ds_read_b128 {v(K1,4)}, v{AK1} offset:{(t+1)*KVBLK}" if ph == 0 else ""
            rdK2 = f"ds_read_b32 v{K2}, v{AK2} offset:{(t+1)*KVBLK}" if ph == 0 else ""
            rdV0 = f"ds_read_b64_tr_b16 {v(V0,2)}, v{AV} offset:{(t+1)*KVBLK}\nds_read_b64_tr_b16 {v(V0+2,2)}, v{AV+1} offset:{(t+1)*KVBLK}" if ph == 1 else ""
            wA = "s_waitcnt lgkmcnt(0)" if ph == 1 else ""
            wD = "s_waitcnt lgkmcnt(4)" if ph == 0 else ""
            k(f"""
{e(0)}
{e(1)}
{wA}
{M16} {v(Op,16)}, {v(V1,4)}, {v(P+4,4)}, {v(Op,16)}
{rdV1}
{e(2)}
{e(3)}
{c(0)}
{c(1)}
{e(4)}
{e(5)}
{M16} {v(nxt,16)}, {v(K1,4)}, {v(Q1[1-ph],4)}, 0
{rdK1}
{e(6)}
{e(7)}
{c(2)}
{c(3)}
{e(8)}
{e(9)}
{M8} {v(nxt,16)}, {v(K2,2)}, {v(Q2[1-ph],2)}, {v(nxt,16)}
{rdK2}
{e(10)}
{e(11)}
{c(4)}
{c(5)}
{e(12)}
{e(13)}
{wD}
{M16} {v(Oc,16)}, {v(V0,4)}, {v(P,4)}, {v(Oc,16)}
{rdV0}
{e(14)}
{e(15)}
{c(6)}
{c(7)}
""")
    for i in range(6):
        k(f"v_add_u32 v{AK1+i}, {U*KVBLK}, v{AK1+i}")
    k(f"""
s_add_u32 s20, s20, 1
s_cmp_eq_u32 s20, s21
s_cbranch_scc1 {k.lab('stub')}
s_cmp_lt_u32 s20, s3
s_cbranch_scc1 {k.lab('loop')}
{M16} {v(OO[1],16)}, {v(V1,4)}, {v(P+4,4)}, {v(OO[1],16)}
""")
    k.mark(2)
    k(f"""
s_setprio 0
s_waitcnt lgkmcnt(0)
s_cmp_lg_u32 s21, 98
s_cbranch_scc1 {k.lab('x1')}
s_mov_b32 s21, 99
s_mul_i32 s59, s61, {FLS}
s_add_u32 s59, s59, {FPOFF}
s_waitcnt vmcnt(0)
""")
    set_flag(k, 59, T0 + 6)
    if dbg == "b": k.mark(8)
    k(f"""
s_cmp_lg_u32 s16, 0
s_cbranch_scc1 {k.lab('x1')}
v_and_b32 v{T0+6}, 1, v0
v_mul_u32_u24 v{T0+6}, 1152, v{T0+6}
v_lshrrev_b32 v{T0+7}, 4, v0
v_lshl_add_u32 v{T0+6}, v{T0+7}, 4, v{T0+6}
s_mov_b32 s60, {WBAROFF}
""")
    for ks in range(16):
        k(f"buffer_load_dwordx4 {v(wcreg(ks,0),4)}, v1, s[12:15], s62 offen")
        k(f"buffer_load_dwordx4 {v(wcreg(ks,1),4)}, v{T0+6}, s[12:15], s60 offen offset:{ks*64}")
        k("s_add_u32 s62, s62, 36864")
    k.label("x1")
    k(f"""
s_mov_b32 s26, {f2u(2.0**60):#x}
s_nop 7
v_add_f32 v{T0+1}, v{OO[0]+10}, v{OO[1]+10}
s_mul_i32 s19, s16, 3072
s_add_u32 s19, s19, {MRG + 1024}
v_add_u32 v{T0+2}, s19, v1
v_cmp_ngt_f32 vcc, s26, v{T0+1}
s_xor_b32 s19, s16, 4
s_mul_i32 s19, s19, 3072
s_add_u32 s19, s19, {MRG + 1024}
v_add_u32 v{T0+3}, s19, v1
s_lshl_b32 s19, s16, 2
s_add_u32 s19, s19, {MRG}
v_mov_b32 v{T0+4}, s19
s_cmp_lg_u64 vcc, 0
s_cselect_b32 s19, 1, 0
v_mov_b32 v{T0+5}, s19
""")
    k.mark(3)
    k(f"""
s_barrier
ds_write_b32 v{T0+4}, v{T0+5}
s_cmp_eq_u32 s33, 0
s_cbranch_scc1 {k.lab('sendb')}
""")
    for j in range(3):
        k(f"ds_write_b128 v{T0+2}, {v(OO[0]+4*j,4)} offset:{j*1024}")
    for i in range(11):
        k(f"v_mov_b32 v{SS[0]+i}, v{OO[1]+i}")
    k(f"s_branch {k.lab('sent')}")
    k.label("sendb")
    for j in range(3):
        k(f"ds_write_b128 v{T0+2}, {v(OO[1]+4*j,4)} offset:{j*1024}")
    for i in range(11):
        k(f"v_mov_b32 v{SS[0]+i}, v{OO[0]+i}")
    k.label("sent")
    k(f"""
s_add_u32 s19, s18, s33
s_lshl_b32 s24, s17, 16
s_lshl_b32 s23, s19, 9
s_add_u32 s24, s24, s23
s_add_u32 s24, s24, {OOFF}
s_lshl_b32 s19, s19, 5
s_add_u32 s19, s19, s17
s_lshl_b32 s23, s19, 7
s_add_u32 s23, s23, {O2OFF}
s_mul_i32 s19, s19, {FLS}
s_add_u32 s19, s19, {FBOFF}
v_and_b32 v{T0+1}, 31, v0
v_lshrrev_b32 v{T0+2}, 5, v0
v_lshlrev_b32 v{T0+1}, 4, v{T0+1}
v_lshl_add_u32 v{T0+2}, v{T0+2}, 15, v{T0+1}
v_lshlrev_b32 v{T0+1}, 2, v0
v_mov_b32 v{T0+4}, {MRG}
s_waitcnt lgkmcnt(0)
s_barrier
ds_read_b128 {v(K1,4)}, v{T0+4}
ds_read_b128 {v(V0,4)}, v{T0+4} offset:16
""")
    if dbg == "b": k.mark(11)
    for j in range(3):
        k(f"ds_read_b128 {v(SS[1]+4*j,4)}, v{T0+3} offset:{j*1024}")
    O = SS[0]
    k(f"""
s_waitcnt lgkmcnt(3)
v_or3_b32 v{K1}, v{K1}, v{K1+1}, v{K1+2}
v_or3_b32 v{V0}, v{V0}, v{V0+1}, v{V0+2}
v_or3_b32 v{K1}, v{K1}, v{K1+3}, v{V0+3}
v_or_b32 v{K1}, v{K1}, v{V0}
s_waitcnt lgkmcnt(0)
v_readfirstlane_b32 s26, v{K1}
v_add_f32 v{O+10}, v{O+10}, v{SS[1]+10}
v_rcp_f32 v{T0}, v{O+10}
s_and_b32 s26, s26, s48
s_cmp_eq_u32 s26, 1
s_cbranch_scc1 {k.lab('fallback')}
""")
    for i in range(10):
        k(f"v_add_f32 v{O+i}, v{O+i}, v{SS[1]+i}")
    for i in range(10):
        k(f"v_mul_f32 v{O+i}, v{O+i}, v{T0}")
    for i in range(5):
        k(f"v_cvt_pk_bf16_f32 v{P+i}, v{O+2*i}, v{O+2*i+1}")
    k(f"""
buffer_store_dwordx4 {v(P,4)}, v{T0+2}, s[12:15], s24 offen sc1
s_mov_b64 exec, s[30:31]
buffer_store_dword v{P+4}, v{T0+1}, s[12:15], s23 offen sc1
s_mov_b64 exec, -1
""")
    LT, LG = 2, 3
    GV = 4
    XV, W1V, FV = 5, 6, 7
    ACC, OF, X, MU = 16, 32, 48, 56
    TC = 60
    k.srd(4, 28, S * D * 2)
    k(f"""
v_and_b32 v{LT}, 15, v0
v_lshrrev_b32 v{LG}, 4, v0
v_lshlrev_b32 v{GV}, 15, v{LG}
v_lshl_add_u32 v{GV}, v{LT}, 4, v{GV}
v_and_b32 v{FV}, 31, v0
v_mul_u32_u24 v{FV}, {FLS}, v{FV}
v_mul_u32_u24 v{XV}, 1152, v{LT}
v_lshl_add_u32 v{XV}, v{LG}, 3, v{XV}
v_lshlrev_b32 v{W1V}, 2, v{LT}
s_mul_i32 s24, s38, {32*1152}
s_lshl_b32 s23, s49, 5
s_add_u32 s24, s24, s23
s_add_u32 s23, s24, {16*1152}
s_lshl_b32 s26, s38, 7
s_lshl_b32 s27, s38, 8
s_add_u32 s27, s27, {STOFF + 4}
v_lshlrev_b32 v9, 3, v{LT}
s_cmp_gt_u32 s11, 4
s_cbranch_scc1 {k.lab('cidle')}
s_cmp_lt_u32 s11, 4
s_cbranch_scc1 {k.lab('clate')}
v_and_b32 v8, 1, v0
v_mul_u32_u24 v8, 1152, v8
v_lshl_add_u32 v8, v{LG}, 4, v8
s_mov_b32 s60, {WBAROFF}
""")
    for ks in (16, 17):
        k(f"buffer_load_dwordx4 {v(wcreg(ks,0),4)}, v1, s[12:15], s62 offen")
        k(f"buffer_load_dwordx4 {v(wcreg(ks,1),4)}, v8, s[12:15], s60 offen offset:{ks*64}")
        k("s_add_u32 s62, s62, 36864")
    k(f"s_branch {k.lab('cx')}")
    k.label("clate")
    for ks in (16, 17):
        for sl in range(2):
            k(f"buffer_load_dwordx4 {v(wcreg(ks,sl),4)}, v1, s[12:15], s62 offen offset:{sl*1024}")
        k("s_add_u32 s62, s62, 36864")
    k.label("cx")
    for T in range(2):
        for i in range(2):
            k(f"buffer_load_dwordx2 {v(X+2*(2*i+T),2)}, v{XV}, s[4:7], s{[24,23][T]} offen offset:{i*32}")
        k(f"buffer_load_dword v{MU+T}, v9, s[12:15], s27 offen offset:{T*128} {ld}")
    k(f"s_waitcnt vmcnt(10)\ns_branch {k.lab('cflag')}")
    k.label("cidle")
    k("s_waitcnt vmcnt(0)")
    k.label("cflag")
    set_flag(k, 19, TC)

    k.mark(4)
    k(f"""
s_mul_i32 s59, s38, {32*FLS}
s_add_u32 s59, s59, {FBOFF}
s_lshl_b32 s57, s38, 9
s_add_u32 s57, s57, {OOFF}
s_lshr_b32 s58, s16, 1
s_lshl_b32 s58, s58, 17
s_add_u32 s57, s57, s58
s_and_b32 s58, s16, 1
s_lshl_b32 s58, s58, 8
s_add_u32 s57, s57, s58
s_lshl_b32 s58, s16, 10
s_lshl_b32 s56, s38, 12
s_add_u32 s56, s56, s58
s_add_u32 s56, s56, {O2OFF}
s_add_u32 s58, s58, {OST}
v_add_u32 v{XV}, {OST}, v1
v_lshlrev_b32 v8, 9, v{LG}
v_add3_u32 v8, v8, v{W1V}, s58
""".replace("v_add3_u32 v8, v8, v{W1V}, s58".format(W1V=W1V), f"v_add_u32 v8, v8, v{W1V}\nv_add_u32 v8, {OST + 32768}, v8"))
    k(f"""
s_cmp_le_u32 s11, 4
s_cbranch_scc1 {k.lab('pbx')}
s_cmp_eq_u32 s16, 1
s_cbranch_scc1 {k.lab('pb0')}
; waves 2,3: re-layout jobs read by phases D/E.  lanes 0..35: job = lane*18 + cg ; lanes 36..: 648 + (9kq + j/3)*9 + cs0 + j%3
s_mul_i32 s59, s9, 9
s_sub_u32 s60, s16, 2
s_lshl_b32 s60, s60, 3
s_add_u32 s59, s59, s60
s_lshr_b32 s55, s59, 4           ; cg
s_bfe_u32 s59, s2, 0x20001
s_mul_i32 s59, s59, 81
s_mul_i32 s60, s39, 9
s_lshr_b32 s60, s60, 2
s_add_u32 s59, s59, s60
s_add_u32 s59, s59, 648
v_subrev_u32 v9, 36, v0
v_min_u32 v9, 26, v9
v_mul_u32_u24 v10, 21846, v9
v_lshrrev_b32 v10, 16, v10
v_mad_u32_u24 v9, v10, 6, v9
v_add_u32 v9, s59, v9
v_mul_u32_u24 v10, 18, v0
v_add_u32 v10, s55, v10
v_cmp_gt_u32 vcc, 36, v0
s_mov_b32 s59, {FPOFF}
s_nop 0
v_cndmask_b32 v{FV}, v9, v10, vcc
v_mul_u32_u24 v{FV}, {FLS}, v{FV}
""")
    k.label("pb0")
    poll(k, "pb", 59, FV, TC, 60)
    k("s_barrier")
    k.mark(5)
    for n in range(4):
        k(f"s_add_u32 m0, s58, {n*8192}\ns_add_u32 s62, s57, {n*4*4*CH}\nbuffer_load_dwordx4 v{GV}, s[12:15], s62 offen {ld} lds")
    k(f"s_cmp_ge_u32 s16, 4\ns_cbranch_scc1 {k.lab('co')}")
    k(f"s_add_u32 m0, s58, {4*8192}\ns_nop 0\nbuffer_load_dwordx4 v1, s[12:15], s56 offen {ld} lds")
    k.label("co")
    k(f"s_waitcnt vmcnt(0)\ns_barrier")
    k.mark(6)
    k(f"s_cmp_gt_u32 s11, 4\ns_cbranch_scc1 {k.lab('cfeed')}")
    OR = 64
    def rdo(ks):
        b = OR + 8 * (ks % CR)
        if ks >= 16:
            r = []
            if ks == 17: r.append("v_add_u32 v8, 2048, v8")
            for T in range(2):
                for h in range(2):
                    r.append(f"ds_read2_b32 {v(b+4*T+2*h,2)}, v8 offset0:{16*T+64*h} offset1:{16*T+64*h+32}")
            return r
        return [f"ds_read_b128 {v(b+4*T,4)}, v{XV} offset:{(2*ks+T)*1024}" for T in range(2)]
    nrd = lambda ks: 4 if ks >= 16 else 2
    for ks in range(CR - 1):
        for r in rdo(ks): k(r)
    for ks in range(18):
        k(f"s_waitcnt lgkmcnt({sum(nrd(q) for q in range(ks + 1, min(ks + CR - 1, 18)))})")
        r = rdo(ks + CR - 1) if ks + CR - 1 < 18 else []
        for sl in range(2):
            for T in range(2):
                d = v(ACC + (2*sl+T)*4, 4)
                k(f"{M} {d}, {v(wcreg(ks,sl),4)}, {v(OR+8*(ks%CR)+4*T,4)}, {'0' if ks == 0 else d}")
                if r: k(r.pop(0))
        for x in r: k(x)
    SQ = 58
    k(f"""
s_lshl_b32 s24, s49, 16
s_lshl_b32 s23, s38, 9
s_add_u32 s24, s24, s23
s_add_u32 s24, s24, {HCOFF}
v_lshrrev_b32 v8, 5, v0
v_lshlrev_b32 v8, 15, v8
v_and_b32 v9, 31, v0
v_lshl_add_u32 v8, v9, 4, v8
v_lshlrev_b32 v9, 2, v9
v_add_u32 v10, {MUL}, v{W1V}
v_mov_b32 v{SQ}, 0
v_mov_b32 v{SQ+1}, 0
s_cmp_lt_u32 s11, 4
s_cbranch_scc1 {k.lab('cmu')}
""")
    for T in range(2):
        aw = ACC + (2+T)*4
        k(f"v_add_f32 v{aw}, v{aw}, v{aw+1}\nv_add_f32 v{aw}, v{MU+T}, v{aw}\nds_write_b32 v10, v{aw} offset:{T*64}")
    k.label("cmu")
    for sl in range(2):
        for T in range(2):
            x = X + 2*(2*sl+T)
            r = OF + 4*(2*sl+T)
            k(f"v_lshlrev_b32 v{r}, 16, v{x}\nv_and_b32 v{r+1}, 0xffff0000, v{x}\nv_lshlrev_b32 v{r+2}, 16, v{x+1}\nv_and_b32 v{r+3}, 0xffff0000, v{x+1}")
    k("s_waitcnt lgkmcnt(0)\ns_barrier")
    for T in range(2):
        k(f"ds_read_b32 v{MU+T}, v10 offset:{T*64}")
    for i in range(8):
        k(f"v_pk_add_f32 {v(ACC+2*i,2)}, {v(ACC+2*i,2)}, {v(OF+2*i,2)}")
    k("s_waitcnt lgkmcnt(0)")
    for sl in range(2):
        if sl == 1:
            k(f"s_cmp_eq_u32 s11, 4\ns_cbranch_scc1 {k.lab('cq')}")
        R = X + 4*sl
        for T in range(2):
            ac = ACC + (2*sl+T)*4
            for r in range(4):
                k(f"v_sub_f32 v{ac+r}, v{ac+r}, v{MU+T}")
            k(f"v_cvt_pk_bf16_f32 v{R+2*T}, v{ac}, v{ac+1}\nv_cvt_pk_bf16_f32 v{R+2*T+1}, v{ac+2}, v{ac+3}")
            for r in range(4):
                k(f"v_fmac_f32 v{SQ+T}, v{ac+r}, v{ac+r}")
        k(f"""
v_permlane16_swap_b32 v{R}, v{R+2}
v_permlane16_swap_b32 v{R+1}, v{R+3}
buffer_store_dwordx4 {v(R,4)}, v8, s[12:15], s24 offen sc1
s_add_u32 s24, s24, 65536
""")
    k.label("cq")
    k(f"""
s_mul_i32 s23, s39, 5
s_add_u32 s23, s23, s11
v_permlane16_swap_b32 v{SQ}, v{SQ+1}
s_lshl_b32 s27, s23, 13
s_add_u32 s27, s27, s26
s_add_u32 s27, s27, {SSQOFF}
v_add_f32 v{SQ}, v{SQ}, v{SQ+1}
v_mov_b32 v{SQ+1}, v{SQ}
s_add_u32 s26, s26, {MUHOFF}
s_cmp_lg_u32 s23, 0
s_cselect_b32 s26, {OOB}, s26
v_permlane32_swap_b32 v{SQ}, v{SQ+1}
v_add_f32 v{SQ}, v{SQ}, v{SQ+1}
s_mov_b32 exec_hi, 0
buffer_store_dword v{SQ}, v9, s[12:15], s27 offen sc1
s_mov_b64 exec, 0xffff
buffer_store_dword v{MU}, v{W1V}, s[12:15], s26 offen sc1
buffer_store_dword v{MU+1}, v{W1V}, s[12:15], s26 offen offset:64 sc1
s_mov_b64 exec, -1
s_lshl_b32 s59, s38, 5
s_add_u32 s59, s59, s23
s_mul_i32 s59, s59, {FLS}
s_add_u32 s59, s59, {FCOFF}
s_waitcnt vmcnt(0)
""")
    set_flag(k, 59, TC)
    k(f"s_branch {k.lab('dstart')}")
    k.label("cfeed")
    k(f"""
s_sub_u32 s23, s16, 1
s_mul_i32 s22, s23, {UB}
s_add_u32 s22, s22, s10
s_mul_i32 s23, s23, {CB}
""")
    for p_ in range(36):
        if p_ % 4 == 0:
            k(f"s_add_u32 m0, s23, {(p_//12)*UB + (p_%12)*1024}\ns_add_u32 s24, s22, {p_*1024}")
        k(f"buffer_load_dwordx4 v1, s[12:15], s24 offen offset:{(p_%4)*1024} lds")
        if p_ + 1 == NF1:
            k("s_barrier")
    k.label("dstart")
    k.mark(7)
    if upto >= 4:
        tails = phase_d(k, GV, FV, WV, ld, **dopt)
    if upto >= 5:
        phase_e(k, GV, ld, tails, **eopt)
    k(f"s_branch {k.lab('fin')}")
    k.label("stub")
    k(f"""
s_cmp_eq_u32 s21, 2
s_cbranch_scc1 {k.lab('stub0')}
s_cmp_eq_u32 s21, {ST[1]}
s_cbranch_scc1 {k.lab('stub2')}
s_cmp_eq_u32 s21, {ST[2]}
s_cbranch_scc1 {k.lab('stub3')}
s_cmp_eq_u32 s21, {ST[3]}
s_cbranch_scc1 {k.lab('stub4')}
s_mov_b32 s21, {ST[1]}
""")
    prep_loads_tab(k, (0, 1), DAT, PVS, 4, 40)
    k(f"s_branch {k.lab('loop')}")
    k.label("stub2")
    k(f"s_mov_b32 s21, {ST[2]}")
    prep_loads_tab(k, (2, 3), DAT, PVS, 4, 40)
    k(f"s_branch {k.lab('loop')}")
    k.label("stub3")
    k(f"s_mov_b32 s21, {ST[3]}")
    prep_process(k, DAT, FR, PVW, PVR, ns=(0, 1))
    k(f"s_branch {k.lab('loop')}")
    k.label("stub4")
    k(f"s_mov_b32 s21, 98")
    prep_process(k, DAT, FR, PVW, PVR, ns=(2, 3))
    k(f"s_branch {k.lab('loop')}")
    k.label("stub0")
    k(f"s_barrier\ns_cmp_ge_u32 s61, 972\ns_cselect_b32 s21, 98, {ST[0]}\ns_branch {k.lab('loop')}")
    k.label("fallback")
    k(f"""
s_waitcnt vmcnt(0)
s_barrier
s_mov_b32 s48, 64
s_mul_i32 s22, s17, {KVHEAD}
s_lshl_b32 s23, s16, 10
""")
    k.label("fb1")
    k(piece(0))
    k(f"""
s_add_u32 s23, s23, 8192
s_cmp_lt_u32 s23, {KVHEAD}
s_cbranch_scc1 {k.lab('fb1')}
s_waitcnt vmcnt(0)
s_barrier
s_branch {k.lab('restart')}
""")
    for i, l in enumerate(k.L):
        if l.strip().startswith("buffer_load") and "s[12:15]" in l and " sc1" not in l:
            k.L[i] = l[:-4] + " sc1 lds" if l.endswith(" lds") else l.rstrip() + " sc1"
    k.label("fin")
    k.stamp_end(12)
    k.label("end")
    k("s_endpgm")
    return k


def phase_d(k, GV, FV, WV, ld, PF=6, LA=4, WG=2, exp='', prio=0, DS=5):
    ACC = [16, 32, 48]
    WF, PR, HV = 64, 88, 112
    SV, A0, A1, AB, FILL = 3, 5, 6, 2, 8
    hreg = lambda ks, T: v(HV + 4*(2*ks+T), 4)
    k(f"""
s_lshl_b32 s11, s8, 3
s_add_u32 s11, s11, s16
s_lshl_b32 s21, s11, 9
s_add_u32 s20, s21, {HCOFF}      ; h soffset
s_lshr_b32 s22, s9, 3
s_mul_i32 s22, s22, {72*65536}
s_add_u32 s21, s21, s22
s_and_b32 s22, s9, 7
s_mul_i32 s22, s22, {3*65536}
s_add_u32 s21, s21, s22
s_add_u32 s21, s21, {HIDOFF}
s_and_b32 s17, s2, 1
s_lshl_b32 s17, s17, 3
s_bfe_u32 s18, s2, 0x30003
s_add_u32 s17, s17, s18
s_lshr_b32 s18, s2, 6
s_bfe_u32 s19, s2, 0x20001
""")
    for n in range(5):
        k(f"s_add_u32 s28, s16, {8*n}")
        if n == 4:
            k("s_add_u32 s29, s16, 24\ns_cmp_ge_u32 s28, 36\ns_cselect_b32 s28, s29, s28")
        k(f"""
s_lshl_b32 s{44+n}, s28, 10
s_mul_i32 s29, s28, 21846
s_lshr_b32 s29, s29, 18
s_mul_i32 s29, s29, {UB - CB}
s_add_u32 s{54+n}, s{44+n}, s29
s_mul_i32 s29, s28, 7282
s_lshr_b32 s29, s29, 16
s_mul_i32 s30, s29, 9
s_sub_u32 s28, s28, s30
s_add_u32 s30, s28, s19
s_and_b32 s30, s30, 3
s_and_b32 s31, s28, 4
s_or_b32 s30, s30, s31
s_cmp_eq_u32 s28, 8
s_cselect_b32 s30, 8, s30
s_lshl_b32 s30, s30, 10
s_mul_i32 s29, s29, 36864
s_add_u32 s{38+n}, s29, s30
""")
    k(f"""
s_add_u32 s51, s10, {3*UB}
s_mov_b32 s50, {CB}
s_mov_b32 s49, {3*UB - 2*CB}
s_mov_b32 s24, {3*UB}
s_mul_i32 s53, s19, {36*36864}
s_mul_i32 s29, s18, 9216
s_add_u32 s53, s53, s29
s_add_u32 s53, s53, {WDOFF}
v_lshrrev_b32 v{SV}, 5, v0
v_lshlrev_b32 v{SV}, 15, v{SV}
v_and_b32 v{A0}, 31, v0
v_lshl_add_u32 v{SV}, v{A0}, 4, v{SV}
v_mov_b32 v{A0}, v1
v_add_u32 v{A1}, {UB}, v1
s_mov_b32 s26, {UB}
v_min_u32 v{FV}, 19, v0
v_mul_u32_u24 v{FV}, {FLS}, v{FV}
s_mul_i32 s61, s11, {32*FLS}
s_add_u32 s61, s61, {FCOFF}
s_lshl_b32 s28, s17, 2
s_and_b32 s29, s16, 3
s_add_u32 s28, s28, s29
s_mul_i32 s52, s28, 36
s_mul_i32 s29, s18, 9
s_add_u32 s52, s52, s29
s_mul_i32 s52, s52, 3072
s_add_u32 s62, s52, {EXOFF}
s_and_b32 s29, s16, 4
s_add_u32 s29, s29, s19
s_mul_i32 s29, s29, 3072
s_add_u32 s52, s62, s29
s_add_u32 s63, s62, {8*3072}
s_cmp_eq_u32 s16, s19
s_cselect_b32 s63, s63, {OOB}
s_mov_b32 s27, 0
s_lshl_b32 s30, s11, 5
s_add_u32 s30, s30, s9
s_mul_i32 s30, s30, {FLS}
s_add_u32 s30, s30, {FDOFF}
s_lshl_b32 s31, s2, 3
s_add_u32 s31, s31, s16
s_mul_i32 s31, s31, {FLS}
s_add_u32 s31, s31, {FXOFF}
s_lshl_b32 s32, s28, 2
s_add_u32 s32, s32, s19
s_mul_i32 s32, s32, {8*FLS}
s_add_u32 s32, s32, {FDOFF}
v_and_b32 v2, 7, v0
v_mul_u32_u24 v2, {FLS}, v2
v_mov_b32 v14, 0
s_waitcnt vmcnt(0)
s_barrier
""")
    def rd(n):
        base = A0 if n < 36 else A1
        j = n % 36
        ks, u, m = j // 6, (j % 6) // 2, j % 2
        return [f"ds_read_b128 {v(WF+4*(n%PF),4)}, v{base} offset:{u*CB + (2*ks+m)*1024}", ""]
    for n in range(PF - 1):
        for x in rd(n): k(x)
    for i in range(4):
        k(f"v_mov_b32 v{FILL+i}, -1")
    if prio:
        k(f"s_cmp_lt_u32 s16, 4\ns_cbranch_scc1 {k.lab('dp')}\ns_setprio 1")
        k.label("dp")
    poll(k, "pc", 61, FV, 12, 60)
    k.mark(8)
    def h_ops(ks):
        return [f"buffer_load_dwordx4 {hreg(ks,T)}, v{GV}, s[12:15], s20 offen offset:{T*256} {ld}" for T in range(2)] + \
               [f"s_add_u32 s20, s20, {4*CH}"]
    def tail(u):
        R = PR + 8*u
        return [f"v_cvt_pk_bf16_f32 v{R}, v{R}, v{R+1}", f"v_cvt_pk_bf16_f32 v{R+1}, v{R+2}, v{R+3}",
                f"v_cvt_pk_bf16_f32 v{R+2}, v{R+4}, v{R+5}", f"v_cvt_pk_bf16_f32 v{R+3}, v{R+6}, v{R+7}\ns_nop 0",
                f"v_permlane16_swap_b32 v{R}, v{R+2}", f"v_permlane16_swap_b32 v{R+1}, v{R+3}",
                f"buffer_store_dwordx4 {v(R,4)}, v{SV}, s[12:15], s21 offen sc1", f"s_add_u32 s21, s21, {65536 if u < 2 else 22*65536}"]
    def dma(c):
        ops = [f"s_add_u32 m0, s24, s{44+n}\ns_add_u32 s22, s51, s{54+n}\nbuffer_load_dwordx4 v1, s[12:15], s22 offen lds" for n in range(5)]
        ops.append(f"s_add_u32 s51, s51, s{49 if c == 0 else 50}")
        ops.append(f"s_add_u32 s24, s24, {UB}\ns_cmp_ge_u32 s24, {4*UB}\ns_cselect_b32 s24, 0, s24")
        return ops
    sw = [f"s_cmp_eq_u32 s27, 2\ns_cselect_b32 s51, s53, s51\ns_cselect_b32 s50, {4*36864}, s50",
          f"s_cselect_b64 s[54:55], s[38:39], s[54:55]\ns_cselect_b64 s[56:57], s[40:41], s[56:57]\ns_cselect_b32 s58, s42, s58"]
    def group(first):
        pend = []
        tot = [2 * LA]; hm = {ks: 2 * ks + 2 for ks in range(LA)}
        for c in range(3):
            f1 = []
            if not first and 'nost' not in exp:
                if c == 0:
                    tl = tail(0) + tail(1) + tail(2)
                    f1 += [tl[2*i] + "\n" + tl[2*i+1] for i in range(12)]
                if c == 2:
                    f1 += [flag_txt([30], 12, "s27"),
                           "buffer_load_dwordx2 v[12:13], v2, s[12:15], s32 offen sc1"]
                if 'nofill' not in exp:
                    f1 += [f"buffer_store_dwordx4 {v(FILL,4)}, v1, s[12:15], s52 offen offset:{c*1024} sc1"]
            f2 = dma(c) if not (first and c == 0) else []
            f3 = f2[5:] + [f"s_add_u32 s26, s26, {UB}\ns_cmp_ge_u32 s26, {4*UB}\ns_cselect_b32 s26, 0, s26"]
            if c == 0 and not first:
                f3 += sw
            f2 = f2[:5] if 'nodma' not in exp else []
            nvm = 0
            for j in range(36):
                ks = 6 * c + j // 6
                u, m = (j % 6) // 2, j % 2
                if first and j % 6 == 0 and ks + LA < 18:
                    pend += h_ops(ks + LA)
                if j % WG == 0:
                    w = f"lgkmcnt({PF-1-WG})"
                    vm = []
                    if first and j % 6 == 0: vm.append(tot[0] - hm[ks])
                    if j == 30 and 'novm' not in exp: vm.append(nvm)
                    if vm: w = f"vmcnt({min(vm)}) " + w
                    k("s_waitcnt " + w)
                if j == 30 and 'nobar' not in exp:
                    k("s_barrier")
                r = rd(j + PF - 1)
                for T in range(2):
                    d = v(ACC[u] + (m*2+T)*4, 4)
                    k(f"{M} {d}, {v(WF+4*(j%PF),4)}, {hreg(ks,T)}, {'0' if ks == 0 else d}")
                    k(r[T])
                    if T == 1:
                        x = None
                        if f2 and j % DS == DS - 1: x = f2.pop(0)
                        elif pend: x = pend.pop(0)
                        elif f1: x = f1.pop(0)
                        elif not f2 and f3: x = f3.pop(0)
                        if x:
                            k(x); nvm += x.count("buffer_"); tot[0] += x.count("buffer_")
                            if x.startswith("buffer_load") and "offset:256" in x: hm[len(hm)] = tot[0]
            assert not f1 and not f2 and not f3 and not pend, (f1, f2, f3, pend)
            k(f"v_mov_b32 v{A0}, v{A1}\nv_add_u32 v{A1}, s26, v1")
        k("s_add_u32 s27, s27, 1\ns_nop 1")
        for u in range(3):
            if u == 2: k("s_nop 1")
            for h in range(4):
                k(f"v_pk_mul_f32 {v(PR+8*u+2*h,2)}, {v(ACC[u]+2*h,2)}, {v(ACC[u]+8+2*h,2)}")
    for ks in range(LA):
        for x in h_ops(ks): k(x)
    group(True)
    k.mark(9)
    k(".p2align 6")
    k.label("dloop")
    group(False)
    k("s_mov_b32 s52, s63")
    k(f"s_cmp_lt_u32 s27, 3\ns_cbranch_scc1 {k.lab('dloop')}")
    k.mark(10)
    return [x for u in range(3) for x in tail(u)]


def phase_e(k, GV, ld, tails, PF=9, WG=3, LA=5):
    SB = UB
    ACC, WF, HV, XV = 16, 112, 148, 15
    FLG = flag_txt([30, 31], 12, "3")
    XL = 3 * SB
    k(f"s_cmp_lt_u32 s16, 4\ns_cbranch_scc1 {k.lab('econs')}")
    def head():
        k("s_and_b32 s33, s16, 3")
        for t in range(4):
            k(f"s_add_u32 s{40+t}, s19, {t}\ns_and_b32 s{40+t}, s{40+t}, 3\ns_lshl_b32 s{44+t}, s{40+t}, 10")
        k(f"s_mul_i32 s29, s33, 6144\ns_add_u32 s29, s29, {XL}\nv_add_u32 v{XV}, s29, v1")
    for x in tails: k(x)
    head()
    k(f"""
s_mul_i32 s23, s33, 36864
s_add_u32 s23, s23, s53
s_add_u32 s23, s23, {8*36864}
s_mul_i32 s22, s33, 9216
s_add_u32 s24, s22, {3*SB}
s_mov_b32 s27, 2
""")
    k.srd(4, 36, S * D * 2)
    k.label("pl")
    for n in range(9):
        if n < 4:
            k(f"s_add_u32 m0, s24, {n*1024}\ns_add_u32 s{48+n}, s23, s{44+n}\nbuffer_load_dwordx4 v1, s[12:15], s{48+n} offen lds")
        elif n < 8:
            k(f"s_add_u32 m0, s24, {n*1024}\ns_add_u32 s25, s{48+n-4}, 4096\nbuffer_load_dwordx4 v1, s[12:15], s25 offen lds")
        else:
            k(f"s_add_u32 m0, s24, {n*1024}\ns_add_u32 s25, s23, 8192\nbuffer_load_dwordx4 v1, s[12:15], s25 offen lds")
    k(f"""
s_add_u32 s23, s23, {4*36864}
s_add_u32 s24, s24, {SB}
s_cmp_ge_u32 s24, {4*SB}
s_cselect_b32 s24, s22, s24
s_add_u32 s27, s27, 1
s_waitcnt vmcnt(9)
s_barrier
s_cmp_eq_u32 s27, 3
s_cbranch_scc1 {k.lab('pf')}
s_cmp_eq_u32 s27, 6
s_cbranch_scc1 {k.lab('pg')}
s_cmp_lt_u32 s27, 9
s_cbranch_scc1 {k.lab('pl')}
""")
    HC, SS, MU, OWN, RX, T0, BS = 16, 28, 38, 40, 64, 100, 104
    k(f"""
v_and_b32 v6, 31, v0
v_lshrrev_b32 v7, 5, v0
v_lshlrev_b32 v5, 15, v7
v_lshl_add_u32 v5, v6, 4, v5
v_mul_u32_u24 v8, {10*8192}, v7
v_lshl_add_u32 v8, v6, 2, v8
v_lshlrev_b32 v9, 2, v6
s_mul_i32 s54, s18, 9
s_add_u32 s55, s54, s19
s_lshl_b32 s56, s55, 16
s_lshl_b32 s57, s28, 9
s_add_u32 s57, s57, {HCOFF}
s_add_u32 s56, s56, s57
buffer_load_dwordx4 {v(HC,4)}, v5, s[12:15], s56 offen {ld}
s_add_u32 s56, s56, {4*65536}
buffer_load_dwordx4 {v(HC+4,4)}, v5, s[12:15], s56 offen {ld}
s_add_u32 s54, s54, 8
s_lshl_b32 s56, s54, 16
s_add_u32 s56, s56, s57
buffer_load_dwordx4 {v(HC+8,4)}, v5, s[12:15], s56 offen {ld}
s_lshl_b32 s56, s28, 7
s_add_u32 s57, s56, {MUHOFF}
s_add_u32 s56, s56, {SSQOFF}
buffer_load_dword v{MU}, v9, s[12:15], s57 offen {ld}
""")
    for j in range(10):
        k(f"buffer_load_dword v{SS+j}, v8, s[12:15], s56 offen {ld}")
        if j < 9: k("s_add_u32 s56, s56, 8192")
    k(f"""
v_bfe_u32 v10, v0, 3, 2
v_and_b32 v11, 7, v0
v_lshl_add_u32 v10, v10, 4, v11
v_mul_u32_u24 v10, {FLS}, v10
s_andn2_b32 s59, s2, 6
s_mul_i32 s59, s59, {8*FLS}
s_add_u32 s59, s59, {FXOFF}
""")
    poll(k, "px", 59, 10, 12, 60)
    k(f"""
s_barrier
s_mul_i32 s58, s19, 3072
s_add_u32 s58, s58, s62
s_add_u32 s59, s58, {4*3072}
s_add_u32 s60, s62, {8*3072}
s_cmp_eq_u32 s19, s33
s_cselect_b32 s60, s60, {OOB}
s_mov_b32 s61, 0
v_mul_u32_u24 v8, 1152, v6
v_lshl_add_u32 v8, v7, 4, v8
s_mul_i32 s56, s28, {32*1152}
s_lshl_b32 s57, s55, 5
s_add_u32 s57, s57, s56
s_lshl_b32 s54, s54, 5
s_add_u32 s56, s56, s54
s_mov_b32 s63, {f2u(1.0/D):#x}
""")
    for j in range(1, 10):
        k(f"v_add_f32 v{SS}, v{SS}, v{SS+j}")
    k(f"""
v_mov_b32 v{SS+1}, v{SS}
v_mov_b32 v{SS+2}, {f2u(1e-5):#x}
s_nop 0
v_permlane32_swap_b32 v{SS}, v{SS+1}
v_add_f32 v{SS}, v{SS}, v{SS+1}
v_fma_f32 v{SS}, v{SS}, s63, v{SS+2}
v_rcp_f32 v{SS}, v{SS}
""")
    for i in range(3):
        for d in range(4):
            x = HC + 4*i + d
            k(f"v_lshlrev_b32 v{BS+8*i+2*d}, 16, v{x}\nv_and_b32 v{BS+8*i+2*d+1}, 0xffff0000, v{x}")
    for i in range(24):
        k(f"v_add_f32 v{BS+i}, v{BS+i}, v{MU}")
    k("s_barrier\ns_barrier")
    k.mark(11)
    for i in range(6):
        k(f"ds_read_b128 {v(OWN+4*i,4)}, v{XV} offset:{i*1024}")
    k.label("poll")
    for i in range(3):
        for q in range(3):
            k(f"buffer_load_dwordx4 {v(RX+12*i+4*q,4)}, v1, s[12:15], s{58+i} offen offset:{q*1024} sc1")
    k("s_waitcnt vmcnt(0)")
    k(f"v_max3_u32 v{T0}, v{RX}, v{RX+1}, v{RX+2}")
    k(f"v_max3_u32 v{T0+1}, v{RX+3}, v{RX+4}, v{RX+5}")
    for n, j in enumerate(range(6, 36, 2)):
        k(f"v_max3_u32 v{T0+(n&1)}, v{T0+(n&1)}, v{RX+j}, v{RX+j+1}")
    k(f"""
v_max_u32 v{T0}, v{T0}, v{T0+1}
v_cmp_eq_u32 vcc, -1, v{T0}
s_add_u32 s61, s61, 1
s_cmp_ge_u32 s61, {POLLMAX}
s_cbranch_scc1 {k.lab('got')}
s_cbranch_vccnz {k.lab('poll')}
""")
    k.label("got")
    k.mark(12)
    k("s_waitcnt lgkmcnt(0)")
    for i in range(3):
        if i == 2:
            k(f"s_cmp_lg_u32 s19, s33\ns_cbranch_scc1 {k.lab('fin')}")
        A = OWN + 8*i
        for r in range(4):
            k(f"v_permlane16_swap_b32 v{A+r}, v{A+4+r}")
        for q in range(3):
            for d in range(4):
                x = RX + 12*i + 4*q + d
                tt = T0 + 2*(d & 1)
                k(f"v_lshlrev_b32 v{tt}, 16, v{x}\nv_and_b32 v{tt+1}, 0xffff0000, v{x}\nv_pk_add_f32 {v(A+2*d,2)}, {v(A+2*d,2)}, {v(tt,2)}")
        for d in range(4):
            b = BS + 8*i + 2*d
            k(f"v_pk_fma_f32 {v(b,2)}, {v(A+2*d,2)}, {v(SS,2)}, {v(b,2)} op_sel_hi:[1,0,1]")
            k(f"v_cvt_pk_bf16_f32 v{HC+4*i+d}, v{b}, v{b+1}")
        so, off = [("s57", 0), ("s57", 128), ("s56", 0)][i]
        k(f"buffer_store_dwordx4 {v(HC+4*i,4)}, v8, s[4:7], {so} offen offset:{off}")
    k(f"s_branch {k.lab('fin')}")
    k.label("pf")
    k(FLG)
    k.label("pg")
    k("s_add_u32 s25, s27, 3\ns_mul_i32 s25, s25, 86\ns_lshr_b32 s25, s25, 8")
    poll(k, "pe", 32, 2, 12, 60, need="s25")
    k(f"s_branch {k.lab('pl')}")
    k.label("econs")
    hreg = lambda set_, kk, T: v(HV + 4 * (8*set_ + 2*kk + T), 4)
    def h_ops(p):
        return [f"buffer_load_dwordx4 {hreg(p//4,p%4,T)}, v{GV}, s[12:15], s20 offen offset:{T*256} {ld}" for T in range(2)] + \
               [f"s_add_u32 s20, s20, {4*CH}"]
    def rd(j):
        base, jj = ("v5", j) if j < 36 else ("v6", j - 36)
        return f"ds_read_b128 {v(WF+4*(j%PF),4)}, {base} offset:{jj*1024}"
    k(f"""
s_lshl_b32 s20, s28, 9
s_mul_i32 s29, s19, {36*4*CH}
s_add_u32 s20, s20, s29
s_add_u32 s20, s20, {HIDOFF}
s_waitcnt vmcnt(6)
{flag_check(12)}
v_add_u32 v5, {SB}, v1
v_add_u32 v6, {2*SB}, v1
s_cbranch_vccz {k.lab('pdx')}
""")
    poll(k, "pd", 32, 2, 12, 60)
    for p in range(LA):
        for x in h_ops(p): k(x)
    for j in range(PF - 1):
        k(rd(j))
    for x in tails: k(x)
    head()
    k(f"""
s_mov_b32 s26, {2*SB}
s_mov_b32 s27, 0
s_sub_u32 s52, s33, s19
s_and_b32 s52, s52, 3
s_lshl_b32 s52, s52, 10
s_add_u32 s52, s52, s62
s_add_u32 s52, s52, {8*3072-1024}
s_mov_b32 s53, 0xfffefffe
s_waitcnt lgkmcnt(8)
""")
    for i in range(36):
        k(f"v_pk_mul_f32 {v(ACC+2*i,2)}, {v(14,2)}, {v(14,2)} op_sel_hi:[0,0]")
    k.mark(11)
    k(".p2align 6")
    k.label("eloop")
    for st3 in range(3):
        for kk in range(4):
            p = 4 * st3 + kk
            f = h_ops((p + LA) % 12)
            if p + LA == 12:
                f = [f"s_add_u32 s27, s27, 1\ns_cmp_ge_u32 s27, 3", f"s_cselect_b32 s20, {OOB}, s20"] + f
            if p == LA + 1:
                f = f + [FLG, f"s_mov_b32 s30, {OOB}\ns_mov_b32 s31, {OOB}"]
            if kk == 3:
                f = f + [f"s_add_u32 s26, s26, {SB}\ns_cmp_ge_u32 s26, {4*SB}", "s_cselect_b32 s26, 0, s26"]
            for t in range(9):
                j = 9 * kk + t
                if t % WG == 0:
                    w = f"lgkmcnt({PF-1-WG})"
                    if t == 0:
                        w = f"vmcnt({2*(LA-1)}) " + w
                    k("s_waitcnt " + w)
                if t == 0 and kk == 3:
                    k("s_barrier")
                for T in range(2):
                    d = v(ACC + (2*t+T)*4, 4)
                    k(f"{M} {d}, {v(WF+4*(j%PF),4)}, {hreg(st3,kk,T)}, {d}")
                    if T == 0:
                        k(rd(j + PF - 1))
                    elif f and t >= 1:
                        k(f.pop(0))
            assert not f, f
        k(f"v_mov_b32 v5, v6\nv_add_u32 v6, s26, v1")
    k(f"s_cmp_lt_u32 s27, 3\ns_cbranch_scc1 {k.lab('eloop')}")
    k.mark(12)
    PKR = WF
    def pack(t, R):
        A0, A1 = ACC + 8*t, ACC + 8*t + 4
        return f"""
v_cvt_pk_bf16_f32 v{R}, v{A0}, v{A0+1}
v_cvt_pk_bf16_f32 v{R+2}, v{A1}, v{A1+1}
v_cvt_pk_bf16_f32 v{R+1}, v{A0+2}, v{A0+3}
v_cvt_pk_bf16_f32 v{R+3}, v{A1+2}, v{A1+3}
v_min_u32 v{R}, s53, v{R}
v_min_u32 v{R+2}, s53, v{R+2}
v_min_u32 v{R+1}, s53, v{R+1}
v_min_u32 v{R+3}, s53, v{R+3}
v_permlane16_swap_b32 v{R}, v{R+2}
s_nop 0
v_permlane16_swap_b32 v{R+1}, v{R+3}
"""
    k("s_waitcnt lgkmcnt(0)")
    i = 0
    for t in (1, 2, 3, 5, 6, 7):
        R = PKR + 4*i; i += 1
        k(f"s_mul_i32 s29, s{40 + (t & 3)}, 3072\ns_add_u32 s29, s29, s62")
        if t >= 4: k(f"s_add_u32 s29, s29, {4*3072}")
        k(pack(t, R))
        k(f"buffer_store_dwordx4 {v(R,4)}, v1, s[12:15], s29 offen offset:{((t & 3) - 1)*1024} sc1")
    k(f"s_cmp_eq_u32 s19, s33\ns_cbranch_scc1 {k.lab('own8')}")
    R = PKR + 24
    k(pack(8, R))
    k(f"buffer_store_dwordx4 {v(R,4)}, v1, s[12:15], s52 offen sc1")
    k.label("own8")
    for i, t in enumerate((0, 4, 8)):
        for T in range(2):
            k(f"ds_write_b128 v{XV}, {v(ACC+8*t+4*T,4)} offset:{(2*i+T)*1024}")
    k("s_waitcnt lgkmcnt(0)\ns_barrier")
```

```python
from common import *
from prep import *

SLOT = 34816
XB = 16384
NS = 4
LST = NS * SLOT
LCS = LST + 1024
LNO = LCS + 1024
QSCALE = (DH ** -0.5) * math.log2(math.e)
M = "v_mfma_f32_16x16x32_bf16"

def get_nonce(k, name, vt):
    k(f"s_mov_b32 s60, 0\ns_branch {k.lab(name + 'c')}")
    k.label(name)
    k(f"s_sleep 2\nglobal_load_dwordx2 v[{vt}:{vt+1}], v{vt+2}, s[38:39] sc1\ns_add_u32 s60, s60, 1\ns_waitcnt vmcnt(0)")
    k.label(name + "c")
    k(f"""
v_readfirstlane_b32 s{NLO}, v{vt}
v_readfirstlane_b32 s{NHI}, v{vt+1}
s_cmp_ge_u32 s60, {POLLMAX}
s_cbranch_scc1 {k.lab(name + 'x')}
s_cmp_eq_u32 s{NLO}, 0
s_cbranch_scc1 {k.lab(name)}
""")
    k.label(name + "x")

def phase_a(k, rot="4", RP=1):
    XV0, XV1, WV = 2, 3, 4
    XR, WR, XA, WA = 8, 10, 12, 14
    LT, LG = 22, 23
    ONE = 24
    WF = [28, 64]
    XF = [100, 108]
    ACC = 116
    T0 = 216
    k(f"""
v_and_b32 v{LT}, 15, v0
v_lshrrev_b32 v{LG}, 4, v0
s_and_b32 s3, s16, 3
s_and_b32 s26, s2, 7
s_lshr_b32 s27, s2, 3
s_lshr_b32 s17, s26, 1
s_lshl_b32 s17, s17, 2
s_and_b32 s50, s27, 3
s_add_u32 s17, s17, s50          ; rb
s_and_b32 s18, s26, 1
s_mul_i32 s18, s18, 6
s_lshr_b32 s51, s27, 2
s_add_u32 s18, s18, s51          ; nb
s_lshl_b32 s48, s17, 2
s_add_u32 s48, s48, s3
s_lshl_b32 s49, s3, 12
s_cmp_ge_u32 s2, 192
s_cbranch_scc1 {k.lab('aux')}
s_cmp_lt_u32 s16, 4
s_cbranch_scc1 {k.lab('acons')}
; ---- producer ----
""")
    if rot == "4":
        k("s_add_u32 s25, s51, s50\ns_and_b32 s25, s25, 3\ns_mul_i32 s25, s25, 9\ns_lshr_b32 s25, s25, 2")
    elif rot == "3":
        k("s_add_u32 s25, s51, s50\ns_mul_i32 s50, s25, 86\ns_lshr_b32 s50, s50, 8\ns_mul_i32 s50, s50, 3\ns_sub_u32 s25, s25, s50\ns_mul_i32 s25, s25, 3")
    else:
        k("""s_lshl_b32 s25, s51, 1
s_mul_i32 s50, s50, 7
s_add_u32 s25, s25, s50
s_lshr_b32 s50, s26, 1
s_add_u32 s25, s25, s50
s_and_b32 s50, s26, 1
s_mul_i32 s50, s50, 3
s_add_u32 s25, s25, s50
s_mul_i32 s50, s25, 7282
s_lshr_b32 s50, s50, 16
s_mul_i32 s50, s50, 9
s_sub_u32 s25, s25, s50""")
    k(f"""
s_mul_i32 s19, s48, {32*1152}
s_mul_i32 s20, s18, 288
v_lshrrev_b32 v{T0}, 3, v0
v_mul_u32_u24 v{T0}, 1152, v{T0}
v_and_b32 v{T0+1}, 7, v0
v_xor_b32 v{T0+1}, v{T0+1}, v{LG}
v_lshl_add_u32 v{XV0}, v{T0+1}, 4, v{T0}
v_xor_b32 v{T0+1}, 4, v{T0+1}
v_lshl_add_u32 v{XV1}, v{T0+1}, 4, v{T0}
""")
    for n in range(5):
        k(f"s_add_u32 s{52+n}, s3, {4*n}")
        if n == 4:
            k("s_add_u32 s50, s3, 12\ns_cmp_ge_u32 s56, 18\ns_cselect_b32 s56, s50, s56")
        k(f"""
s_lshl_b32 s50, s{52+n}, 6
v_add_u32 v{T0}, s50, v0
v_mul_u32_u24 v{T0+1}, 3641, v{T0}
v_lshrrev_b32 v{T0+1}, 16, v{T0+1}
v_mul_u32_u24 v{T0+2}, 18, v{T0+1}
v_sub_u32 v{T0+2}, v{T0}, v{T0+2}
v_and_b32 v{T0+3}, 0x33, v{T0+1}
v_and_b32 v{T0+4}, 4, v{T0+1}
v_lshl_or_b32 v{T0+3}, v{T0+4}, 1, v{T0+3}
v_bfe_u32 v{T0+4}, v{T0+1}, 3, 1
v_lshl_or_b32 v{T0+3}, v{T0+4}, 2, v{T0+3}
v_mul_u32_u24 v{T0+3}, 3456, v{T0+3}
v_lshl_add_u32 v{WV+n}, v{T0+2}, 4, v{T0+3}
s_lshl_b32 s{52+n}, s{52+n}, 10
s_add_u32 s{52+n}, s{52+n}, {XB}
""")
    k("s_waitcnt lgkmcnt(0)")
    k.srd(4, 28, S * D * 2)
    k.srd(8, 30, D * 3 * D * 2)
    k.srd(12, 34, WS_BYTES)
    k("s_mov_b32 s23, 0\ns_mov_b32 s24, 0\ns_mov_b32 s57, 0\nv_mov_b32 v12, 0\nv_mov_b32 v13, 0")
    k.label("ploop")
    k(f"""
s_lshl_b32 s21, s25, 7
s_add_u32 s21, s21, s19
s_mul_i32 s22, s25, {64*3456}
s_add_u32 s22, s22, s20
s_add_u32 s50, s49, s23
""")
    for n in range(4):
        k(f"s_add_u32 m0, s50, {n*1024}\ns_add_u32 s51, s21, {n*8*1152}\nbuffer_load_dwordx4 v{XV0 + (n & 1)}, s[4:7], s51 offen lds")
    for n in range(5):
        k(f"s_add_u32 m0, s{52+n}, s23\ns_nop 0\nbuffer_load_dwordx4 v{WV+n}, s[8:11], s22 offen lds")
    k(f"""
s_add_u32 s25, s25, 1
s_cmp_ge_u32 s25, 9
s_cselect_b32 s25, 0, s25
s_add_u32 s23, s23, {SLOT}
s_cmp_ge_u32 s23, {NS*SLOT}
s_cselect_b32 s23, 0, s23
s_add_u32 s24, s24, 1
s_cmp_eq_u32 s24, 1
s_cbranch_scc1 {k.lab('ploop')}
s_waitcnt vmcnt(9)
s_barrier
s_cmp_eq_u32 s16, 4
s_cbranch_scc1 {k.lab('pside')}
""")
    k.label("pback")
    k(f"""
s_cmp_lt_u32 s24, 9
s_cbranch_scc1 {k.lab('ploop')}
s_waitcnt vmcnt(0)
s_barrier
s_cmp_lg_u32 s16, 4
s_cbranch_scc1 {k.lab('pfin')}
s_cmp_eq_u32 s57, 1
s_cbranch_scc1 {k.lab('pfin')}
""")
    poll(k, "pa", 58, 13, 10, 60)
    side = f"""
s_mov_b32 m0, {LST}
s_lshl_b32 s50, s17, 10
s_add_u32 s50, s50, {STOFF}
buffer_load_dwordx4 v1, s[12:15], s50 offen sc1 lds
s_mov_b32 m0, {LCS}
s_mul_i32 s50, s18, 576
s_add_u32 s50, s50, {CSOFF}
buffer_load_dwordx4 v1, s[12:15], s50 offen sc1 lds
"""
    k(side + "s_waitcnt vmcnt(0)")
    k.label("pfin")
    k(f"s_barrier\ns_branch {k.lab('ajoin')}")
    k.label("pside")
    k(f"""
s_cmp_eq_u32 s24, 5
s_cbranch_scc1 {k.lab('ps5')}
s_cmp_eq_u32 s24, 7
s_cbranch_scc1 {k.lab('ps7')}
s_cmp_eq_u32 s24, 8
s_cbranch_scc1 {k.lab('ps8')}
s_cmp_lg_u32 s24, 4
s_cbranch_scc1 {k.lab('pback')}
global_load_dwordx2 v[10:11], v12, s[38:39] sc1
s_branch {k.lab('pback')}
""")
    k.label("ps5")
    get_nonce(k, "gn", 10)
    k(f"""
v_mov_b32 v14, {LNO}
ds_write_b64 v14, v[10:11]
s_lshl_b32 s50, s17, 3
v_and_b32 v13, 7, v0
v_add_u32 v13, s50, v13
s_mul_i32 s50, s18, 144
s_add_u32 s51, s50, 143
s_lshr_b32 s50, s50, 6
s_lshr_b32 s51, s51, 6
v_and_b32 v14, 3, v0
v_add_u32 v14, s50, v14
v_min_u32 v14, s51, v14
v_add_u32 v14, 209, v14
v_cmp_gt_u32 vcc, 8, v0
s_mov_b32 s58, {FSOFF}
s_waitcnt lgkmcnt(0)
v_cndmask_b32 v13, v14, v13, vcc
v_mul_u32_u24 v13, {FLS}, v13
s_branch {k.lab('pback')}
""")
    k.label("ps7")
    k(f"buffer_load_dwordx2 v[10:11], v13, s[12:15], s58 offen sc1\ns_branch {k.lab('pback')}")
    k.label("ps8")
    k(flag_check(10))
    k(f"s_nop 0\ns_cbranch_vccnz {k.lab('pback')}\ns_mov_b32 s57, 1")
    k(side + f"s_branch {k.lab('pback')}")

    k.label("acons")
    k(f"""
s_cmp_lg_u32 s2, 0
s_cbranch_scc1 {k.lab('an')}
s_cmp_lg_u32 s16, 0
s_cbranch_scc1 {k.lab('an')}
s_memrealtime s[50:51]
s_waitcnt lgkmcnt(0)
s_lshr_b64 s[52:53], s[50:51], 29
s_xor_b32 s52, s52, 0x9e3779b9
s_lshl_b32 s50, s50, 2
s_or_b32 s50, s50, 0x80000000
v_mov_b32 v4, s50
v_mov_b32 v5, s52
v_mov_b32 v6, 0
s_mov_b64 exec, 1
global_store_dwordx2 v6, v[4:5], s[38:39] sc1
s_mov_b64 exec, -1
""")
    k.label("an")
    k.code_l2(k.name, k.lab("end"), 5, 5, 50)
    k("s_waitcnt lgkmcnt(0)")
    k.srd(12, 34, WS_BYTES)
    VO, VX = 20, 21
    k(f"""
s_lshr_b32 s19, s18, 2           ; which
s_and_b32 s20, s18, 3            ; hg
v_lshrrev_b32 v{T0}, 1, v{LT}
v_xor_b32 v{T0}, v{T0}, v{LG}
v_lshlrev_b32 v{T0}, 4, v{T0}
v_lshl_add_u32 v{T0}, v{LT}, 7, v{T0}
v_add_u32 v{XR}, s49, v{T0}
v_xor_b32 v{XR+1}, 64, v{XR}
v_lshrrev_b32 v{T0}, 5, v0
v_lshlrev_b32 v{T0}, 4, v{T0}
v_bfe_u32 v{T0+1}, v0, 2, 3
v_add_u32 v{T0}, v{T0}, v{T0+1}
v_mul_u32_u24 v{T0}, 288, v{T0}
v_add_u32 v{T0}, {XB}, v{T0}
v_bfe_u32 v{T0+1}, v0, 1, 1
v_mul_u32_u24 v{T0+1}, 40, v{T0+1}
v_and_b32 v{T0+2}, 1, v0
v_lshl_add_u32 v{T0+1}, v{T0+2}, 4, v{T0+1}
v_add_u32 v{WR}, v{T0}, v{T0+1}
v_and_b32 v{T0+2}, 3, v0
v_mul_u32_u24 v{T0+2}, 72, v{T0+2}
v_add3_u32 v{WR+1}, v{T0}, v{T0+2}, 32
s_mov_b32 s55, {KVHEAD}
s_mov_b32 s56, {KVBLK}
s_mov_b32 s60, {KV_K2}
s_mov_b32 s59, 512
s_cmp_eq_u32 s19, 0
s_cselect_b32 s55, {QHEAD}, s55          ; HS
s_cselect_b32 s56, {QBLK}, s56           ; BS
s_cselect_b32 s57, {QOFF}, {KVOFF}
s_cselect_b32 s60, 1024, s60             ; cx
s_cselect_b32 s62, {f2u(QSCALE):#x}, 1.0
s_cmp_eq_u32 s19, 2
s_cselect_b32 s58, {KV_V0}, 0            ; c0
s_cselect_b32 s59, {KV_V1-KV_V0}, s59    ; c1-c0
s_cselect_b32 s60, {KV_V2}, s60
s_cselect_b32 s61, 3, 2
s_mul_i32 s52, s48, s56
s_add_u32 s57, s57, s52
s_lshl_b32 s52, s20, 3
s_mul_i32 s52, s52, s55
s_add_u32 s57, s57, s52
s_add_u32 s60, s60, s57
s_add_u32 s57, s57, s58
v_lshrrev_b32 v{T0+2}, 1, v{LG}
v_mul_lo_u32 v{VO}, v{T0+2}, s55
v_lshlrev_b32 v{VX}, 2, v{VO}
v_and_b32 v{T0+3}, 1, v{LG}
v_mul_lo_u32 v{T0+4}, v{T0+3}, s59
v_lshlrev_b32 v{T0+5}, 4, v{LT}
v_add3_u32 v{VO}, v{VO}, v{T0+4}, v{T0+5}
v_and_b32 v{T0+4}, 31, v0
v_lshlrev_b32 v{T0+4}, s61, v{T0+4}
v_add_u32 v{VX}, v{VX}, v{T0+4}
v_mul_u32_u24 v18, 80, v{T0+2}
v_lshl_add_u32 v18, v{T0+3}, 5, v18
v_add_u32 v18, {LCS}, v18
v_mul_u32_u24 v19, 144, v{LG}
v_add_u32 v19, {LCS + 64}, v19
s_lshl_b32 s52, s3, 8
s_add_u32 s52, s52, {LST}
v_lshl_add_u32 v17, v{LT}, 3, s52
v_mov_b32 v16, 0
""")
    for i in range(36):
        k(f"v_pk_mul_f32 {v(ACC+2*i,2)}, {v(16,2)}, {v(16,2)} op_sel_hi:[0,0]")
    for i in range(2):
        k(f"v_mov_b32 v{XA+i}, v{XR+i}\nv_mov_b32 v{WA+i}, v{WR+i}")

    def reads(ks, buf):
        r = []
        for T in range(2):
            r.append(f"ds_read_b128 {v(XF[buf]+4*T,4)}, v{XA+ks} offset:{T*2048}")
        for t in range(9):
            for i in range(2):
                off = ks * 32 * 288 + i * 8 * 288 + (((t >> 1) * 72 + (t & 1) * 8) if t < 8 else 0)
                r.append(f"ds_read_b64_tr_b16 {v(WF[buf]+4*t+2*i,2)}, v{WA + (1 if t == 8 else 0)} offset:{off}")
        return r

    def half(buf, rd, extra):
        done = 0
        for t in range(9):
            need = 2 + 2 * (t + 1)
            k(f"s_waitcnt lgkmcnt({min(15, 20 - need + done)})")
            for T in range(2):
                d = v(ACC + (2*t+T)*4, 4)
                k(f"{M} {d}, {v(WF[buf]+4*t,4)}, {v(XF[buf]+4*T,4)}, {d}")
                n = 2 if (2*t + T) < 2 + 2*(RP-1) * 4 else 1
                for _ in range(n):
                    if rd:
                        k(rd.pop(0)); done += 1
        assert not rd
        for x in extra: k(x)
    k.mark(0)
    k("s_barrier")
    k.mark(1)
    for r in reads(0, 0):
        k(r)
    k("s_mov_b32 s24, 0\ns_mov_b32 s25, 0")
    k(".p2align 6")
    k.label("aloop")
    upd = [f"s_add_u32 s24, s24, {SLOT}\ns_cmp_ge_u32 s24, {NS*SLOT}\ns_cselect_b32 s24, 0, s24\ns_add_u32 s25, s25, 1"] + \
          [f"v_add_u32 v{XA+i}, s24, v{XR+i}\nv_add_u32 v{WA+i}, s24, v{WR+i}" for i in range(2)] + ["s_barrier"]
    half(0, reads(1, 1), upd)
    half(1, reads(0, 0), [])
    k(f"s_cmp_lt_u32 s25, 9\ns_cbranch_scc1 {k.lab('aloop')}")
    k.mark(2)
    RS, CS, PK, OUT = 188, 64, 192, 28
    for T in range(2):
        k(f"ds_read_b64 {v(RS+2*T,2)}, v17 offset:{T*128}")
    for t in range(9):
        if t < 8:
            k(f"ds_read_b128 {v(CS+4*t,4)}, v18 offset:{(t>>1)*144 + (t&1)*16}")
        else:
            k(f"ds_read_b128 {v(CS+4*t,4)}, v19")
    k("s_lshl_b32 s56, s55, 1\ns_waitcnt lgkmcnt(7)")
    for T in range(2):
        k(f"v_mul_f32 v{RS+2*T}, s62, v{RS+2*T}\nv_mul_f32 v{RS+2*T+1}, v{RS+2*T}, -v{RS+2*T+1}")
    def fix(acc, cs, T, dst, tmp):
        rs = v(RS+2*T, 2)
        return f"""
v_pk_mul_f32 {v(tmp,2)}, {v(cs,2)}, {rs} op_sel:[0,1] op_sel_hi:[1,1]
v_pk_mul_f32 {v(tmp+2,2)}, {v(cs+2,2)}, {rs} op_sel:[0,1] op_sel_hi:[1,1]
v_pk_fma_f32 {v(tmp,2)}, {v(acc,2)}, {rs}, {v(tmp,2)} op_sel:[0,0,0] op_sel_hi:[1,0,1]
v_pk_fma_f32 {v(tmp+2,2)}, {v(acc+2,2)}, {rs}, {v(tmp+2,2)} op_sel:[0,0,0] op_sel_hi:[1,0,1]
v_cvt_pk_bf16_f32 v{dst[0]}, v{tmp}, v{tmp+1}
v_cvt_pk_bf16_f32 v{dst[1]}, v{tmp+2}, v{tmp+3}
"""
    for j in range(4):
        if j == 1:
            k("s_waitcnt lgkmcnt(0)")
        for T in range(2):
            o = OUT + (2*j+T)*4
            for t in range(2):
                k(fix(ACC + (2*(2*j+t)+T)*4, CS + 4*(2*j+t), T, (o + 2*t, o + 2*t + 1), PK + 4*t))
            k(f"buffer_store_dwordx4 {v(o,4)}, v{VO}, s[12:15], s57 offen offset:{T*256} sc1")
        k("s_add_u32 s57, s57, s56")
    XO = 200
    for T in range(2):
        k(fix(ACC + (16+T)*4, CS + 32, T, (XO + 4*T, XO + 4*T + 2), PK + 4*T))
    for i in range(4):
        k(f"v_mov_b32 v{XO+2*i+1}, 0x3f80")
    k(f"""
v_permlane16_swap_b32 v{XO}, v{XO+4}
v_permlane16_swap_b32 v{XO+2}, v{XO+6}
s_cmp_eq_u32 s19, 2
s_cbranch_scc1 {k.lab('xv')}
""")
    for i in range(4):
        k(f"buffer_store_dword v{XO+2*i}, v{VX}, s[12:15], s60 offen sc1\ns_add_u32 s60, s60, s55")
    k(f"s_branch {k.lab('ajoin')}")
    k.label("xv")
    for i in range(4):
        k(f"buffer_store_dwordx2 {v(XO+2*i,2)}, v{VX}, s[12:15], s60 offen sc1\ns_add_u32 s60, s60, s55")
    k.label("ajoin")
    k.mark(3)
    k(f"""
v_mov_b32 v4, {LNO}
ds_read_b64 v[4:5], v4
s_lshl_b32 s50, s18, 4
s_add_u32 s50, s50, s17
s_mul_i32 s50, s50, {FLS}
s_add_u32 s50, s50, {FAOFF}
s_cmp_lg_u32 s16, 0
s_cselect_b32 s50, {OOB}, s50
s_waitcnt lgkmcnt(0)
v_readfirstlane_b32 s{NLO}, v4
v_readfirstlane_b32 s{NHI}, v5
s_waitcnt vmcnt(0)
s_barrier
""")
    set_flag(k, 50, 4)
    k(f"s_branch {k.lab('aend')}")

    k.label("aux")
    for i in range(4):
        k(f"v_mov_b32 v{ONE+i}, 0x3f803f80")
    k("s_waitcnt lgkmcnt(0)")
    k.srd(12, 34, WS_BYTES)
    k(f"""
s_sub_u32 s17, s2, 192
s_mov_b32 s63, {OOB}
s_cmp_lt_u32 s17, 27
s_cbranch_scc1 {k.lab('acs')}
s_mul_i32 s18, s16, 37
s_add_u32 s17, s17, s18
s_sub_u32 s17, s17, 27           ; job
s_cmp_ge_u32 s17, 209
s_cbranch_scc1 {k.lab('asyn')}
s_mul_i32 s63, s17, {FLS}
s_add_u32 s63, s63, {FSOFF}
s_cmp_lt_u32 s17, 128
s_cbranch_scc1 {k.lab('ast')}
""")
    k.srd(24, 32, D * D * 2)
    k(f"""
s_cmp_ge_u32 s17, 173
s_cbranch_scc1 {k.lab('awb')}
s_sub_u32 s18, s17, 128
s_mov_b32 s50, 1152
s_mov_b32 s54, 36864
s_mov_b32 s55, 1024
s_mov_b32 s52, {36*1152}
s_mov_b32 s56, 8
s_mov_b32 s57, 20
s_mov_b32 s58, 4
s_mul_i32 s19, s18, 7282
s_lshr_b32 s19, s19, 16
s_mul_i32 s20, s19, 9
s_sub_u32 s20, s18, s20
s_mul_i32 s51, s19, {4*36*1152}
s_mul_i32 s53, s19, {4*36864}
s_add_u32 s53, s53, {WOOFF}
s_lshl_b32 s21, s20, 12
s_add_u32 s53, s53, s21
s_cmp_ge_u32 s18, 36
s_cselect_b32 s51, {16*1152}, s51
s_cselect_b32 s52, {288*1152}, s52
s_cselect_b32 s56, 72, s56
s_cselect_b32 s57, 144, s57
s_cselect_b32 s58, 36, s58
s_lshl_b32 s21, s20, 7
s_add_u32 s51, s51, s21
s_lshl_b32 s21, s16, 11
""")
    prep_addr(k, 2, 3, 4, 12, 21)
    prep_loads(k, range(4), 28, 2)
    prep_process(k, 28, 92, 3, 4)
    k(f"s_branch {k.lab('asyn')}")
    k.label("awb")
    k(f"""
s_sub_u32 s17, s17, 173
s_lshr_b32 s18, s17, 1
s_and_b32 s19, s17, 1
s_mul_i32 s20, s18, 36
s_mul_i32 s21, s19, 20
s_add_u32 s20, s20, s21
v_add_u32 v2, s20, v{LT}
s_sub_u32 s20, s17, 32
s_mul_i32 s20, s20, 144
s_add_u32 s20, s20, 16
v_lshrrev_b32 v3, 2, v{LT}
v_mul_u32_u24 v3, 36, v3
v_and_b32 v4, 3, v{LT}
v_add3_u32 v3, v3, v4, s20
s_cmp_ge_u32 s17, 32
s_cselect_b64 vcc, -1, 0
s_mov_b32 s22, 1
v_cndmask_b32 v2, v2, v3, vcc
s_branch {k.lab('arow')}
""")
    k.label("ast")
    k.srd(24, 28, S * D * 2)
    k(f"s_lshl_b32 s20, s17, 4\nv_add_u32 v2, s20, v{LT}\ns_mov_b32 s22, 0")
    k.label("arow")
    k(f"v_mul_u32_u24 v2, 1152, v2\nv_lshl_add_u32 v2, v{LG}, 4, v2")
    for n in range(18):
        k(f"buffer_load_dwordx4 {v(28+4*n,4)}, v2, s[24:27], 0 offen offset:{n*64}")
    for n in range(18):
        k(f"s_waitcnt vmcnt({17-n})")
        k(f"{M} v[4:7], {v(ONE,4)}, {v(28+4*n,4)}, {'0' if n == 0 else 'v[4:7]'}")
        k(f"{M} v[8:11], {v(28+4*n,4)}, {v(28+4*n,4)}, {'0' if n == 0 else 'v[8:11]'}")
    k(f"""
s_mov_b32 s50, {f2u(1.0/D):#x}
v_and_b32 v12, 1, v0
v_cmp_eq_u32 s[52:53], 1, v12
v_and_b32 v12, 2, v0
v_cmp_eq_u32 s[54:55], 2, v12
v_lshrrev_b32 v12, 2, v{LT}
v_cmp_eq_u32 s[56:57], v12, v{LG}
s_cmp_eq_u32 s22, 0
s_nop 0
v_mul_f32 v5, s50, v4
s_cbranch_scc1 {k.lab('ast2')}
s_lshl_b32 s51, s17, 5
s_add_u32 s51, s51, {WBAROFF}
v_lshlrev_b32 v2, 1, v{LT}
v_cvt_pk_bf16_f32 v6, v5, v5
v_and_b32 v7, 0xffff0000, v6
v_sub_f32 v7, v5, v7
v_cvt_pk_bf16_f32 v7, v7, v7
s_mov_b64 exec, 0xffff
buffer_store_short v6, v2, s[12:15], s51 offen sc1
buffer_store_short v7, v2, s[12:15], s51 offen offset:1152 sc1
s_mov_b64 exec, -1
s_branch {k.lab('asyn')}
""")
    k.label("ast2")
    k(f"""
v_cndmask_b32 v8, v8, v9, s[52:53]
v_cndmask_b32 v10, v10, v11, s[52:53]
v_cndmask_b32 v8, v8, v10, s[54:55]
v_mul_f32 v9, v5, v5
v_fma_f32 v8, v8, s50, -v9
v_max_f32 v8, 0, v8
v_add_f32 v8, {f2u(1e-5):#x}, v8
v_rsq_f32 v4, v8
s_lshl_b32 s51, s17, 7
s_add_u32 s51, s51, {STOFF}
v_lshlrev_b32 v2, 3, v{LT}
s_mov_b64 exec, s[56:57]
buffer_store_dwordx2 v[4:5], v2, s[12:15], s51 offen sc1
s_mov_b64 exec, -1
s_branch {k.lab('asyn')}
""")
    k.label("acs")
    k.srd(24, 30, D * 3 * D * 2)
    k(f"""
v_lshrrev_b32 v2, 3, v0
v_mul_u32_u24 v2, 3456, v2
v_and_b32 v3, 7, v0
v_lshl_add_u32 v2, v3, 4, v2
s_mul_i32 s18, s16, {72*3456}
s_lshl_b32 s19, s17, 7
s_add_u32 s18, s18, s19
""")
    for n in range(9):
        k(f"buffer_load_dwordx4 {v(28+4*n,4)}, v2, s[24:27], s18 offen\ns_add_u32 s18, s18, {8*3456}")
    for n in range(9):
        k(f"s_waitcnt vmcnt({8-n})")
        for d in range(4):
            if n == 0:
                k(f"v_lshlrev_b32 v{4+2*d}, 16, v{28+d}\nv_and_b32 v{5+2*d}, 0xffff0000, v{28+d}")
            else:
                k(f"v_lshlrev_b32 v12, 16, v{28+4*n+d}\nv_and_b32 v13, 0xffff0000, v{28+4*n+d}\nv_pk_add_f32 {v(4+2*d,2)}, {v(4+2*d,2)}, v[12:13]")
    k(f"""
s_lshl_b32 s18, s16, 11
v_lshl_add_u32 v2, v0, 5, s18
ds_write_b128 v2, v[4:7]
ds_write_b128 v2, v[8:11] offset:16
""")
    k.label("asyn")
    k(f"s_cmp_lg_u32 s16, 7\ns_cbranch_scc1 {k.lab('asy2')}\nv_mov_b32 v14, 0\nv_mov_b32 v16, 0\ns_nop 0")
    get_nonce(k, "ga", 14)
    k(f"v_mov_b32 v16, {LNO}\nds_write_b64 v16, v[14:15]")
    k.label("asy2")
    k(f"""
v_mov_b32 v4, {LNO}
s_waitcnt lgkmcnt(0)
s_barrier
ds_read_b64 v[4:5], v4
s_cmp_ge_u32 s2, {192 + 27}
s_cbranch_scc1 {k.lab('asy3')}
s_cmp_lg_u32 s16, 0
s_cbranch_scc1 {k.lab('asy3')}
v_lshlrev_b32 v2, 2, v0
""")
    for b in range(4):
        for i in range(8):
            k(f"ds_read2st64_b32 {v(28+16*(b&1)+2*i,2)}, v2 offset0:{16*b+2*i} offset1:{16*b+2*i+1}")
        k("s_waitcnt lgkmcnt(0)")
        for i in range(8):
            if b == 0 and i == 0:
                k("v_mov_b32 v8, v28\nv_mov_b32 v9, v29")
            else:
                k(f"v_pk_add_f32 v[8:9], v[8:9], {v(28+16*(b&1)+2*i,2)}")
    k(f"""
v_add_f32 v8, v8, v9
s_lshl_b32 s18, s17, 8
s_add_u32 s18, s18, {CSOFF}
buffer_store_dword v8, v2, s[12:15], s18 offen sc1
s_add_u32 s63, s17, 209
s_mul_i32 s63, s63, {FLS}
s_add_u32 s63, s63, {FSOFF}
""")
    k.label("asy3")
    k(f"""
s_waitcnt lgkmcnt(0)
v_readfirstlane_b32 s{NLO}, v4
v_readfirstlane_b32 s{NHI}, v5
s_waitcnt vmcnt(0)
""")
    set_flag(k, 63, 4)
    k("s_barrier")
    k.label("aend")
```

```python
import sys
from common import *
from km import gen_km

def build(diag=False, aslist=False, **opt):
    k = gen_km(diag, **opt.get('km', {}))
    t = """; pre-LN transformer block (S=2048, D=576, H=32, F=4608) as one persistent kernel, one 8-wave workgroup per CU.
"""
    t += k.launch() if aslist else f"; @launch grid=({k.grid},1,1) block=({k.block},1,1) lds={k.lds}\n"
    t += '.amdgcn_target "amdgcn-amd-amdhsa--gfx950"\n.text\n'
    t += k.text()
    return t

if __name__ == "__main__":
    out = sys.argv[1]
    diag = "diag" in sys.argv[2:]
    opt = {}
    REAL[0] = "real" in sys.argv[2:]
    for a_ in sys.argv[2:]:
        if a_.startswith("probe:"):
            PROBE[0] = eval(a_[6:])
        elif "=" in a_:
            key, val = a_.split("=", 1)
            kn, pn = key.split(".")
            try: val = eval(val, {"dict": dict})
            except Exception: pass
            opt.setdefault(kn, {})[pn] = val
    open(out, "w").write(build(diag, "final" not in sys.argv[2:], **opt))
```

```python
import math, struct

S, D, H, DH, F = 2048, 576, 32, 18, 4608

KVBLK = 2432
KV_K0, KV_K1, KV_V0, KV_K2, KV_V1, KV_V2 = 0, 512, 1024, 1536, 1664, 2176
KVHEAD = 64 * KVBLK
QBLK = 1152
QHEAD = 64 * QBLK
KVOFF = 0
QOFF = 32 * KVHEAD
OOFF = 0x800000
HCOFF = 0xB00000
MUXOFF = 0xE00000
MUHOFF = 0xE02000
SSQOFF = 0xE04000
WBAROFF = 0xE40000
WOOFF = 0xF00000
WGUOFF = 0x1000000
WDOFF = 0x1C00000
HIDOFF = 0x2200000
PARTOFF = 0x3400000
EXOFF = 0x3600000
FLS = 128
FBOFF = 0x3000000 + 0x400000
FCOFF = FBOFF + 2048 * FLS
FDOFF = FCOFF + 2048 * FLS
FDL = 2048 * FLS
FXOFF = FDOFF + 3 * FDL
FPOFF = FXOFF + 2048 * FLS
FAOFF = FPOFF + 1024 * FLS
FSOFF = FAOFF + 192 * FLS
FLEND = FSOFF + 256 * FLS
STOFF = 0xE50000
CSOFF = 0xE58000
STAMPOFF = 0x8000000
WS_BYTES = 0x10000000
CH = S * 16
OOB = 0x40000000

ARG_X, ARG_WQKV, ARG_WO, ARG_BX, ARG_WG, ARG_WU, ARG_WD, ARG_OUT, ARG_DBG, ARG_WS = [8 * i for i in range(10)]


def f2u(x):
    return struct.unpack("<I", struct.pack("<f", x))[0]


def v(i, n=1):
    return f"v{i}" if n == 1 else f"v[{i}:{i+n-1}]"


def a(i, n=1):
    return f"a{i}" if n == 1 else f"a[{i}:{i+n-1}]"


def s(i, n=1):
    return f"s{i}" if n == 1 else f"s[{i}:{i+n-1}]"


REAL = [False]
DBG = [0]
PROBE = [None]

class Kern:
    def __init__(self, name, grid, block, lds, vgpr, accum=None, sgpr=96, idx=0, diag=False, nm=7, mb=72):
        self.nm, self.mb = nm, mb
        if diag: sgpr = 102
        self.name, self.grid, self.block, self.lds = name, grid, block, lds
        self.vgpr, self.accum, self.sgpr = vgpr, accum, sgpr
        self.L = []
        self.idx, self.diag = idx, diag

    def __call__(self, txt):
        for ln in txt.strip("\n").split("\n"):
            ln = ln.strip()
            if not ln:
                continue
            if ln.endswith(":") or ln.startswith("."):
                self.L.append(ln)
            else:
                self.L.append("  " + ln)

    def lab(self, l):
        return f"L{self.name[:2]}_{l}"

    def label(self, l):
        self.L.append(self.lab(l) + ":")

    def srd(self, d, p, nbytes):
        self(f"s_mov_b32 s{d}, s{p}\ns_mov_b32 s{d+1}, s{p+1}\ns_mov_b32 s{d+2}, {nbytes:#x}\ns_mov_b32 s{d+3}, 0x20000")

    NM = 14
    MB = 64
    def stamp_start(self):
        if self.diag:
            self("s_memrealtime s[96:97]\ns_memtime s[92:93]")
            for i in range(self.nm):
                self(f"s_mov_b64 s[{self.mb+2*i}:{self.mb+1+2*i}], 0")

    def mark(self, i):
        if self.diag:
            assert i < self.nm - 1
            self(f"{'s_memrealtime' if REAL[0] else 's_memtime'} s[{self.mb+2*i}:{self.mb+1+2*i}]")

    def stamp_end(self, ws_srd):
        if self.diag and PROBE[0]:
            a_, b_ = PROBE[0]
            L = self.lab("prb")
            self(f"s_waitcnt vmcnt(0) lgkmcnt(0)\ns_cmp_lg_u32 s2, 100\ns_cbranch_scc1 {L}x\ns_cmp_lg_u32 s95, {0 if self.idx == 0 else 4}\ns_cbranch_scc1 {L}x")
            if self.idx == 0:
                self(f"s_memrealtime s[98:99]\ns_waitcnt lgkmcnt(0)\nv_mov_b32 v0, 0\nv_mov_b32 v4, s96\nv_mov_b32 v5, s98\ns_mov_b32 s94, {STAMPOFF}\nbuffer_store_dwordx2 v[4:5], v0, s[{ws_srd}:{ws_srd+3}], s94 offen\ns_waitcnt vmcnt(0)")
            else:
                self(f"v_mov_b32 v0, 0\ns_mov_b32 s94, {STAMPOFF}\nbuffer_load_dwordx2 v[4:5], v0, s[{ws_srd}:{ws_srd+3}], s94 offen\ns_memrealtime s[98:99]\ns_waitcnt vmcnt(0) lgkmcnt(0)\nv_readfirstlane_b32 s92, v4\nv_readfirstlane_b32 s93, v5")
                nm = lambda x: {"a0": "s92", "a1": "s93", "m0": "s96", "m1": "s98"}.get(x) or f"s{self.mb+2*x}"
                self(f"s_nop 3\ns_sub_u32 s94, {nm(b_)}, {nm(a_)}\ns_lshl_b32 s94, s94, 3\ns_min_u32 s94, s94, 200000\n{L}:\ns_memrealtime s[100:101]\ns_waitcnt lgkmcnt(0)\ns_sub_u32 s100, s100, s98\ns_cmp_lt_u32 s100, s94\ns_cbranch_scc1 {L}")
            self(f"{L}x:")
            return
        if self.diag:
            e = self.mb + 2 * (self.nm - 1)
            self(f"""
{'s_memrealtime' if REAL[0] else 's_memtime'} s[{e}:{e+1}]
s_waitcnt vmcnt(0) lgkmcnt(0)
s_memrealtime s[98:99]
s_memtime s[100:101]
s_mov_b64 exec, 1
s_waitcnt lgkmcnt(0)
s_lshl_b32 s94, s2, 4
s_add_u32 s94, s94, s95
s_lshl_b32 s94, s94, 7
s_add_u32 s94, s94, {STAMPOFF + self.idx * 0x100000}
s_sub_u32 s100, s100, s92
v_mov_b32 v0, 0
v_mov_b32 v4, s96
v_mov_b32 v5, s98
v_mov_b32 v6, s100
v_mov_b32 v7, 1
v_mov_b32 v8, s95
v_mov_b32 v9, {self.nm}
""")
            if DBG[0]:
                self(f"s_load_dwordx2 s[0:1], s[0:1], {ARG_DBG}\ns_waitcnt lgkmcnt(0)")
                if self.idx == 1 and DBG[0] == 2:
                    self("s_sub_u32 s0, s0, 512\ns_subb_u32 s1, s1, 0")
                sl = [(0, "s96", True), (1, "s98", False)] if self.idx == 0 else \
                     [(2, "s96", True)] + [(3 + j, f"s{self.mb+2*i}", False) for j, i in enumerate((1, 2, 3, 4, 5, 6, 7, 8, 9, 10, 11, 12))] + [(15, "s98", False)]
                for (d, r, neg) in sl:
                    self(f"v_mov_b32 v10, {r}")
                    if neg: self("v_not_b32 v10, v10")
                    self(f"global_atomic_umax v0, v10, s[0:1] offset:{4*d}")
            for i in range(14):
                if i < self.nm:
                    self(f"s_sub_u32 s{self.mb+2*i}, s{self.mb+2*i}, {'s96' if REAL[0] else 's92'}\nv_mov_b32 v{10+i}, s{self.mb+2*i}")
                else:
                    self(f"v_mov_b32 v{10+i}, 0")
            for i in range(5):
                self(f"buffer_store_dwordx4 v[{4+4*i}:{7+4*i}], v0, s[{ws_srd}:{ws_srd+3}], s94 offen offset:{16*i}")
            self("s_waitcnt vmcnt(0)")

    def code_l2(self, lab0, lab1, nmax, vt, sp, lane="v0"):
        u = f"Lpc{self.name[:2]}{len(self.L)}"
        self(f"""
s_getpc_b64 s[{sp}:{sp+1}]
{u}:
s_add_u32 s{sp}, s{sp}, {lab0}-{u}
s_addc_u32 s{sp+1}, s{sp+1}, ({lab0}-{u})>>32
v_lshlrev_b32 v{vt}, 7, {lane}
""")
        for i in range(nmax):
            self(f"v_min_u32 v{vt+1}, {lab1}-{lab0}-4, v{vt}\nglobal_load_dword v{vt+2}, v{vt+1}, s[{sp}:{sp+1}]")
            if i + 1 < nmax:
                self(f"v_add_u32 v{vt}, 8192, v{vt}")

    def code_l2_one(self, lab0, lab1, sidx, vt, sp):
        u = f"Lpc{self.name[:2]}{len(self.L)}"
        self(f"""
s_getpc_b64 s[{sp}:{sp+1}]
{u}:
s_add_u32 s{sp}, s{sp}, {lab0}-{u}
s_addc_u32 s{sp+1}, s{sp+1}, ({lab0}-{u})>>32
s_lshl_b32 s{sp+2}, s{sidx}, 13
v_lshl_add_u32 v{vt}, v0, 7, s{sp+2}
v_min_u32 v{vt}, {lab1}-{lab0}-4, v{vt}
global_load_dword v{vt+1}, v{vt}, s[{sp}:{sp+1}]
""")

    def kd_touch(self, names, vt, sp):
        self(f"v_mov_b32 v{vt}, 0")
        for n in names:
            self(f"""
s_getpc_b64 s[{sp}:{sp+1}]
s_add_u32 s{sp}, s{sp}, Ldesc_{n}@rel32@lo+4
s_addc_u32 s{sp+1}, s{sp+1}, Ldesc_{n}@rel32@hi+12
global_load_dword v{vt+1}, v{vt}, s[{sp}:{sp+1}]
""")

    def text(self):
        accum = self.accum if self.accum is not None else min(256, (self.vgpr + 3) // 4 * 4)
        t = f".globl {self.name}\n.p2align 8\n.type {self.name},@function\n{self.name}:\n"
        t += "\n".join(self.L) + "\n"
        t += f""".section .rodata,"a"
.p2align 6
Ldesc_{self.name}:
.amdhsa_kernel {self.name}
  .amdhsa_next_free_vgpr {self.vgpr}
  .amdhsa_next_free_sgpr {self.sgpr}
  .amdhsa_accum_offset {accum}
  .amdhsa_group_segment_fixed_size 0
  .amdhsa_kernarg_size 80
  .amdhsa_user_sgpr_count 2
  .amdhsa_user_sgpr_kernarg_segment_ptr 1
  .amdhsa_system_sgpr_workgroup_id_x 1
.end_amdhsa_kernel
.text
"""
        return t

    def launch(self):
        return f"; @launch kernel={self.name} grid=({self.grid},1,1) block=({self.block},1,1) lds={self.lds}\n"


def interleave(main, fill, per=1, start=0):
    out = []
    fi = 0
    for i, m in enumerate(main):
        out.append(m)
        if i >= start:
            for _ in range(per):
                if fi < len(fill):
                    out.append(fill[fi]); fi += 1
    out.extend(fill[fi:])
    return out


POLLMAX = 400000
SLEEP = [2]
FULL = [0xffff]
PL = ['sc1']
PS = ['sc1']
NLO, NHI = 0, 1

def set_flag(k, soff, vt, level="1"):
    k(flag_txt([soff], vt, level))

def flag_txt(soffs, vt, level="1"):
    t = f"v_mov_b32 v{vt}, {level}\nv_mov_b32 v{vt+1}, s{NHI}\nv_add_u32 v{vt}, s{NLO}, v{vt}\nv_lshlrev_b32 v{vt+2}, 3, v0\ns_mov_b64 exec, {FULL[0]}\n"
    for so in soffs:
        t += f"buffer_store_dwordx2 v[{vt}:{vt+1}], v{vt+2}, s[12:15], s{so} offen {PS[0]}\n"
    return t + "s_mov_b64 exec, -1"

def flag_check(vt, need="1"):
    return (f"v_subrev_u32 v{vt}, s{NLO}, v{vt}\nv_xor_b32 v{vt+1}, s{NHI}, v{vt+1}\nv_subrev_u32 v{vt}, {need}, v{vt}\n"
            f"v_and_or_b32 v{vt}, v{vt}, -4, v{vt+1}\nv_cmp_ne_u32 vcc, 0, v{vt}")

def poll(k, name, soff, voff, vt, cnt_s, sleep=None, need="1"):
    sleep = sleep or SLEEP[0]
    k(f"s_mov_b32 s{cnt_s}, 0")
    k.label(name)
    k(f"""
buffer_load_dwordx2 v[{vt}:{vt+1}], v{voff}, s[12:15], s{soff} offen {PL[0]}
s_add_u32 s{cnt_s}, s{cnt_s}, 1
s_waitcnt vmcnt(0)
{flag_check(vt, need)}
s_cmp_ge_u32 s{cnt_s}, {POLLMAX}
s_cbranch_scc1 {k.lab(name + 'x')}
s_cbranch_vccz {k.lab(name + 'x')}
s_sleep {sleep}
s_branch {k.lab(name)}
""")
    k.label(name + "x")
```

```python
from common import *
from prep import *
from pa import phase_a
KNAME = 'sequential_preLN__softmax_full_mha__glu_gated_bilinear__prompt_kernel'

SCR = KVHEAD
UB = 36864
CB = 12288
HALF = 32 * KVBLK
OST = 163840 - UB
MRG = OST - 25600
MUL = OST - 1024
O2OFF = OOFF + 64 * CH
M16 = "v_mfma_f32_32x32x16_bf16"
M8 = "v_mfma_f32_32x32x8_bf16"
M = "v_mfma_f32_16x16x32_bf16"


def gen_km(diag=False, U=4, upto=9, ld="sc1", dbg="", NO=10, ST=(4, 5, 8, 9), NPRE=8, NF1=16, SL=2, one=True, CR=6, dopt={}, eopt={}, aopt={}, full=0xffff, wsc=True, pl='sc1', ps='sc1', warm=True, b0=False):
    assert ST[3] < NO and ST[0] > 2
    k = Kern(KNAME, 256, 512, 163840, vgpr=256, idx=1, diag=diag, nm=14, mb=64)
    SLEEP[0] = SL
    FULL[0] = full
    PL[0] = pl
    PS[0] = ps
    mk = k.mark
    if dbg == "a":
        late = lambda i: mk(i + 4) if i < 3 else None
    elif dbg == "c":
        late = lambda i: mk(i) if 2 <= i <= 8 else None
    else:
        late = mk
    k.stamp_start()
    AK1, AK2, AV = 2, 3, 4
    BK1 = 8
    SS = [16, 32]
    OO = [48, 96]
    P, K1, K2, V0, V1 = 64, 72, 76, 80, 84
    Q1 = [88, 112]
    Q2 = [92, 116]
    T0 = 118
    DAT, FR, PVS, PVW, PVR = 128, 192, 224, 225, 226
    WV = 14
    k(f"""
s_cmp_ge_u32 s2, 256
s_cbranch_scc1 {k.lab('end')}
s_load_dwordx4 s[28:31], s[0:1], {ARG_X}
s_load_dwordx2 s[32:33], s[0:1], {ARG_WO}
s_load_dwordx2 s[34:35], s[0:1], {ARG_WS}
s_load_dwordx2 s[38:39], s[0:1], {ARG_DBG}
s_load_dwordx8 s[40:47], s[0:1], {ARG_WG}
v_lshrrev_b32 v1, 6, v0
v_and_b32 v0, 63, v0
v_readfirstlane_b32 s16, v1
v_lshlrev_b32 v1, 4, v0
s_mov_b32 s95, s16
""")
    if dbg != "a":
        k.mark = lambda i: None
    if dbg in ("a0", "a1"):
        aopt = dict(aopt, tr=dbg); late = lambda i: None
    phase_a(k, **aopt)
    k.mark = late
    k(f"""
s_and_b32 s17, s2, 7
s_lshl_b32 s17, s17, 2
s_bfe_u32 s18, s2, 0x20003
s_add_u32 s17, s17, s18          ; head
s_lshr_b32 s18, s2, 5
s_lshl_b32 s18, s18, 3
s_and_b32 s19, s16, 3
s_lshl_b32 s19, s19, 1
s_add_u32 s18, s18, s19
s_lshr_b32 s33, s16, 2           ; kh
s_mul_i32 s63, s17, {QHEAD}
s_mul_i32 s22, s18, {QBLK}
s_add_u32 s63, s63, s22
s_add_u32 s63, s63, {QOFF}
s_mul_i32 s22, s17, {KVHEAD}
s_lshl_b32 s23, s16, 10
v_and_b32 v{T0}, 31, v0
v_lshlrev_b32 v{T0+8}, 2, v{T0}
""")
    def piece(off, base="s23"):
        return f"s_add_u32 m0, {base}, {off}\ns_add_u32 s24, s22, m0\nbuffer_load_dwordx4 v1, s[12:15], s24 offen {ld} lds"
    assert (2 * U + 1) * KVBLK <= 24576
    k(f"""
v_and_b32 v{T0+1}, 0x13, v{T0}
v_and_b32 v{T0+2}, 4, v{T0}
v_lshl_or_b32 v{T0+1}, v{T0+2}, 1, v{T0+1}
v_bfe_u32 v{T0+2}, v{T0}, 3, 1
v_lshl_or_b32 v{T0+1}, v{T0+2}, 2, v{T0+1}
v_lshrrev_b32 v{T0+2}, 5, v0
v_lshlrev_b32 v{T0+3}, 9, v{T0+2}
v_lshl_add_u32 v{BK1}, v{T0+1}, 4, v{T0+3}
v_lshlrev_b32 v{BK1+1}, 2, v{T0+1}
v_add_u32 v{BK1+1}, {KV_K2}, v{BK1+1}
v_bfe_u32 v{T0+3}, v0, 2, 2
v_lshl_add_u32 v{T0+3}, v{T0+2}, 3, v{T0+3}
v_and_b32 v{T0+4}, 1, v0
v_mul_u32_u24 v{T0+4}, {KV_V1-KV_V0}, v{T0+4}
v_bfe_u32 v{T0+5}, v0, 1, 1
v_lshl_add_u32 v{T0+4}, v{T0+5}, 3, v{T0+4}
v_add_u32 v{T0+4}, {KV_V0}, v{T0+4}
v_and_b32 v{T0+5}, 16, v0
v_cmp_eq_u32 vcc, 16, v{T0+5}
""")
    for m in range(2):
        for i in range(2):
            k(f"""
v_add_u32 v{T0+5}, {16*m+4*i}, v{T0+3}
v_lshl_add_u32 v{T0+6}, v{T0+5}, 4, v{T0+4}
v_lshlrev_b32 v{T0+5}, 3, v{T0+5}
v_add_u32 v{T0+5}, {KV_V2}, v{T0+5}
v_cndmask_b32 v{BK1+2+2*m+i}, v{T0+6}, v{T0+5}, vcc
""")
    k(f"""
v_mov_b32 v{K2+1}, 0x3f803f80
v_cmp_gt_u32 s[30:31], 32, v0
s_mul_i32 s32, s33, {NO*U*KVBLK}
s_mul_i32 s3, s33, {(64//U - 2*NO) & 0xffffffff}
s_add_u32 s3, s3, {NO}
s_mov_b32 s48, 1
s_mov_b32 s21, 2
s_mov_b32 s36, s46
s_mov_b32 s37, s47
s_and_b32 s38, s2, 7
s_lshl_b32 s38, s38, 3
s_bfe_u32 s39, s2, 0x30003
s_add_u32 s38, s38, s39
s_lshr_b32 s39, s2, 6
s_xor_b32 s11, s16, 4
s_mul_i32 s49, s39, 9
s_lshl_b32 s19, s11, 1
s_add_u32 s49, s49, s19
s_lshl_b32 s62, s49, 10
s_add_u32 s62, s62, {WOOFF}
s_bfe_u32 s8, s2, 0x10002
s_lshl_b32 s8, s8, 2
s_bfe_u32 s9, s2, 0x20003
s_add_u32 s8, s8, s9
s_and_b32 s9, s2, 3
s_lshl_b32 s9, s9, 3
s_lshr_b32 s10, s2, 5
s_add_u32 s9, s9, s10
s_mul_i32 s10, s9, {9*UB}
s_add_u32 s10, s10, {WGUOFF}
s_lshl_b32 s61, s2, 2
s_add_u32 s61, s61, s16
s_mov_b32 s7, 0x20000
s_mov_b32 s56, 8
s_mov_b32 s57, 16
s_mov_b32 s58, 4
s_mov_b32 s6, {D*F*2}
s_cmp_ge_u32 s61, 648
s_cbranch_scc1 {k.lab('p1')}
s_cmp_ge_u32 s61, 324
s_cselect_b32 s4, s42, s40
s_cselect_b32 s5, s43, s41
s_cselect_b32 s60, 324, 0
s_cselect_b32 s53, 1024, 0
s_sub_u32 s60, s61, s60
s_mul_i32 s19, s60, 3641
s_lshr_b32 s19, s19, 16          ; ks
s_mul_i32 s59, s19, 18
s_sub_u32 s60, s60, s59          ; cg
s_mov_b32 s50, {F*2}
s_mul_i32 s51, s19, {32*F*2}
s_lshl_b32 s59, s60, 9
s_add_u32 s51, s51, s59
s_mov_b32 s52, 128
s_mul_i32 s59, s60, {16*36864}
s_add_u32 s53, s53, s59
s_lshl_b32 s59, s19, 11
s_add_u32 s53, s53, s59
s_add_u32 s53, s53, {WGUOFF}
s_mov_b32 s54, {4*36864}
s_mov_b32 s55, 36864
""")
    for e in range(8):
        k(f"s_add_u32 s{40+e}, s51, {(e//2)*128 + (e&1)*16*F*2}")
    k(f"s_branch {k.lab('pgo')}")
    k.label("p1")
    k(f"""
s_mov_b32 s50, 1152
s_mov_b32 s54, 36864
s_mov_b32 s55, 1024
s_mov_b32 s4, s44
s_mov_b32 s5, s45
s_mov_b32 s52, {32*1152}
s_sub_u32 s60, s61, 648
s_mul_i32 s19, s60, 7282
s_lshr_b32 s19, s19, 16          ; kg = r/9
s_mul_i32 s59, s19, 9
s_sub_u32 s60, s60, s59          ; cs
s_mul_i32 s53, s19, {4*36864}
s_add_u32 s53, s53, {WDOFF}
s_lshl_b32 s59, s60, 12
s_add_u32 s53, s53, s59
; k-slot order: position pos (16 rows) of quarter kq holds unit 72kq + 9*((pos%24)/3) + 3*(pos/24) + pos%3
s_lshl_b32 s51, s60, 7
s_mul_i32 s59, s19, 7282
s_lshr_b32 s59, s59, 16
s_mul_i32 s60, s59, 9
s_sub_u32 s19, s19, s60          ; kg%9
s_mul_i32 s59, s59, {72*16*1152}
s_add_u32 s51, s51, s59
s_mul_i32 s59, s19, 86
s_lshr_b32 s59, s59, 8           ; gamma = (kg%9)/3
s_mul_i32 s60, s59, 3
s_sub_u32 s19, s19, s60
s_lshl_b32 s19, s19, 3           ; pos%24 of the first half block
s_mul_i32 s60, s60, {16*1152}
s_add_u32 s51, s51, s60
""")
    for e in range(8):
        k(f"""
s_add_u32 s59, s19, {e}
s_mul_i32 s60, s59, 86
s_lshr_b32 s60, s60, 8
s_mul_i32 s60, s60, 6
s_add_u32 s59, s59, s60
s_mul_i32 s59, s59, {16*1152}
s_add_u32 s{40+e}, s51, s59
""")
    k.label("pgo")
    k(f"s_lshl_b32 s19, s16, 11\ns_add_u32 s19, s19, {SCR}")
    prep_addr(k, PVS, PVW, PVR, PVR + 1, 19)
    if warm:
        k(f"""
s_lshl_b32 s59, s2, 3
s_add_u32 s59, s59, s16
s_lshl_b32 s59, s59, 10
s_add_u32 s59, s59, {FBOFF}
s_cmp_ge_u32 s59, {FAOFF}
s_cselect_b32 s26, {OOB}, s59
v_mov_b32 v16, 0
v_mov_b32 v17, 0
v_mov_b32 v18, 0
v_mov_b32 v19, 0
""")
    k(f"""
s_cmp_eq_u32 s16, 5
s_cbranch_scc1 {k.lab('q5')}
s_cmp_lg_u32 s16, 4
s_cbranch_scc1 {k.lab('pqx')}
s_lshr_b32 s59, s17, 3
s_lshl_b32 s59, s59, 4           ; hg*16
v_and_b32 v{T0}, 15, v0
v_bfe_u32 v{T0+1}, v0, 4, 1
v_lshl_add_u32 v{T0}, v{T0+1}, 6, v{T0}
v_add_u32 v{T0}, 64, v{T0}
s_lshr_b32 s60, s2, 5
s_lshl_b32 s60, s60, 1
v_and_b32 v{T0+1}, 1, v0
v_add_u32 v{T0+1}, s60, v{T0+1}
s_mul_i32 s59, s59, {FLS}
s_add_u32 s59, s59, {FAOFF}
v_cndmask_b32 v{T0}, v{T0+1}, v{T0}, s[30:31]
s_branch {k.lab('q6')}
""")
    k.label("q5")
    k(f"""
; lanes 0..14: Wo jobs 128 + (l/3)*9 + cs0 + l%3 ; 15..50: wbar jobs ; 51..: statistics 2tb + (l&1)
s_mul_i32 s60, s39, 9
s_lshr_b32 s60, s60, 2
s_add_u32 s60, s60, 128
v_mul_u32_u24 v{T0}, 21846, v0
v_lshrrev_b32 v{T0}, 16, v{T0}
v_mad_u32_u24 v{T0}, v{T0}, 6, v0
v_add_u32 v{T0}, s60, v{T0}
v_add_u32 v{T0+1}, {173-15}, v0
v_cmp_gt_u32 vcc, 15, v0
s_lshl_b32 s60, s38, 1
v_and_b32 v{T0+2}, 1, v0
v_cndmask_b32 v{T0}, v{T0+1}, v{T0}, vcc
v_cmp_gt_u32 vcc, 51, v0
v_add_u32 v{T0+2}, s60, v{T0+2}
s_mov_b32 s59, {FSOFF}
v_cndmask_b32 v{T0}, v{T0+2}, v{T0}, vcc
""")
    k.label("q6")
    k(f"v_mul_u32_u24 v{T0}, {FLS}, v{T0}")
    poll(k, "pq", 59, T0, T0 + 2, 60)
    k("s_barrier")
    if dbg == "a": mk(7)
    k(piece(0))
    k(f"""
buffer_load_dwordx4 {v(Q1[0],4)}, v1, s[12:15], s63 offen {ld}
buffer_load_dword v{Q2[0]}, v{T0+8}, s[12:15], s63 offen offset:1024 {ld}
buffer_load_dwordx4 {v(Q1[1],4)}, v1, s[12:15], s63 offen offset:{QBLK} {ld}
buffer_load_dword v{Q2[1]}, v{T0+8}, s[12:15], s63 offen offset:{QBLK+1024} {ld}
""")
    k(piece(8192)); k(piece(16384))
    k(f"s_waitcnt vmcnt({2 if b0 else 0})\ns_barrier")
    if warm:
        k("buffer_store_dwordx4 v[16:19], v1, s[12:15], s26 offen sc1\ns_nop 1")
    k.mark(0)
    k(f"""
v_cndmask_b32 v{Q2[0]}, 0, v{Q2[0]}, s[30:31]
v_cndmask_b32 v{Q2[1]}, 0, v{Q2[1]}, s[30:31]
s_setprio 1
s_cmp_eq_u32 s33, 0
s_cbranch_scc1 {k.lab('restart')}
s_setprio 0
s_mov_b32 s21, 99
s_add_u32 s23, s23, {24576 - 4096}
""")
    for n in range(NPRE):
        k(piece(n * 4096))
    k(f"s_add_u32 s23, s23, {NPRE*4096}")
    B0B = (f"s_cmp_lg_u32 s48, 1\ns_cbranch_scc1 {k.lab('b0b')}\ns_waitcnt vmcnt({NPRE + (1 if warm else 0)})\ns_cmp_lg_u32 s33, 0\ns_cbranch_scc1 {k.lab('b0a')}\n"
           f"s_waitcnt vmcnt({1 if warm else 0})\n{k.lab('b0a')}:\ns_barrier\n{k.lab('b0b')}:")
    k.label("restart")
    k(f"""
v_mov_b32 v{Q2[0]+1}, 0
v_mov_b32 v{Q2[1]+1}, 0
v_mov_b32 v{T0}, 0xff800000
v_mov_b32 v{T0+1}, 0xff800000
v_mov_b32 v{AK1}, v{BK1}
v_mov_b32 v{AK2}, v{BK1+1}
s_mov_b32 s20, s48
""")
    k.label("mx")
    k(f"""
ds_read_b128 {v(K1,4)}, v{AK1}
ds_read_b32 v{K2}, v{AK2}
v_add_u32 v{AK1}, {KVBLK}, v{AK1}
v_add_u32 v{AK2}, {KVBLK}, v{AK2}
s_waitcnt lgkmcnt(0)
{M16} {v(SS[0],16)}, {v(K1,4)}, {v(Q1[0],4)}, 0
{M8} {v(SS[0],16)}, {v(K2,2)}, {v(Q2[0],2)}, {v(SS[0],16)}
{M16} {v(SS[1],16)}, {v(K1,4)}, {v(Q1[1],4)}, 0
{M8} {v(SS[1],16)}, {v(K2,2)}, {v(Q2[1],2)}, {v(SS[1],16)}
s_sub_u32 s20, s20, 1
s_nop 8
""")
    for q in range(2):
        for i in range(8):
            k(f"v_max3_f32 v{T0+q}, v{T0+q}, v{SS[q]+2*i}, v{SS[q]+2*i+1}")
    k(f"""
s_cmp_lg_u32 s20, 0
s_cbranch_scc1 {k.lab('mx')}
v_mov_b32 v{T0+2}, v{T0}
v_mov_b32 v{T0+3}, v{T0+1}
""")
    for i in range(6):
        k(f"v_add_u32 v{AK1+i}, s32, v{BK1+i}")
    k(f"""
v_permlane32_swap_b32 v{T0}, v{T0+2}
v_permlane32_swap_b32 v{T0+1}, v{T0+3}
{B0B if b0 else ""}
s_and_b32 s19, s33, s48
s_cbranch_scc0 {k.lab('kvx')}
""")
    k.label("kv")
    k(piece(0))
    k(f"""
s_add_u32 s23, s23, 4096
s_cmp_lt_u32 s23, {KVHEAD}
s_cbranch_scc1 {k.lab('kv')}
s_waitcnt vmcnt(0)
s_barrier
""")
    WC = 112
    def wcreg(ks, sl):
        i = 2 * ks + sl
        return 128 + 4 * i if i < 32 else WC + 4 * (i - 32)
    for ks in range(16):
        for sl in range(2):
            k(f"buffer_load_dwordx4 {v(wcreg(ks,sl),4)}, v1, s[12:15], s62 offen offset:{sl*1024}")
        k("s_add_u32 s62, s62, 36864")
    k.label("kvx")
    k(f"""
ds_read_b128 {v(K1,4)}, v{AK1}
ds_read_b32 v{K2}, v{AK2}
ds_read_b64_tr_b16 {v(V0,2)}, v{AV}
ds_read_b64_tr_b16 {v(V0+2,2)}, v{AV+1}
""")
    for q in range(2):
        k(f"""
v_max_f32 v{T0+q}, v{T0+q}, v{T0+2+q}
v_sub_f32 v{T0+q}, 0, v{T0+q}
v_cvt_pk_bf16_f32 v{T0+4}, v{T0+q}, v{T0+q}
v_and_b32 v{T0+4}, 0xffff0000, v{T0+4}
v_sub_f32 v{T0+5}, v{T0+q}, v{T0+4}
v_cvt_pk_bf16_f32 v{T0+4}, v{T0+4}, v{T0+5}
v_cndmask_b32 v{Q2[q]+1}, 0, v{T0+4}, s[30:31]
""")
    k(f"""
s_waitcnt lgkmcnt(0)
{M16} {v(SS[0],16)}, {v(K1,4)}, {v(Q1[0],4)}, 0
{M8} {v(SS[0],16)}, {v(K2,2)}, {v(Q2[0],2)}, {v(SS[0],16)}
""")
    for q in range(2):
        for i in range(16):
            k(f"v_mov_b32 v{OO[q]+i}, 0")
    for i in range(4):
        k(f"v_mov_b32 v{P+4+i}, 0\nv_mov_b32 v{V1+i}, 0")
    k.mark(1)
    k(".p2align 6")
    k.label("loop")
    for t in range(U):
        for ph in range(2):
            cur, nxt = SS[ph], SS[1-ph]
            Oc, Op = OO[ph], OO[1-ph]
            e = lambda i: f"v_exp_f32 v{cur+i}, v{cur+i}"
            c = lambda i: f"v_cvt_pk_bf16_f32 v{P+i}, v{cur+2*i}, v{cur+2*i+1}"
            rdV1 = f"ds_read_b64_tr_b16 {v(V1,2)}, v{AV+2} offset:{t*KVBLK}\nds_read_b64_tr_b16 {v(V1+2,2)}, v{AV+3} offset:{t*KVBLK}" if ph == 0 else ""
            rdK1 = f"ds_read_b128 {v(K1,4)}, v{AK1} offset:{(t+1)*KVBLK}" if ph == 0 else ""
            rdK2 = f"ds_read_b32 v{K2}, v{AK2} offset:{(t+1)*KVBLK}" if ph == 0 else ""
            rdV0 = f"ds_read_b64_tr_b16 {v(V0,2)}, v{AV} offset:{(t+1)*KVBLK}\nds_read_b64_tr_b16 {v(V0+2,2)}, v{AV+1} offset:{(t+1)*KVBLK}" if ph == 1 else ""
            wA = "s_waitcnt lgkmcnt(0)" if ph == 1 else ""
            wD = "s_waitcnt lgkmcnt(4)" if ph == 0 else ""
            k(f"""
{e(0)}
{e(1)}
{wA}
{M16} {v(Op,16)}, {v(V1,4)}, {v(P+4,4)}, {v(Op,16)}
{rdV1}
{e(2)}
{e(3)}
{c(0)}
{c(1)}
{e(4)}
{e(5)}
{M16} {v(nxt,16)}, {v(K1,4)}, {v(Q1[1-ph],4)}, 0
{rdK1}
{e(6)}
{e(7)}
{c(2)}
{c(3)}
{e(8)}
{e(9)}
{M8} {v(nxt,16)}, {v(K2,2)}, {v(Q2[1-ph],2)}, {v(nxt,16)}
{rdK2}
{e(10)}
{e(11)}
{c(4)}
{c(5)}
{e(12)}
{e(13)}
{wD}
{M16} {v(Oc,16)}, {v(V0,4)}, {v(P,4)}, {v(Oc,16)}
{rdV0}
{e(14)}
{e(15)}
{c(6)}
{c(7)}
""")
    for i in range(6):
        k(f"v_add_u32 v{AK1+i}, {U*KVBLK}, v{AK1+i}")
    k(f"""
s_add_u32 s20, s20, 1
s_cmp_eq_u32 s20, s21
s_cbranch_scc1 {k.lab('stub')}
s_cmp_lt_u32 s20, s3
s_cbranch_scc1 {k.lab('loop')}
{M16} {v(OO[1],16)}, {v(V1,4)}, {v(P+4,4)}, {v(OO[1],16)}
""")
    k.mark(2)
    BADF = 16384
    k(f"""
s_setprio 0
s_and_b32 s19, s16, 3
s_lshl_b32 s24, s19, 12
v_add_u32 v{T0+2}, s24, v1
s_lshl_b32 s24, s19, 11
s_add_u32 s24, s24, {SCR}
v_add_u32 v{T0+3}, s24, v1
v_mov_b32 v{T0+4}, {BADF}
s_waitcnt lgkmcnt(0)
s_cmp_eq_u32 s48, 1
s_cbranch_scc1 {k.lab('x0')}
s_barrier
""")
    k.label("x0")
    k(f"s_cmp_lg_u32 s33, 0\ns_cbranch_scc1 {k.lab('xy')}")
    for q in range(2):
        for j in range(2):
            k(f"ds_write_b128 v{T0+2}, {v(OO[q]+4*j,4)} offset:{(2*q+j)*1024}")
        k(f"ds_write_b128 v{T0+3}, {v(OO[q]+8,4)} offset:{q*1024}")
    k(f"""
s_cmp_lg_u32 s21, 98
s_cbranch_scc1 {k.lab('x1')}
s_mov_b32 s21, 99
s_mul_i32 s59, s61, {FLS}
s_add_u32 s59, s59, {FPOFF}
s_waitcnt vmcnt(0)
""")
    set_flag(k, 59, T0 + 6)
    k(f"""
v_and_b32 v{T0+6}, 1, v0
v_mul_u32_u24 v{T0+6}, 1152, v{T0+6}
v_lshrrev_b32 v{T0+7}, 4, v0
v_lshl_add_u32 v{T0+6}, v{T0+7}, 4, v{T0+6}
s_mul_i32 s60, s39, 9216
s_add_u32 s60, s60, {WOOFF + 8192}
s_mov_b32 s59, 36864
s_bitcmp1_b32 s16, 0
s_cselect_b32 s60, {WBAROFF}, s60
s_cselect_b32 s59, 64, s59
s_cselect_b64 vcc, -1, 0
s_lshr_b32 s58, s16, 1
s_add_u32 s57, s58, 16
s_mul_i32 s57, s57, s59
s_add_u32 s57, s57, s60
s_lshl_b32 s58, s58, 3
s_mul_i32 s58, s58, s59
s_add_u32 s60, s60, s58
v_cndmask_b32 v{T0+6}, v1, v{T0+6}, vcc
""")
    for i in range(8):
        k(f"buffer_load_dwordx4 {v(128+4*i,4)}, v{T0+6}, s[12:15], s60 offen\ns_add_u32 s60, s60, s59")
    k(f"buffer_load_dwordx4 {v(160,4)}, v{T0+6}, s[12:15], s57 offen")
    k.label("x1")
    k.mark(3)
    k(f"s_waitcnt lgkmcnt(0)\ns_barrier\ns_branch {k.lab('x2')}")
    k.label("xy")
    k(f"""
s_lshl_b32 s24, s17, 16
s_lshl_b32 s23, s18, 9
s_add_u32 s24, s24, s23
s_add_u32 s24, s24, {OOFF}
s_lshl_b32 s19, s18, 5
s_add_u32 s19, s19, s17
s_lshl_b32 s23, s19, 7
s_add_u32 s23, s23, {O2OFF}
s_add_u32 s22, s23, 4096
s_mul_i32 s19, s19, {FLS}
s_add_u32 s19, s19, {FBOFF}
s_add_u32 s25, s19, {32*FLS}
s_mov_b32 s26, {f2u(2.0**60):#x}
v_and_b32 v{T0+1}, 31, v0
v_lshrrev_b32 v{T0+5}, 5, v0
v_lshlrev_b32 v{T0+1}, 4, v{T0+1}
v_lshl_add_u32 v{T0+5}, v{T0+5}, 15, v{T0+1}
v_lshlrev_b32 v{T0+1}, 2, v0
""")
    k.mark(3)
    k("s_barrier")
    for q in range(2):
        k(f"ds_read_b128 {v(SS[q]+8,4)}, v{T0+3} offset:{q*1024}")
        for j in range(2):
            k(f"ds_read_b128 {v(SS[q]+4*j,4)}, v{T0+2} offset:{(2*q+j)*1024}")
    for q in range(2):
        O = OO[q]
        PQ = [P, V0][q]
        k(f"s_waitcnt lgkmcnt({5 - 3*q})\nv_add_f32 v{O+10}, v{O+10}, v{SS[q]+10}\nv_rcp_f32 v{T0+6+q}, v{O+10}\ns_waitcnt lgkmcnt({3 - 3*q})")
        for i in range(5):
            k(f"v_pk_add_f32 {v(O+2*i,2)}, {v(O+2*i,2)}, {v(SS[q]+2*i,2)}")
        for i in range(5):
            k(f"v_pk_mul_f32 {v(O+2*i,2)}, {v(O+2*i,2)}, {v(T0+6,2)} op_sel:[0,{q}] op_sel_hi:[1,{q}]")
        for i in range(5):
            k(f"v_cvt_pk_bf16_f32 v{PQ+i}, v{O+2*i}, v{O+2*i+1}")
        k(f"""
buffer_store_dwordx4 {v(PQ,4)}, v{T0+5}, s[12:15], s24 offen offset:{q*512} sc1
s_mov_b64 exec, s[30:31]
buffer_store_dword v{PQ+4}, v{T0+1}, s[12:15], s{23-q} offen sc1
s_mov_b64 exec, -1
""")
    k(f"""
v_add_f32 v{T0}, v{OO[0]+10}, v{OO[1]+10}
v_cmp_ngt_f32 vcc, s26, v{T0}
s_lshl_b32 s26, s16, 2
s_add_u32 s26, s26, {BADF - 16}
v_mov_b32 v{T0}, s26
s_cmp_lg_u64 vcc, 0
s_cselect_b32 s26, 1, 0
v_mov_b32 v{T0+2}, s26
ds_write_b32 v{T0}, v{T0+2}
s_waitcnt lgkmcnt(0)
""")
    k.label("x2")
    if dbg == "c": mk(0)
    k(f"""
s_barrier
ds_read_b128 {v(K1,4)}, v{T0+4}
s_waitcnt lgkmcnt(0)
v_or3_b32 v{K1}, v{K1}, v{K1+1}, v{K1+2}
v_or_b32 v{K1}, v{K1}, v{K1+3}
s_nop 0
v_readfirstlane_b32 s26, v{K1}
s_and_b32 s26, s26, s48
s_cmp_eq_u32 s26, 1
s_cbranch_scc1 {k.lab('fallback')}
""")
    if dbg == "c": mk(1)
    LT, LG = 2, 3
    GV = 4
    XV, W1V, FV = 5, 6, 7
    ACC, OF, X, MU = 16, 32, 48, 56
    TC = 60
    k.srd(4, 28, S * D * 2)
    k(f"""
v_and_b32 v{LT}, 15, v0
v_lshrrev_b32 v{LG}, 4, v0
v_lshlrev_b32 v{GV}, 15, v{LG}
v_lshl_add_u32 v{GV}, v{LT}, 4, v{GV}
v_and_b32 v{FV}, 31, v0
v_mul_u32_u24 v{FV}, {FLS}, v{FV}
v_mul_u32_u24 v{XV}, 1152, v{LT}
v_lshl_add_u32 v{XV}, v{LG}, 3, v{XV}
v_lshlrev_b32 v{W1V}, 2, v{LT}
s_mul_i32 s24, s38, {32*1152}
s_lshl_b32 s23, s49, 5
s_add_u32 s24, s24, s23
s_add_u32 s23, s24, {16*1152}
s_lshl_b32 s26, s38, 7
s_lshl_b32 s27, s38, 8
s_add_u32 s27, s27, {STOFF + 4}
v_lshlrev_b32 v9, 3, v{LT}
s_cmp_lt_u32 s16, 2
s_cbranch_scc1 {k.lab('ppx')}
s_cmp_lt_u32 s16, 4
s_cbranch_scc1 {k.lab('cfp')}
s_waitcnt vmcnt(0)
{flag_txt([19, 25], TC)}
s_branch {k.lab('ppx')}
{k.lab('cfp')}:
; waves 2,3: re-layout jobs read by phases D/E.  lanes 0..35: job = lane*18 + cg ; lanes 36..: 648 + (9kq + j/3)*9 + cs0 + j%3
s_mul_i32 s59, s9, 9
s_sub_u32 s60, s16, 2
s_lshl_b32 s60, s60, 3
s_add_u32 s59, s59, s60
s_lshr_b32 s55, s59, 4           ; cg
s_bfe_u32 s59, s2, 0x20001
s_mul_i32 s59, s59, 81
s_mul_i32 s60, s39, 9
s_lshr_b32 s60, s60, 2
s_add_u32 s59, s59, s60
s_add_u32 s59, s59, 648
v_subrev_u32 v9, 36, v0
v_min_u32 v9, 26, v9
v_mul_u32_u24 v10, 21846, v9
v_lshrrev_b32 v10, 16, v10
v_mad_u32_u24 v9, v10, 6, v9
v_add_u32 v9, s59, v9
v_mul_u32_u24 v10, 18, v0
v_add_u32 v10, s55, v10
v_cmp_gt_u32 vcc, 36, v0
s_mov_b32 s59, {FPOFF}
s_nop 0
v_cndmask_b32 v11, v9, v10, vcc
v_mul_u32_u24 v11, {FLS}, v11
""")
    poll(k, "pp", 59, 11, TC, 60)
    k.mark(4)
    k(f"s_barrier\ns_cmp_gt_u32 s11, 4\ns_cbranch_scc1 {k.lab('cnx')}")
    for T in range(2):
        for i in range(2):
            k(f"buffer_load_dwordx2 {v(X+2*(2*i+T),2)}, v{XV}, s[4:7], s{[24,23][T]} offen offset:{i*32}")
        k(f"buffer_load_dword v{MU+T}, v9, s[12:15], s27 offen offset:{T*128} {ld}")
    k(f"s_cmp_eq_u32 s11, 4\ns_cbranch_scc1 {k.lab('cnx')}")
    for ks in (16, 17):
        for sl in range(2):
            k(f"buffer_load_dwordx4 {v(wcreg(ks,sl),4)}, v1, s[12:15], s62 offen offset:{sl*1024}")
        k("s_add_u32 s62, s62, 36864")
    k.label("cnx")
    k(f"""
s_mul_i32 s59, s38, {32*FLS}
s_add_u32 s59, s59, {FBOFF}
s_lshl_b32 s57, s38, 9
s_add_u32 s57, s57, {OOFF}
s_lshr_b32 s58, s16, 1
s_lshl_b32 s58, s58, 17
s_add_u32 s57, s57, s58
s_and_b32 s58, s16, 1
s_lshl_b32 s58, s58, 8
s_add_u32 s57, s57, s58
s_lshl_b32 s58, s16, 10
s_lshl_b32 s56, s38, 12
s_add_u32 s56, s56, s58
s_add_u32 s56, s56, {O2OFF}
s_add_u32 s58, s58, {OST}
v_add_u32 v{XV}, {OST}, v1
v_lshlrev_b32 v8, 9, v{LG}
v_add3_u32 v8, v8, v{W1V}, s58
""".replace("v_add3_u32 v8, v8, v{W1V}, s58".format(W1V=W1V), f"v_add_u32 v8, v8, v{W1V}\nv_add_u32 v8, {OST + 32768}, v8"))
    def feed(p0, p1):
        k(f"s_mul_i32 s22, s55, {UB}\ns_add_u32 s22, s22, s10\ns_mul_i32 s54, s55, {CB}")
        for p_ in range(p0, p1):
            if p_ % 4 == 0:
                k(f"s_add_u32 m0, s54, {(p_//12)*UB + (p_%12)*1024}\ns_add_u32 s53, s22, {p_*1024}")
            k(f"buffer_load_dwordx4 v1, s[12:15], s53 offen offset:{(p_%4)*1024} lds")
    k(f"""
s_cmp_ge_u32 s16, 4
s_cbranch_scc1 {k.lab('pbx')}
s_cmp_eq_u32 s16, 1
s_cbranch_scc1 {k.lab('pb0')}
s_sub_u32 s55, s16, 1
s_max_i32 s55, s55, 0
""")
    feed(0, NF1)
    k(f"s_branch {k.lab('pbx')}")
    k.label("pb0")
    poll(k, "pb", 59, FV, TC, 60)
    k("s_barrier")
    k.mark(5)
    for n in range(4):
        k(f"s_add_u32 m0, s58, {n*8192}\ns_add_u32 s62, s57, {n*4*4*CH}\nbuffer_load_dwordx4 v{GV}, s[12:15], s62 offen {ld} lds")
    k(f"s_cmp_ge_u32 s16, 4\ns_cbranch_scc1 {k.lab('co')}")
    k(f"s_add_u32 m0, s58, {4*8192}\ns_nop 0\nbuffer_load_dwordx4 v1, s[12:15], s56 offen {ld} lds")
    k.label("co")
    k(f"s_waitcnt vmcnt(0)\ns_barrier")
    k.mark(6)
    HL = 3 * UB
    k(f"v_add_u32 v10, {HL}, v1\ns_cmp_lt_u32 s16, 4\ns_cbranch_scc1 {k.lab('chelp')}")
    OR = 64
    def rdo(ks):
        b = OR + 8 * (ks % CR)
        if ks >= 16:
            r = []
            if ks == 17: r.append("v_add_u32 v8, 2048, v8")
            for T in range(2):
                for h in range(2):
                    r.append(f"ds_read2_b32 {v(b+4*T+2*h,2)}, v8 offset0:{16*T+64*h} offset1:{16*T+64*h+32}")
            return r
        return [f"ds_read_b128 {v(b+4*T,4)}, v{XV} offset:{(2*ks+T)*1024}" for T in range(2)]
    nrd = lambda ks: 4 if ks >= 16 else 2
    for ks in range(CR - 1):
        for r in rdo(ks): k(r)
    for ks in range(18):
        k(f"s_waitcnt lgkmcnt({sum(nrd(q) for q in range(ks + 1, min(ks + CR - 1, 18)))})")
        r = rdo(ks + CR - 1) if ks + CR - 1 < 18 else []
        for sl in range(2):
            for T in range(2):
                d = v(ACC + (2*sl+T)*4, 4)
                k(f"{M} {d}, {v(wcreg(ks,sl),4)}, {v(OR+8*(ks%CR)+4*T,4)}, {'0' if ks == 0 else d}")
                if r: k(r.pop(0))
        for x in r: k(x)
    k.label("cepi")
    if dbg == 'c': mk(9)
    SQ = 58
    k(f"""
s_lshl_b32 s24, s49, 16
s_lshl_b32 s23, s38, 9
s_add_u32 s24, s24, s23
s_add_u32 s24, s24, {HCOFF}
v_lshrrev_b32 v8, 5, v0
v_lshlrev_b32 v8, 15, v8
v_and_b32 v9, 31, v0
v_lshl_add_u32 v8, v9, 4, v8
v_lshlrev_b32 v9, 2, v9
v_mov_b32 v{SQ}, 0
v_mov_b32 v{SQ+1}, 0
""")
    for sl in range(2):
        for T in range(2):
            x = X + 2*(2*sl+T)
            r = OF + 4*(2*sl+T)
            k(f"v_lshlrev_b32 v{r}, 16, v{x}\nv_and_b32 v{r+1}, 0xffff0000, v{x}\nv_lshlrev_b32 v{r+2}, 16, v{x+1}\nv_and_b32 v{r+3}, 0xffff0000, v{x+1}")
    k("s_barrier")
    if dbg == 'c': mk(10)
    for T in range(2):
        for hh in range(2):
            k(f"ds_read_b64 {v(64+4*T+2*hh,2)}, v10 offset:{(1+2*hh)*2048 + T*1024}")
    for T in range(2):
        k(f"ds_read_b128 {v(72+4*T,4)}, v10 offset:{2*2048 + T*1024}")
    for i in range(8):
        k(f"v_pk_add_f32 {v(ACC+2*i,2)}, {v(ACC+2*i,2)}, {v(OF+2*i,2)}")
    k("s_waitcnt lgkmcnt(0)")
    for T in range(2):
        k(f"v_pk_add_f32 {v(64+4*T,2)}, {v(64+4*T,2)}, {v(66+4*T,2)}\nv_add_f32 v{MU+T}, v{MU+T}, v{64+4*T}\nv_add_f32 v{MU+T}, v{MU+T}, v{65+4*T}")
    k(f"s_cmp_lg_u32 s11, 4\ns_cbranch_scc1 {k.lab('cn8')}")
    for i in range(4):
        k(f"v_pk_add_f32 {v(ACC+2*i,2)}, {v(ACC+2*i,2)}, {v(72+2*i,2)}")
    k.label("cn8")
    for sl in range(2):
        if sl == 1:
            k(f"s_cmp_eq_u32 s11, 4\ns_cbranch_scc1 {k.lab('cq')}")
        R = X + 4*sl
        for T in range(2):
            ac = ACC + (2*sl+T)*4
            for r in range(4):
                k(f"v_sub_f32 v{ac+r}, v{ac+r}, v{MU+T}")
            k(f"v_cvt_pk_bf16_f32 v{R+2*T}, v{ac}, v{ac+1}\nv_cvt_pk_bf16_f32 v{R+2*T+1}, v{ac+2}, v{ac+3}")
            for r in range(4):
                k(f"v_fmac_f32 v{SQ+T}, v{ac+r}, v{ac+r}")
        k(f"""
v_permlane16_swap_b32 v{R}, v{R+2}
v_permlane16_swap_b32 v{R+1}, v{R+3}
buffer_store_dwordx4 {v(R,4)}, v8, s[12:15], s24 offen sc1
s_add_u32 s24, s24, 65536
""")
    k.label("cq")
    k(f"""
s_mul_i32 s23, s39, 5
s_add_u32 s23, s23, s11
v_permlane16_swap_b32 v{SQ}, v{SQ+1}
v_permlane16_swap_b32 v{MU}, v{MU+1}
s_lshl_b32 s27, s23, 13
s_add_u32 s27, s27, s26
s_add_u32 s27, s27, {SSQOFF}
v_add_f32 v{SQ}, v{SQ}, v{SQ+1}
v_mov_b32 v{SQ+1}, v{SQ}
s_add_u32 s26, s26, {MUHOFF}
s_cmp_lg_u32 s23, 0
s_cselect_b32 s26, {OOB}, s26
v_permlane32_swap_b32 v{SQ}, v{SQ+1}
v_add_f32 v{SQ}, v{SQ}, v{SQ+1}
s_mov_b32 exec_hi, 0
buffer_store_dword v{SQ}, v9, s[12:15], s27 offen sc1
buffer_store_dword v{MU}, v9, s[12:15], s26 offen sc1
s_mov_b64 exec, -1
s_lshl_b32 s3, s38, 5
s_add_u32 s3, s3, s23
s_mul_i32 s3, s3, {FLS}
s_add_u32 s3, s3, {FCOFF}
s_branch {k.lab('dstart')}
""")
    k.label("chelp")
    if NF1 < 36:
        k(f"s_cmp_eq_u32 s16, 0\ns_cbranch_scc1 {k.lab('ch2')}\ns_sub_u32 s55, s16, 1")
        feed(NF1, 36)
        k.label("ch2")
    k(f"""
s_lshr_b32 s23, s16, 1
s_lshl_b32 s24, s23, 14
v_add_u32 v{XV}, s24, v{XV}
s_lshl_b32 s24, s23, 11
v_add_u32 v8, s24, v8
s_lshl_b32 s24, s16, 11
v_add_u32 v11, s24, v10
s_setprio 1
""")
    HB = 168
    for i in range(8):
        for T in range(2):
            k(f"ds_read_b128 {v(HB+8*i+4*T,4)}, v{XV} offset:{(2*i+T)*1024}")
        if i == 5: k("s_waitcnt lgkmcnt(8)")
    for T in range(2):
        for h in range(2):
            k(f"ds_read2_b32 {v(HB+64+4*T+2*h,2)}, v8 offset0:{16*T+64*h} offset1:{16*T+64*h+32}")
    for i in range(9):
        k(f"s_waitcnt lgkmcnt({max(0, min(15, 2*(7-i) + 4)) if i < 8 else 0})")
        for T in range(2):
            d = v(ACC + 4*T, 4)
            k(f"{M} {d}, {v(128+4*i,4)}, {v(HB+8*i+4*T,4)}, {'0' if i == 0 else d}")
    k(f"""
s_setprio 0
s_mov_b32 s3, {OOB}
s_cmp_eq_u32 s16, 0
s_cbranch_scc1 {k.lab('cepi')}
s_nop 3
ds_write_b128 v11, {v(ACC,4)}
ds_write_b128 v11, {v(ACC+4,4)} offset:1024
""")
    k("s_waitcnt lgkmcnt(0)\ns_barrier")
    k.label("dstart")
    if dopt.get("wgf", 1):
        k(f"""
s_lshl_b32 s3, s38, 2
s_add_u32 s3, s3, s39
s_mul_i32 s3, s3, {FLS}
s_add_u32 s3, s3, {FCOFF}
s_cmp_lg_u32 s16, 2
s_cselect_b32 s3, {OOB}, s3
""")
    k.mark(7)
    if upto >= 4:
        tails, dside = phase_d(k, GV, FV, WV, ld, **dopt)
    if upto >= 5:
        i0 = len(k.L)
        phase_e(k, GV, ld, tails, **eopt)
        if dbg in ("e0", "e1"):
            i1 = k.L.index(k.lab("econs") + ":")
            n = 0; out = []
            for l in k.L[i0:i1]:
                if l.strip() == "s_barrier" and n < 10:
                    m_ = f"  s_memtime s[{k.mb+2*n}:{k.mb+2*n+1}]"; n += 1
                    out += [m_, l] if dbg == "e0" else [l, m_]
                else:
                    out.append(l)
            k.L[i0:i1] = out
    k(f"s_branch {k.lab('fin')}")
    if upto >= 4:
        k(dside)
    k.label("stub")
    k(f"""
s_cmp_eq_u32 s21, 2
s_cbranch_scc1 {k.lab('stub0')}
s_cmp_eq_u32 s21, {ST[1]}
s_cbranch_scc1 {k.lab('stub2')}
s_cmp_eq_u32 s21, {ST[2]}
s_cbranch_scc1 {k.lab('stub3')}
s_cmp_eq_u32 s21, {ST[3]}
s_cbranch_scc1 {k.lab('stub4')}
s_mov_b32 s21, {ST[1]}
""")
    prep_loads_tab(k, (0, 1), DAT, PVS, 4, 40)
    k(f"s_branch {k.lab('loop')}")
    k.label("stub2")
    k(f"s_mov_b32 s21, {ST[2]}")
    prep_loads_tab(k, (2, 3), DAT, PVS, 4, 40)
    k(f"s_branch {k.lab('loop')}")
    k.label("stub3")
    k(f"s_mov_b32 s21, {ST[3]}")
    prep_process(k, DAT, FR, PVW, PVR, ns=(0, 1))
    k(f"s_branch {k.lab('loop')}")
    k.label("stub4")
    k(f"s_mov_b32 s21, 98")
    prep_process(k, DAT, FR, PVW, PVR, ns=(2, 3))
    k(f"s_branch {k.lab('loop')}")
    k.label("stub0")
    k(f"s_barrier\ns_cmp_ge_u32 s61, 972\ns_cselect_b32 s21, 98, {ST[0]}\ns_branch {k.lab('loop')}")
    k.label("fallback")
    k(f"""
s_waitcnt vmcnt(0)
s_barrier
s_mov_b32 s48, 64
s_mul_i32 s22, s17, {KVHEAD}
s_lshl_b32 s23, s16, 10
""")
    k.label("fb1")
    k(piece(0))
    k(f"""
s_add_u32 s23, s23, 8192
s_cmp_lt_u32 s23, {KVHEAD}
s_cbranch_scc1 {k.lab('fb1')}
s_waitcnt vmcnt(0)
s_barrier
s_branch {k.lab('restart')}
""")
    for i, l in enumerate(k.L):
        if l.strip().startswith("buffer_load") and "s[12:15]" in l and " sc1" not in l and wsc:
            k.L[i] = l[:-4] + " sc1 lds" if l.endswith(" lds") else l.rstrip() + " sc1"
    k.label("fin")
    k.stamp_end(12)
    k.label("end")
    k("s_endpgm")
    return k


def phase_d(k, GV, FV, WV, ld, PF=6, LA=4, WG=2, exp='', prio=0, DS=5, tch=False, pre=12, psl=None, wgf=2):
    ACC = [16, 32, 48]
    WF, PR, HV = 64, 88, 112
    SV, A0, A1, AB, FILL = 3, 5, 6, 2, 8
    hreg = lambda ks, T: v(HV + 4*(2*ks+T), 4)
    k(f"""
s_lshl_b32 s11, s8, 3
s_add_u32 s11, s11, s16
s_lshl_b32 s21, s11, 9
s_add_u32 s20, s21, {HCOFF}      ; h soffset
s_lshr_b32 s22, s9, 3
s_mul_i32 s22, s22, {72*65536}
s_add_u32 s21, s21, s22
s_and_b32 s22, s9, 7
s_mul_i32 s22, s22, {3*65536}
s_add_u32 s21, s21, s22
s_add_u32 s21, s21, {HIDOFF}
s_and_b32 s17, s2, 1
s_lshl_b32 s17, s17, 3
s_bfe_u32 s18, s2, 0x30003
s_add_u32 s17, s17, s18
s_lshr_b32 s18, s2, 6
s_bfe_u32 s19, s2, 0x20001
""")
    for n in range(5):
        k(f"s_add_u32 s28, s16, {8*n}")
        if n == 4:
            k("s_add_u32 s29, s16, 24\ns_cmp_ge_u32 s28, 36\ns_cselect_b32 s28, s29, s28")
        k(f"""
s_lshl_b32 s{44+n}, s28, 10
s_mov_b32 s{54+n}, s{44+n}
s_mul_i32 s29, s28, 7282
s_lshr_b32 s29, s29, 16
s_mul_i32 s30, s29, 9
s_sub_u32 s28, s28, s30
s_add_u32 s30, s28, s19
s_and_b32 s30, s30, 3
s_and_b32 s31, s28, 4
s_or_b32 s30, s30, s31
s_cmp_eq_u32 s28, 8
s_cselect_b32 s30, 8, s30
s_lshl_b32 s30, s30, 10
s_mul_i32 s29, s29, 36864
s_add_u32 s{38+n}, s29, s30
""")
    k(f"""
s_add_u32 s51, s10, {3*UB}
s_mov_b32 s50, {UB}
s_mov_b32 s24, {3*UB}
s_mul_i32 s53, s19, {36*36864}
s_mul_i32 s29, s18, 9216
s_add_u32 s53, s53, s29
s_add_u32 s53, s53, {WDOFF}
v_lshrrev_b32 v{SV}, 5, v0
v_lshlrev_b32 v{SV}, 15, v{SV}
v_and_b32 v{A0}, 31, v0
v_lshl_add_u32 v{SV}, v{A0}, 4, v{SV}
v_mov_b32 v{A0}, v1
v_add_u32 v{A1}, {UB}, v1
s_mov_b32 s26, {UB}
{["v_min_u32 v%d, 19, v0", "v_and_b32 v%d, 31, v0", "v_and_b32 v%d, 3, v0"][wgf] % FV}
v_mul_u32_u24 v{FV}, {FLS}, v{FV}
{[f"s_mul_i32 s61, s11, {32*FLS}", f"s_mul_i32 s61, s8, {32*FLS}", f"s_mul_i32 s61, s11, {4*FLS}"][wgf]}
s_add_u32 s61, s61, {FCOFF}
s_lshl_b32 s28, s17, 2
s_and_b32 s29, s16, 3
s_add_u32 s28, s28, s29
s_mul_i32 s52, s28, 36
s_mul_i32 s29, s18, 9
s_add_u32 s52, s52, s29
s_mul_i32 s52, s52, 3072
s_add_u32 s62, s52, {EXOFF}
s_and_b32 s29, s16, 4
s_add_u32 s29, s29, s19
s_mul_i32 s29, s29, 3072
s_add_u32 s52, s62, s29
s_add_u32 s63, s62, {8*3072}
s_cmp_eq_u32 s16, s19
s_cselect_b32 s63, s63, {OOB}
s_mov_b32 s27, 0
s_lshl_b32 s30, s11, 5
s_add_u32 s30, s30, s9
s_mul_i32 s30, s30, {FLS}
s_add_u32 s30, s30, {FDOFF}
s_lshl_b32 s31, s2, 3
s_add_u32 s31, s31, s16
s_mul_i32 s31, s31, {FLS}
s_add_u32 s31, s31, {FXOFF}
s_lshl_b32 s32, s28, 2
s_add_u32 s32, s32, s19
s_mul_i32 s32, s32, {8*FLS}
s_add_u32 s32, s32, {FDOFF}
v_and_b32 v2, 7, v0
v_mul_u32_u24 v2, {FLS}, v2
""")
    if wgf:
        k(f"""
s_waitcnt vmcnt(0)
s_barrier
{flag_txt([3], 12)}
""")
    else:
        k(f"""
s_waitcnt vmcnt(0)
{flag_txt([3], 12)}
s_barrier
""")
    def rd(n, lin=False):
        base = A0 if n < 36 else A1
        j = n % 36
        if lin:
            return [f"ds_read_b128 {v(WF+4*(n%PF),4)}, v{base} offset:{j*1024}", ""]
        ks, u, m = j // 6, (j % 6) // 2, j % 2
        return [f"ds_read_b128 {v(WF+4*(n%PF),4)}, v{base} offset:{u*CB + (2*ks+m)*1024}", ""]
    for n in range(PF - 1):
        for x in rd(n): k(x)
    for i in range(4):
        k(f"v_mov_b32 v{FILL+i}, -1")
    if prio:
        k(f"s_cmp_lt_u32 s16, 4\ns_cbranch_scc1 {k.lab('dp')}\ns_setprio 1")
        k.label("dp")
    if wgf == 1:
        k(f"s_cmp_lg_u32 s16, 1\ns_cbranch_scc1 {k.lab('pcx')}")
    if pre: k(f"s_sleep {pre}")
    poll(k, "pc", 61, FV, 12, 60, sleep=psl)
    if wgf == 1:
        k("s_barrier")
    k.mark(8)
    def h_ops(ks):
        return [f"buffer_load_dwordx4 {hreg(ks,T)}, v{GV}, s[12:15], s20 offen offset:{T*256} {ld}" for T in range(2)] + \
               [f"s_add_u32 s20, s20, {4*CH}"]
    def tail(u):
        R = PR + 8*u
        return [f"v_cvt_pk_bf16_f32 v{R}, v{R}, v{R+1}", f"v_cvt_pk_bf16_f32 v{R+1}, v{R+2}, v{R+3}",
                f"v_cvt_pk_bf16_f32 v{R+2}, v{R+4}, v{R+5}", f"v_cvt_pk_bf16_f32 v{R+3}, v{R+6}, v{R+7}\ns_nop 0",
                f"v_permlane16_swap_b32 v{R}, v{R+2}", f"v_permlane16_swap_b32 v{R+1}, v{R+3}",
                f"buffer_store_dwordx4 {v(R,4)}, v{SV}, s[12:15], s21 offen sc1", f"s_add_u32 s21, s21, {65536 if u < 2 else 22*65536}"]
    def dma():
        ops = [f"s_add_u32 m0, s24, s{44+n}\ns_add_u32 s22, s51, s{54+n}\nbuffer_load_dwordx4 v1, s[12:15], s22 offen lds" for n in range(5)]
        ops.append(f"s_add_u32 s51, s51, s50")
        ops.append(f"s_add_u32 s24, s24, {UB}\ns_cmp_ge_u32 s24, {4*UB}\ns_cselect_b32 s24, 0, s24")
        return ops
    nxt = f"s_add_u32 s26, s26, {UB}\ns_cmp_ge_u32 s26, {4*UB}\ns_cselect_b32 s26, 0, s26"
    fill = [f"buffer_store_dwordx4 {v(FILL,4)}, v1, s[12:15], s52 offen sc1", "s_add_u32 s52, s52, 1024"]
    tot = [2 * LA]; hm = {ks: 2 * ks + 2 for ks in range(LA)}
    def stage(c, f1, f2, f3):
        pend = []
        nvm = 0
        for j in range(36):
            if c is None:
                ks, u, m = j // 2, 0, j % 2
            else:
                ks, u, m = 6 * c + j // 6, (j % 6) // 2, j % 2
            hw = c is not None and j % 6 == 0
            if hw and ks + LA < 18:
                pend += h_ops(ks + LA)
            if j % WG == 0:
                w = f"lgkmcnt({PF-1-WG})"
                vm = []
                if hw: vm.append(tot[0] - hm[ks])
                if j == 30: vm.append(nvm)
                if vm: w = f"vmcnt({min(vm)}) " + w
                k("s_waitcnt " + w)
            if j == 30:
                k("s_barrier")
            r = rd(j + PF - 1, lin=(c is None or (c == 2 and j + PF - 1 >= 36)))
            for T in range(2):
                d = v(ACC[u] + (m*2+T)*4, 4)
                k(f"{M} {d}, {v(WF+4*(j%PF),4)}, {hreg(ks,T)}, {'0' if ks == 0 else d}")
                k(r[T])
                if T == 1:
                    x = None
                    if f2 and j % DS == DS - 1: x = f2.pop(0)
                    elif pend: x = pend.pop(0)
                    elif f1: x = f1.pop(0)
                    elif not f2 and f3: x = f3.pop(0)
                    if x:
                        k(x); nvm += x.count("buffer_"); tot[0] += x.count("buffer_")
                        if x.startswith("buffer_load") and "offset:256" in x: hm[len(hm)] = tot[0]
        assert not f1 and not f2 and not f3 and not pend, (f1, f2, f3, pend)
        k(f"v_mov_b32 v{A0}, v{A1}\nv_add_u32 v{A1}, s26, v1")
    def prod(u, slot):
        for h in range(4):
            k(f"v_pk_mul_f32 {v(PR+8*slot+2*h,2)}, {v(ACC[u]+2*h,2)}, {v(ACC[u]+8+2*h,2)}")
    for ks in range(LA):
        for x in h_ops(ks): k(x)
    stage(0, [], [], [nxt])
    for c in (1, 2):
        d_ = dma()
        stage(c, [], d_[:5], d_[5:] + [nxt])
    k("s_mov_b32 s27, 4\ns_nop 1")
    prod(0, 0); prod(1, 1); k("s_nop 1"); prod(2, 2)
    k.mark(9)
    tl = tail(0) + tail(1) + tail(2)
    d_ = dma()
    stage(None, [tl[2*i] + "\n" + tl[2*i+1] for i in range(12)] + fill, d_[:5], d_[5:] + [nxt])
    k("s_nop 5")
    prod(0, 0)
    k(".p2align 6")
    k.label("dloop")
    d_ = dma()
    stage(None, [f"s_branch {k.lab('dside')}\n{k.lab('dback')}:"] + tail(0) + fill, d_[:5], d_[5:] + [nxt])
    k(f"s_add_u32 s27, s27, 1\ns_cmp_lt_u32 s27, 9\ns_nop 3")
    prod(0, 0)
    k(f"s_cbranch_scc1 {k.lab('dloop')}")
    k.mark(10)
    side = f"""
{k.lab('dside')}:
s_cmp_eq_u32 s27, 6
s_cbranch_scc1 {k.lab('ds6')}
s_cmp_eq_u32 s27, 7
s_cbranch_scc1 {k.lab('ds7')}
s_cmp_eq_u32 s27, 4
s_cbranch_scc1 {k.lab('dback')}
{flag_txt([30], 12)}
s_add_u32 s30, s30, {FDL}
s_branch {k.lab('dback')}
{k.lab('ds6')}:
s_mov_b32 s52, s63
s_branch {k.lab('dback')}
{k.lab('ds7')}:
s_add_u32 s21, s21, {21*65536}
s_mov_b32 s51, s53
s_mov_b32 s50, {4*36864}
s_mov_b64 s[54:55], s[38:39]
s_mov_b64 s[56:57], s[40:41]
s_mov_b32 s58, s42
buffer_load_dwordx2 v[32:33], v2, s[12:15], s32 offen sc1
s_branch {k.lab('dback')}
"""
    return tail(0), side


def phase_e(k, GV, ld, tails, PF=9, WG=3, LA=5, tch=False, P3=6, exp='', hl=None, prio=0, sleep=12, ost=''):
    ld = ld if hl is None else hl
    SB = UB
    ACC, WF, HV, XV = 16, 112, 148, 11
    FLG = flag_txt([30, 31], 12)
    XL = 3 * SB
    k(f"s_cmp_lt_u32 s16, 4\ns_cbranch_scc1 {k.lab('econs')}")
    def head():
        k("s_and_b32 s33, s16, 3")
        for t in range(4):
            k(f"s_add_u32 s{40+t}, s19, {t}\ns_and_b32 s{40+t}, s{40+t}, 3\ns_lshl_b32 s{44+t}, s{40+t}, 10")
        k(f"s_mul_i32 s29, s33, 6144\ns_add_u32 s29, s29, {XL}\nv_add_u32 v{XV}, s29, v1")
    PR = 88
    TL = 4 * SB
    packs = [x for x in tails if not x.startswith(("buffer", "s_add"))]
    def wissue():
        for n in range(9):
            if n < 4:
                k(f"s_add_u32 m0, s24, {n*1024}\ns_add_u32 s{48+n}, s23, s{44+n}\nbuffer_load_dwordx4 v1, s[12:15], s{48+n} offen lds")
            elif n < 8:
                k(f"s_add_u32 m0, s24, {n*1024}\ns_add_u32 s25, s{48+n-4}, 4096\nbuffer_load_dwordx4 v1, s[12:15], s25 offen lds")
            else:
                k(f"s_add_u32 m0, s24, {n*1024}\ns_add_u32 s25, s23, 8192\nbuffer_load_dwordx4 v1, s[12:15], s25 offen lds")
        k(f"s_add_u32 s23, s23, {4*36864 if 'hotw' not in exp else 0}\ns_add_u32 s24, s24, {SB}\ns_cmp_ge_u32 s24, {4*SB}\ns_cselect_b32 s24, s22, s24")
    def check(name, soff, voff, vt):
        k(flag_check(vt))
        k(f"s_nop 0\ns_cbranch_vccz {k.lab(name + 'x')}")
        poll(k, name, soff, voff, vt, 60)
    k(f"s_add_u32 s32, s32, {FDL}\nbuffer_load_dwordx2 v[16:17], v2, s[12:15], s32 offen sc1")
    head()
    k(f"""
s_mul_i32 s23, s33, 36864
s_add_u32 s23, s23, s53
s_add_u32 s23, s23, {8*36864 if 'now' not in exp else OOB}
s_mul_i32 s22, s33, 9216
s_add_u32 s24, s22, {3*SB}
""")
    for x in packs: k(x)
    k(f"s_mul_i32 s29, s33, 3072\ns_add_u32 s29, s29, {TL}\nv_add_u32 v5, s29, v1\ns_sub_u32 s29, s21, 2048\ns_barrier")
    for u in range(1):
        k(f"ds_read_b128 {v(PR+8*u+4,4)}, v5 offset:{u*1024}")
    wissue()
    for u in range(1):
        k(f"buffer_store_dwordx4 {v(PR+8*u,4)}, v3, s[12:15], s21 offen sc1\ns_add_u32 s21, s21, 65536")
    k("s_waitcnt lgkmcnt(0)")
    for u in range(1):
        k(f"buffer_store_dwordx4 {v(PR+8*u+4,4)}, v3, s[12:15], s29 offen sc1\ns_add_u32 s29, s29, 65536")
    k.srd(4, 36, S * D * 2)
    k("s_waitcnt vmcnt(11)\ns_barrier")
    check("pe2", 32, 2, 16)
    wissue()
    k(f"s_sub_u32 s26, s30, {4*32*FLS}\ns_sub_u32 s27, s31, {4*FLS}\ns_waitcnt vmcnt(11)\ns_barrier\ns_waitcnt vmcnt(9)")
    k(flag_txt([30, 26, 31, 27], 12))
    wissue()
    k("s_waitcnt vmcnt(13)\ns_barrier")
    wissue()
    k(f"s_waitcnt vmcnt(9)\ns_barrier\ns_add_u32 s32, s32, {FDL}\nbuffer_load_dwordx2 v[16:17], v2, s[12:15], s32 offen sc1")
    wissue()
    k("s_waitcnt vmcnt(9)")
    check("pe3", 32, 2, 16)
    k("s_barrier")
    wissue()
    k("s_waitcnt vmcnt(9)\ns_barrier")
    k(f"""
v_bfe_u32 v10, v0, 3, 2
v_and_b32 v9, 7, v0
v_lshl_add_u32 v10, v10, 4, v9
v_mul_u32_u24 v10, {FLS}, v10
s_andn2_b32 s59, s2, 6
s_mul_i32 s59, s59, {8*FLS}
s_add_u32 s59, s59, {FXOFF}
buffer_load_dwordx2 v[12:13], v10, s[12:15], s59 offen sc1
""")
    wissue()
    k("s_waitcnt vmcnt(9)\ns_barrier")
    check("px", 59, 10, 12)
    HC, SS, MU, OWN, RX, T0, BS = 16, 28, 38, 40, 64, 100, 104
    k(f"""
v_and_b32 v6, 31, v0
v_lshrrev_b32 v7, 5, v0
v_mul_u32_u24 v8, {10*8192}, v7
v_lshl_add_u32 v8, v6, 2, v8
v_lshlrev_b32 v9, 2, v6
s_mul_i32 s54, s18, 9
s_add_u32 s55, s54, s19
s_lshl_b32 s56, s55, 16
s_lshl_b32 s57, s28, 9
s_add_u32 s57, s57, {HCOFF}
s_add_u32 s56, s56, s57
buffer_load_dwordx4 {v(HC,4)}, v3, s[12:15], s56 offen {ld}
s_add_u32 s56, s56, {4*65536}
buffer_load_dwordx4 {v(HC+4,4)}, v3, s[12:15], s56 offen {ld}
s_add_u32 s54, s54, 8
s_lshl_b32 s56, s54, 16
s_add_u32 s56, s56, s57
buffer_load_dwordx4 {v(HC+8,4)}, v3, s[12:15], s56 offen {ld}
s_lshl_b32 s56, s28, 7
s_add_u32 s57, s56, {MUHOFF}
s_add_u32 s56, s56, {SSQOFF}
buffer_load_dword v{MU}, v9, s[12:15], s57 offen {ld}
""")
    for j in range(10):
        k(f"buffer_load_dword v{SS+j}, v8, s[12:15], s56 offen {ld}")
        if j < 9: k("s_add_u32 s56, s56, 8192")
    k("s_waitcnt vmcnt(14)\ns_barrier\ns_waitcnt vmcnt(0)")
    k(f"""
s_mul_i32 s58, s19, 3072
s_add_u32 s58, s58, s62
s_add_u32 s59, s58, {4*3072}
s_add_u32 s60, s62, {8*3072}
s_cmp_eq_u32 s19, s33
s_cselect_b32 s60, s60, {OOB}
s_mov_b32 s61, 0
v_mul_u32_u24 v8, 1152, v6
v_lshl_add_u32 v8, v7, 4, v8
s_mul_i32 s56, s28, {32*1152}
s_lshl_b32 s57, s55, 5
s_add_u32 s57, s57, s56
s_lshl_b32 s54, s54, 5
s_add_u32 s56, s56, s54
s_mov_b32 s63, {f2u(1.0/D):#x}
""")
    for j in range(1, 10):
        k(f"v_add_f32 v{SS}, v{SS}, v{SS+j}")
    k(f"""
v_mov_b32 v{SS+1}, v{SS}
v_mov_b32 v{SS+2}, {f2u(1e-5):#x}
s_nop 0
v_permlane32_swap_b32 v{SS}, v{SS+1}
v_add_f32 v{SS}, v{SS}, v{SS+1}
v_fma_f32 v{SS}, v{SS}, s63, v{SS+2}
v_rcp_f32 v{SS}, v{SS}
""")
    for i in range(3):
        for d in range(4):
            x = HC + 4*i + d
            k(f"v_lshlrev_b32 v{BS+8*i+2*d}, 16, v{x}\nv_and_b32 v{BS+8*i+2*d+1}, 0xffff0000, v{x}")
    for i in range(24):
        k(f"v_add_f32 v{BS+i}, v{BS+i}, v{MU}")
    k("s_barrier")
    k.mark(11)
    for i in range(6):
        k(f"ds_read_b128 {v(OWN+4*i,4)}, v{XV} offset:{i*1024}")
    if sleep: k(f"s_sleep {sleep}")
    k.label("poll")
    for i in range(3):
        for q in range(3):
            k(f"buffer_load_dwordx4 {v(RX+12*i+4*q,4)}, v1, s[12:15], s{58+i} offen offset:{q*1024} sc1")
    k("s_waitcnt vmcnt(0)")
    k(f"v_max3_u32 v{T0}, v{RX}, v{RX+1}, v{RX+2}")
    k(f"v_max3_u32 v{T0+1}, v{RX+3}, v{RX+4}, v{RX+5}")
    for n, j in enumerate(range(6, 36, 2)):
        k(f"v_max3_u32 v{T0+(n&1)}, v{T0+(n&1)}, v{RX+j}, v{RX+j+1}")
    k(f"""
v_max_u32 v{T0}, v{T0}, v{T0+1}
v_cmp_eq_u32 vcc, -1, v{T0}
s_add_u32 s61, s61, 1
s_cmp_ge_u32 s61, {POLLMAX}
s_cbranch_scc1 {k.lab('got')}
s_cbranch_vccnz {k.lab('poll')}
""")
    k.label("got")
    k.mark(12)
    k("s_waitcnt lgkmcnt(0)")
    for i in range(3):
        if i == 2:
            k(f"s_cmp_lg_u32 s19, s33\ns_cbranch_scc1 {k.lab('fin')}")
        A = OWN + 8*i
        for r in range(4):
            k(f"v_permlane16_swap_b32 v{A+r}, v{A+4+r}")
        for q in range(3):
            for d in range(4):
                x = RX + 12*i + 4*q + d
                tt = T0 + 2*(d & 1)
                k(f"v_lshlrev_b32 v{tt}, 16, v{x}\nv_and_b32 v{tt+1}, 0xffff0000, v{x}\nv_pk_add_f32 {v(A+2*d,2)}, {v(A+2*d,2)}, {v(tt,2)}")
        for d in range(4):
            b = BS + 8*i + 2*d
            k(f"v_pk_fma_f32 {v(b,2)}, {v(A+2*d,2)}, {v(SS,2)}, {v(b,2)} op_sel_hi:[1,0,1]")
            k(f"v_cvt_pk_bf16_f32 v{HC+4*i+d}, v{b}, v{b+1}")
        so, off = [("s57", 0), ("s57", 128), ("s56", 0)][i]
        k(f"buffer_store_dwordx4 {v(HC+4*i,4)}, v8, s[4:7], {so} offen offset:{off} {ost}")
    k(f"s_branch {k.lab('fin')}")
    k.label("econs")
    hreg = lambda set_, kk, T: v(HV + 4 * (8*set_ + 2*kk + T), 4)
    def h_ops(p):
        return [f"buffer_load_dwordx4 {hreg(p//4,p%4,T)}, v{GV}, s[12:15], s20 offen offset:{T*256} {ld}" for T in range(2)] + \
               [f"s_add_u32 s20, s20, {4*CH if 'hoth' not in exp else 0}"]
    def rd(j):
        base, jj = ("v5", j) if j < 36 else ("v6", j - 36)
        return f"ds_read_b128 {v(WF+4*(j%PF),4)}, {base} offset:{jj*1024}"
    k(f"""
s_lshl_b32 s20, s28, 9
s_mul_i32 s29, s19, {36*4*CH}
s_add_u32 s20, s20, s29
s_add_u32 s20, s20, {HIDOFF if 'noh' not in exp else OOB}
s_setprio {prio}
v_add_u32 v5, {SB}, v1
v_add_u32 v6, {2*SB}, v1
{flag_check(32)}
s_nop 0
s_cbranch_vccz {k.lab('pdx')}
""")
    poll(k, "pd", 32, 2, 12, 60)
    for p in range(LA):
        for x in h_ops(p): k(x)
    for x in packs: k(x)
    k(f"s_mul_i32 s29, s16, 3072\ns_add_u32 s29, s29, {TL}\nv_add_u32 v7, s29, v1")
    for u in range(1):
        k(f"ds_write_b128 v7, {v(PR+8*u,4)} offset:{u*1024}")
    k("s_waitcnt lgkmcnt(0)\ns_barrier")
    for j in range(PF - 1):
        k(rd(j))
    head()
    k(f"""
s_mov_b32 s26, {2*SB}
s_mov_b32 s27, 0
s_sub_u32 s52, s33, s19
s_and_b32 s52, s52, 3
s_lshl_b32 s52, s52, 10
s_add_u32 s52, s52, s62
s_add_u32 s52, s52, {8*3072-1024}
s_mov_b32 s53, 0xfffefffe
v_mov_b32 v14, 0
""")
    for i in range(36):
        k(f"v_pk_mul_f32 {v(ACC+2*i,2)}, {v(14,2)}, {v(14,2)} op_sel_hi:[0,0]")
    k.mark(11)
    k(".p2align 6")
    k.label("eloop")
    for st3 in range(3):
        for kk in range(4):
            p = 4 * st3 + kk
            f = h_ops((p + LA) % 12)
            if p + LA == 12:
                f = [f"s_add_u32 s27, s27, 1\ns_cmp_ge_u32 s27, 3", f"s_cselect_b32 s20, {OOB}, s20"] + f
            if kk == 3:
                f = f + [f"s_add_u32 s26, s26, {SB}\ns_cmp_ge_u32 s26, {4*SB}", "s_cselect_b32 s26, 0, s26"]
            for t in range(9):
                j = 9 * kk + t
                if t % WG == 0:
                    w = f"lgkmcnt({PF-1-WG})"
                    if t == 0:
                        w = f"vmcnt({2*(LA-1)}) " + w
                    k("s_waitcnt " + w)
                if t == 0 and kk == 3:
                    k("s_barrier")
                for T in range(2):
                    d = v(ACC + (2*t+T)*4, 4)
                    k(f"{M} {d}, {v(WF+4*(j%PF),4)}, {hreg(st3,kk,T)}, {d}")
                    if T == 0:
                        k(rd(j + PF - 1))
                    elif f and t >= 1:
                        k(f.pop(0))
            assert not f, f
        k(f"v_mov_b32 v5, v6\nv_add_u32 v6, s26, v1")
        if st3 == 1:
            k(f"s_cmp_eq_u32 s27, 3\ns_cbranch_scc1 {k.lab('elast')}")
    k(f"s_branch {k.lab('eloop')}")
    k.label("elast")
    PKR = HV
    def pack(t, R):
        A0, A1 = ACC + 8*t, ACC + 8*t + 4
        return [f"v_cvt_pk_bf16_f32 v{R}, v{A0}, v{A0+1}\nv_cvt_pk_bf16_f32 v{R+2}, v{A1}, v{A1+1}",
                f"v_cvt_pk_bf16_f32 v{R+1}, v{A0+2}, v{A0+3}\nv_cvt_pk_bf16_f32 v{R+3}, v{A1+2}, v{A1+3}",
                f"v_min_u32 v{R}, s53, v{R}\nv_min_u32 v{R+2}, s53, v{R+2}",
                f"v_min_u32 v{R+1}, s53, v{R+1}\nv_min_u32 v{R+3}, s53, v{R+3}",
                f"v_permlane16_swap_b32 v{R}, v{R+2}",
                f"v_permlane16_swap_b32 v{R+1}, v{R+3}"]
    order = [(0, t) for t in range(8)]
    for t in (1, 2, 3, 5, 6, 7, 8, 0, 4):
        order += [(kk, t) for kk in range(4) if (kk, t) not in order]
    k(f"s_cmp_eq_u32 s19, s33\ns_cselect_b32 s52, {OOB}, s52")
    fq = []; delay = []
    ns = 0
    for n, (kk, t) in enumerate(order):
        left = len(order) - 1 - n
        w = f"lgkmcnt({min(PF - 2, left)})"
        if n == 0: w = f"vmcnt({2*(LA-1)}) " + w
        if n == 8: w = f"vmcnt(0) " + w
        k("s_waitcnt " + w)
        for T in range(2):
            d = v(ACC + (2*t+T)*4, 4)
            k(f"{M} {d}, {v(WF+4*(n%PF),4)}, {hreg(2,kk,T)}, {d}")
            if T == 0 and n + PF - 1 < len(order):
                k2, t2 = order[n + PF - 1]
                k(f"ds_read_b128 {v(WF+4*((n+PF-1)%PF),4)}, v5 offset:{(9*k2+t2)*1024}")
            if fq: k(fq.pop(0))
        fq += delay; delay = []
        if kk == 3 and t not in (0, 4):
            R = PKR + 4*ns; ns += 1
            if t < 8:
                ad = f"s_mul_i32 s29, s{40 + (t & 3)}, 3072\ns_add_u32 s29, s29, s62" + (f"\ns_add_u32 s29, s29, {4*3072}" if t >= 4 else "\ns_nop 0")
                st_ = f"buffer_store_dwordx4 {v(R,4)}, v1, s[12:15], s29 offen offset:{((t & 3) - 1)*1024} sc1"
            else:
                ad = "s_nop 2"; st_ = f"buffer_store_dwordx4 {v(R,4)}, v1, s[12:15], s52 offen sc1"
            pk = pack(t, R)
            delay = [ad + "\n" + pk[0]] + pk[1:5] + [pk[5] + "\n" + st_]
    for x in fq: k(x)
    k.mark(12)
    k("s_nop 4")
    for i, t in ((2, 8), (0, 0), (1, 4)):
        for T in range(2):
            k(f"ds_write_b128 v{XV}, {v(ACC+8*t+4*T,4)} offset:{(2*i+T)*1024}")
    k("s_waitcnt lgkmcnt(0)\ns_barrier")
```

```python
from common import *
from prep import *

SLOT = 34816
XB = 16384
NS = 4
LST = NS * SLOT
LCS = LST + 1024
LNO = LCS + 1024
QSCALE = (DH ** -0.5) * math.log2(math.e)
M = "v_mfma_f32_16x16x32_bf16"

def get_nonce(k, name, vt):
    k(f"s_mov_b32 s60, 0\ns_branch {k.lab(name + 'c')}")
    k.label(name)
    k(f"s_sleep 2\nglobal_load_dwordx2 v[{vt}:{vt+1}], v{vt+2}, s[38:39] sc1\ns_add_u32 s60, s60, 1\ns_waitcnt vmcnt(0)")
    k.label(name + "c")
    k(f"""
v_readfirstlane_b32 s{NLO}, v{vt}
v_readfirstlane_b32 s{NHI}, v{vt+1}
s_cmp_ge_u32 s60, {POLLMAX}
s_cbranch_scc1 {k.lab(name + 'x')}
s_cmp_eq_u32 s{NLO}, 0
s_cbranch_scc1 {k.lab(name)}
""")
    k.label(name + "x")

def phase_a(k, rot="0", RP=1, tr="", pf=0, cl2=2, NSW=26, wsl=0, nodup=True):
    assert 8 * (37 - NSW) >= 81
    XV0, XV1, WV = 2, 3, 4
    XR, WR, XA, WA = 8, 10, 12, 14
    LT, LG = 22, 23
    ONE = 24
    WF = [28, 64]
    XF = [100, 108]
    ACC = 116
    T0 = 216
    k(f"""
v_and_b32 v{LT}, 15, v0
v_lshrrev_b32 v{LG}, 4, v0
s_and_b32 s3, s16, 3
s_and_b32 s26, s2, 7
s_lshr_b32 s27, s2, 3
s_lshr_b32 s17, s26, 1
s_lshl_b32 s17, s17, 2
s_and_b32 s50, s27, 3
s_add_u32 s17, s17, s50          ; rb
s_and_b32 s18, s26, 1
s_mul_i32 s18, s18, 6
s_lshr_b32 s51, s27, 2
s_add_u32 s18, s18, s51          ; nb
s_lshl_b32 s48, s17, 2
s_add_u32 s48, s48, s3
s_lshl_b32 s49, s3, 12
s_cmp_ge_u32 s2, 192
s_cbranch_scc1 {k.lab('aux')}
s_cmp_lt_u32 s16, 4
s_cbranch_scc1 {k.lab('acons')}
; ---- producer ----
""")
    if rot == "4":
        k("s_add_u32 s25, s51, s50\ns_and_b32 s25, s25, 3\ns_mul_i32 s25, s25, 9\ns_lshr_b32 s25, s25, 2")
    elif rot == "3":
        k("s_add_u32 s25, s51, s50\ns_mul_i32 s50, s25, 86\ns_lshr_b32 s50, s50, 8\ns_mul_i32 s50, s50, 3\ns_sub_u32 s25, s25, s50\ns_mul_i32 s25, s25, 3")
    elif rot == "0":
        k("s_mov_b32 s25, 0")
    elif rot == "2":
        k("s_add_u32 s25, s51, s50\ns_and_b32 s25, s25, 1\ns_lshl_b32 s25, s25, 2")
    else:
        k("""s_lshl_b32 s25, s51, 1
s_mul_i32 s50, s50, 7
s_add_u32 s25, s25, s50
s_lshr_b32 s50, s26, 1
s_add_u32 s25, s25, s50
s_and_b32 s50, s26, 1
s_mul_i32 s50, s50, 3
s_add_u32 s25, s25, s50
s_mul_i32 s50, s25, 7282
s_lshr_b32 s50, s50, 16
s_mul_i32 s50, s50, 9
s_sub_u32 s25, s25, s50""")
    k(f"""
s_mul_i32 s19, s48, {32*1152}
s_mul_i32 s20, s18, 288
v_lshrrev_b32 v{T0}, 3, v0
v_mul_u32_u24 v{T0}, 1152, v{T0}
v_and_b32 v{T0+1}, 7, v0
v_xor_b32 v{T0+1}, v{T0+1}, v{LG}
v_lshl_add_u32 v{XV0}, v{T0+1}, 4, v{T0}
v_xor_b32 v{T0+1}, 4, v{T0+1}
v_lshl_add_u32 v{XV1}, v{T0+1}, 4, v{T0}
""")
    for n in range(5):
        k(f"s_add_u32 s{52+n}, s3, {4*n}")
        if n == 4:
            k("s_add_u32 s50, s3, 12\ns_cmp_ge_u32 s56, 18\ns_cselect_b32 s56, s50, s56")
        k(f"""
s_lshl_b32 s50, s{52+n}, 6
v_add_u32 v{T0}, s50, v0
v_mul_u32_u24 v{T0+1}, 3641, v{T0}
v_lshrrev_b32 v{T0+1}, 16, v{T0+1}
v_mul_u32_u24 v{T0+2}, 18, v{T0+1}
v_sub_u32 v{T0+2}, v{T0}, v{T0+2}
v_and_b32 v{T0+3}, 0x33, v{T0+1}
v_and_b32 v{T0+4}, 4, v{T0+1}
v_lshl_or_b32 v{T0+3}, v{T0+4}, 1, v{T0+3}
v_bfe_u32 v{T0+4}, v{T0+1}, 3, 1
v_lshl_or_b32 v{T0+3}, v{T0+4}, 2, v{T0+3}
v_mul_u32_u24 v{T0+3}, 3456, v{T0+3}
v_lshl_add_u32 v{WV+n}, v{T0+2}, 4, v{T0+3}
s_lshl_b32 s{52+n}, s{52+n}, 10
s_add_u32 s{52+n}, s{52+n}, {XB}
""")
    if nodup:
        k(f"s_cmp_ge_u32 s3, 2\ns_cselect_b64 vcc, -1, 0\nv_mov_b32 v{T0}, {OOB}\ns_cselect_b32 s59, 0, -1\ns_cselect_b32 s56, {LNO + 1024}, s56\nv_cndmask_b32 v{WV+4}, v{WV+4}, v{T0}, vcc")
    k("s_waitcnt lgkmcnt(0)")
    k.srd(4, 28, S * D * 2)
    k.srd(8, 30, D * 3 * D * 2)
    k.srd(12, 34, WS_BYTES)
    k("s_mov_b32 s23, 0\ns_mov_b32 s24, 0\ns_mov_b32 s57, 0\nv_mov_b32 v12, 0\nv_mov_b32 v13, 0")
    TR = "s_memtime s[62:63]\ns_lshl_b32 m0, s24, 1\ns_waitcnt lgkmcnt(0)\ns_movreld_b32 s60, s62"
    k.label("ploop")
    k(f"""
s_lshl_b32 s21, s25, 7
s_add_u32 s21, s21, s19
s_mul_i32 s22, s25, {64*3456}
s_add_u32 s22, s22, s20
s_add_u32 s50, s49, s23
""")
    for n in range(4):
        k(f"s_add_u32 m0, s50, {n*1024}\ns_add_u32 s51, s21, {n*8*1152}\nbuffer_load_dwordx4 v{XV0 + (n & 1)}, s[4:7], s51 offen lds")
    for n in range(5):
        if n == 4 and nodup:
            k(f"s_and_b32 s51, s23, s59\ns_add_u32 m0, s56, s51\ns_nop 0\nbuffer_load_dwordx4 v{WV+n}, s[8:11], s22 offen lds")
        else:
            k(f"s_add_u32 m0, s{52+n}, s23\ns_nop 0\nbuffer_load_dwordx4 v{WV+n}, s[8:11], s22 offen lds")
    k(f"""
s_add_u32 s25, s25, 1
s_cmp_ge_u32 s25, 9
s_cselect_b32 s25, 0, s25
s_add_u32 s23, s23, {SLOT}
s_cmp_ge_u32 s23, {NS*SLOT}
s_cselect_b32 s23, 0, s23
s_add_u32 s24, s24, 1
s_cmp_eq_u32 s24, 1
s_cbranch_scc1 {k.lab('ploop')}
s_waitcnt vmcnt(9)
{TR if tr == "a0" else ""}
s_barrier
{TR if tr == "a1" else ""}
s_cmp_eq_u32 s16, 4
s_cbranch_scc1 {k.lab('pside')}
""")
    k.label("pback")
    k(f"""
s_cmp_lt_u32 s24, 9
s_cbranch_scc1 {k.lab('ploop')}
s_waitcnt vmcnt(0)
s_barrier
s_cmp_lg_u32 s16, 4
s_cbranch_scc1 {k.lab('pfin')}
""")
    k.mark(11)
    poll(k, "pa", 58, 13, 10, 60)
    side = f"""
s_mov_b32 m0, {LST}
s_lshl_b32 s50, s17, 10
s_add_u32 s50, s50, {STOFF}
buffer_load_dwordx4 v1, s[12:15], s50 offen sc1 lds
s_mov_b32 m0, {LCS}
s_mul_i32 s50, s18, 576
s_add_u32 s50, s50, {CSOFF}
buffer_load_dwordx4 v1, s[12:15], s50 offen sc1 lds
"""
    k(side + "s_waitcnt vmcnt(0)")
    k.label("pfin")
    k(f"s_barrier\ns_branch {k.lab('ajoin')}")
    k.label("pside")
    k(f"""
s_cmp_eq_u32 s24, 5
s_cbranch_scc1 {k.lab('ps5')}
s_cmp_eq_u32 s24, 8
s_cbranch_scc1 {k.lab('ps7')}
s_cmp_eq_u32 s24, 9
s_cbranch_scc1 {k.lab('ps8')}
s_cmp_lg_u32 s24, 4
s_cbranch_scc1 {k.lab('pback')}
global_load_dwordx2 v[10:11], v12, s[38:39] sc1
s_branch {k.lab('pback')}
""")
    k.label("ps5")
    get_nonce(k, "gn", 10)
    k(f"""
v_mov_b32 v14, {LNO}
ds_write_b64 v14, v[10:11]
s_lshl_b32 s50, s17, 3
v_and_b32 v13, 7, v0
v_add_u32 v13, s50, v13
s_mul_i32 s50, s18, 144
s_add_u32 s51, s50, 143
s_lshr_b32 s50, s50, 6
s_lshr_b32 s51, s51, 6
v_and_b32 v14, 3, v0
v_add_u32 v14, s50, v14
v_min_u32 v14, s51, v14
v_add_u32 v14, 209, v14
v_cmp_gt_u32 vcc, 8, v0
s_mov_b32 s58, {FSOFF}
s_waitcnt lgkmcnt(0)
v_cndmask_b32 v13, v14, v13, vcc
v_mul_u32_u24 v13, {FLS}, v13
s_branch {k.lab('pback')}
""")
    k.label("ps7")
    k(f"buffer_load_dwordx2 v[10:11], v13, s[12:15], s58 offen sc1\ns_branch {k.lab('pback')}")
    k.label("ps8")
    k(flag_check(10))
    k(f"s_nop 0\ns_cbranch_vccnz {k.lab('pback')}")
    k(side + f"s_waitcnt vmcnt(2)\ns_barrier\ns_waitcnt vmcnt(0)\ns_branch {k.lab('pfin')}")

    k.label("acons")
    k(f"""
s_cmp_lg_u32 s2, 0
s_cbranch_scc1 {k.lab('an')}
s_cmp_lg_u32 s16, 0
s_cbranch_scc1 {k.lab('an')}
s_memrealtime s[50:51]
s_waitcnt lgkmcnt(0)
s_lshr_b64 s[52:53], s[50:51], 29
s_xor_b32 s52, s52, 0x9e3779b9
s_lshl_b32 s50, s50, 2
s_or_b32 s50, s50, 0x80000000
v_mov_b32 v4, s50
v_mov_b32 v5, s52
v_mov_b32 v6, 0
s_mov_b64 exec, 1
global_store_dwordx2 v6, v[4:5], s[38:39] sc1
s_mov_b64 exec, -1
""")
    k.label("an")
    if pf:
        k(f"""
s_lshr_b32 s52, s26, 1
s_lshl_b32 s52, s52, 3
s_add_u32 s52, s52, s27
s_mul_i32 s52, s52, {64*1152}
v_mul_u32_u24 v2, 1152, v0
s_sub_u32 s53, s27, 8
s_lshl_b32 s53, s53, 6
v_add_u32 v3, s53, v0
v_mul_u32_u24 v4, 4682, v3
v_lshrrev_b32 v4, 16, v4
v_mul_u32_u24 v4, {3456 - 14*128}, v4
v_lshl_add_u32 v3, v3, 7, v4
s_and_b32 s53, s26, 1
s_mul_i32 s53, s53, 1664
s_mov_b32 s54, {64*3456}
s_cmp_lt_u32 s27, 8
s_cselect_b64 vcc, -1, 0
s_cselect_b32 s52, s52, s53
s_cselect_b32 s54, 128, s54
s_waitcnt lgkmcnt(0)
s_cselect_b64 s[4:5], s[28:29], s[30:31]
s_mov_b32 s6, {D*3*D*2}
s_cselect_b32 s6, {S*D*2}, s6
s_mov_b32 s7, 0x20000
v_cndmask_b32 v2, v3, v2, vcc
s_cmp_ge_u32 s27, 22
s_cselect_b32 s52, {OOB}, s52
s_mul_i32 s53, s54, s3
s_add_u32 s21, s52, s53
s_lshl_b32 s22, s54, 2
buffer_load_dword v7, v2, s[4:7], s21 offen
s_add_u32 s21, s21, s22
""")
        if pf == 1:
            k(f"buffer_load_dword v7, v2, s[4:7], s21 offen\ns_add_u32 s21, s21, s22\ns_cmp_eq_u32 s3, 0\ns_cselect_b32 s21, s21, {OOB}\nbuffer_load_dword v7, v2, s[4:7], s21 offen")
    if cl2 == 1:
        k.code_l2(k.name, k.lab("end"), 5, 5, 50)
    k("s_waitcnt lgkmcnt(0)")
    k.srd(12, 34, WS_BYTES)
    VO, VX = 20, 21
    k(f"""
s_lshr_b32 s19, s18, 2           ; which
s_and_b32 s20, s18, 3            ; hg
v_lshrrev_b32 v{T0}, 1, v{LT}
v_xor_b32 v{T0}, v{T0}, v{LG}
v_lshlrev_b32 v{T0}, 4, v{T0}
v_lshl_add_u32 v{T0}, v{LT}, 7, v{T0}
v_add_u32 v{XR}, s49, v{T0}
v_xor_b32 v{XR+1}, 64, v{XR}
v_lshrrev_b32 v{T0}, 5, v0
v_lshlrev_b32 v{T0}, 4, v{T0}
v_bfe_u32 v{T0+1}, v0, 2, 3
v_add_u32 v{T0}, v{T0}, v{T0+1}
v_mul_u32_u24 v{T0}, 288, v{T0}
v_add_u32 v{T0}, {XB}, v{T0}
v_bfe_u32 v{T0+1}, v0, 1, 1
v_mul_u32_u24 v{T0+1}, 40, v{T0+1}
v_and_b32 v{T0+2}, 1, v0
v_lshl_add_u32 v{T0+1}, v{T0+2}, 4, v{T0+1}
v_add_u32 v{WR}, v{T0}, v{T0+1}
v_and_b32 v{T0+2}, 3, v0
v_mul_u32_u24 v{T0+2}, 72, v{T0+2}
v_add3_u32 v{WR+1}, v{T0}, v{T0+2}, 32
s_mov_b32 s55, {KVHEAD}
s_mov_b32 s56, {KVBLK}
s_mov_b32 s60, {KV_K2}
s_mov_b32 s59, 512
s_cmp_eq_u32 s19, 0
s_cselect_b32 s55, {QHEAD}, s55          ; HS
s_cselect_b32 s56, {QBLK}, s56           ; BS
s_cselect_b32 s57, {QOFF}, {KVOFF}
s_cselect_b32 s60, 1024, s60             ; cx
s_cselect_b32 s62, {f2u(QSCALE):#x}, 1.0
s_cmp_eq_u32 s19, 2
s_cselect_b32 s58, {KV_V0}, 0            ; c0
s_cselect_b32 s59, {KV_V1-KV_V0}, s59    ; c1-c0
s_cselect_b32 s60, {KV_V2}, s60
s_cselect_b32 s61, 3, 2
s_mul_i32 s52, s48, s56
s_add_u32 s57, s57, s52
s_lshl_b32 s52, s20, 3
s_mul_i32 s52, s52, s55
s_add_u32 s57, s57, s52
s_add_u32 s60, s60, s57
s_add_u32 s57, s57, s58
v_lshrrev_b32 v{T0+2}, 1, v{LG}
v_mul_lo_u32 v{VO}, v{T0+2}, s55
v_lshlrev_b32 v{VX}, 2, v{VO}
v_and_b32 v{T0+3}, 1, v{LG}
v_mul_lo_u32 v{T0+4}, v{T0+3}, s59
v_lshlrev_b32 v{T0+5}, 4, v{LT}
v_add3_u32 v{VO}, v{VO}, v{T0+4}, v{T0+5}
v_and_b32 v{T0+4}, 31, v0
v_lshlrev_b32 v{T0+4}, s61, v{T0+4}
v_add_u32 v{VX}, v{VX}, v{T0+4}
v_mul_u32_u24 v18, 80, v{T0+2}
v_lshl_add_u32 v18, v{T0+3}, 5, v18
v_add_u32 v18, {LCS}, v18
v_mul_u32_u24 v19, 144, v{LG}
v_add_u32 v19, {LCS + 64}, v19
s_lshl_b32 s52, s3, 8
s_add_u32 s52, s52, {LST}
v_lshl_add_u32 v17, v{LT}, 3, s52
v_mov_b32 v16, 0
""")
    for i in range(36):
        k(f"v_pk_mul_f32 {v(ACC+2*i,2)}, {v(16,2)}, {v(16,2)} op_sel_hi:[0,0]")
    for i in range(2):
        k(f"v_mov_b32 v{XA+i}, v{XR+i}\nv_mov_b32 v{WA+i}, v{WR+i}")

    def reads(ks, buf):
        r = []
        for T in range(2):
            r.append(f"ds_read_b128 {v(XF[buf]+4*T,4)}, v{XA+ks} offset:{T*2048}")
        for t in range(9):
            for i in range(2):
                off = ks * 32 * 288 + i * 8 * 288 + (((t >> 1) * 72 + (t & 1) * 8) if t < 8 else 0)
                r.append(f"ds_read_b64_tr_b16 {v(WF[buf]+4*t+2*i,2)}, v{WA + (1 if t == 8 else 0)} offset:{off}")
        return r

    def half(buf, rd, extra):
        done = 0
        for t in range(9):
            need = 2 + 2 * (t + 1)
            k(f"s_waitcnt lgkmcnt({min(15, 20 - need + done)})")
            for T in range(2):
                d = v(ACC + (2*t+T)*4, 4)
                k(f"{M} {d}, {v(WF[buf]+4*t,4)}, {v(XF[buf]+4*T,4)}, {d}")
                n = 2 if (2*t + T) < 2 + 2*(RP-1) * 4 else 1
                for _ in range(n):
                    if rd:
                        k(rd.pop(0)); done += 1
        assert not rd
        for x in extra: k(x)
    if pf == 2:
        k(f"s_waitcnt vmcnt(0)\nbuffer_load_dword v7, v2, s[4:7], s21 offen\ns_add_u32 s21, s21, s22\ns_cmp_eq_u32 s3, 0\ns_cselect_b32 s21, s21, {OOB}\nbuffer_load_dword v7, v2, s[4:7], s21 offen")
    k.mark(0)
    k("s_barrier")
    k.mark(1)
    for r in reads(0, 0):
        k(r)
    k("s_mov_b32 s24, 0\ns_mov_b32 s25, 0")
    k(".p2align 6")
    k.label("aloop")
    upd = [f"s_add_u32 s24, s24, {SLOT}\ns_cmp_ge_u32 s24, {NS*SLOT}\ns_cselect_b32 s24, 0, s24\ns_add_u32 s25, s25, 1"] + \
          [f"v_add_u32 v{XA+i}, s24, v{XR+i}\nv_add_u32 v{WA+i}, s24, v{WR+i}" for i in range(2)] + ["s_barrier"]
    half(0, reads(1, 1), upd)
    half(1, reads(0, 0), [])
    k(f"s_cmp_lt_u32 s25, 9\ns_cbranch_scc1 {k.lab('aloop')}")
    k.mark(2)
    RS, CS, PK, OUT = 188, 64, 192, 28
    for T in range(2):
        k(f"ds_read_b64 {v(RS+2*T,2)}, v17 offset:{T*128}")
    for t in range(9):
        if t < 8:
            k(f"ds_read_b128 {v(CS+4*t,4)}, v18 offset:{(t>>1)*144 + (t&1)*16}")
        else:
            k(f"ds_read_b128 {v(CS+4*t,4)}, v19")
    k("s_lshl_b32 s56, s55, 1\ns_waitcnt lgkmcnt(7)")
    for T in range(2):
        k(f"v_mul_f32 v{RS+2*T}, s62, v{RS+2*T}\nv_mul_f32 v{RS+2*T+1}, v{RS+2*T}, -v{RS+2*T+1}")
    def fix(acc, cs, T, dst, tmp):
        rs = v(RS+2*T, 2)
        return f"""
v_pk_mul_f32 {v(tmp,2)}, {v(cs,2)}, {rs} op_sel:[0,1] op_sel_hi:[1,1]
v_pk_mul_f32 {v(tmp+2,2)}, {v(cs+2,2)}, {rs} op_sel:[0,1] op_sel_hi:[1,1]
v_pk_fma_f32 {v(tmp,2)}, {v(acc,2)}, {rs}, {v(tmp,2)} op_sel:[0,0,0] op_sel_hi:[1,0,1]
v_pk_fma_f32 {v(tmp+2,2)}, {v(acc+2,2)}, {rs}, {v(tmp+2,2)} op_sel:[0,0,0] op_sel_hi:[1,0,1]
v_cvt_pk_bf16_f32 v{dst[0]}, v{tmp}, v{tmp+1}
v_cvt_pk_bf16_f32 v{dst[1]}, v{tmp+2}, v{tmp+3}
"""
    for j in range(4):
        if j == 1:
            k("s_waitcnt lgkmcnt(0)")
        for T in range(2):
            o = OUT + (2*j+T)*4
            for t in range(2):
                k(fix(ACC + (2*(2*j+t)+T)*4, CS + 4*(2*j+t), T, (o + 2*t, o + 2*t + 1), PK + 4*t))
            k(f"buffer_store_dwordx4 {v(o,4)}, v{VO}, s[12:15], s57 offen offset:{T*256} sc1")
        k("s_add_u32 s57, s57, s56")
    XO = 200
    for T in range(2):
        k(fix(ACC + (16+T)*4, CS + 32, T, (XO + 4*T, XO + 4*T + 2), PK + 4*T))
    for i in range(4):
        k(f"v_mov_b32 v{XO+2*i+1}, 0x3f80")
    k(f"""
v_permlane16_swap_b32 v{XO}, v{XO+4}
v_permlane16_swap_b32 v{XO+2}, v{XO+6}
s_cmp_eq_u32 s19, 2
s_cbranch_scc1 {k.lab('xv')}
""")
    for i in range(4):
        k(f"buffer_store_dword v{XO+2*i}, v{VX}, s[12:15], s60 offen sc1\ns_add_u32 s60, s60, s55")
    k(f"s_branch {k.lab('ajoin')}")
    k.label("xv")
    for i in range(4):
        k(f"buffer_store_dwordx2 {v(XO+2*i,2)}, v{VX}, s[12:15], s60 offen sc1\ns_add_u32 s60, s60, s55")
    k.label("ajoin")
    k.mark(3)
    k(f"""
v_mov_b32 v4, {LNO}
ds_read_b64 v[4:5], v4
s_lshl_b32 s50, s18, 4
s_add_u32 s50, s50, s17
s_mul_i32 s50, s50, {FLS}
s_add_u32 s50, s50, {FAOFF}
s_cmp_lg_u32 s16, 0
s_cselect_b32 s50, {OOB}, s50
s_waitcnt lgkmcnt(0)
v_readfirstlane_b32 s{NLO}, v4
v_readfirstlane_b32 s{NHI}, v5
s_waitcnt vmcnt(0)
s_barrier
""")
    k.mark(12)
    set_flag(k, 50, 4)
    k(f"s_branch {k.lab('aend')}")

    k.label("aux")
    if cl2 == 2:
        k(f"s_cmp_lg_u32 s16, 7\ns_cbranch_scc1 {k.lab('aux2')}\ns_sub_u32 s53, s27, 24")
        k.code_l2_one(k.name, k.lab("end"), 53, 18, 50)
        k.label("aux2")
    for i in range(4):
        k(f"v_mov_b32 v{ONE+i}, 0x3f803f80")
    k("v_mov_b32 v14, 0\nv_mov_b32 v15, 0\nv_mov_b32 v16, 0\ns_waitcnt lgkmcnt(0)")
    k.srd(12, 34, WS_BYTES)
    k(f"""
s_sub_u32 s17, s2, 192
s_mov_b32 s63, {OOB}
s_cmp_lt_u32 s17, 27
s_cbranch_scc1 {k.lab('acs')}
s_sub_u32 s17, s17, 27
s_mul_i32 s18, s16, {NSW}
s_add_u32 s18, s18, s17
s_cmp_ge_u32 s18, 128
s_cselect_b32 s18, 999, s18
s_mul_i32 s19, s16, {37 - NSW}
s_add_u32 s19, s19, s17
s_add_u32 s19, s19, {128 - NSW}
s_cmp_lt_u32 s17, {NSW}
s_cselect_b32 s17, s18, s19      ; job
s_cmp_ge_u32 s17, 209
s_cbranch_scc1 {k.lab('aidle')}
s_mul_i32 s63, s17, {FLS}
s_add_u32 s63, s63, {FSOFF}
s_cmp_lt_u32 s17, 128
s_cbranch_scc1 {k.lab('ast')}
""")
    k.srd(24, 32, D * D * 2)
    if wsl: k(f"s_sleep {wsl}")
    k(f"""
s_cmp_ge_u32 s17, 173
s_cbranch_scc1 {k.lab('awb')}
s_sub_u32 s18, s17, 128
s_mov_b32 s50, 1152
s_mov_b32 s54, 36864
s_mov_b32 s55, 1024
s_mov_b32 s52, {36*1152}
s_mov_b32 s56, 8
s_mov_b32 s57, 20
s_mov_b32 s58, 4
s_mul_i32 s19, s18, 7282
s_lshr_b32 s19, s19, 16
s_mul_i32 s20, s19, 9
s_sub_u32 s20, s18, s20
s_mul_i32 s51, s19, {4*36*1152}
s_mul_i32 s53, s19, {4*36864}
s_add_u32 s53, s53, {WOOFF}
s_lshl_b32 s21, s20, 12
s_add_u32 s53, s53, s21
s_cmp_ge_u32 s18, 36
s_cselect_b32 s51, {16*1152}, s51
s_cselect_b32 s52, {288*1152}, s52
s_cselect_b32 s56, 72, s56
s_cselect_b32 s57, 144, s57
s_cselect_b32 s58, 36, s58
s_lshl_b32 s21, s20, 7
s_add_u32 s51, s51, s21
s_lshl_b32 s21, s16, 11
""")
    prep_addr(k, 2, 3, 4, 12, 21)
    prep_loads(k, range(4), 28, 2)
    k("global_load_dwordx2 v[14:15], v16, s[38:39] sc1")
    prep_process(k, 28, 92, 3, 4, total=17)
    k(f"s_branch {k.lab('asyn')}")
    k.label("awb")
    k(f"""
s_sub_u32 s17, s17, 173
s_lshr_b32 s18, s17, 1
s_and_b32 s19, s17, 1
s_mul_i32 s20, s18, 36
s_mul_i32 s21, s19, 20
s_add_u32 s20, s20, s21
v_add_u32 v2, s20, v{LT}
s_sub_u32 s20, s17, 32
s_mul_i32 s20, s20, 144
s_add_u32 s20, s20, 16
v_lshrrev_b32 v3, 2, v{LT}
v_mul_u32_u24 v3, 36, v3
v_and_b32 v4, 3, v{LT}
v_add3_u32 v3, v3, v4, s20
s_cmp_ge_u32 s17, 32
s_cselect_b64 vcc, -1, 0
s_mov_b32 s22, 1
v_cndmask_b32 v2, v2, v3, vcc
s_branch {k.lab('arow')}
""")
    k.label("ast")
    k.srd(24, 28, S * D * 2)
    k(f"s_lshl_b32 s20, s17, 4\nv_add_u32 v2, s20, v{LT}\ns_mov_b32 s22, 0")
    k.label("arow")
    k(f"v_mul_u32_u24 v2, 1152, v2\nv_lshl_add_u32 v2, v{LG}, 4, v2")
    for n in range(18):
        k(f"buffer_load_dwordx4 {v(28+4*n,4)}, v2, s[24:27], 0 offen offset:{n*64}")
    k("global_load_dwordx2 v[14:15], v16, s[38:39] sc1")
    for n in range(18):
        k(f"s_waitcnt vmcnt({18-n})")
        k(f"{M} v[4:7], {v(ONE,4)}, {v(28+4*n,4)}, {'0' if n == 0 else 'v[4:7]'}")
        k(f"{M} v[8:11], {v(28+4*n,4)}, {v(28+4*n,4)}, {'0' if n == 0 else 'v[8:11]'}")
    k(f"""
s_mov_b32 s50, {f2u(1.0/D):#x}
v_and_b32 v12, 1, v0
v_cmp_eq_u32 s[52:53], 1, v12
v_and_b32 v12, 2, v0
v_cmp_eq_u32 s[54:55], 2, v12
v_lshrrev_b32 v12, 2, v{LT}
v_cmp_eq_u32 s[56:57], v12, v{LG}
s_cmp_eq_u32 s22, 0
s_nop 0
v_mul_f32 v5, s50, v4
s_cbranch_scc1 {k.lab('ast2')}
s_lshl_b32 s51, s17, 5
s_add_u32 s51, s51, {WBAROFF}
v_lshlrev_b32 v2, 1, v{LT}
v_cvt_pk_bf16_f32 v6, v5, v5
v_and_b32 v7, 0xffff0000, v6
v_sub_f32 v7, v5, v7
v_cvt_pk_bf16_f32 v7, v7, v7
s_mov_b64 exec, 0xffff
buffer_store_short v6, v2, s[12:15], s51 offen sc1
buffer_store_short v7, v2, s[12:15], s51 offen offset:1152 sc1
s_mov_b64 exec, -1
s_branch {k.lab('asyn')}
""")
    k.label("ast2")
    k(f"""
v_cndmask_b32 v8, v8, v9, s[52:53]
v_cndmask_b32 v10, v10, v11, s[52:53]
v_cndmask_b32 v8, v8, v10, s[54:55]
v_mul_f32 v9, v5, v5
v_fma_f32 v8, v8, s50, -v9
v_max_f32 v8, 0, v8
v_add_f32 v8, {f2u(1e-5):#x}, v8
v_rsq_f32 v4, v8
s_lshl_b32 s51, s17, 7
s_add_u32 s51, s51, {STOFF}
v_lshlrev_b32 v2, 3, v{LT}
s_mov_b64 exec, s[56:57]
buffer_store_dwordx2 v[4:5], v2, s[12:15], s51 offen sc1
s_mov_b64 exec, -1
s_branch {k.lab('asyn')}
""")
    k.label("acs")
    k.srd(24, 30, D * 3 * D * 2)
    k(f"""
v_lshrrev_b32 v2, 3, v0
v_mul_u32_u24 v2, 3456, v2
v_and_b32 v3, 7, v0
v_lshl_add_u32 v2, v3, 4, v2
s_mul_i32 s18, s16, {72*3456}
s_lshl_b32 s19, s17, 7
s_add_u32 s18, s18, s19
""")
    for n in range(9):
        k(f"buffer_load_dwordx4 {v(28+4*n,4)}, v2, s[24:27], s18 offen\ns_add_u32 s18, s18, {8*3456}")
    for n in range(9):
        k(f"s_waitcnt vmcnt({8-n if n == 0 else 9-n})")
        if n == 0: k("global_load_dwordx2 v[14:15], v16, s[38:39] sc1")
        for d in range(4):
            if n == 0:
                k(f"v_lshlrev_b32 v{4+2*d}, 16, v{28+d}\nv_and_b32 v{5+2*d}, 0xffff0000, v{28+d}")
            else:
                k(f"v_lshlrev_b32 v12, 16, v{28+4*n+d}\nv_and_b32 v13, 0xffff0000, v{28+4*n+d}\nv_pk_add_f32 {v(4+2*d,2)}, {v(4+2*d,2)}, v[12:13]")
    k(f"""
s_lshl_b32 s18, s16, 11
v_lshl_add_u32 v2, v0, 5, s18
ds_write_b128 v2, v[4:7]
ds_write_b128 v2, v[8:11] offset:16
""")
    k(f"""
s_waitcnt lgkmcnt(0)
s_barrier
s_cmp_lg_u32 s16, 0
s_cbranch_scc1 {k.lab('asyn')}
v_lshlrev_b32 v2, 2, v0
""")
    for i in range(32):
        k(f"ds_read2st64_b32 {v(28+2*i,2)}, v2 offset0:{2*i} offset1:{2*i+1}")
    for i in range(1, 32):
        if i in (1, 17, 25): k(f"s_waitcnt lgkmcnt({ {1: 15, 17: 7, 25: 0}[i] })")
        k(f"v_pk_add_f32 {v(28+2*(i&1),2)}, {v(28+2*(i&1),2)}, {v(28+2*i,2)}" if i > 1 else "")
    k("v_pk_add_f32 v[8:9], v[28:29], v[30:31]")
    k(f"""
v_add_f32 v8, v8, v9
s_lshl_b32 s18, s17, 8
s_add_u32 s18, s18, {CSOFF}
buffer_store_dword v8, v2, s[12:15], s18 offen sc1
s_add_u32 s63, s17, 209
s_mul_i32 s63, s63, {FLS}
s_add_u32 s63, s63, {FSOFF}
""")
    k(f"s_branch {k.lab('asyn')}")
    k.label("aidle")
    k("s_sleep 40")
    k.label("asyn")
    k.mark(8)
    k("s_waitcnt vmcnt(0)")
    get_nonce(k, "ga", 14)
    k.mark(10)
    k("s_nop 0")
    set_flag(k, 63, 4)
    k("s_barrier")
    k.label("aend")
```

```python
from common import *
from prep import *
from pa import phase_a
KNAME = 'sequential_preLN__softmax_full_mha__glu_gated_bilinear__prompt_kernel'

SCR = KVHEAD
UB = 36864
CB = 12288
HALF = 32 * KVBLK
OST = 163840 - UB
MRG = OST - 25600
MUL = OST - 1024
O2OFF = OOFF + 64 * CH
M16 = "v_mfma_f32_32x32x16_bf16"
M8 = "v_mfma_f32_32x32x8_bf16"
M = "v_mfma_f32_16x16x32_bf16"


def gen_km(diag=False, U=4, upto=9, ld="sc1", dbg="", NO=10, ST=(4, 5, 8, 9), NPRE=8, NF1=16, SL=2, one=True, CR=6, dopt={}, eopt={}, aopt={}, full=0xffff, wsc=True, pl='sc1', ps='sc1', warm=True, b0=False, otch=0):
    assert ST[3] < NO and ST[0] > 2
    k = Kern(KNAME, 256, 512, 163840, vgpr=256, idx=1, diag=diag, nm=14, mb=64)
    SLEEP[0] = SL
    FULL[0] = full
    PL[0] = pl
    PS[0] = ps
    mk = k.mark
    if dbg == "a":
        late = lambda i: mk(i + 4) if i < 3 else None
    elif dbg == "c":
        late = lambda i: mk(i) if 2 <= i <= 8 else None
    else:
        late = mk
    k.stamp_start()
    AK1, AK2, AV = 2, 3, 4
    BK1 = 8
    SS = [16, 32]
    OO = [48, 96]
    P, K1, K2, V0, V1 = 64, 72, 76, 80, 84
    Q1 = [88, 112]
    Q2 = [92, 116]
    T0 = 118
    DAT, FR, PVS, PVW, PVR = 128, 192, 224, 225, 226
    WV = 14
    k(f"""
s_cmp_ge_u32 s2, 256
s_cbranch_scc1 {k.lab('end')}
s_load_dwordx4 s[28:31], s[0:1], {ARG_X}
s_load_dwordx2 s[32:33], s[0:1], {ARG_WO}
s_load_dwordx2 s[34:35], s[0:1], {ARG_WS}
s_load_dwordx2 s[38:39], s[0:1], {ARG_DBG}
s_load_dwordx8 s[40:47], s[0:1], {ARG_WG}
v_lshrrev_b32 v1, 6, v0
v_and_b32 v0, 63, v0
v_readfirstlane_b32 s16, v1
v_lshlrev_b32 v1, 4, v0
s_mov_b32 s95, s16
""")
    if dbg != "a":
        k.mark = lambda i: None
    if dbg in ("a0", "a1"):
        aopt = dict(aopt, tr=dbg); late = lambda i: None
    phase_a(k, **aopt)
    k.mark = late
    k(f"""
s_and_b32 s17, s2, 7
s_lshl_b32 s17, s17, 2
s_bfe_u32 s18, s2, 0x20003
s_add_u32 s17, s17, s18          ; head
s_lshr_b32 s18, s2, 5
s_lshl_b32 s18, s18, 3
s_and_b32 s19, s16, 3
s_lshl_b32 s19, s19, 1
s_add_u32 s18, s18, s19
s_lshr_b32 s33, s16, 2           ; kh
s_mul_i32 s63, s17, {QHEAD}
s_mul_i32 s22, s18, {QBLK}
s_add_u32 s63, s63, s22
s_add_u32 s63, s63, {QOFF}
s_mul_i32 s22, s17, {KVHEAD}
s_lshl_b32 s23, s16, 10
v_and_b32 v{T0}, 31, v0
v_lshlrev_b32 v{T0+8}, 2, v{T0}
""")
    def piece(off, base="s23"):
        return f"s_add_u32 m0, {base}, {off}\ns_add_u32 s24, s22, m0\nbuffer_load_dwordx4 v1, s[12:15], s24 offen {ld} lds"
    assert (2 * U + 1) * KVBLK <= 24576
    k(f"""
v_and_b32 v{T0+1}, 0x13, v{T0}
v_and_b32 v{T0+2}, 4, v{T0}
v_lshl_or_b32 v{T0+1}, v{T0+2}, 1, v{T0+1}
v_bfe_u32 v{T0+2}, v{T0}, 3, 1
v_lshl_or_b32 v{T0+1}, v{T0+2}, 2, v{T0+1}
v_lshrrev_b32 v{T0+2}, 5, v0
v_lshlrev_b32 v{T0+3}, 9, v{T0+2}
v_lshl_add_u32 v{BK1}, v{T0+1}, 4, v{T0+3}
v_lshlrev_b32 v{BK1+1}, 2, v{T0+1}
v_add_u32 v{BK1+1}, {KV_K2}, v{BK1+1}
v_bfe_u32 v{T0+3}, v0, 2, 2
v_lshl_add_u32 v{T0+3}, v{T0+2}, 3, v{T0+3}
v_and_b32 v{T0+4}, 1, v0
v_mul_u32_u24 v{T0+4}, {KV_V1-KV_V0}, v{T0+4}
v_bfe_u32 v{T0+5}, v0, 1, 1
v_lshl_add_u32 v{T0+4}, v{T0+5}, 3, v{T0+4}
v_add_u32 v{T0+4}, {KV_V0}, v{T0+4}
v_and_b32 v{T0+5}, 16, v0
v_cmp_eq_u32 vcc, 16, v{T0+5}
""")
    for m in range(2):
        for i in range(2):
            k(f"""
v_add_u32 v{T0+5}, {16*m+4*i}, v{T0+3}
v_lshl_add_u32 v{T0+6}, v{T0+5}, 4, v{T0+4}
v_lshlrev_b32 v{T0+5}, 3, v{T0+5}
v_add_u32 v{T0+5}, {KV_V2}, v{T0+5}
v_cndmask_b32 v{BK1+2+2*m+i}, v{T0+6}, v{T0+5}, vcc
""")
    k(f"""
v_mov_b32 v{K2+1}, 0x3f803f80
v_cmp_gt_u32 s[30:31], 32, v0
s_mul_i32 s32, s33, {NO*U*KVBLK}
s_mul_i32 s3, s33, {(64//U - 2*NO) & 0xffffffff}
s_add_u32 s3, s3, {NO}
s_mov_b32 s48, 1
s_mov_b32 s21, 2
s_mov_b32 s36, s46
s_mov_b32 s37, s47
s_and_b32 s38, s2, 7
s_lshl_b32 s38, s38, 3
s_bfe_u32 s39, s2, 0x30003
s_add_u32 s38, s38, s39
s_lshr_b32 s39, s2, 6
s_xor_b32 s11, s16, 4
s_mul_i32 s49, s39, 9
s_lshl_b32 s19, s11, 1
s_add_u32 s49, s49, s19
s_lshl_b32 s62, s49, 10
s_add_u32 s62, s62, {WOOFF}
s_bfe_u32 s8, s2, 0x10002
s_lshl_b32 s8, s8, 2
s_bfe_u32 s9, s2, 0x20003
s_add_u32 s8, s8, s9
s_and_b32 s9, s2, 3
s_lshl_b32 s9, s9, 3
s_lshr_b32 s10, s2, 5
s_add_u32 s9, s9, s10
s_mul_i32 s10, s9, {9*UB}
s_add_u32 s10, s10, {WGUOFF}
s_lshl_b32 s61, s2, 2
s_add_u32 s61, s61, s16
s_mov_b32 s7, 0x20000
s_mov_b32 s56, 8
s_mov_b32 s57, 16
s_mov_b32 s58, 4
s_mov_b32 s6, {D*F*2}
s_cmp_ge_u32 s61, 648
s_cbranch_scc1 {k.lab('p1')}
s_cmp_ge_u32 s61, 324
s_cselect_b32 s4, s42, s40
s_cselect_b32 s5, s43, s41
s_cselect_b32 s60, 324, 0
s_cselect_b32 s53, 1024, 0
s_sub_u32 s60, s61, s60
s_mul_i32 s19, s60, 3641
s_lshr_b32 s19, s19, 16          ; ks
s_mul_i32 s59, s19, 18
s_sub_u32 s60, s60, s59          ; cg
s_mov_b32 s50, {F*2}
s_mul_i32 s51, s19, {32*F*2}
s_lshl_b32 s59, s60, 9
s_add_u32 s51, s51, s59
s_mov_b32 s52, 128
s_mul_i32 s59, s60, {16*36864}
s_add_u32 s53, s53, s59
s_lshl_b32 s59, s19, 11
s_add_u32 s53, s53, s59
s_add_u32 s53, s53, {WGUOFF}
s_mov_b32 s54, {4*36864}
s_mov_b32 s55, 36864
""")
    for e in range(8):
        k(f"s_add_u32 s{40+e}, s51, {(e//2)*128 + (e&1)*16*F*2}")
    k(f"s_branch {k.lab('pgo')}")
    k.label("p1")
    k(f"""
s_mov_b32 s50, 1152
s_mov_b32 s54, 36864
s_mov_b32 s55, 1024
s_mov_b32 s4, s44
s_mov_b32 s5, s45
s_mov_b32 s52, {32*1152}
s_sub_u32 s60, s61, 648
s_mul_i32 s19, s60, 7282
s_lshr_b32 s19, s19, 16          ; kg = r/9
s_mul_i32 s59, s19, 9
s_sub_u32 s60, s60, s59          ; cs
s_mul_i32 s53, s19, {4*36864}
s_add_u32 s53, s53, {WDOFF}
s_lshl_b32 s59, s60, 12
s_add_u32 s53, s53, s59
; k-slot order: position pos (16 rows) of quarter kq holds unit 72kq + 9*((pos%24)/3) + 3*(pos/24) + pos%3
s_lshl_b32 s51, s60, 7
s_mul_i32 s59, s19, 7282
s_lshr_b32 s59, s59, 16
s_mul_i32 s60, s59, 9
s_sub_u32 s19, s19, s60          ; kg%9
s_mul_i32 s59, s59, {72*16*1152}
s_add_u32 s51, s51, s59
s_mul_i32 s59, s19, 86
s_lshr_b32 s59, s59, 8           ; gamma = (kg%9)/3
s_mul_i32 s60, s59, 3
s_sub_u32 s19, s19, s60
s_lshl_b32 s19, s19, 3           ; pos%24 of the first half block
s_mul_i32 s60, s60, {16*1152}
s_add_u32 s51, s51, s60
""")
    for e in range(8):
        k(f"""
s_add_u32 s59, s19, {e}
s_mul_i32 s60, s59, 86
s_lshr_b32 s60, s60, 8
s_mul_i32 s60, s60, 6
s_add_u32 s59, s59, s60
s_mul_i32 s59, s59, {16*1152}
s_add_u32 s{40+e}, s51, s59
""")
    k.label("pgo")
    k(f"s_lshl_b32 s19, s16, 11\ns_add_u32 s19, s19, {SCR}")
    prep_addr(k, PVS, PVW, PVR, PVR + 1, 19)
    if warm:
        k(f"""
s_lshl_b32 s59, s2, 3
s_add_u32 s59, s59, s16
s_lshl_b32 s59, s59, 10
s_add_u32 s59, s59, {FBOFF}
s_cmp_ge_u32 s59, {FAOFF}
s_cselect_b32 s26, {OOB}, s59
v_mov_b32 v16, 0
v_mov_b32 v17, 0
v_mov_b32 v18, 0
v_mov_b32 v19, 0
""")
    k(f"""
s_cmp_eq_u32 s16, 5
s_cbranch_scc1 {k.lab('q5')}
s_cmp_lg_u32 s16, 4
s_cbranch_scc1 {k.lab('pqx')}
s_lshr_b32 s59, s17, 3
s_lshl_b32 s59, s59, 4           ; hg*16
v_and_b32 v{T0}, 15, v0
v_bfe_u32 v{T0+1}, v0, 4, 1
v_lshl_add_u32 v{T0}, v{T0+1}, 6, v{T0}
v_add_u32 v{T0}, 64, v{T0}
s_lshr_b32 s60, s2, 5
s_lshl_b32 s60, s60, 1
v_and_b32 v{T0+1}, 1, v0
v_add_u32 v{T0+1}, s60, v{T0+1}
s_mul_i32 s59, s59, {FLS}
s_add_u32 s59, s59, {FAOFF}
v_cndmask_b32 v{T0}, v{T0+1}, v{T0}, s[30:31]
s_branch {k.lab('q6')}
""")
    k.label("q5")
    k(f"""
; lanes 0..14: Wo jobs 128 + (l/3)*9 + cs0 + l%3 ; 15..50: wbar jobs ; 51..: statistics 2tb + (l&1)
s_mul_i32 s60, s39, 9
s_lshr_b32 s60, s60, 2
s_add_u32 s60, s60, 128
v_mul_u32_u24 v{T0}, 21846, v0
v_lshrrev_b32 v{T0}, 16, v{T0}
v_mad_u32_u24 v{T0}, v{T0}, 6, v0
v_add_u32 v{T0}, s60, v{T0}
v_add_u32 v{T0+1}, {173-15}, v0
v_cmp_gt_u32 vcc, 15, v0
s_lshl_b32 s60, s38, 1
v_and_b32 v{T0+2}, 1, v0
v_cndmask_b32 v{T0}, v{T0+1}, v{T0}, vcc
v_cmp_gt_u32 vcc, 51, v0
v_add_u32 v{T0+2}, s60, v{T0+2}
s_mov_b32 s59, {FSOFF}
v_cndmask_b32 v{T0}, v{T0+2}, v{T0}, vcc
""")
    k.label("q6")
    k(f"v_mul_u32_u24 v{T0}, {FLS}, v{T0}")
    poll(k, "pq", 59, T0, T0 + 2, 60)
    k("s_barrier")
    if dbg == "a": mk(7)
    k(piece(0))
    k(f"""
buffer_load_dwordx4 {v(Q1[0],4)}, v1, s[12:15], s63 offen {ld}
buffer_load_dword v{Q2[0]}, v{T0+8}, s[12:15], s63 offen offset:1024 {ld}
buffer_load_dwordx4 {v(Q1[1],4)}, v1, s[12:15], s63 offen offset:{QBLK} {ld}
buffer_load_dword v{Q2[1]}, v{T0+8}, s[12:15], s63 offen offset:{QBLK+1024} {ld}
""")
    k(piece(8192)); k(piece(16384))
    k(f"s_waitcnt vmcnt({2 if b0 else 0})\ns_barrier")
    if warm:
        k("buffer_store_dwordx4 v[16:19], v1, s[12:15], s26 offen sc1\ns_nop 1")
    k.mark(0)
    k(f"""
v_cndmask_b32 v{Q2[0]}, 0, v{Q2[0]}, s[30:31]
v_cndmask_b32 v{Q2[1]}, 0, v{Q2[1]}, s[30:31]
s_setprio 1
s_cmp_eq_u32 s33, 0
s_cbranch_scc1 {k.lab('restart')}
s_setprio 0
s_mov_b32 s21, 99
s_add_u32 s23, s23, {24576 - 4096}
""")
    for n in range(NPRE):
        k(piece(n * 4096))
    k(f"s_add_u32 s23, s23, {NPRE*4096}")
    B0B = (f"s_cmp_lg_u32 s48, 1\ns_cbranch_scc1 {k.lab('b0b')}\ns_waitcnt vmcnt({NPRE + (1 if warm else 0)})\ns_cmp_lg_u32 s33, 0\ns_cbranch_scc1 {k.lab('b0a')}\n"
           f"s_waitcnt vmcnt({1 if warm else 0})\n{k.lab('b0a')}:\ns_barrier\n{k.lab('b0b')}:")
    k.label("restart")
    k(f"""
v_mov_b32 v{Q2[0]+1}, 0
v_mov_b32 v{Q2[1]+1}, 0
v_mov_b32 v{T0}, 0xff800000
v_mov_b32 v{T0+1}, 0xff800000
v_mov_b32 v{AK1}, v{BK1}
v_mov_b32 v{AK2}, v{BK1+1}
s_mov_b32 s20, s48
""")
    k.label("mx")
    k(f"""
ds_read_b128 {v(K1,4)}, v{AK1}
ds_read_b32 v{K2}, v{AK2}
v_add_u32 v{AK1}, {KVBLK}, v{AK1}
v_add_u32 v{AK2}, {KVBLK}, v{AK2}
s_waitcnt lgkmcnt(0)
{M16} {v(SS[0],16)}, {v(K1,4)}, {v(Q1[0],4)}, 0
{M8} {v(SS[0],16)}, {v(K2,2)}, {v(Q2[0],2)}, {v(SS[0],16)}
{M16} {v(SS[1],16)}, {v(K1,4)}, {v(Q1[1],4)}, 0
{M8} {v(SS[1],16)}, {v(K2,2)}, {v(Q2[1],2)}, {v(SS[1],16)}
s_sub_u32 s20, s20, 1
s_nop 8
""")
    for q in range(2):
        for i in range(8):
            k(f"v_max3_f32 v{T0+q}, v{T0+q}, v{SS[q]+2*i}, v{SS[q]+2*i+1}")
    k(f"""
s_cmp_lg_u32 s20, 0
s_cbranch_scc1 {k.lab('mx')}
v_mov_b32 v{T0+2}, v{T0}
v_mov_b32 v{T0+3}, v{T0+1}
""")
    for i in range(6):
        k(f"v_add_u32 v{AK1+i}, s32, v{BK1+i}")
    k(f"""
v_permlane32_swap_b32 v{T0}, v{T0+2}
v_permlane32_swap_b32 v{T0+1}, v{T0+3}
{B0B if b0 else ""}
s_and_b32 s19, s33, s48
s_cbranch_scc0 {k.lab('kvx')}
""")
    k.label("kv")
    k(piece(0))
    k(f"""
s_add_u32 s23, s23, 4096
s_cmp_lt_u32 s23, {KVHEAD}
s_cbranch_scc1 {k.lab('kv')}
s_waitcnt vmcnt(0)
s_barrier
""")
    WC = 112
    def wcreg(ks, sl):
        i = 2 * ks + sl
        return 128 + 4 * i if i < 32 else WC + 4 * (i - 32)
    for ks in range(16):
        for sl in range(2):
            k(f"buffer_load_dwordx4 {v(wcreg(ks,sl),4)}, v1, s[12:15], s62 offen offset:{sl*1024}")
        k("s_add_u32 s62, s62, 36864")
    if otch:
        k.srd(24, 36, S * D * 2)
        k(f"""
s_lshl_b32 s59, s11, 8
s_add_u32 s59, s59, s2
s_lshl_b32 s59, s59, 13
v_lshlrev_b32 v14, 7, v0
buffer_load_dword v15, v14, s[24:27], s59 offen {otch if otch != 1 else ""}
""")
    k.label("kvx")
    k(f"""
ds_read_b128 {v(K1,4)}, v{AK1}
ds_read_b32 v{K2}, v{AK2}
ds_read_b64_tr_b16 {v(V0,2)}, v{AV}
ds_read_b64_tr_b16 {v(V0+2,2)}, v{AV+1}
""")
    for q in range(2):
        k(f"""
v_max_f32 v{T0+q}, v{T0+q}, v{T0+2+q}
v_sub_f32 v{T0+q}, 0, v{T0+q}
v_cvt_pk_bf16_f32 v{T0+4}, v{T0+q}, v{T0+q}
v_and_b32 v{T0+4}, 0xffff0000, v{T0+4}
v_sub_f32 v{T0+5}, v{T0+q}, v{T0+4}
v_cvt_pk_bf16_f32 v{T0+4}, v{T0+4}, v{T0+5}
v_cndmask_b32 v{Q2[q]+1}, 0, v{T0+4}, s[30:31]
""")
    k(f"""
s_waitcnt lgkmcnt(0)
{M16} {v(SS[0],16)}, {v(K1,4)}, {v(Q1[0],4)}, 0
{M8} {v(SS[0],16)}, {v(K2,2)}, {v(Q2[0],2)}, {v(SS[0],16)}
""")
    for q in range(2):
        for i in range(16):
            k(f"v_mov_b32 v{OO[q]+i}, 0")
    for i in range(4):
        k(f"v_mov_b32 v{P+4+i}, 0\nv_mov_b32 v{V1+i}, 0")
    k.mark(1)
    k(".p2align 6")
    k.label("loop")
    for t in range(U):
        for ph in range(2):
            cur, nxt = SS[ph], SS[1-ph]
            Oc, Op = OO[ph], OO[1-ph]
            e = lambda i: f"v_exp_f32 v{cur+i}, v{cur+i}"
            c = lambda i: f"v_cvt_pk_bf16_f32 v{P+i}, v{cur+2*i}, v{cur+2*i+1}"
            rdV1 = f"ds_read_b64_tr_b16 {v(V1,2)}, v{AV+2} offset:{t*KVBLK}\nds_read_b64_tr_b16 {v(V1+2,2)}, v{AV+3} offset:{t*KVBLK}" if ph == 0 else ""
            rdK1 = f"ds_read_b128 {v(K1,4)}, v{AK1} offset:{(t+1)*KVBLK}" if ph == 0 else ""
            rdK2 = f"ds_read_b32 v{K2}, v{AK2} offset:{(t+1)*KVBLK}" if ph == 0 else ""
            rdV0 = f"ds_read_b64_tr_b16 {v(V0,2)}, v{AV} offset:{(t+1)*KVBLK}\nds_read_b64_tr_b16 {v(V0+2,2)}, v{AV+1} offset:{(t+1)*KVBLK}" if ph == 1 else ""
            wA = "s_waitcnt lgkmcnt(0)" if ph == 1 else ""
            wD = "s_waitcnt lgkmcnt(4)" if ph == 0 else ""
            k(f"""
{e(0)}
{e(1)}
{wA}
{M16} {v(Op,16)}, {v(V1,4)}, {v(P+4,4)}, {v(Op,16)}
{rdV1}
{e(2)}
{e(3)}
{c(0)}
{c(1)}
{e(4)}
{e(5)}
{M16} {v(nxt,16)}, {v(K1,4)}, {v(Q1[1-ph],4)}, 0
{rdK1}
{e(6)}
{e(7)}
{c(2)}
{c(3)}
{e(8)}
{e(9)}
{M8} {v(nxt,16)}, {v(K2,2)}, {v(Q2[1-ph],2)}, {v(nxt,16)}
{rdK2}
{e(10)}
{e(11)}
{c(4)}
{c(5)}
{e(12)}
{e(13)}
{wD}
{M16} {v(Oc,16)}, {v(V0,4)}, {v(P,4)}, {v(Oc,16)}
{rdV0}
{e(14)}
{e(15)}
{c(6)}
{c(7)}
""")
    for i in range(6):
        k(f"v_add_u32 v{AK1+i}, {U*KVBLK}, v{AK1+i}")
    k(f"""
s_add_u32 s20, s20, 1
s_cmp_eq_u32 s20, s21
s_cbranch_scc1 {k.lab('stub')}
s_cmp_lt_u32 s20, s3
s_cbranch_scc1 {k.lab('loop')}
{M16} {v(OO[1],16)}, {v(V1,4)}, {v(P+4,4)}, {v(OO[1],16)}
""")
    k.mark(2)
    BADF = 16384
    k(f"""
s_setprio 0
s_and_b32 s19, s16, 3
s_lshl_b32 s24, s19, 12
v_add_u32 v{T0+2}, s24, v1
s_lshl_b32 s24, s19, 11
s_add_u32 s24, s24, {SCR}
v_add_u32 v{T0+3}, s24, v1
v_mov_b32 v{T0+4}, {BADF}
s_waitcnt lgkmcnt(0)
s_cmp_eq_u32 s48, 1
s_cbranch_scc1 {k.lab('x0')}
s_barrier
""")
    k.label("x0")
    k(f"s_cmp_lg_u32 s33, 0\ns_cbranch_scc1 {k.lab('xy')}")
    for q in range(2):
        for j in range(2):
            k(f"ds_write_b128 v{T0+2}, {v(OO[q]+4*j,4)} offset:{(2*q+j)*1024}")
        k(f"ds_write_b128 v{T0+3}, {v(OO[q]+8,4)} offset:{q*1024}")
    k(f"""
s_cmp_lg_u32 s21, 98
s_cbranch_scc1 {k.lab('x1')}
s_mov_b32 s21, 99
s_mul_i32 s59, s61, {FLS}
s_add_u32 s59, s59, {FPOFF}
s_waitcnt vmcnt(0)
""")
    set_flag(k, 59, T0 + 6)
    k(f"""
v_and_b32 v{T0+6}, 1, v0
v_mul_u32_u24 v{T0+6}, 1152, v{T0+6}
v_lshrrev_b32 v{T0+7}, 4, v0
v_lshl_add_u32 v{T0+6}, v{T0+7}, 4, v{T0+6}
s_mul_i32 s60, s39, 9216
s_add_u32 s60, s60, {WOOFF + 8192}
s_mov_b32 s59, 36864
s_bitcmp1_b32 s16, 0
s_cselect_b32 s60, {WBAROFF}, s60
s_cselect_b32 s59, 64, s59
s_cselect_b64 vcc, -1, 0
s_lshr_b32 s58, s16, 1
s_add_u32 s57, s58, 16
s_mul_i32 s57, s57, s59
s_add_u32 s57, s57, s60
s_lshl_b32 s58, s58, 3
s_mul_i32 s58, s58, s59
s_add_u32 s60, s60, s58
v_cndmask_b32 v{T0+6}, v1, v{T0+6}, vcc
""")
    for i in range(8):
        k(f"buffer_load_dwordx4 {v(128+4*i,4)}, v{T0+6}, s[12:15], s60 offen\ns_add_u32 s60, s60, s59")
    k(f"buffer_load_dwordx4 {v(160,4)}, v{T0+6}, s[12:15], s57 offen")
    k.label("x1")
    k.mark(3)
    k(f"s_waitcnt lgkmcnt(0)\ns_barrier\ns_branch {k.lab('x2')}")
    k.label("xy")
    k(f"""
s_lshl_b32 s24, s17, 16
s_lshl_b32 s23, s18, 9
s_add_u32 s24, s24, s23
s_add_u32 s24, s24, {OOFF}
s_lshl_b32 s19, s18, 5
s_add_u32 s19, s19, s17
s_lshl_b32 s23, s19, 7
s_add_u32 s23, s23, {O2OFF}
s_add_u32 s22, s23, 4096
s_mul_i32 s19, s19, {FLS}
s_add_u32 s19, s19, {FBOFF}
s_add_u32 s25, s19, {32*FLS}
s_mov_b32 s26, {f2u(2.0**60):#x}
v_and_b32 v{T0+1}, 31, v0
v_lshrrev_b32 v{T0+5}, 5, v0
v_lshlrev_b32 v{T0+1}, 4, v{T0+1}
v_lshl_add_u32 v{T0+5}, v{T0+5}, 15, v{T0+1}
v_lshlrev_b32 v{T0+1}, 2, v0
""")
    k.mark(3)
    k("s_barrier")
    for q in range(2):
        k(f"ds_read_b128 {v(SS[q]+8,4)}, v{T0+3} offset:{q*1024}")
        for j in range(2):
            k(f"ds_read_b128 {v(SS[q]+4*j,4)}, v{T0+2} offset:{(2*q+j)*1024}")
    for q in range(2):
        O = OO[q]
        PQ = [P, V0][q]
        k(f"s_waitcnt lgkmcnt({5 - 3*q})\nv_add_f32 v{O+10}, v{O+10}, v{SS[q]+10}\nv_rcp_f32 v{T0+6+q}, v{O+10}\ns_waitcnt lgkmcnt({3 - 3*q})")
        for i in range(5):
            k(f"v_pk_add_f32 {v(O+2*i,2)}, {v(O+2*i,2)}, {v(SS[q]+2*i,2)}")
        for i in range(5):
            k(f"v_pk_mul_f32 {v(O+2*i,2)}, {v(O+2*i,2)}, {v(T0+6,2)} op_sel:[0,{q}] op_sel_hi:[1,{q}]")
        for i in range(5):
            k(f"v_cvt_pk_bf16_f32 v{PQ+i}, v{O+2*i}, v{O+2*i+1}")
        k(f"""
buffer_store_dwordx4 {v(PQ,4)}, v{T0+5}, s[12:15], s24 offen offset:{q*512} sc1
s_mov_b64 exec, s[30:31]
buffer_store_dword v{PQ+4}, v{T0+1}, s[12:15], s{23-q} offen sc1
s_mov_b64 exec, -1
""")
    k(f"""
v_add_f32 v{T0}, v{OO[0]+10}, v{OO[1]+10}
v_cmp_ngt_f32 vcc, s26, v{T0}
s_lshl_b32 s26, s16, 2
s_add_u32 s26, s26, {BADF - 16}
v_mov_b32 v{T0}, s26
s_cmp_lg_u64 vcc, 0
s_cselect_b32 s26, 1, 0
v_mov_b32 v{T0+2}, s26
ds_write_b32 v{T0}, v{T0+2}
s_waitcnt lgkmcnt(0)
""")
    k.label("x2")
    if dbg == "c": mk(0)
    k(f"""
s_barrier
ds_read_b128 {v(K1,4)}, v{T0+4}
s_waitcnt lgkmcnt(0)
v_or3_b32 v{K1}, v{K1}, v{K1+1}, v{K1+2}
v_or_b32 v{K1}, v{K1}, v{K1+3}
s_nop 0
v_readfirstlane_b32 s26, v{K1}
s_and_b32 s26, s26, s48
s_cmp_eq_u32 s26, 1
s_cbranch_scc1 {k.lab('fallback')}
""")
    if dbg == "c": mk(1)
    LT, LG = 2, 3
    GV = 4
    XV, W1V, FV = 5, 6, 7
    ACC, OF, X, MU = 16, 32, 48, 56
    TC = 60
    k.srd(4, 28, S * D * 2)
    k(f"""
v_and_b32 v{LT}, 15, v0
v_lshrrev_b32 v{LG}, 4, v0
v_lshlrev_b32 v{GV}, 15, v{LG}
v_lshl_add_u32 v{GV}, v{LT}, 4, v{GV}
v_and_b32 v{FV}, 31, v0
v_mul_u32_u24 v{FV}, {FLS}, v{FV}
v_mul_u32_u24 v{XV}, 1152, v{LT}
v_lshl_add_u32 v{XV}, v{LG}, 3, v{XV}
v_lshlrev_b32 v{W1V}, 2, v{LT}
s_mul_i32 s24, s38, {32*1152}
s_lshl_b32 s23, s49, 5
s_add_u32 s24, s24, s23
s_add_u32 s23, s24, {16*1152}
s_lshl_b32 s26, s38, 7
s_lshl_b32 s27, s38, 8
s_add_u32 s27, s27, {STOFF + 4}
v_lshlrev_b32 v9, 3, v{LT}
s_cmp_lt_u32 s16, 2
s_cbranch_scc1 {k.lab('ppx')}
s_cmp_lt_u32 s16, 4
s_cbranch_scc1 {k.lab('cfp')}
s_waitcnt vmcnt(0)
{flag_txt([19, 25], TC)}
s_branch {k.lab('ppx')}
{k.lab('cfp')}:
; waves 2,3: re-layout jobs read by phases D/E.  lanes 0..35: job = lane*18 + cg ; lanes 36..: 648 + (9kq + j/3)*9 + cs0 + j%3
s_mul_i32 s59, s9, 9
s_sub_u32 s60, s16, 2
s_lshl_b32 s60, s60, 3
s_add_u32 s59, s59, s60
s_lshr_b32 s55, s59, 4           ; cg
s_bfe_u32 s59, s2, 0x20001
s_mul_i32 s59, s59, 81
s_mul_i32 s60, s39, 9
s_lshr_b32 s60, s60, 2
s_add_u32 s59, s59, s60
s_add_u32 s59, s59, 648
v_subrev_u32 v9, 36, v0
v_min_u32 v9, 26, v9
v_mul_u32_u24 v10, 21846, v9
v_lshrrev_b32 v10, 16, v10
v_mad_u32_u24 v9, v10, 6, v9
v_add_u32 v9, s59, v9
v_mul_u32_u24 v10, 18, v0
v_add_u32 v10, s55, v10
v_cmp_gt_u32 vcc, 36, v0
s_mov_b32 s59, {FPOFF}
s_nop 0
v_cndmask_b32 v11, v9, v10, vcc
v_mul_u32_u24 v11, {FLS}, v11
""")
    poll(k, "pp", 59, 11, TC, 60)
    k.mark(4)
    k(f"s_barrier\ns_cmp_gt_u32 s11, 4\ns_cbranch_scc1 {k.lab('cnx')}")
    for T in range(2):
        for i in range(2):
            k(f"buffer_load_dwordx2 {v(X+2*(2*i+T),2)}, v{XV}, s[4:7], s{[24,23][T]} offen offset:{i*32}")
        k(f"buffer_load_dword v{MU+T}, v9, s[12:15], s27 offen offset:{T*128} {ld}")
    k(f"s_cmp_eq_u32 s11, 4\ns_cbranch_scc1 {k.lab('cnx')}")
    for ks in (16, 17):
        for sl in range(2):
            k(f"buffer_load_dwordx4 {v(wcreg(ks,sl),4)}, v1, s[12:15], s62 offen offset:{sl*1024}")
        k("s_add_u32 s62, s62, 36864")
    k.label("cnx")
    k(f"""
s_mul_i32 s59, s38, {32*FLS}
s_add_u32 s59, s59, {FBOFF}
s_lshl_b32 s57, s38, 9
s_add_u32 s57, s57, {OOFF}
s_lshr_b32 s58, s16, 1
s_lshl_b32 s58, s58, 17
s_add_u32 s57, s57, s58
s_and_b32 s58, s16, 1
s_lshl_b32 s58, s58, 8
s_add_u32 s57, s57, s58
s_lshl_b32 s58, s16, 10
s_lshl_b32 s56, s38, 12
s_add_u32 s56, s56, s58
s_add_u32 s56, s56, {O2OFF}
s_add_u32 s58, s58, {OST}
v_add_u32 v{XV}, {OST}, v1
v_lshlrev_b32 v8, 9, v{LG}
v_add3_u32 v8, v8, v{W1V}, s58
""".replace("v_add3_u32 v8, v8, v{W1V}, s58".format(W1V=W1V), f"v_add_u32 v8, v8, v{W1V}\nv_add_u32 v8, {OST + 32768}, v8"))
    def feed(p0, p1):
        k(f"s_mul_i32 s22, s55, {UB}\ns_add_u32 s22, s22, s10\ns_mul_i32 s54, s55, {CB}")
        for p_ in range(p0, p1):
            if p_ % 4 == 0:
                k(f"s_add_u32 m0, s54, {(p_//12)*UB + (p_%12)*1024}\ns_add_u32 s53, s22, {p_*1024}")
            k(f"buffer_load_dwordx4 v1, s[12:15], s53 offen offset:{(p_%4)*1024} lds")
    k(f"""
s_cmp_ge_u32 s16, 4
s_cbranch_scc1 {k.lab('pbx')}
s_cmp_eq_u32 s16, 1
s_cbranch_scc1 {k.lab('pb0')}
s_sub_u32 s55, s16, 1
s_max_i32 s55, s55, 0
""")
    feed(0, NF1)
    k(f"s_branch {k.lab('pbx')}")
    k.label("pb0")
    poll(k, "pb", 59, FV, TC, 60)
    k("s_barrier")
    k.mark(5)
    for n in range(4):
        k(f"s_add_u32 m0, s58, {n*8192}\ns_add_u32 s62, s57, {n*4*4*CH}\nbuffer_load_dwordx4 v{GV}, s[12:15], s62 offen {ld} lds")
    k(f"s_cmp_ge_u32 s16, 4\ns_cbranch_scc1 {k.lab('co')}")
    k(f"s_add_u32 m0, s58, {4*8192}\ns_nop 0\nbuffer_load_dwordx4 v1, s[12:15], s56 offen {ld} lds")
    k.label("co")
    k(f"s_waitcnt vmcnt(0)\ns_barrier")
    k.mark(6)
    HL = 3 * UB
    k(f"v_add_u32 v10, {HL}, v1\ns_cmp_lt_u32 s16, 4\ns_cbranch_scc1 {k.lab('chelp')}")
    OR = 64
    def rdo(ks):
        b = OR + 8 * (ks % CR)
        if ks >= 16:
            r = []
            if ks == 17: r.append("v_add_u32 v8, 2048, v8")
            for T in range(2):
                for h in range(2):
                    r.append(f"ds_read2_b32 {v(b+4*T+2*h,2)}, v8 offset0:{16*T+64*h} offset1:{16*T+64*h+32}")
            return r
        return [f"ds_read_b128 {v(b+4*T,4)}, v{XV} offset:{(2*ks+T)*1024}" for T in range(2)]
    nrd = lambda ks: 4 if ks >= 16 else 2
    for ks in range(CR - 1):
        for r in rdo(ks): k(r)
    for ks in range(18):
        k(f"s_waitcnt lgkmcnt({sum(nrd(q) for q in range(ks + 1, min(ks + CR - 1, 18)))})")
        r = rdo(ks + CR - 1) if ks + CR - 1 < 18 else []
        for sl in range(2):
            for T in range(2):
                d = v(ACC + (2*sl+T)*4, 4)
                k(f"{M} {d}, {v(wcreg(ks,sl),4)}, {v(OR+8*(ks%CR)+4*T,4)}, {'0' if ks == 0 else d}")
                if r: k(r.pop(0))
        for x in r: k(x)
    k.label("cepi")
    if dbg == 'c': mk(9)
    SQ = 58
    k(f"""
s_lshl_b32 s24, s49, 16
s_lshl_b32 s23, s38, 9
s_add_u32 s24, s24, s23
s_add_u32 s24, s24, {HCOFF}
v_lshrrev_b32 v8, 5, v0
v_lshlrev_b32 v8, 15, v8
v_and_b32 v9, 31, v0
v_lshl_add_u32 v8, v9, 4, v8
v_lshlrev_b32 v9, 2, v9
v_mov_b32 v{SQ}, 0
v_mov_b32 v{SQ+1}, 0
""")
    for sl in range(2):
        for T in range(2):
            x = X + 2*(2*sl+T)
            r = OF + 4*(2*sl+T)
            k(f"v_lshlrev_b32 v{r}, 16, v{x}\nv_and_b32 v{r+1}, 0xffff0000, v{x}\nv_lshlrev_b32 v{r+2}, 16, v{x+1}\nv_and_b32 v{r+3}, 0xffff0000, v{x+1}")
    k("s_barrier")
    if dbg == 'c': mk(10)
    for T in range(2):
        for hh in range(2):
            k(f"ds_read_b64 {v(64+4*T+2*hh,2)}, v10 offset:{(1+2*hh)*2048 + T*1024}")
    for T in range(2):
        k(f"ds_read_b128 {v(72+4*T,4)}, v10 offset:{2*2048 + T*1024}")
    for i in range(8):
        k(f"v_pk_add_f32 {v(ACC+2*i,2)}, {v(ACC+2*i,2)}, {v(OF+2*i,2)}")
    k("s_waitcnt lgkmcnt(0)")
    for T in range(2):
        k(f"v_pk_add_f32 {v(64+4*T,2)}, {v(64+4*T,2)}, {v(66+4*T,2)}\nv_add_f32 v{MU+T}, v{MU+T}, v{64+4*T}\nv_add_f32 v{MU+T}, v{MU+T}, v{65+4*T}")
    k(f"s_cmp_lg_u32 s11, 4\ns_cbranch_scc1 {k.lab('cn8')}")
    for i in range(4):
        k(f"v_pk_add_f32 {v(ACC+2*i,2)}, {v(ACC+2*i,2)}, {v(72+2*i,2)}")
    k.label("cn8")
    for sl in range(2):
        if sl == 1:
            k(f"s_cmp_eq_u32 s11, 4\ns_cbranch_scc1 {k.lab('cq')}")
        R = X + 4*sl
        for T in range(2):
            ac = ACC + (2*sl+T)*4
            for r in range(4):
                k(f"v_sub_f32 v{ac+r}, v{ac+r}, v{MU+T}")
            k(f"v_cvt_pk_bf16_f32 v{R+2*T}, v{ac}, v{ac+1}\nv_cvt_pk_bf16_f32 v{R+2*T+1}, v{ac+2}, v{ac+3}")
            for r in range(4):
                k(f"v_fmac_f32 v{SQ+T}, v{ac+r}, v{ac+r}")
        k(f"""
v_permlane16_swap_b32 v{R}, v{R+2}
v_permlane16_swap_b32 v{R+1}, v{R+3}
buffer_store_dwordx4 {v(R,4)}, v8, s[12:15], s24 offen sc1
s_add_u32 s24, s24, 65536
""")
    k.label("cq")
    k(f"""
s_mul_i32 s23, s39, 5
s_add_u32 s23, s23, s11
v_permlane16_swap_b32 v{SQ}, v{SQ+1}
v_permlane16_swap_b32 v{MU}, v{MU+1}
s_lshl_b32 s27, s23, 13
s_add_u32 s27, s27, s26
s_add_u32 s27, s27, {SSQOFF}
v_add_f32 v{SQ}, v{SQ}, v{SQ+1}
v_mov_b32 v{SQ+1}, v{SQ}
s_add_u32 s26, s26, {MUHOFF}
s_cmp_lg_u32 s23, 0
s_cselect_b32 s26, {OOB}, s26
v_permlane32_swap_b32 v{SQ}, v{SQ+1}
v_add_f32 v{SQ}, v{SQ}, v{SQ+1}
s_mov_b32 exec_hi, 0
buffer_store_dword v{SQ}, v9, s[12:15], s27 offen sc1
buffer_store_dword v{MU}, v9, s[12:15], s26 offen sc1
s_mov_b64 exec, -1
s_lshl_b32 s3, s38, 5
s_add_u32 s3, s3, s23
s_mul_i32 s3, s3, {FLS}
s_add_u32 s3, s3, {FCOFF}
s_branch {k.lab('dstart')}
""")
    k.label("chelp")
    if NF1 < 36:
        k(f"s_cmp_eq_u32 s16, 0\ns_cbranch_scc1 {k.lab('ch2')}\ns_sub_u32 s55, s16, 1")
        feed(NF1, 36)
        k.label("ch2")
    k(f"""
s_lshr_b32 s23, s16, 1
s_lshl_b32 s24, s23, 14
v_add_u32 v{XV}, s24, v{XV}
s_lshl_b32 s24, s23, 11
v_add_u32 v8, s24, v8
s_lshl_b32 s24, s16, 11
v_add_u32 v11, s24, v10
s_setprio 1
""")
    HB = 168
    for i in range(8):
        for T in range(2):
            k(f"ds_read_b128 {v(HB+8*i+4*T,4)}, v{XV} offset:{(2*i+T)*1024}")
        if i == 5: k("s_waitcnt lgkmcnt(8)")
    for T in range(2):
        for h in range(2):
            k(f"ds_read2_b32 {v(HB+64+4*T+2*h,2)}, v8 offset0:{16*T+64*h} offset1:{16*T+64*h+32}")
    for i in range(9):
        k(f"s_waitcnt lgkmcnt({max(0, min(15, 2*(7-i) + 4)) if i < 8 else 0})")
        for T in range(2):
            d = v(ACC + 4*T, 4)
            k(f"{M} {d}, {v(128+4*i,4)}, {v(HB+8*i+4*T,4)}, {'0' if i == 0 else d}")
    k(f"""
s_setprio 0
s_mov_b32 s3, {OOB}
s_cmp_eq_u32 s16, 0
s_cbranch_scc1 {k.lab('cepi')}
s_nop 3
ds_write_b128 v11, {v(ACC,4)}
ds_write_b128 v11, {v(ACC+4,4)} offset:1024
""")
    k("s_waitcnt lgkmcnt(0)\ns_barrier")
    k.label("dstart")
    if dopt.get("wgf", 1):
        k(f"""
s_lshl_b32 s3, s38, 2
s_add_u32 s3, s3, s39
s_mul_i32 s3, s3, {FLS}
s_add_u32 s3, s3, {FCOFF}
s_cmp_lg_u32 s16, 2
s_cselect_b32 s3, {OOB}, s3
""")
    k.mark(7)
    if upto >= 4:
        tails, dside = phase_d(k, GV, FV, WV, ld, **dopt)
    if upto >= 5:
        i0 = len(k.L)
        phase_e(k, GV, ld, tails, **eopt)
        if dbg in ("e0", "e1"):
            i1 = k.L.index(k.lab("econs") + ":")
            n = 0; out = []
            for l in k.L[i0:i1]:
                if l.strip() == "s_barrier" and n < 10:
                    m_ = f"  s_memtime s[{k.mb+2*n}:{k.mb+2*n+1}]"; n += 1
                    out += [m_, l] if dbg == "e0" else [l, m_]
                else:
                    out.append(l)
            k.L[i0:i1] = out
    k(f"s_branch {k.lab('fin')}")
    if upto >= 4:
        k(dside)
    k.label("stub")
    k(f"""
s_cmp_eq_u32 s21, 2
s_cbranch_scc1 {k.lab('stub0')}
s_cmp_eq_u32 s21, {ST[1]}
s_cbranch_scc1 {k.lab('stub2')}
s_cmp_eq_u32 s21, {ST[2]}
s_cbranch_scc1 {k.lab('stub3')}
s_cmp_eq_u32 s21, {ST[3]}
s_cbranch_scc1 {k.lab('stub4')}
s_mov_b32 s21, {ST[1]}
""")
    prep_loads_tab(k, (0, 1), DAT, PVS, 4, 40)
    k(f"s_branch {k.lab('loop')}")
    k.label("stub2")
    k(f"s_mov_b32 s21, {ST[2]}")
    prep_loads_tab(k, (2, 3), DAT, PVS, 4, 40)
    k(f"s_branch {k.lab('loop')}")
    k.label("stub3")
    k(f"s_mov_b32 s21, {ST[3]}")
    prep_process(k, DAT, FR, PVW, PVR, ns=(0, 1))
    k(f"s_branch {k.lab('loop')}")
    k.label("stub4")
    k(f"s_mov_b32 s21, 98")
    prep_process(k, DAT, FR, PVW, PVR, ns=(2, 3))
    k(f"s_branch {k.lab('loop')}")
    k.label("stub0")
    k(f"s_barrier\ns_cmp_ge_u32 s61, 972\ns_cselect_b32 s21, 98, {ST[0]}\ns_branch {k.lab('loop')}")
    k.label("fallback")
    k(f"""
s_waitcnt vmcnt(0)
s_barrier
s_mov_b32 s48, 64
s_mul_i32 s22, s17, {KVHEAD}
s_lshl_b32 s23, s16, 10
""")
    k.label("fb1")
    k(piece(0))
    k(f"""
s_add_u32 s23, s23, 8192
s_cmp_lt_u32 s23, {KVHEAD}
s_cbranch_scc1 {k.lab('fb1')}
s_waitcnt vmcnt(0)
s_barrier
s_branch {k.lab('restart')}
""")
    for i, l in enumerate(k.L):
        if l.strip().startswith("buffer_load") and "s[12:15]" in l and " sc1" not in l and wsc:
            k.L[i] = l[:-4] + " sc1 lds" if l.endswith(" lds") else l.rstrip() + " sc1"
    k.label("fin")
    k.stamp_end(12)
    k.label("end")
    k("s_endpgm")
    return k


def phase_d(k, GV, FV, WV, ld, PF=6, LA=4, WG=2, exp='', prio=0, DS=5, tch=False, pre=12, psl=None, wgf=2):
    ACC = [16, 32, 48]
    WF, PR, HV = 64, 88, 112
    SV, A0, A1, AB, FILL = 3, 5, 6, 2, 8
    hreg = lambda ks, T: v(HV + 4*(2*ks+T), 4)
    k(f"""
s_lshl_b32 s11, s8, 3
s_add_u32 s11, s11, s16
s_lshl_b32 s21, s11, 9
s_add_u32 s20, s21, {HCOFF}      ; h soffset
s_lshr_b32 s22, s9, 3
s_mul_i32 s22, s22, {72*65536}
s_add_u32 s21, s21, s22
s_and_b32 s22, s9, 7
s_mul_i32 s22, s22, {3*65536}
s_add_u32 s21, s21, s22
s_add_u32 s21, s21, {HIDOFF}
s_and_b32 s17, s2, 1
s_lshl_b32 s17, s17, 3
s_bfe_u32 s18, s2, 0x30003
s_add_u32 s17, s17, s18
s_lshr_b32 s18, s2, 6
s_bfe_u32 s19, s2, 0x20001
""")
    for n in range(5):
        k(f"s_add_u32 s28, s16, {8*n}")
        if n == 4:
            k("s_add_u32 s29, s16, 24\ns_cmp_ge_u32 s28, 36\ns_cselect_b32 s28, s29, s28")
        k(f"""
s_lshl_b32 s{44+n}, s28, 10
s_mov_b32 s{54+n}, s{44+n}
s_mul_i32 s29, s28, 7282
s_lshr_b32 s29, s29, 16
s_mul_i32 s30, s29, 9
s_sub_u32 s28, s28, s30
s_add_u32 s30, s28, s19
s_and_b32 s30, s30, 3
s_and_b32 s31, s28, 4
s_or_b32 s30, s30, s31
s_cmp_eq_u32 s28, 8
s_cselect_b32 s30, 8, s30
s_lshl_b32 s30, s30, 10
s_mul_i32 s29, s29, 36864
s_add_u32 s{38+n}, s29, s30
""")
    k(f"""
s_add_u32 s51, s10, {3*UB}
s_mov_b32 s50, {UB}
s_mov_b32 s24, {3*UB}
s_mul_i32 s53, s19, {36*36864}
s_mul_i32 s29, s18, 9216
s_add_u32 s53, s53, s29
s_add_u32 s53, s53, {WDOFF}
v_lshrrev_b32 v{SV}, 5, v0
v_lshlrev_b32 v{SV}, 15, v{SV}
v_and_b32 v{A0}, 31, v0
v_lshl_add_u32 v{SV}, v{A0}, 4, v{SV}
v_mov_b32 v{A0}, v1
v_add_u32 v{A1}, {UB}, v1
s_mov_b32 s26, {UB}
{["v_min_u32 v%d, 19, v0", "v_and_b32 v%d, 31, v0", "v_and_b32 v%d, 3, v0"][wgf] % FV}
v_mul_u32_u24 v{FV}, {FLS}, v{FV}
{[f"s_mul_i32 s61, s11, {32*FLS}", f"s_mul_i32 s61, s8, {32*FLS}", f"s_mul_i32 s61, s11, {4*FLS}"][wgf]}
s_add_u32 s61, s61, {FCOFF}
s_lshl_b32 s28, s17, 2
s_and_b32 s29, s16, 3
s_add_u32 s28, s28, s29
s_mul_i32 s52, s28, 36
s_mul_i32 s29, s18, 9
s_add_u32 s52, s52, s29
s_mul_i32 s52, s52, 3072
s_add_u32 s62, s52, {EXOFF}
s_and_b32 s29, s16, 4
s_add_u32 s29, s29, s19
s_mul_i32 s29, s29, 3072
s_add_u32 s52, s62, s29
s_add_u32 s63, s62, {8*3072}
s_cmp_eq_u32 s16, s19
s_cselect_b32 s63, s63, {OOB}
s_mov_b32 s27, 0
s_lshl_b32 s30, s11, 5
s_add_u32 s30, s30, s9
s_mul_i32 s30, s30, {FLS}
s_add_u32 s30, s30, {FDOFF}
s_lshl_b32 s31, s2, 3
s_add_u32 s31, s31, s16
s_mul_i32 s31, s31, {FLS}
s_add_u32 s31, s31, {FXOFF}
s_lshl_b32 s32, s28, 2
s_add_u32 s32, s32, s19
s_mul_i32 s32, s32, {8*FLS}
s_add_u32 s32, s32, {FDOFF}
v_and_b32 v2, 7, v0
v_mul_u32_u24 v2, {FLS}, v2
""")
    if wgf:
        k(f"""
s_waitcnt vmcnt(0)
s_barrier
{flag_txt([3], 12)}
""")
    else:
        k(f"""
s_waitcnt vmcnt(0)
{flag_txt([3], 12)}
s_barrier
""")
    def rd(n, lin=False):
        base = A0 if n < 36 else A1
        j = n % 36
        if lin:
            return [f"ds_read_b128 {v(WF+4*(n%PF),4)}, v{base} offset:{j*1024}", ""]
        ks, u, m = j // 6, (j % 6) // 2, j % 2
        return [f"ds_read_b128 {v(WF+4*(n%PF),4)}, v{base} offset:{u*CB + (2*ks+m)*1024}", ""]
    for n in range(PF - 1):
        for x in rd(n): k(x)
    for i in range(4):
        k(f"v_mov_b32 v{FILL+i}, -1")
    if prio:
        k(f"s_cmp_lt_u32 s16, 4\ns_cbranch_scc1 {k.lab('dp')}\ns_setprio 1")
        k.label("dp")
    if wgf == 1:
        k(f"s_cmp_lg_u32 s16, 1\ns_cbranch_scc1 {k.lab('pcx')}")
    if pre: k(f"s_sleep {pre}")
    poll(k, "pc", 61, FV, 12, 60, sleep=psl)
    if wgf == 1:
        k("s_barrier")
    k.mark(8)
    def h_ops(ks):
        return [f"buffer_load_dwordx4 {hreg(ks,T)}, v{GV}, s[12:15], s20 offen offset:{T*256} {ld}" for T in range(2)] + \
               [f"s_add_u32 s20, s20, {4*CH}"]
    def tail(u):
        R = PR + 8*u
        return [f"v_cvt_pk_bf16_f32 v{R}, v{R}, v{R+1}", f"v_cvt_pk_bf16_f32 v{R+1}, v{R+2}, v{R+3}",
                f"v_cvt_pk_bf16_f32 v{R+2}, v{R+4}, v{R+5}", f"v_cvt_pk_bf16_f32 v{R+3}, v{R+6}, v{R+7}\ns_nop 0",
                f"v_permlane16_swap_b32 v{R}, v{R+2}", f"v_permlane16_swap_b32 v{R+1}, v{R+3}",
                f"buffer_store_dwordx4 {v(R,4)}, v{SV}, s[12:15], s21 offen sc1", f"s_add_u32 s21, s21, {65536 if u < 2 else 22*65536}"]
    def dma():
        ops = [f"s_add_u32 m0, s24, s{44+n}\ns_add_u32 s22, s51, s{54+n}\nbuffer_load_dwordx4 v1, s[12:15], s22 offen lds" for n in range(5)]
        ops.append(f"s_add_u32 s51, s51, s50")
        ops.append(f"s_add_u32 s24, s24, {UB}\ns_cmp_ge_u32 s24, {4*UB}\ns_cselect_b32 s24, 0, s24")
        return ops
    nxt = f"s_add_u32 s26, s26, {UB}\ns_cmp_ge_u32 s26, {4*UB}\ns_cselect_b32 s26, 0, s26"
    fill = [f"buffer_store_dwordx4 {v(FILL,4)}, v1, s[12:15], s52 offen sc1", "s_add_u32 s52, s52, 1024"]
    tot = [2 * LA]; hm = {ks: 2 * ks + 2 for ks in range(LA)}
    def stage(c, f1, f2, f3):
        pend = []
        nvm = 0
        for j in range(36):
            if c is None:
                ks, u, m = j // 2, 0, j % 2
            else:
                ks, u, m = 6 * c + j // 6, (j % 6) // 2, j % 2
            hw = c is not None and j % 6 == 0
            if hw and ks + LA < 18:
                pend += h_ops(ks + LA)
            if j % WG == 0:
                w = f"lgkmcnt({PF-1-WG})"
                vm = []
                if hw: vm.append(tot[0] - hm[ks])
                if j == 30: vm.append(nvm)
                if vm: w = f"vmcnt({min(vm)}) " + w
                k("s_waitcnt " + w)
            if j == 30:
                k("s_barrier")
            r = rd(j + PF - 1, lin=(c is None or (c == 2 and j + PF - 1 >= 36)))
            for T in range(2):
                d = v(ACC[u] + (m*2+T)*4, 4)
                k(f"{M} {d}, {v(WF+4*(j%PF),4)}, {hreg(ks,T)}, {'0' if ks == 0 else d}")
                k(r[T])
                if T == 1:
                    x = None
                    if f2 and j % DS == DS - 1: x = f2.pop(0)
                    elif pend: x = pend.pop(0)
                    elif f1: x = f1.pop(0)
                    elif not f2 and f3: x = f3.pop(0)
                    if x:
                        k(x); nvm += x.count("buffer_"); tot[0] += x.count("buffer_")
                        if x.startswith("buffer_load") and "offset:256" in x: hm[len(hm)] = tot[0]
        assert not f1 and not f2 and not f3 and not pend, (f1, f2, f3, pend)
        k(f"v_mov_b32 v{A0}, v{A1}\nv_add_u32 v{A1}, s26, v1")
    def prod(u, slot):
        for h in range(4):
            k(f"v_pk_mul_f32 {v(PR+8*slot+2*h,2)}, {v(ACC[u]+2*h,2)}, {v(ACC[u]+8+2*h,2)}")
    for ks in range(LA):
        for x in h_ops(ks): k(x)
    stage(0, [], [], [nxt])
    for c in (1, 2):
        d_ = dma()
        stage(c, [], d_[:5], d_[5:] + [nxt])
    k("s_mov_b32 s27, 4\ns_nop 1")
    prod(0, 0); prod(1, 1); k("s_nop 1"); prod(2, 2)
    k.mark(9)
    tl = tail(0) + tail(1) + tail(2)
    d_ = dma()
    stage(None, [tl[2*i] + "\n" + tl[2*i+1] for i in range(12)] + fill, d_[:5], d_[5:] + [nxt])
    k("s_nop 5")
    prod(0, 0)
    k(".p2align 6")
    k.label("dloop")
    d_ = dma()
    stage(None, [f"s_branch {k.lab('dside')}\n{k.lab('dback')}:"] + tail(0) + fill, d_[:5], d_[5:] + [nxt])
    k(f"s_add_u32 s27, s27, 1\ns_cmp_lt_u32 s27, 9\ns_nop 3")
    prod(0, 0)
    k(f"s_cbranch_scc1 {k.lab('dloop')}")
    k.mark(10)
    side = f"""
{k.lab('dside')}:
s_cmp_eq_u32 s27, 6
s_cbranch_scc1 {k.lab('ds6')}
s_cmp_eq_u32 s27, 7
s_cbranch_scc1 {k.lab('ds7')}
s_cmp_eq_u32 s27, 4
s_cbranch_scc1 {k.lab('dback')}
{flag_txt([30], 12)}
s_add_u32 s30, s30, {FDL}
s_branch {k.lab('dback')}
{k.lab('ds6')}:
s_mov_b32 s52, s63
s_branch {k.lab('dback')}
{k.lab('ds7')}:
s_add_u32 s21, s21, {21*65536}
s_mov_b32 s51, s53
s_mov_b32 s50, {4*36864}
s_mov_b64 s[54:55], s[38:39]
s_mov_b64 s[56:57], s[40:41]
s_mov_b32 s58, s42
buffer_load_dwordx2 v[32:33], v2, s[12:15], s32 offen sc1
s_branch {k.lab('dback')}
"""
    return tail(0), side


def phase_e(k, GV, ld, tails, PF=9, WG=3, LA=5, tch=False, P3=6, exp='', hl=None, prio=0, sleep=12, ost='sc1'):
    ld = ld if hl is None else hl
    SB = UB
    ACC, WF, HV, XV = 16, 112, 148, 11
    FLG = flag_txt([30, 31], 12)
    XL = 3 * SB
    k(f"s_cmp_lt_u32 s16, 4\ns_cbranch_scc1 {k.lab('econs')}")
    def head():
        k("s_and_b32 s33, s16, 3")
        for t in range(4):
            k(f"s_add_u32 s{40+t}, s19, {t}\ns_and_b32 s{40+t}, s{40+t}, 3\ns_lshl_b32 s{44+t}, s{40+t}, 10")
        k(f"s_mul_i32 s29, s33, 6144\ns_add_u32 s29, s29, {XL}\nv_add_u32 v{XV}, s29, v1")
    PR = 88
    TL = 4 * SB
    packs = [x for x in tails if not x.startswith(("buffer", "s_add"))]
    def wissue():
        for n in range(9):
            if n < 4:
                k(f"s_add_u32 m0, s24, {n*1024}\ns_add_u32 s{48+n}, s23, s{44+n}\nbuffer_load_dwordx4 v1, s[12:15], s{48+n} offen lds")
            elif n < 8:
                k(f"s_add_u32 m0, s24, {n*1024}\ns_add_u32 s25, s{48+n-4}, 4096\nbuffer_load_dwordx4 v1, s[12:15], s25 offen lds")
            else:
                k(f"s_add_u32 m0, s24, {n*1024}\ns_add_u32 s25, s23, 8192\nbuffer_load_dwordx4 v1, s[12:15], s25 offen lds")
        k(f"s_add_u32 s23, s23, {4*36864 if 'hotw' not in exp else 0}\ns_add_u32 s24, s24, {SB}\ns_cmp_ge_u32 s24, {4*SB}\ns_cselect_b32 s24, s22, s24")
    def check(name, soff, voff, vt):
        k(flag_check(vt))
        k(f"s_nop 0\ns_cbranch_vccz {k.lab(name + 'x')}")
        poll(k, name, soff, voff, vt, 60)
    k(f"s_add_u32 s32, s32, {FDL}\nbuffer_load_dwordx2 v[16:17], v2, s[12:15], s32 offen sc1")
    head()
    k(f"""
s_mul_i32 s23, s33, 36864
s_add_u32 s23, s23, s53
s_add_u32 s23, s23, {8*36864 if 'now' not in exp else OOB}
s_mul_i32 s22, s33, 9216
s_add_u32 s24, s22, {3*SB}
""")
    for x in packs: k(x)
    k(f"s_mul_i32 s29, s33, 3072\ns_add_u32 s29, s29, {TL}\nv_add_u32 v5, s29, v1\ns_sub_u32 s29, s21, 2048\ns_barrier")
    for u in range(1):
        k(f"ds_read_b128 {v(PR+8*u+4,4)}, v5 offset:{u*1024}")
    wissue()
    for u in range(1):
        k(f"buffer_store_dwordx4 {v(PR+8*u,4)}, v3, s[12:15], s21 offen sc1\ns_add_u32 s21, s21, 65536")
    k("s_waitcnt lgkmcnt(0)")
    for u in range(1):
        k(f"buffer_store_dwordx4 {v(PR+8*u+4,4)}, v3, s[12:15], s29 offen sc1\ns_add_u32 s29, s29, 65536")
    k.srd(4, 36, S * D * 2)
    k("s_waitcnt vmcnt(11)\ns_barrier")
    check("pe2", 32, 2, 16)
    wissue()
    k(f"s_sub_u32 s26, s30, {4*32*FLS}\ns_sub_u32 s27, s31, {4*FLS}\ns_waitcnt vmcnt(11)\ns_barrier\ns_waitcnt vmcnt(9)")
    k(flag_txt([30, 26, 31, 27], 12))
    wissue()
    k("s_waitcnt vmcnt(13)\ns_barrier")
    wissue()
    k(f"s_waitcnt vmcnt(9)\ns_barrier\ns_add_u32 s32, s32, {FDL}\nbuffer_load_dwordx2 v[16:17], v2, s[12:15], s32 offen sc1")
    wissue()
    k("s_waitcnt vmcnt(9)")
    check("pe3", 32, 2, 16)
    k("s_barrier")
    wissue()
    k("s_waitcnt vmcnt(9)\ns_barrier")
    k(f"""
v_bfe_u32 v10, v0, 3, 2
v_and_b32 v9, 7, v0
v_lshl_add_u32 v10, v10, 4, v9
v_mul_u32_u24 v10, {FLS}, v10
s_andn2_b32 s59, s2, 6
s_mul_i32 s59, s59, {8*FLS}
s_add_u32 s59, s59, {FXOFF}
buffer_load_dwordx2 v[12:13], v10, s[12:15], s59 offen sc1
""")
    wissue()
    k("s_waitcnt vmcnt(9)\ns_barrier")
    check("px", 59, 10, 12)
    HC, SS, MU, OWN, RX, T0, BS = 16, 28, 38, 40, 64, 100, 104
    k(f"""
v_and_b32 v6, 31, v0
v_lshrrev_b32 v7, 5, v0
v_mul_u32_u24 v8, {10*8192}, v7
v_lshl_add_u32 v8, v6, 2, v8
v_lshlrev_b32 v9, 2, v6
s_mul_i32 s54, s18, 9
s_add_u32 s55, s54, s19
s_lshl_b32 s56, s55, 16
s_lshl_b32 s57, s28, 9
s_add_u32 s57, s57, {HCOFF}
s_add_u32 s56, s56, s57
buffer_load_dwordx4 {v(HC,4)}, v3, s[12:15], s56 offen {ld}
s_add_u32 s56, s56, {4*65536}
buffer_load_dwordx4 {v(HC+4,4)}, v3, s[12:15], s56 offen {ld}
s_add_u32 s54, s54, 8
s_lshl_b32 s56, s54, 16
s_add_u32 s56, s56, s57
buffer_load_dwordx4 {v(HC+8,4)}, v3, s[12:15], s56 offen {ld}
s_lshl_b32 s56, s28, 7
s_add_u32 s57, s56, {MUHOFF}
s_add_u32 s56, s56, {SSQOFF}
buffer_load_dword v{MU}, v9, s[12:15], s57 offen {ld}
""")
    for j in range(10):
        k(f"buffer_load_dword v{SS+j}, v8, s[12:15], s56 offen {ld}")
        if j < 9: k("s_add_u32 s56, s56, 8192")
    k("s_waitcnt vmcnt(14)\ns_barrier\ns_waitcnt vmcnt(0)")
    k(f"""
s_mul_i32 s58, s19, 3072
s_add_u32 s58, s58, s62
s_add_u32 s59, s58, {4*3072}
s_add_u32 s60, s62, {8*3072}
s_cmp_eq_u32 s19, s33
s_cselect_b32 s60, s60, {OOB}
s_mov_b32 s61, 0
v_mul_u32_u24 v8, 1152, v6
v_lshl_add_u32 v8, v7, 4, v8
s_mul_i32 s56, s28, {32*1152}
s_lshl_b32 s57, s55, 5
s_add_u32 s57, s57, s56
s_lshl_b32 s54, s54, 5
s_add_u32 s56, s56, s54
s_mov_b32 s63, {f2u(1.0/D):#x}
""")
    for j in range(1, 10):
        k(f"v_add_f32 v{SS}, v{SS}, v{SS+j}")
    k(f"""
v_mov_b32 v{SS+1}, v{SS}
v_mov_b32 v{SS+2}, {f2u(1e-5):#x}
s_nop 0
v_permlane32_swap_b32 v{SS}, v{SS+1}
v_add_f32 v{SS}, v{SS}, v{SS+1}
v_fma_f32 v{SS}, v{SS}, s63, v{SS+2}
v_rcp_f32 v{SS}, v{SS}
""")
    for i in range(3):
        for d in range(4):
            x = HC + 4*i + d
            k(f"v_lshlrev_b32 v{BS+8*i+2*d}, 16, v{x}\nv_and_b32 v{BS+8*i+2*d+1}, 0xffff0000, v{x}")
    for i in range(24):
        k(f"v_add_f32 v{BS+i}, v{BS+i}, v{MU}")
    k("s_barrier")
    k.mark(11)
    for i in range(6):
        k(f"ds_read_b128 {v(OWN+4*i,4)}, v{XV} offset:{i*1024}")
    if sleep: k(f"s_sleep {sleep}")
    k.label("poll")
    for i in range(3):
        for q in range(3):
            k(f"buffer_load_dwordx4 {v(RX+12*i+4*q,4)}, v1, s[12:15], s{58+i} offen offset:{q*1024} sc1")
    k("s_waitcnt vmcnt(0)")
    k(f"v_max3_u32 v{T0}, v{RX}, v{RX+1}, v{RX+2}")
    k(f"v_max3_u32 v{T0+1}, v{RX+3}, v{RX+4}, v{RX+5}")
    for n, j in enumerate(range(6, 36, 2)):
        k(f"v_max3_u32 v{T0+(n&1)}, v{T0+(n&1)}, v{RX+j}, v{RX+j+1}")
    k(f"""
v_max_u32 v{T0}, v{T0}, v{T0+1}
v_cmp_eq_u32 vcc, -1, v{T0}
s_add_u32 s61, s61, 1
s_cmp_ge_u32 s61, {POLLMAX}
s_cbranch_scc1 {k.lab('got')}
s_cbranch_vccnz {k.lab('poll')}
""")
    k.label("got")
    k.mark(12)
    k("s_waitcnt lgkmcnt(0)")
    for i in range(3):
        if i == 2:
            k(f"s_cmp_lg_u32 s19, s33\ns_cbranch_scc1 {k.lab('fin')}")
        A = OWN + 8*i
        for r in range(4):
            k(f"v_permlane16_swap_b32 v{A+r}, v{A+4+r}")
        for q in range(3):
            for d in range(4):
                x = RX + 12*i + 4*q + d
                tt = T0 + 2*(d & 1)
                k(f"v_lshlrev_b32 v{tt}, 16, v{x}\nv_and_b32 v{tt+1}, 0xffff0000, v{x}\nv_pk_add_f32 {v(A+2*d,2)}, {v(A+2*d,2)}, {v(tt,2)}")
        for d in range(4):
            b = BS + 8*i + 2*d
            k(f"v_pk_fma_f32 {v(b,2)}, {v(A+2*d,2)}, {v(SS,2)}, {v(b,2)} op_sel_hi:[1,0,1]")
            k(f"v_cvt_pk_bf16_f32 v{HC+4*i+d}, v{b}, v{b+1}")
        so, off = [("s57", 0), ("s57", 128), ("s56", 0)][i]
        k(f"buffer_store_dwordx4 {v(HC+4*i,4)}, v8, s[4:7], {so} offen offset:{off} {ost}")
    k(f"s_branch {k.lab('fin')}")
    k.label("econs")
    hreg = lambda set_, kk, T: v(HV + 4 * (8*set_ + 2*kk + T), 4)
    def h_ops(p):
        return [f"buffer_load_dwordx4 {hreg(p//4,p%4,T)}, v{GV}, s[12:15], s20 offen offset:{T*256} {ld}" for T in range(2)] + \
               [f"s_add_u32 s20, s20, {4*CH if 'hoth' not in exp else 0}"]
    def rd(j):
        base, jj = ("v5", j) if j < 36 else ("v6", j - 36)
        return f"ds_read_b128 {v(WF+4*(j%PF),4)}, {base} offset:{jj*1024}"
    k(f"""
s_lshl_b32 s20, s28, 9
s_mul_i32 s29, s19, {36*4*CH}
s_add_u32 s20, s20, s29
s_add_u32 s20, s20, {HIDOFF if 'noh' not in exp else OOB}
s_setprio {prio}
v_add_u32 v5, {SB}, v1
v_add_u32 v6, {2*SB}, v1
{flag_check(32)}
s_nop 0
s_cbranch_vccz {k.lab('pdx')}
""")
    poll(k, "pd", 32, 2, 12, 60)
    for p in range(LA):
        for x in h_ops(p): k(x)
    for x in packs: k(x)
    k(f"s_mul_i32 s29, s16, 3072\ns_add_u32 s29, s29, {TL}\nv_add_u32 v7, s29, v1")
    for u in range(1):
        k(f"ds_write_b128 v7, {v(PR+8*u,4)} offset:{u*1024}")
    k("s_waitcnt lgkmcnt(0)\ns_barrier")
    for j in range(PF - 1):
        k(rd(j))
    head()
    k(f"""
s_mov_b32 s26, {2*SB}
s_mov_b32 s27, 0
s_sub_u32 s52, s33, s19
s_and_b32 s52, s52, 3
s_lshl_b32 s52, s52, 10
s_add_u32 s52, s52, s62
s_add_u32 s52, s52, {8*3072-1024}
s_mov_b32 s53, 0xfffefffe
v_mov_b32 v14, 0
""")
    for i in range(36):
        k(f"v_pk_mul_f32 {v(ACC+2*i,2)}, {v(14,2)}, {v(14,2)} op_sel_hi:[0,0]")
    k.mark(11)
    k(".p2align 6")
    k.label("eloop")
    for st3 in range(3):
        for kk in range(4):
            p = 4 * st3 + kk
            f = h_ops((p + LA) % 12)
            if p + LA == 12:
                f = [f"s_add_u32 s27, s27, 1\ns_cmp_ge_u32 s27, 3", f"s_cselect_b32 s20, {OOB}, s20"] + f
            if kk == 3:
                f = f + [f"s_add_u32 s26, s26, {SB}\ns_cmp_ge_u32 s26, {4*SB}", "s_cselect_b32 s26, 0, s26"]
            for t in range(9):
                j = 9 * kk + t
                if t % WG == 0:
                    w = f"lgkmcnt({PF-1-WG})"
                    if t == 0:
                        w = f"vmcnt({2*(LA-1)}) " + w
                    k("s_waitcnt " + w)
                if t == 0 and kk == 3:
                    k("s_barrier")
                for T in range(2):
                    d = v(ACC + (2*t+T)*4, 4)
                    k(f"{M} {d}, {v(WF+4*(j%PF),4)}, {hreg(st3,kk,T)}, {d}")
                    if T == 0:
                        k(rd(j + PF - 1))
                    elif f and t >= 1:
                        k(f.pop(0))
            assert not f, f
        k(f"v_mov_b32 v5, v6\nv_add_u32 v6, s26, v1")
        if st3 == 1:
            k(f"s_cmp_eq_u32 s27, 3\ns_cbranch_scc1 {k.lab('elast')}")
    k(f"s_branch {k.lab('eloop')}")
    k.label("elast")
    PKR = HV
    def pack(t, R):
        A0, A1 = ACC + 8*t, ACC + 8*t + 4
        return [f"v_cvt_pk_bf16_f32 v{R}, v{A0}, v{A0+1}\nv_cvt_pk_bf16_f32 v{R+2}, v{A1}, v{A1+1}",
                f"v_cvt_pk_bf16_f32 v{R+1}, v{A0+2}, v{A0+3}\nv_cvt_pk_bf16_f32 v{R+3}, v{A1+2}, v{A1+3}",
                f"v_min_u32 v{R}, s53, v{R}\nv_min_u32 v{R+2}, s53, v{R+2}",
                f"v_min_u32 v{R+1}, s53, v{R+1}\nv_min_u32 v{R+3}, s53, v{R+3}",
                f"v_permlane16_swap_b32 v{R}, v{R+2}",
                f"v_permlane16_swap_b32 v{R+1}, v{R+3}"]
    order = [(0, t) for t in range(8)]
    for t in (1, 2, 3, 5, 6, 7, 8, 0, 4):
        order += [(kk, t) for kk in range(4) if (kk, t) not in order]
    k(f"s_cmp_eq_u32 s19, s33\ns_cselect_b32 s52, {OOB}, s52")
    fq = []; delay = []
    ns = 0
    for n, (kk, t) in enumerate(order):
        left = len(order) - 1 - n
        w = f"lgkmcnt({min(PF - 2, left)})"
        if n == 0: w = f"vmcnt({2*(LA-1)}) " + w
        if n == 8: w = f"vmcnt(0) " + w
        k("s_waitcnt " + w)
        for T in range(2):
            d = v(ACC + (2*t+T)*4, 4)
            k(f"{M} {d}, {v(WF+4*(n%PF),4)}, {hreg(2,kk,T)}, {d}")
            if T == 0 and n + PF - 1 < len(order):
                k2, t2 = order[n + PF - 1]
                k(f"ds_read_b128 {v(WF+4*((n+PF-1)%PF),4)}, v5 offset:{(9*k2+t2)*1024}")
            if fq: k(fq.pop(0))
        fq += delay; delay = []
        if kk == 3 and t not in (0, 4):
            R = PKR + 4*ns; ns += 1
            if t < 8:
                ad = f"s_mul_i32 s29, s{40 + (t & 3)}, 3072\ns_add_u32 s29, s29, s62" + (f"\ns_add_u32 s29, s29, {4*3072}" if t >= 4 else "\ns_nop 0")
                st_ = f"buffer_store_dwordx4 {v(R,4)}, v1, s[12:15], s29 offen offset:{((t & 3) - 1)*1024} sc1"
            else:
                ad = "s_nop 2"; st_ = f"buffer_store_dwordx4 {v(R,4)}, v1, s[12:15], s52 offen sc1"
            pk = pack(t, R)
            delay = [ad + "\n" + pk[0]] + pk[1:5] + [pk[5] + "\n" + st_]
    for x in fq: k(x)
    k.mark(12)
    k("s_nop 4")
    for i, t in ((2, 8), (0, 0), (1, 4)):
        for T in range(2):
            k(f"ds_write_b128 v{XV}, {v(ACC+8*t+4*T,4)} offset:{(2*i+T)*1024}")
    k("s_waitcnt lgkmcnt(0)\ns_barrier")
```

```python
from common import *
from prep import *
from pa import phase_a
KNAME = 'sequential_preLN__softmax_full_mha__glu_gated_bilinear__prompt_kernel'

SCR = KVHEAD
UB = 36864
CB = 12288
HALF = 32 * KVBLK
OST = 163840 - UB
MRG = OST - 25600
MUL = OST - 1024
O2OFF = OOFF + 64 * CH
M16 = "v_mfma_f32_32x32x16_bf16"
M8 = "v_mfma_f32_32x32x8_bf16"
M = "v_mfma_f32_16x16x32_bf16"


def gen_km(diag=False, U=4, upto=9, ld="sc1", dbg="", NO=10, ST=(4, 5, 8, 9), NPRE=8, NF1=12, NF2=36, SL=2, one=True, CR=6, dopt={}, eopt={}, aopt={}, full=0xffff, wsc=True, pl='sc1', ps='sc1', warm=False, b0=False, otch=1, FPC=0, HP=1, efill=True, rot=False):
    if efill: dopt = dict(dopt, efill=True); eopt = dict(eopt, efill=True)
    assert ST[3] < NO and ST[0] > 2
    k = Kern(KNAME, 256, 512, 163840, vgpr=256, idx=1, diag=diag, nm=14, mb=64)
    SLEEP[0] = SL
    FULL[0] = full
    PL[0] = pl
    PS[0] = ps
    mk = k.mark
    if dbg == "a":
        late = lambda i: mk(i + 4) if i < 3 else None
    elif dbg == "c":
        late = lambda i: mk(i) if 2 <= i <= 8 else None
    else:
        late = mk
    k.stamp_start()
    AK1, AK2, AV = 2, 3, 4
    BK1 = 8
    SS = [16, 32]
    OO = [48, 96]
    P, K1, K2, V0, V1 = 64, 72, 76, 80, 84
    Q1 = [88, 112]
    Q2 = [92, 116]
    T0 = 118
    DAT, FR, PVS, PVW, PVR = 128, 192, 224, 225, 226
    WV = 14
    k(f"""
s_cmp_ge_u32 s2, 256
s_cbranch_scc1 {k.lab('end')}
s_load_dwordx4 s[28:31], s[0:1], {ARG_X}
s_load_dwordx2 s[32:33], s[0:1], {ARG_WO}
s_load_dwordx2 s[34:35], s[0:1], {ARG_WS}
s_load_dwordx2 s[38:39], s[0:1], {ARG_DBG}
s_load_dwordx8 s[40:47], s[0:1], {ARG_WG}
v_lshrrev_b32 v1, 6, v0
v_and_b32 v0, 63, v0
v_readfirstlane_b32 s16, v1
v_lshlrev_b32 v1, 4, v0
s_mov_b32 s95, s16
""")
    if dbg != "a":
        k.mark = lambda i: None
    if dbg in ("a0", "a1"):
        aopt = dict(aopt, tr=dbg); late = lambda i: None
    phase_a(k, **aopt)
    k.mark = late
    k(f"""
s_and_b32 s17, s2, 7
s_lshl_b32 s17, s17, 2
s_bfe_u32 s18, s2, 0x20003
s_add_u32 s17, s17, s18          ; head
s_lshr_b32 s18, s2, 5
s_lshl_b32 s18, s18, 3
s_and_b32 s19, s16, 3
s_lshl_b32 s19, s19, 1
s_add_u32 s18, s18, s19
s_lshr_b32 s33, s16, 2           ; kh
s_mul_i32 s63, s17, {QHEAD}
s_mul_i32 s22, s18, {QBLK}
s_add_u32 s63, s63, s22
s_add_u32 s63, s63, {QOFF}
s_mul_i32 s22, s17, {KVHEAD}
s_lshl_b32 s23, s16, 10
v_and_b32 v{T0}, 31, v0
v_lshlrev_b32 v{T0+8}, 2, v{T0}
""")
    def piece(off, base="s23"):
        return f"s_add_u32 m0, {base}, {off}\ns_add_u32 s24, s22, m0\nbuffer_load_dwordx4 v1, s[12:15], s24 offen {ld} lds"
    assert (2 * U + 2) * KVBLK <= 24576
    k(f"""
v_and_b32 v{T0+1}, 0x13, v{T0}
v_and_b32 v{T0+2}, 4, v{T0}
v_lshl_or_b32 v{T0+1}, v{T0+2}, 1, v{T0+1}
v_bfe_u32 v{T0+2}, v{T0}, 3, 1
v_lshl_or_b32 v{T0+1}, v{T0+2}, 2, v{T0+1}
v_lshrrev_b32 v{T0+2}, 5, v0
v_lshlrev_b32 v{T0+3}, 9, v{T0+2}
v_lshl_add_u32 v{BK1}, v{T0+1}, 4, v{T0+3}
v_lshlrev_b32 v{BK1+1}, 2, v{T0+1}
v_add_u32 v{BK1+1}, {KV_K2}, v{BK1+1}
v_bfe_u32 v{T0+3}, v0, 2, 2
v_lshl_add_u32 v{T0+3}, v{T0+2}, 3, v{T0+3}
v_and_b32 v{T0+4}, 1, v0
v_mul_u32_u24 v{T0+4}, {KV_V1-KV_V0}, v{T0+4}
v_bfe_u32 v{T0+5}, v0, 1, 1
v_lshl_add_u32 v{T0+4}, v{T0+5}, 3, v{T0+4}
v_add_u32 v{T0+4}, {KV_V0}, v{T0+4}
v_and_b32 v{T0+5}, 16, v0
v_cmp_eq_u32 vcc, 16, v{T0+5}
""")
    for m in range(2):
        for i in range(2):
            k(f"""
v_add_u32 v{T0+5}, {16*m+4*i}, v{T0+3}
v_lshl_add_u32 v{T0+6}, v{T0+5}, 4, v{T0+4}
v_lshlrev_b32 v{T0+5}, 3, v{T0+5}
v_add_u32 v{T0+5}, {KV_V2}, v{T0+5}
v_cndmask_b32 v{BK1+2+2*m+i}, v{T0+6}, v{T0+5}, vcc
""")
    k(f"""
v_mov_b32 v{K2+1}, 0x3f803f80
v_cmp_gt_u32 s[30:31], 32, v0
s_mul_i32 s32, s33, {NO*U*KVBLK}
s_mul_i32 s3, s33, {(64//U - 2*NO) & 0xffffffff}
s_add_u32 s3, s3, {NO}
s_mov_b32 s48, 1
s_mov_b32 s21, 2
s_mov_b32 s36, s46
s_mov_b32 s37, s47
s_and_b32 s38, s2, 7
s_lshl_b32 s38, s38, 3
s_bfe_u32 s39, s2, 0x30003
s_add_u32 s38, s38, s39
s_lshr_b32 s39, s2, 6
s_xor_b32 s11, s16, 4
s_mul_i32 s49, s39, 9
s_lshl_b32 s19, s11, 1
s_add_u32 s49, s49, s19
s_lshl_b32 s62, s49, 10
s_add_u32 s62, s62, {WOOFF}
s_bfe_u32 s8, s2, 0x10002
s_lshl_b32 s8, s8, 2
s_bfe_u32 s9, s2, 0x20003
s_add_u32 s8, s8, s9
s_and_b32 s9, s2, 3
s_lshl_b32 s9, s9, 3
s_lshr_b32 s10, s2, 5
s_add_u32 s9, s9, s10
s_mul_i32 s10, s9, {9*UB}
s_add_u32 s10, s10, {WGUOFF}
s_lshl_b32 s61, s2, 2
s_add_u32 s61, s61, s16
s_mov_b32 s7, 0x20000
s_mov_b32 s56, 8
s_mov_b32 s57, 16
s_mov_b32 s58, 4
s_mov_b32 s6, {D*F*2}
s_cmp_ge_u32 s61, 648
s_cbranch_scc1 {k.lab('p1')}
s_cmp_ge_u32 s61, 324
s_cselect_b32 s4, s42, s40
s_cselect_b32 s5, s43, s41
s_cselect_b32 s60, 324, 0
s_cselect_b32 s53, 1024, 0
s_sub_u32 s60, s61, s60
s_mul_i32 s19, s60, 3641
s_lshr_b32 s19, s19, 16          ; ks
s_mul_i32 s59, s19, 18
s_sub_u32 s60, s60, s59          ; cg
s_mov_b32 s50, {F*2}
s_mul_i32 s51, s19, {32*F*2}
s_lshl_b32 s59, s60, 9
s_add_u32 s51, s51, s59
s_mov_b32 s52, 128
s_mul_i32 s59, s60, {16*36864}
s_add_u32 s53, s53, s59
s_lshl_b32 s59, s19, 11
s_add_u32 s53, s53, s59
s_add_u32 s53, s53, {WGUOFF}
s_mov_b32 s54, {4*36864}
s_mov_b32 s55, 36864
""")
    for e in range(8):
        k(f"s_add_u32 s{40+e}, s51, {(e//2)*128 + (e&1)*16*F*2}")
    k(f"s_branch {k.lab('pgo')}")
    k.label("p1")
    k(f"""
s_mov_b32 s50, 1152
s_mov_b32 s54, 36864
s_mov_b32 s55, 1024
s_mov_b32 s4, s44
s_mov_b32 s5, s45
s_mov_b32 s52, {32*1152}
s_sub_u32 s60, s61, 648
s_mul_i32 s19, s60, 7282
s_lshr_b32 s19, s19, 16          ; kg = r/9
s_mul_i32 s59, s19, 9
s_sub_u32 s60, s60, s59          ; cs
s_mul_i32 s53, s19, {4*36864}
s_add_u32 s53, s53, {WDOFF}
s_lshl_b32 s59, s60, 12
s_add_u32 s53, s53, s59
; k-slot order: position pos (16 rows) of quarter kq holds unit 72kq + 9*((pos%24)/3) + 3*(pos/24) + pos%3
s_lshl_b32 s51, s60, 7
s_mul_i32 s59, s19, 7282
s_lshr_b32 s59, s59, 16
s_mul_i32 s60, s59, 9
s_sub_u32 s19, s19, s60          ; kg%9
s_mul_i32 s59, s59, {72*16*1152}
s_add_u32 s51, s51, s59
s_mul_i32 s59, s19, 86
s_lshr_b32 s59, s59, 8           ; gamma = (kg%9)/3
s_mul_i32 s60, s59, 3
s_sub_u32 s19, s19, s60
s_lshl_b32 s19, s19, 3           ; pos%24 of the first half block
s_mul_i32 s60, s60, {16*1152}
s_add_u32 s51, s51, s60
""")
    for e in range(8):
        k(f"""
s_add_u32 s59, s19, {e}
s_mul_i32 s60, s59, 86
s_lshr_b32 s60, s60, 8
s_mul_i32 s60, s60, 6
s_add_u32 s59, s59, s60
s_mul_i32 s59, s59, {16*1152}
s_add_u32 s{40+e}, s51, s59
""")
    k.label("pgo")
    k(f"s_lshl_b32 s19, s16, 11\ns_add_u32 s19, s19, {SCR}")
    prep_addr(k, PVS, PVW, PVR, PVR + 1, 19)
    if warm:
        k(f"""
s_lshl_b32 s25, s18, 5
s_add_u32 s25, s25, s17
s_mul_i32 s25, s25, {FLS}
s_add_u32 s25, s25, {FBOFF}
s_add_u32 s26, s25, {32*FLS}
s_mul_i32 s59, s61, {FLS}
s_add_u32 s59, s59, {FPOFF}
s_lshl_b32 s60, s38, 2
s_add_u32 s60, s60, s39
s_mul_i32 s60, s60, {FLS}
s_add_u32 s60, s60, {FCOFF}
s_cmp_lg_u32 s16, 2
s_cselect_b32 s60, {OOB}, s60
s_cmp_lt_u32 s16, 4
s_cselect_b32 s25, s59, s25
s_cselect_b32 s26, s60, s26
v_mov_b32 v16, 0
v_mov_b32 v17, 0
v_lshlrev_b32 v18, 3, v0
""")
    def clears():
        k(f"v_mov_b32 v{P+4}, 0\nv_mov_b32 v{K2+3}, 0x3f803f80")
        for r in [OO[q] + 2*i for q in range(2) for i in range(8)] + [P + 4, P + 6, V1, V1 + 2]:
            k(f"v_pk_mul_f32 {v(r,2)}, {v(P+4,2)}, {v(P+4,2)} op_sel_hi:[0,0]")
    clears()
    k(f"""
s_cmp_eq_u32 s16, 5
s_cbranch_scc1 {k.lab('q5')}
s_cmp_lg_u32 s16, 4
s_cbranch_scc1 {k.lab('pqx')}
s_lshr_b32 s59, s17, 3
s_lshl_b32 s59, s59, 4           ; hg*16
v_and_b32 v{T0}, 15, v0
v_bfe_u32 v{T0+1}, v0, 4, 1
v_lshl_add_u32 v{T0}, v{T0+1}, 6, v{T0}
v_add_u32 v{T0}, 64, v{T0}
s_lshr_b32 s60, s2, 5
s_lshl_b32 s60, s60, 1
v_and_b32 v{T0+1}, 1, v0
v_add_u32 v{T0+1}, s60, v{T0+1}
s_mul_i32 s59, s59, {FLS}
s_add_u32 s59, s59, {FAOFF}
v_cndmask_b32 v{T0}, v{T0+1}, v{T0}, s[30:31]
s_branch {k.lab('q6')}
""")
    k.label("q5")
    k(f"""
; lanes 0..14: Wo jobs 128 + (l/3)*9 + cs0 + l%3 ; 15..50: wbar jobs ; 51..: statistics 2tb + (l&1)
s_mul_i32 s60, s39, 9
s_lshr_b32 s60, s60, 2
s_add_u32 s60, s60, 128
v_mul_u32_u24 v{T0}, 21846, v0
v_lshrrev_b32 v{T0}, 16, v{T0}
v_mad_u32_u24 v{T0}, v{T0}, 6, v0
v_add_u32 v{T0}, s60, v{T0}
v_add_u32 v{T0+1}, {173-15}, v0
v_cmp_gt_u32 vcc, 15, v0
s_lshl_b32 s60, s38, 1
v_and_b32 v{T0+2}, 1, v0
v_cndmask_b32 v{T0}, v{T0+1}, v{T0}, vcc
v_cmp_gt_u32 vcc, 51, v0
v_add_u32 v{T0+2}, s60, v{T0+2}
s_mov_b32 s59, {FSOFF}
v_cndmask_b32 v{T0}, v{T0+2}, v{T0}, vcc
""")
    k.label("q6")
    k(f"v_mul_u32_u24 v{T0}, {FLS}, v{T0}")
    poll(k, "pq", 59, T0, T0 + 2, 60)
    k("s_barrier")
    if dbg == "a": mk(7)
    k(piece(0))
    k(f"""
buffer_load_dwordx4 {v(Q1[0],4)}, v1, s[12:15], s63 offen {ld}
buffer_load_dword v{Q2[0]}, v{T0+8}, s[12:15], s63 offen offset:1024 {ld}
buffer_load_dwordx4 {v(Q1[1],4)}, v1, s[12:15], s63 offen offset:{QBLK} {ld}
buffer_load_dword v{Q2[1]}, v{T0+8}, s[12:15], s63 offen offset:{QBLK+1024} {ld}
""")
    k(piece(8192)); k(piece(16384))
    k(f"s_waitcnt vmcnt({2 if b0 else 0})\ns_barrier")
    if warm:
        k("s_mov_b64 exec, 0xffff\nbuffer_store_dwordx2 v[16:17], v18, s[12:15], s25 offen sc1\nbuffer_store_dwordx2 v[16:17], v18, s[12:15], s26 offen sc1\ns_mov_b64 exec, -1")
    k.mark(0)
    k(f"""
v_cndmask_b32 v{Q2[0]}, 0, v{Q2[0]}, s[30:31]
v_cndmask_b32 v{Q2[1]}, 0, v{Q2[1]}, s[30:31]
s_setprio 1
s_cmp_eq_u32 s33, 0
s_cbranch_scc1 {k.lab('restart')}
s_setprio 0
s_mov_b32 s21, 99
s_add_u32 s23, s23, {24576 - 4096}
""")
    for n in range(NPRE):
        k(piece(n * 4096))
    k(f"s_add_u32 s23, s23, {NPRE*4096}")
    B0B = (f"s_cmp_lg_u32 s48, 1\ns_cbranch_scc1 {k.lab('b0b')}\ns_waitcnt vmcnt({NPRE + (1 if warm else 0)})\ns_cmp_lg_u32 s33, 0\ns_cbranch_scc1 {k.lab('b0a')}\n"
           f"s_waitcnt vmcnt({1 if warm else 0})\n{k.lab('b0a')}:\ns_barrier\n{k.lab('b0b')}:")
    k.label("restart")
    k(f"""
v_mov_b32 v{Q2[0]+1}, 0
v_mov_b32 v{Q2[1]+1}, 0
v_mov_b32 v{T0}, 0xff800000
v_mov_b32 v{T0+1}, 0xff800000
v_mov_b32 v{AK1}, v{BK1}
v_mov_b32 v{AK2}, v{BK1+1}
s_mov_b32 s20, s48
""")
    k.label("mx")
    k(f"""
ds_read_b128 {v(K1,4)}, v{AK1}
ds_read_b32 v{K2}, v{AK2}
v_add_u32 v{AK1}, {KVBLK}, v{AK1}
v_add_u32 v{AK2}, {KVBLK}, v{AK2}
s_waitcnt lgkmcnt(0)
{M16} {v(SS[0],16)}, {v(K1,4)}, {v(Q1[0],4)}, 0
{M8} {v(SS[0],16)}, {v(K2,2)}, {v(Q2[0],2)}, {v(SS[0],16)}
{M16} {v(SS[1],16)}, {v(K1,4)}, {v(Q1[1],4)}, 0
{M8} {v(SS[1],16)}, {v(K2,2)}, {v(Q2[1],2)}, {v(SS[1],16)}
s_sub_u32 s20, s20, 1
s_nop 8
""")
    for q in range(2):
        for i in range(8):
            k(f"v_max3_f32 v{T0+q}, v{T0+q}, v{SS[q]+2*i}, v{SS[q]+2*i+1}")
    k(f"""
s_cmp_lg_u32 s20, 0
s_cbranch_scc1 {k.lab('mx')}
v_mov_b32 v{T0+2}, v{T0}
v_mov_b32 v{T0+3}, v{T0+1}
""")
    for i in range(6):
        k(f"v_add_u32 v{AK1+i}, s32, v{BK1+i}")
    k(f"""
v_permlane32_swap_b32 v{T0}, v{T0+2}
v_permlane32_swap_b32 v{T0+1}, v{T0+3}
{B0B if b0 else ""}
s_and_b32 s19, s33, s48
s_cbranch_scc0 {k.lab('kvx')}
""")
    k.label("kv")
    k(piece(0))
    k(f"""
s_add_u32 s23, s23, 4096
s_cmp_lt_u32 s23, {KVHEAD}
s_cbranch_scc1 {k.lab('kv')}
s_waitcnt vmcnt(0)
s_barrier
""")
    WC = 112
    def wcreg(ks, sl):
        i = 2 * ks + sl
        return 128 + 4 * i if i < 32 else WC + 4 * (i - 32)
    for ks in range(16):
        for sl in range(2):
            k(f"buffer_load_dwordx4 {v(wcreg(ks,sl),4)}, v1, s[12:15], s62 offen offset:{sl*1024}")
        k("s_add_u32 s62, s62, 36864")
    if otch:
        k.srd(24, 36, S * D * 2)
        k(f"""
s_lshl_b32 s59, s11, 8
s_add_u32 s59, s59, s2
s_lshl_b32 s59, s59, 13
v_lshlrev_b32 v14, 7, v0
buffer_load_dword v15, v14, s[24:27], s59 offen {otch if otch != 1 else ""}
""")
    k.label("kvx")
    k(f"""
ds_read_b128 {v(K1,4)}, v{AK1}
ds_read_b32 v{K2}, v{AK2}
ds_read_b64_tr_b16 {v(V0,2)}, v{AV}
ds_read_b64_tr_b16 {v(V0+2,2)}, v{AV+1}
""")
    for q in range(2):
        k(f"""
v_max_f32 v{T0+q}, v{T0+q}, v{T0+2+q}
v_sub_f32 v{T0+q}, 0, v{T0+q}
v_cvt_pk_bf16_f32 v{T0+4}, v{T0+q}, v{T0+q}
v_and_b32 v{T0+4}, 0xffff0000, v{T0+4}
v_sub_f32 v{T0+5}, v{T0+q}, v{T0+4}
v_cvt_pk_bf16_f32 v{T0+4}, v{T0+4}, v{T0+5}
v_cndmask_b32 v{Q2[q]+1}, 0, v{T0+4}, s[30:31]
""")
    k(f"""
s_waitcnt lgkmcnt(0)
{M16} {v(SS[0],16)}, {v(K1,4)}, {v(Q1[0],4)}, 0
{M8} {v(SS[0],16)}, {v(K2,2)}, {v(Q2[0],2)}, {v(SS[0],16)}
""")
    K1B, K2B, V1B = [K1, T0], [K2, K2 + 2], [T0 + 4, V1]
    k(f"""
ds_read_b128 {v(K1B[1],4)}, v{AK1} offset:{KVBLK}
ds_read_b32 v{K2B[1]}, v{AK2} offset:{KVBLK}
ds_read_b64_tr_b16 {v(V1B[0],2)}, v{AV+2}
ds_read_b64_tr_b16 {v(V1B[0]+2,2)}, v{AV+3}
s_nop 7
""")
    k.mark(1)
    k(".p2align 6")
    k.label("loop")
    for t in range(U):
        b = t & 1
        for ph in range(2):
            cur, nxt = SS[ph], SS[1-ph]
            Oc, Op = OO[ph], OO[1-ph]
            e = lambda i: f"v_exp_f32 v{cur+i}, v{cur+i}"
            c = lambda i: f"v_cvt_pk_bf16_f32 v{P+i}, v{cur+2*i}, v{cur+2*i+1}"
            if ph == 0:
                v1, k1, k2 = V1B[1-b], K1B[b], K2B[b]
                sA = f"ds_read_b64_tr_b16 {v(V0+2,2)}, v{AV+1} offset:{t*KVBLK}"
                sB = ""
                sC = "s_waitcnt lgkmcnt(0)"
                sD = f"ds_read_b64_tr_b16 {v(V1B[1-b],2)}, v{AV+2} offset:{(t+1)*KVBLK}"
            else:
                v1, k1, k2 = V1B[b], K1B[1-b], K2B[1-b]
                sA = f"ds_read_b64_tr_b16 {v(V1B[1-b]+2,2)}, v{AV+3} offset:{(t+1)*KVBLK}"
                sB = f"ds_read_b128 {v(K1B[b],4)}, v{AK1} offset:{(t+2)*KVBLK}"
                sC = f"ds_read_b32 v{K2B[b]}, v{AK2} offset:{(t+2)*KVBLK}"
                sD = f"ds_read_b64_tr_b16 {v(V0,2)}, v{AV} offset:{(t+1)*KVBLK}"
            k(f"""
{e(0)}
{e(1)}
{M16} {v(Op,16)}, {v(v1,4)}, {v(P+4,4)}, {v(Op,16)}
{sA}
{e(2)}
{e(3)}
{c(0)}
{c(1)}
{e(4)}
{e(5)}
{M16} {v(nxt,16)}, {v(k1,4)}, {v(Q1[1-ph],4)}, 0
{sB}
{e(6)}
{e(7)}
{c(2)}
{c(3)}
{e(8)}
{e(9)}
{M8} {v(nxt,16)}, {v(k2,2)}, {v(Q2[1-ph],2)}, {v(nxt,16)}
{sC}
{e(10)}
{e(11)}
{c(4)}
{c(5)}
{e(12)}
{e(13)}
{M16} {v(Oc,16)}, {v(V0,4)}, {v(P,4)}, {v(Oc,16)}
{sD}
{e(14)}
{e(15)}
{c(6)}
{c(7)}
""")
    for i in range(6):
        k(f"v_add_u32 v{AK1+i}, {U*KVBLK}, v{AK1+i}")
    k(f"""
s_add_u32 s20, s20, 1
s_cmp_eq_u32 s20, s21
s_cbranch_scc1 {k.lab('stub')}
s_cmp_lt_u32 s20, s3
s_cbranch_scc1 {k.lab('loop')}
{M16} {v(OO[1],16)}, {v(V1,4)}, {v(P+4,4)}, {v(OO[1],16)}
""")
    k.mark(2)
    BADF = 16384
    k(f"""
s_setprio 0
s_waitcnt lgkmcnt(0)
s_and_b32 s19, s16, 3
s_lshl_b32 s24, s19, 12
v_add_u32 v{T0+2}, s24, v1
s_lshl_b32 s24, s19, 11
s_add_u32 s24, s24, {SCR}
v_add_u32 v{T0+3}, s24, v1
v_mov_b32 v{T0+4}, {BADF}
s_waitcnt lgkmcnt(0)
s_cmp_eq_u32 s48, 1
s_cbranch_scc1 {k.lab('x0')}
s_barrier
""")
    k.label("x0")
    k(f"s_cmp_lg_u32 s33, 0\ns_cbranch_scc1 {k.lab('xy')}")
    for q in range(2):
        for j in range(2):
            k(f"ds_write_b128 v{T0+2}, {v(OO[q]+4*j,4)} offset:{(2*q+j)*1024}")
        k(f"ds_write_b128 v{T0+3}, {v(OO[q]+8,4)} offset:{q*1024}")
    k(f"""
s_cmp_lg_u32 s21, 98
s_cbranch_scc1 {k.lab('x1')}
s_mov_b32 s21, 99
s_mul_i32 s59, s61, {FLS}
s_add_u32 s59, s59, {FPOFF}
s_waitcnt vmcnt(0)
""")
    set_flag(k, 59, T0 + 6)
    k(f"""
v_and_b32 v{T0+6}, 1, v0
v_mul_u32_u24 v{T0+6}, 1152, v{T0+6}
v_lshrrev_b32 v{T0+7}, 4, v0
v_lshl_add_u32 v{T0+6}, v{T0+7}, 4, v{T0+6}
s_mul_i32 s60, s39, 9216
s_add_u32 s60, s60, {WOOFF + 8192}
s_mov_b32 s59, 36864
s_bitcmp1_b32 s16, 0
s_cselect_b32 s60, {WBAROFF}, s60
s_cselect_b32 s59, 64, s59
s_cselect_b64 vcc, -1, 0
s_lshr_b32 s58, s16, 1
s_add_u32 s57, s58, 16
s_mul_i32 s57, s57, s59
s_add_u32 s57, s57, s60
s_lshl_b32 s58, s58, 3
s_mul_i32 s58, s58, s59
s_add_u32 s60, s60, s58
v_cndmask_b32 v{T0+6}, v1, v{T0+6}, vcc
""")
    for i in range(8):
        k(f"buffer_load_dwordx4 {v(128+4*i,4)}, v{T0+6}, s[12:15], s60 offen\ns_add_u32 s60, s60, s59")
    k(f"buffer_load_dwordx4 {v(160,4)}, v{T0+6}, s[12:15], s57 offen")
    if efill:
        k(f"""
s_and_b32 s57, s2, 1
s_lshl_b32 s57, s57, 3
s_bfe_u32 s58, s2, 0x30003
s_add_u32 s57, s57, s58
s_lshl_b32 s57, s57, 2
s_add_u32 s57, s57, s16
s_mul_i32 s57, s57, 36
s_mul_i32 s58, s39, 9
s_add_u32 s57, s57, s58
s_mul_i32 s57, s57, 3072
s_add_u32 s57, s57, {EXOFF}
s_bfe_u32 s58, s2, 0x20001
s_mul_i32 s59, s58, 3072
s_add_u32 s59, s59, s57
s_add_u32 s60, s59, {4*3072}
s_add_u32 s57, s57, {8*3072}
""")
        for i in range(4):
            k(f"v_mov_b32 v{SS[0]+i}, -1")
        for so in (59, 60, 57):
            if so == 57:
                k(f"s_cmp_lg_u32 s58, s16\ns_cbranch_scc1 {k.lab('x1')}")
            for i in range(3):
                k(f"buffer_store_dwordx4 {v(SS[0],4)}, v1, s[12:15], s{so} offen offset:{i*1024} sc1")
    k.label("x1")
    k.mark(3)
    k(f"s_waitcnt lgkmcnt(0)\ns_barrier\ns_branch {k.lab('x2')}")
    k.label("xy")
    k(f"""
s_lshl_b32 s24, s17, 16
s_lshl_b32 s23, s18, 9
s_add_u32 s24, s24, s23
s_add_u32 s24, s24, {OOFF}
s_lshl_b32 s19, s18, 5
s_add_u32 s19, s19, s17
s_lshl_b32 s23, s19, 7
s_add_u32 s23, s23, {O2OFF}
s_add_u32 s22, s23, 4096
s_mul_i32 s19, s19, {FLS}
s_add_u32 s19, s19, {FBOFF}
s_add_u32 s25, s19, {32*FLS}
s_mov_b32 s26, {f2u(2.0**60):#x}
v_and_b32 v{T0+1}, 31, v0
v_lshrrev_b32 v{T0+5}, 5, v0
v_lshlrev_b32 v{T0+1}, 4, v{T0+1}
v_lshl_add_u32 v{T0+5}, v{T0+5}, 15, v{T0+1}
v_lshlrev_b32 v{T0+1}, 2, v0
""")
    k.mark(3)
    k("s_barrier")
    for q in range(2):
        k(f"ds_read_b128 {v(SS[q]+8,4)}, v{T0+3} offset:{q*1024}")
        for j in range(2):
            k(f"ds_read_b128 {v(SS[q]+4*j,4)}, v{T0+2} offset:{(2*q+j)*1024}")
    for q in range(2):
        O = OO[q]
        PQ = [P, V0][q]
        k(f"s_waitcnt lgkmcnt({5 - 3*q})\nv_add_f32 v{O+10}, v{O+10}, v{SS[q]+10}\nv_rcp_f32 v{T0+6+q}, v{O+10}\ns_waitcnt lgkmcnt({3 - 3*q})")
        for i in range(5):
            k(f"v_pk_add_f32 {v(O+2*i,2)}, {v(O+2*i,2)}, {v(SS[q]+2*i,2)}")
        for i in range(5):
            k(f"v_pk_mul_f32 {v(O+2*i,2)}, {v(O+2*i,2)}, {v(T0+6,2)} op_sel:[0,{q}] op_sel_hi:[1,{q}]")
        for i in range(5):
            k(f"v_cvt_pk_bf16_f32 v{PQ+i}, v{O+2*i}, v{O+2*i+1}")
        k(f"""
buffer_store_dwordx4 {v(PQ,4)}, v{T0+5}, s[12:15], s24 offen offset:{q*512} sc1
s_mov_b64 exec, s[30:31]
buffer_store_dword v{PQ+4}, v{T0+1}, s[12:15], s{23-q} offen sc1
s_mov_b64 exec, -1
""")
    k(f"""
v_add_f32 v{T0}, v{OO[0]+10}, v{OO[1]+10}
v_cmp_ngt_f32 vcc, s26, v{T0}
s_lshl_b32 s26, s16, 2
s_add_u32 s26, s26, {BADF - 16}
v_mov_b32 v{T0}, s26
s_cmp_lg_u64 vcc, 0
s_cselect_b32 s26, 1, 0
v_mov_b32 v{T0+2}, s26
ds_write_b32 v{T0}, v{T0+2}
s_waitcnt lgkmcnt(0)
""")
    k.label("x2")
    if dbg == "c": mk(0)
    k(f"""
s_barrier
ds_read_b128 {v(K1,4)}, v{T0+4}
s_waitcnt lgkmcnt(0)
v_or3_b32 v{K1}, v{K1}, v{K1+1}, v{K1+2}
v_or_b32 v{K1}, v{K1}, v{K1+3}
s_nop 0
v_readfirstlane_b32 s26, v{K1}
s_and_b32 s26, s26, s48
s_cmp_eq_u32 s26, 1
s_cbranch_scc1 {k.lab('fallback')}
""")
    if dbg == "c": mk(1)
    LT, LG = 2, 3
    GV = 4
    XV, W1V, FV = 5, 6, 7
    ACC, OF, X, MU = 16, 32, 48, 56
    TC = 60
    k.srd(4, 28, S * D * 2)
    k(f"""
v_and_b32 v{LT}, 15, v0
v_lshrrev_b32 v{LG}, 4, v0
v_lshlrev_b32 v{GV}, 15, v{LG}
v_lshl_add_u32 v{GV}, v{LT}, 4, v{GV}
v_and_b32 v{FV}, 31, v0
v_mul_u32_u24 v{FV}, {FLS}, v{FV}
v_mul_u32_u24 v{XV}, 1152, v{LT}
v_lshl_add_u32 v{XV}, v{LG}, 3, v{XV}
v_lshlrev_b32 v{W1V}, 2, v{LT}
s_mul_i32 s24, s38, {32*1152}
s_lshl_b32 s23, s49, 5
s_add_u32 s24, s24, s23
s_add_u32 s23, s24, {16*1152}
s_lshl_b32 s26, s38, 7
s_lshl_b32 s27, s38, 8
s_add_u32 s27, s27, {STOFF + 4}
v_lshlrev_b32 v9, 3, v{LT}
s_cmp_lt_u32 s16, 2
s_cbranch_scc1 {k.lab('ppx')}
s_cmp_lt_u32 s16, 4
s_cbranch_scc1 {k.lab('cfp')}
s_waitcnt vmcnt(0)
{flag_txt([19, 25], TC)}
s_branch {k.lab('ppx')}
{k.lab('cfp')}:
; waves 2,3: re-layout jobs read by phases D/E.  lanes 0..35: job = lane*18 + cg ; lanes 36..: 648 + (9kq + j/3)*9 + cs0 + j%3
s_mul_i32 s59, s9, 9
s_sub_u32 s60, s16, 2
s_lshl_b32 s60, s60, 3
s_add_u32 s59, s59, s60
s_lshr_b32 s55, s59, 4           ; cg
s_bfe_u32 s59, s2, 0x20001
s_mul_i32 s59, s59, 81
s_mul_i32 s60, s39, 9
s_lshr_b32 s60, s60, 2
s_add_u32 s59, s59, s60
s_add_u32 s59, s59, 648
v_subrev_u32 v9, 36, v0
v_min_u32 v9, 26, v9
v_mul_u32_u24 v10, 21846, v9
v_lshrrev_b32 v10, 16, v10
v_mad_u32_u24 v9, v10, 6, v9
v_add_u32 v9, s59, v9
v_mul_u32_u24 v10, 18, v0
v_add_u32 v10, s55, v10
v_cmp_gt_u32 vcc, 36, v0
s_mov_b32 s59, {FPOFF}
s_nop 0
v_cndmask_b32 v11, v9, v10, vcc
v_mul_u32_u24 v11, {FLS}, v11
""")
    poll(k, "pp", 59, 11, TC, 60)
    k.mark(4)
    k(f"s_barrier\ns_cmp_gt_u32 s11, 4\ns_cbranch_scc1 {k.lab('cnx')}")
    for T in range(2):
        for i in range(2):
            k(f"buffer_load_dwordx2 {v(X+2*(2*i+T),2)}, v{XV}, s[4:7], s{[24,23][T]} offen offset:{i*32}")
        k(f"buffer_load_dword v{MU+T}, v9, s[12:15], s27 offen offset:{T*128} {ld}")
    k(f"s_cmp_eq_u32 s11, 4\ns_cbranch_scc1 {k.lab('cnx')}")
    for ks in (16, 17):
        for sl in range(2):
            k(f"buffer_load_dwordx4 {v(wcreg(ks,sl),4)}, v1, s[12:15], s62 offen offset:{sl*1024}")
        k("s_add_u32 s62, s62, 36864")
    k.label("cnx")
    k(f"""
s_mul_i32 s59, s38, {32*FLS}
s_add_u32 s59, s59, {FBOFF}
s_lshl_b32 s57, s38, 9
s_add_u32 s57, s57, {OOFF}
s_lshr_b32 s58, s16, 1
s_lshl_b32 s58, s58, 17
s_add_u32 s57, s57, s58
s_and_b32 s58, s16, 1
s_lshl_b32 s58, s58, 8
s_add_u32 s57, s57, s58
s_lshl_b32 s58, s16, 10
s_lshl_b32 s56, s38, 12
s_add_u32 s56, s56, s58
s_add_u32 s56, s56, {O2OFF}
s_add_u32 s58, s58, {OST}
v_add_u32 v{XV}, {OST}, v1
v_lshlrev_b32 v8, 9, v{LG}
v_add3_u32 v8, v8, v{W1V}, s58
""".replace("v_add3_u32 v8, v8, v{W1V}, s58".format(W1V=W1V), f"v_add_u32 v8, v8, v{W1V}\nv_add_u32 v8, {OST + 32768}, v8"))
    k(f"""
s_add_u32 s47, s8, s9
s_mul_i32 s46, s47, 21846
s_lshr_b32 s46, s46, 16
s_mul_i32 s46, s46, 3
s_sub_u32 s47, s47, s46
{"" if rot else "s_mov_b32 s47, 0"}
s_mul_i32 s40, s47, {CB}
s_add_u32 s41, s40, {CB}
s_cmp_ge_u32 s41, {UB}
s_cselect_b32 s41, 0, s41
s_add_u32 s42, s41, {CB}
s_cmp_ge_u32 s42, {UB}
s_cselect_b32 s42, 0, s42
s_mov_b32 s43, s47
""")
    def feed(p0, p1):
        k(f"s_mul_i32 s22, s34, {UB}\ns_add_u32 s22, s22, s10\ns_mul_i32 s34, s34, {CB}")
        for p_ in range(p0, p1):
            if p_ % 4 == 0:
                k(f"s_add_u32 m0, s34, {(p_//12)*UB + (p_%12)*1024}\ns_add_u32 s35, s22, s{40 + p_//12}\ns_add_u32 s35, s35, {(p_%12)*1024}")
            k(f"buffer_load_dwordx4 v1, s[12:15], s35 offen offset:{(p_%4)*1024} lds")
            if FPC and p0 == 0: k(f"s_waitcnt vmcnt({FPC})")
    k(f"""
s_cmp_ge_u32 s16, 4
s_cbranch_scc1 {k.lab('pbx')}
s_cmp_eq_u32 s16, 1
s_cbranch_scc1 {k.lab('pb0')}
s_sub_u32 s34, s16, 1
s_max_i32 s34, s34, 0
""")
    feed(0, NF1)
    k(f"s_branch {k.lab('pbx')}")
    k.label("pb0")
    poll(k, "pb", 59, FV, TC, 60)
    k("s_barrier")
    k.mark(5)
    for n in range(4):
        k(f"s_add_u32 m0, s58, {n*8192}\ns_add_u32 s62, s57, {n*4*4*CH}\nbuffer_load_dwordx4 v{GV}, s[12:15], s62 offen {ld} lds")
    k(f"s_cmp_ge_u32 s16, 4\ns_cbranch_scc1 {k.lab('co')}")
    k(f"s_add_u32 m0, s58, {4*8192}\ns_nop 0\nbuffer_load_dwordx4 v1, s[12:15], s56 offen {ld} lds")
    k.label("co")
    k(f"s_waitcnt vmcnt(0)\ns_barrier")
    k.mark(6)
    HL = 3 * UB
    k(f"v_add_u32 v10, {HL}, v1\ns_cmp_lt_u32 s16, 4\ns_cbranch_scc1 {k.lab('chelp')}")
    OR = 64
    def rdo(ks):
        b = OR + 8 * (ks % CR)
        if ks >= 16:
            r = []
            if ks == 17: r.append("v_add_u32 v8, 2048, v8")
            for T in range(2):
                for h in range(2):
                    r.append(f"ds_read2_b32 {v(b+4*T+2*h,2)}, v8 offset0:{16*T+64*h} offset1:{16*T+64*h+32}")
            return r
        return [f"ds_read_b128 {v(b+4*T,4)}, v{XV} offset:{(2*ks+T)*1024}" for T in range(2)]
    nrd = lambda ks: 4 if ks >= 16 else 2
    for ks in range(CR - 1):
        for r in rdo(ks): k(r)
    for ks in range(18):
        k(f"s_waitcnt lgkmcnt({sum(nrd(q) for q in range(ks + 1, min(ks + CR - 1, 18)))})")
        r = rdo(ks + CR - 1) if ks + CR - 1 < 18 else []
        for sl in range(2):
            for T in range(2):
                d = v(ACC + (2*sl+T)*4, 4)
                k(f"{M} {d}, {v(wcreg(ks,sl),4)}, {v(OR+8*(ks%CR)+4*T,4)}, {'0' if ks == 0 else d}")
                if r: k(r.pop(0))
        for x in r: k(x)
    k.label("cepi")
    if dbg == 'c': mk(9)
    SQ = 58
    k(f"""
s_lshl_b32 s24, s49, 16
s_lshl_b32 s23, s38, 9
s_add_u32 s24, s24, s23
s_add_u32 s24, s24, {HCOFF}
v_lshrrev_b32 v8, 5, v0
v_lshlrev_b32 v8, 15, v8
v_and_b32 v9, 31, v0
v_lshl_add_u32 v8, v9, 4, v8
v_lshlrev_b32 v9, 2, v9
v_mov_b32 v{SQ}, 0
v_mov_b32 v{SQ+1}, 0
""")
    for sl in range(2):
        for T in range(2):
            x = X + 2*(2*sl+T)
            r = OF + 4*(2*sl+T)
            k(f"v_lshlrev_b32 v{r}, 16, v{x}\nv_and_b32 v{r+1}, 0xffff0000, v{x}\nv_lshlrev_b32 v{r+2}, 16, v{x+1}\nv_and_b32 v{r+3}, 0xffff0000, v{x+1}")
    k("s_barrier")
    if dbg == 'c': mk(10)
    for T in range(2):
        for hh in range(2):
            k(f"ds_read_b64 {v(64+4*T+2*hh,2)}, v10 offset:{(1+2*hh)*2048 + T*1024}")
    for T in range(2):
        k(f"ds_read_b128 {v(72+4*T,4)}, v10 offset:{2*2048 + T*1024}")
    for i in range(8):
        k(f"v_pk_add_f32 {v(ACC+2*i,2)}, {v(ACC+2*i,2)}, {v(OF+2*i,2)}")
    k("s_waitcnt lgkmcnt(0)")
    for T in range(2):
        k(f"v_pk_add_f32 {v(64+4*T,2)}, {v(64+4*T,2)}, {v(66+4*T,2)}\nv_add_f32 v{MU+T}, v{MU+T}, v{64+4*T}\nv_add_f32 v{MU+T}, v{MU+T}, v{65+4*T}")
    k(f"s_cmp_lg_u32 s11, 4\ns_cbranch_scc1 {k.lab('cn8')}")
    for i in range(4):
        k(f"v_pk_add_f32 {v(ACC+2*i,2)}, {v(ACC+2*i,2)}, {v(72+2*i,2)}")
    k.label("cn8")
    for sl in range(2):
        if sl == 1:
            k(f"s_cmp_eq_u32 s11, 4\ns_cbranch_scc1 {k.lab('cq')}")
        R = X + 4*sl
        for T in range(2):
            ac = ACC + (2*sl+T)*4
            for r in range(4):
                k(f"v_sub_f32 v{ac+r}, v{ac+r}, v{MU+T}")
            k(f"v_cvt_pk_bf16_f32 v{R+2*T}, v{ac}, v{ac+1}\nv_cvt_pk_bf16_f32 v{R+2*T+1}, v{ac+2}, v{ac+3}")
            for r in range(4):
                k(f"v_fmac_f32 v{SQ+T}, v{ac+r}, v{ac+r}")
        k(f"""
v_permlane16_swap_b32 v{R}, v{R+2}
v_permlane16_swap_b32 v{R+1}, v{R+3}
buffer_store_dwordx4 {v(R,4)}, v8, s[12:15], s24 offen sc1
s_add_u32 s24, s24, 65536
""")
    k.label("cq")
    k(f"""
s_mul_i32 s23, s39, 5
s_add_u32 s23, s23, s11
v_permlane16_swap_b32 v{SQ}, v{SQ+1}
v_permlane16_swap_b32 v{MU}, v{MU+1}
s_lshl_b32 s27, s23, 13
s_add_u32 s27, s27, s26
s_add_u32 s27, s27, {SSQOFF}
v_add_f32 v{SQ}, v{SQ}, v{SQ+1}
v_mov_b32 v{SQ+1}, v{SQ}
s_add_u32 s26, s26, {MUHOFF}
s_cmp_lg_u32 s23, 0
s_cselect_b32 s26, {OOB}, s26
v_permlane32_swap_b32 v{SQ}, v{SQ+1}
v_add_f32 v{SQ}, v{SQ}, v{SQ+1}
s_mov_b32 exec_hi, 0
buffer_store_dword v{SQ}, v9, s[12:15], s27 offen sc1
buffer_store_dword v{MU}, v9, s[12:15], s26 offen sc1
s_mov_b64 exec, -1
s_lshl_b32 s3, s38, 5
s_add_u32 s3, s3, s23
s_mul_i32 s3, s3, {FLS}
s_add_u32 s3, s3, {FCOFF}
s_branch {k.lab('dstart')}
""")
    k.label("chelp")
    if NF1 < NF2:
        k(f"s_cmp_eq_u32 s16, 0\ns_cbranch_scc1 {k.lab('ch2')}\ns_sub_u32 s34, s16, 1")
        feed(NF1, NF2)
        k.label("ch2")
    k(f"""
s_lshr_b32 s23, s16, 1
s_lshl_b32 s24, s23, 14
v_add_u32 v{XV}, s24, v{XV}
s_lshl_b32 s24, s23, 11
v_add_u32 v8, s24, v8
s_lshl_b32 s24, s16, 11
v_add_u32 v11, s24, v10
s_setprio {HP}
""")
    HB = 168
    for i in range(8):
        for T in range(2):
            k(f"ds_read_b128 {v(HB+8*i+4*T,4)}, v{XV} offset:{(2*i+T)*1024}")
        if i == 5: k("s_waitcnt lgkmcnt(8)")
    for T in range(2):
        for h in range(2):
            k(f"ds_read2_b32 {v(HB+64+4*T+2*h,2)}, v8 offset0:{16*T+64*h} offset1:{16*T+64*h+32}")
    for i in range(9):
        k(f"s_waitcnt lgkmcnt({max(0, min(15, 2*(7-i) + 4)) if i < 8 else 0})")
        for T in range(2):
            d = v(ACC + 4*T, 4)
            k(f"{M} {d}, {v(128+4*i,4)}, {v(HB+8*i+4*T,4)}, {'0' if i == 0 else d}")
    k(f"""
s_setprio 0
s_mov_b32 s3, {OOB}
s_cmp_eq_u32 s16, 0
s_cbranch_scc1 {k.lab('cepi')}
s_nop 3
ds_write_b128 v11, {v(ACC,4)}
ds_write_b128 v11, {v(ACC+4,4)} offset:1024
""")
    k("s_waitcnt lgkmcnt(0)\ns_barrier")
    k.label("dstart")
    if dopt.get("wgf", 1):
        k(f"""
s_lshl_b32 s3, s38, 2
s_add_u32 s3, s3, s39
s_mul_i32 s3, s3, {FLS}
s_add_u32 s3, s3, {FCOFF}
s_cmp_lg_u32 s16, 2
s_cselect_b32 s3, {OOB}, s3
""")
    k.mark(7)
    if upto >= 4:
        assert NF2 >= 12
        def late_feed():
            if NF2 < 36:
                k(f"s_sub_u32 s34, s16, 5\ns_cmp_ge_u32 s34, 3\ns_cbranch_scc1 {k.lab('lf')}")
                feed(NF2, 36)
                k.label("lf")
        tails, dside, last_unit = phase_d(k, GV, FV, WV, ld, late_feed, **dopt)
    if upto >= 5:
        i0 = len(k.L)
        phase_e(k, GV, ld, tails, last_unit, **eopt)
        if dbg in ("e0", "e1"):
            i1 = k.L.index(k.lab("econs") + ":")
            n = 0; out = []
            for l in k.L[i0:i1]:
                if l.strip() == "s_barrier" and n < 10:
                    m_ = f"  s_memtime s[{k.mb+2*n}:{k.mb+2*n+1}]"; n += 1
                    out += [m_, l] if dbg == "e0" else [l, m_]
                else:
                    out.append(l)
            k.L[i0:i1] = out
    k(f"s_branch {k.lab('fin')}")
    if upto >= 4:
        k(dside)
    k.label("stub")
    k(f"""
s_cmp_eq_u32 s21, 2
s_cbranch_scc1 {k.lab('stub0')}
s_cmp_eq_u32 s21, {ST[1]}
s_cbranch_scc1 {k.lab('stub2')}
s_cmp_eq_u32 s21, {ST[2]}
s_cbranch_scc1 {k.lab('stub3')}
s_cmp_eq_u32 s21, {ST[3]}
s_cbranch_scc1 {k.lab('stub4')}
s_mov_b32 s21, {ST[1]}
""")
    prep_loads_tab(k, (0, 1), DAT, PVS, 4, 40)
    k(f"s_branch {k.lab('loop')}")
    k.label("stub2")
    k(f"s_mov_b32 s21, {ST[2]}")
    prep_loads_tab(k, (2, 3), DAT, PVS, 4, 40)
    k(f"s_branch {k.lab('loop')}")
    k.label("stub3")
    k(f"s_mov_b32 s21, {ST[3]}")
    prep_process(k, DAT, FR, PVW, PVR, ns=(0, 1))
    k(f"s_branch {k.lab('loop')}")
    k.label("stub4")
    k(f"s_mov_b32 s21, 98")
    prep_process(k, DAT, FR, PVW, PVR, ns=(2, 3))
    k(f"s_branch {k.lab('loop')}")
    k.label("stub0")
    k(f"s_barrier\ns_cmp_ge_u32 s61, 972\ns_cselect_b32 s21, 98, {ST[0]}\ns_branch {k.lab('loop')}")
    k.label("fallback")
    k(f"""
s_waitcnt vmcnt(0)
s_barrier
s_mov_b32 s48, 64
s_mul_i32 s22, s17, {KVHEAD}
s_lshl_b32 s23, s16, 10
""")
    clears()
    k.label("fb1")
    k(piece(0))
    k(f"""
s_add_u32 s23, s23, 8192
s_cmp_lt_u32 s23, {KVHEAD}
s_cbranch_scc1 {k.lab('fb1')}
s_waitcnt vmcnt(0)
s_barrier
s_branch {k.lab('restart')}
""")
    for i, l in enumerate(k.L):
        if l.strip().startswith("buffer_load") and "s[12:15]" in l and " sc1" not in l and wsc:
            k.L[i] = l[:-4] + " sc1 lds" if l.endswith(" lds") else l.rstrip() + " sc1"
    k.label("fin")
    k.stamp_end(12)
    k.label("end")
    k("s_endpgm")
    return k


def phase_d(k, GV, FV, WV, ld, late_feed, PF=6, LA=4, WG=2, exp='', prio=0, DS=5, tch=False, pre=12, psl=None, wgf=2, NPF=5, PS0=6, PST=2, efill=False, nodup=True):
    ACC = [16, 32, 48]
    WF, PR, HV = 64, 88, 112
    SV, A0, A1, AB, FILL = 3, 5, 6, 2, 8
    hreg = lambda ks, T: v(HV + 4*(2*ks+T), 4)
    k(f"""
s_lshl_b32 s11, s8, 3
s_add_u32 s11, s11, s16
s_lshl_b32 s21, s11, 9
s_add_u32 s20, s21, {HCOFF}      ; h soffset
s_mul_i32 s22, s43, {6*4*CH}
s_add_u32 s20, s20, s22
s_mov_b32 s34, {4*CH}
s_mov_b32 s35, {4*CH}
s_cmp_eq_u32 s43, 2
s_cselect_b32 s34, {(-17*4*CH) & 0xffffffff}, s34
s_cmp_eq_u32 s43, 1
s_cselect_b32 s35, {(-17*4*CH) & 0xffffffff}, s35
s_mul_i32 s43, s43, {CB}
s_lshr_b32 s22, s9, 3
s_mul_i32 s22, s22, {72*65536}
s_add_u32 s21, s21, s22
s_and_b32 s22, s9, 7
s_mul_i32 s22, s22, {3*65536}
s_add_u32 s21, s21, s22
s_add_u32 s21, s21, {HIDOFF}     ; hid store soffset
s_and_b32 s17, s2, 1
s_lshl_b32 s17, s17, 3
s_bfe_u32 s18, s2, 0x30003
s_add_u32 s17, s17, s18
s_lshr_b32 s18, s2, 6
s_bfe_u32 s19, s2, 0x20001
""")
    for n in range(5):
        k(f"s_add_u32 s28, s16, {8*n}")
        if n == 4:
            k("s_add_u32 s29, s16, 24\ns_cmp_ge_u32 s28, 36\ns_cselect_b32 s28, s29, s28")
        k(f"""
s_lshl_b32 s{44+n}, s28, 10
s_add_u32 s{54+n}, s{44+n}, s43
s_cmp_ge_u32 s{54+n}, {UB}
s_cselect_b32 s29, {UB}, 0
s_sub_u32 s{54+n}, s{54+n}, s29
s_mul_i32 s29, s28, 7282
s_lshr_b32 s29, s29, 16
s_mul_i32 s30, s29, 9
s_sub_u32 s28, s28, s30
s_add_u32 s30, s28, s19
s_and_b32 s30, s30, 3
s_and_b32 s31, s28, 4
s_or_b32 s30, s30, s31
s_cmp_eq_u32 s28, 8
s_cselect_b32 s30, 8, s30
s_lshl_b32 s30, s30, 10
s_mul_i32 s29, s29, 36864
s_add_u32 s{38+n}, s29, s30
""")
    k(f"""
s_add_u32 s51, s10, {3*UB}
s_mov_b32 s50, {UB}
s_mov_b32 s24, {3*UB}
s_mul_i32 s53, s19, {36*36864}
s_mul_i32 s29, s18, 9216
s_add_u32 s53, s53, s29
s_add_u32 s53, s53, {WDOFF}
v_lshrrev_b32 v{SV}, 5, v0
v_lshlrev_b32 v{SV}, 15, v{SV}
v_and_b32 v{A0}, 31, v0
v_lshl_add_u32 v{SV}, v{A0}, 4, v{SV}
v_mov_b32 v{A0}, v1
v_add_u32 v{A1}, {UB}, v1
s_mov_b32 s26, {UB}
{["v_min_u32 v%d, 19, v0", "v_and_b32 v%d, 31, v0", "v_and_b32 v%d, 3, v0"][wgf] % FV}
v_mul_u32_u24 v{FV}, {FLS}, v{FV}
{[f"s_mul_i32 s61, s11, {32*FLS}", f"s_mul_i32 s61, s8, {32*FLS}", f"s_mul_i32 s61, s11, {4*FLS}"][wgf]}
s_add_u32 s61, s61, {FCOFF}
s_lshl_b32 s28, s17, 2
s_and_b32 s29, s16, 3
s_add_u32 s28, s28, s29
s_mul_i32 s52, s28, 36
s_mul_i32 s29, s18, 9
s_add_u32 s52, s52, s29
s_mul_i32 s52, s52, 3072
s_add_u32 s62, s52, {EXOFF}
s_and_b32 s29, s16, 4
s_add_u32 s29, s29, s19
s_mul_i32 s29, s29, 3072
s_add_u32 s52, s62, s29
s_add_u32 s63, s62, {8*3072}
s_cmp_eq_u32 s16, s19
s_cselect_b32 s63, s63, {OOB}
s_mov_b32 s27, 0
s_lshl_b32 s30, s11, 5
s_add_u32 s30, s30, s9
s_mul_i32 s30, s30, {FLS}
s_add_u32 s30, s30, {FDOFF}
s_lshl_b32 s31, s2, 3
s_add_u32 s31, s31, s16
s_mul_i32 s31, s31, {FLS}
s_add_u32 s31, s31, {FXOFF}
s_lshl_b32 s32, s28, 2
s_add_u32 s32, s32, s19
s_mul_i32 s32, s32, {8*FLS}
s_add_u32 s32, s32, {FDOFF}
v_and_b32 v2, 7, v0
v_mul_u32_u24 v2, {FLS}, v2
""")
    if wgf:
        k(f"""
s_waitcnt vmcnt(0)
s_barrier
{flag_txt([3], 12)}
""")
    else:
        k(f"""
s_waitcnt vmcnt(0)
{flag_txt([3], 12)}
s_barrier
""")
    late_feed()
    def rd(n, lin=False):
        base = A0 if n < 36 else A1
        j = n % 36
        if lin:
            return [f"ds_read_b128 {v(WF+4*(n%PF),4)}, v{base} offset:{j*1024}", ""]
        ks, u, m = j // 6, (j % 6) // 2, j % 2
        return [f"ds_read_b128 {v(WF+4*(n%PF),4)}, v{base} offset:{u*CB + (2*ks+m)*1024}", ""]
    for n in range(PF - 1):
        for x in rd(n): k(x)
    for i in range(4):
        k(f"v_mov_b32 v{FILL+i}, -1")
    if prio:
        k(f"s_cmp_lt_u32 s16, 4\ns_cbranch_scc1 {k.lab('dp')}\ns_setprio 1")
        k.label("dp")
    if wgf == 1:
        k(f"s_cmp_lg_u32 s16, 1\ns_cbranch_scc1 {k.lab('pcx')}")
    if pre: k(f"s_sleep {pre}")
    poll(k, "pc", 61, FV, 12, 60, sleep=psl)
    if wgf == 1:
        k("s_barrier")
    k.mark(8)
    def h_ops(ks):
        return [f"buffer_load_dwordx4 {hreg(ks,T)}, v{GV}, s[12:15], s20 offen offset:{T*256} {ld}" for T in range(2)] + \
               [f"s_add_u32 s20, s20, { {5: 's34', 11: 's35'}.get(ks, 4*CH) }"]
    def tail(u):
        R = PR + 8*u
        return [f"v_cvt_pk_bf16_f32 v{R}, v{R}, v{R+1}", f"v_cvt_pk_bf16_f32 v{R+1}, v{R+2}, v{R+3}",
                f"v_cvt_pk_bf16_f32 v{R+2}, v{R+4}, v{R+5}", f"v_cvt_pk_bf16_f32 v{R+3}, v{R+6}, v{R+7}\ns_nop 0",
                f"v_permlane16_swap_b32 v{R}, v{R+2}", f"v_permlane16_swap_b32 v{R+1}, v{R+3}",
                f"buffer_store_dwordx4 {v(R,4)}, v{SV}, s[12:15], s21 offen sc1", f"s_add_u32 s21, s21, {65536 if u < 2 else 22*65536}"]
    uid = [0]
    def dma():
        ops = [f"s_add_u32 m0, s24, s{44+n}\ns_add_u32 s22, s51, s{54+n}\nbuffer_load_dwordx4 v1, s[12:15], s22 offen lds" for n in range(5)]
        if nodup:
            uid[0] += 1
            L_ = k.lab(f"nd{uid[0]}")
            ops[4] = f"s_cmp_ge_u32 s16, 4\ns_cbranch_scc1 {L_}\n" + ops[4].replace("buffer_", "BUF_") + f"\n{L_}:"
            ops = [ops[4]] + ops[:4]
        ops.append(f"s_add_u32 s51, s51, s50")
        ops.append(f"s_add_u32 s24, s24, {UB}\ns_cmp_ge_u32 s24, {4*UB}\ns_cselect_b32 s24, 0, s24")
        return ops
    nxt = f"s_add_u32 s26, s26, {UB}\ns_cmp_ge_u32 s26, {4*UB}\ns_cselect_b32 s26, 0, s26"
    fill = [f"buffer_store_dwordx4 {v(FILL,4)}, v1, s[12:15], s52 offen sc1" if 'nofill' not in exp else "s_nop 0", "s_add_u32 s52, s52, 1024"]
    if efill: fill = []
    NV = (6 if efill else 7) - (1 if nodup else 0)
    tot = [2 * LA]; hm = {ks: 2 * ks + 2 for ks in range(LA)}
    def stage(c, f1, f2, f3, pre=0):
        pend = []
        nvm = 0
        for j in range(36):
            if c is None:
                ks, u, m = j // 2, 0, j % 2
            else:
                ks, u, m = 6 * c + j // 6, (j % 6) // 2, j % 2
            hw = c is not None and j % 6 == 0
            if hw and ks + LA < 18:
                pend += h_ops(ks + LA)
            if j % WG == 0:
                w = f"lgkmcnt({PF-1-WG})"
                vm = []
                if hw: vm.append(tot[0] - hm[ks])
                if j == 30 and not ('novm' in exp and c is None): vm.append(nvm)
                if vm: w = f"vmcnt({min(vm)}) " + w
                k("s_waitcnt " + w)
            if j == 30:
                k("s_barrier")
            r = rd(j + PF - 1, lin=(c is None or (c == 2 and j + PF - 1 >= 36)))
            for T in range(2):
                d = v(ACC[u] + (m*2+T)*4, 4)
                k(f"{M} {d}, {v(WF+4*(j%PF),4)}, {hreg(ks,T)}, {'0' if ks == 0 else d}")
                k(r[T])
                if T == 0 and pre and ks >= PS0 and (ks - PS0) % PST == 0 and (ks - PS0) // PST < pre:
                    k(h_ops((ks - PS0) // PST)[m] + ("\n" + h_ops(0)[2] if m else "")); nvm += 1
                if T == 1:
                    x = None
                    if f2 and j % DS == DS - 1: x = f2.pop(0)
                    elif pend: x = pend.pop(0)
                    elif f1: x = f1.pop(0)
                    elif not f2 and f3: x = f3.pop(0)
                    if x:
                        k(x.replace("BUF_", "buffer_")); nvm += x.count("buffer_"); tot[0] += x.count("buffer_")
                        if x.startswith("buffer_load") and "offset:256" in x: hm[len(hm)] = tot[0]
        assert not f1 and not f2 and not f3 and not pend, (f1, f2, f3, pend)
        k(f"v_mov_b32 v{A0}, v{A1}\nv_add_u32 v{A1}, s26, v1")
    def prod(u, slot):
        for h in range(4):
            k(f"v_pk_mul_f32 {v(PR+8*slot+2*h,2)}, {v(ACC[u]+2*h,2)}, {v(ACC[u]+8+2*h,2)}")
    for ks in range(LA):
        for x in h_ops(ks): k(x)
    stage(0, [], [], [nxt])
    for c in (1, 2):
        d_ = dma()
        stage(c, [], d_[:5], d_[5:] + [nxt])
    k("s_mov_b32 s27, 4\ns_lshr_b32 s49, s16, 2\ns_add_u32 s49, s49, 8")
    prod(0, 0); prod(1, 1); k("s_nop 1"); prod(2, 2)
    k.mark(9)
    tl = tail(0) + tail(1) + tail(2)
    d_ = dma()
    stage(None, [tl[2*i] + "\n" + tl[2*i+1] for i in range(12)] + fill, d_[:5], d_[5:] + [nxt])
    k("s_nop 5")
    prod(0, 0)
    k(".p2align 6")
    k.label("dloop")
    d_ = dma()
    stage(None, [f"s_branch {k.lab('dside')}\n{k.lab('dback')}:"] + tail(0) + fill, d_[:5], d_[5:] + [nxt])
    k(f"s_add_u32 s27, s27, 1\ns_cmp_lt_u32 s27, s49\ns_nop 3")
    prod(0, 0)
    k(f"s_cbranch_scc1 {k.lab('dloop')}")
    def last_unit():
        k(f"""
s_lshl_b32 s20, s28, 9
s_mul_i32 s29, s19, {36*4*CH}
s_add_u32 s20, s20, s29
s_add_u32 s20, s20, {HIDOFF}
s_waitcnt vmcnt({NV})
{flag_check(32)}
s_nop 0
s_cbranch_vccz {k.lab('pdx')}
""")
        poll(k, "pd", 32, 2, 32, 60)
        d_ = dma()
        tl = tail(0)
        i0 = len(k.L)
        stage(None, [flag_txt([30], 12)] + [tl[2*i] + "\n" + tl[2*i+1] for i in range(4)] + fill[:1] + d_[:5], [], [], pre=NPF)
        vm = [l for l in k.L[i0:] if "buffer_" in l]
        crit = max(i for i, l in enumerate(vm) if "store" in l or " lds" in l)
        k("s_nop 5")
        prod(0, 0)
        k.mark(10)
        return len(vm) - 1 - crit
    side = f"""
{k.lab('dside')}:
s_cmp_eq_u32 s27, 6
s_cbranch_scc1 {k.lab('ds6')}
s_cmp_eq_u32 s27, 7
s_cbranch_scc1 {k.lab('ds7')}
s_cmp_eq_u32 s27, 4
s_cbranch_scc1 {k.lab('dback')}
{flag_txt([30], 12)}
s_add_u32 s30, s30, {FDL}
s_cmp_lg_u32 s27, 8
s_cbranch_scc1 {k.lab('dback')}
s_waitcnt vmcnt({NV+1})
{flag_check(32)}
s_nop 0
s_cbranch_vccz {k.lab('pgx')}
@POLL@
@EPI@
s_branch {k.lab('dback')}
{k.lab('ds6')}:
s_mov_b32 s52, s63
s_branch {k.lab('dback')}
{k.lab('ds7')}:
s_add_u32 s21, s21, {21*65536}
s_mov_b32 s51, s53
s_mov_b32 s50, {4*36864}
s_mov_b64 s[54:55], s[38:39]
s_mov_b64 s[56:57], s[40:41]
s_mov_b32 s58, s42
buffer_load_dwordx2 v[32:33], v2, s[12:15], s32 offen sc1
s_branch {k.lab('dback')}
"""
    k2 = Kern(k.name, 1, 1, 0, 1)
    poll(k2, "pg", 32, 2, 32, 60)
    side = side.replace("@POLL@", "\n".join(k2.L))
    HC, SS, MU = 36, 48, 58
    epi = f"""
v_and_b32 v60, 31, v0
v_lshrrev_b32 v61, 5, v0
v_mul_u32_u24 v61, {10*8192}, v61
v_lshlrev_b32 v60, 2, v60
v_add_u32 v61, v61, v60
s_mul_i32 s22, s18, 9
s_add_u32 s23, s22, s19
s_lshl_b32 s23, s23, 16
s_lshl_b32 s29, s28, 9
s_add_u32 s29, s29, {HCOFF}
s_add_u32 s23, s23, s29
buffer_load_dwordx4 {v(HC,4)}, v3, s[12:15], s23 offen {ld}
s_add_u32 s23, s23, {4*65536}
buffer_load_dwordx4 {v(HC+4,4)}, v3, s[12:15], s23 offen {ld}
s_add_u32 s22, s22, 8
s_lshl_b32 s23, s22, 16
s_add_u32 s23, s23, s29
buffer_load_dwordx4 {v(HC+8,4)}, v3, s[12:15], s23 offen {ld}
s_lshl_b32 s23, s28, 7
s_add_u32 s29, s23, {MUHOFF}
s_add_u32 s23, s23, {SSQOFF}
buffer_load_dword v{MU}, v60, s[12:15], s29 offen {ld}
""" + "\n".join(f"buffer_load_dword v{SS+j}, v61, s[12:15], s23 offen {ld}\ns_add_u32 s23, s23, 8192" for j in range(10))
    side = side.replace("@EPI@", epi)
    return tail(0), side, last_unit


def phase_e(k, GV, ld, tails, last_unit, PF=9, WG=3, LA=5, tch=False, P3=6, exp='', hl=None, prio=0, sleep=9, ost='sc1', pace='', efill=False):
    ld = ld if hl is None else hl
    SB = UB
    ACC, WF, HV, XV = 16, 208, 112, 11
    FLG = flag_txt([30, 31], 12)
    XL = 3 * SB
    k(f"s_cmp_lt_u32 s16, 4\ns_cbranch_scc1 {k.lab('econs')}")
    k.mark(10)
    assert 5 <= LA <= 8
    def head():
        k("s_and_b32 s33, s16, 3")
        for t in range(4):
            k(f"s_add_u32 s{40+t}, s19, {t}\ns_and_b32 s{40+t}, s{40+t}, 3\ns_lshl_b32 s{44+t}, s{40+t}, 10")
        k(f"s_mul_i32 s29, s33, 6144\ns_add_u32 s29, s29, {XL}\nv_add_u32 v{XV}, s29, v1")
    PR = 88
    TL = 4 * SB
    packs = [x for x in tails if not x.startswith(("buffer", "s_add"))]
    def wissue():
        for n in range(9):
            if pace and n: k(pace)
            if n < 4:
                k(f"s_add_u32 m0, s24, {n*1024}\ns_add_u32 s{48+n}, s23, s{44+n}\nbuffer_load_dwordx4 v1, s[12:15], s{48+n} offen lds")
            elif n < 8:
                k(f"s_add_u32 m0, s24, {n*1024}\ns_add_u32 s25, s{48+n-4}, 4096\nbuffer_load_dwordx4 v1, s[12:15], s25 offen lds")
            else:
                k(f"s_add_u32 m0, s24, {n*1024}\ns_add_u32 s25, s23, 8192\nbuffer_load_dwordx4 v1, s[12:15], s25 offen lds")
        k(f"s_add_u32 s23, s23, {4*36864 if 'hotw' not in exp else 0}\ns_add_u32 s24, s24, {SB}\ns_cmp_ge_u32 s24, {4*SB}\ns_cselect_b32 s24, s22, s24")
    def check(name, soff, voff, vt):
        k(flag_check(vt))
        k(f"s_nop 0\ns_cbranch_vccz {k.lab(name + 'x')}")
        poll(k, name, soff, voff, vt, 60)
    k(f"s_add_u32 s32, s32, {FDL}\nbuffer_load_dwordx2 v[16:17], v2, s[12:15], s32 offen sc1")
    head()
    k(f"""
s_mul_i32 s23, s33, 36864
s_add_u32 s23, s23, s53
s_add_u32 s23, s23, {8*36864 if 'now' not in exp else OOB}
s_mul_i32 s22, s33, 9216
s_add_u32 s24, s22, {3*SB}
""")
    for x in packs: k(x)
    k(f"s_mul_i32 s29, s33, 3072\ns_add_u32 s29, s29, {TL}\nv_add_u32 v5, s29, v1\ns_sub_u32 s29, s21, 2048\ns_barrier")
    for u in range(1):
        k(f"ds_read_b128 {v(PR+8*u+4,4)}, v5 offset:{u*1024}")
    wissue()
    for u in range(1):
        k(f"buffer_store_dwordx4 {v(PR+8*u,4)}, v3, s[12:15], s21 offen sc1\ns_add_u32 s21, s21, 65536")
    k("s_waitcnt lgkmcnt(0)")
    for u in range(1):
        k(f"buffer_store_dwordx4 {v(PR+8*u+4,4)}, v3, s[12:15], s29 offen sc1\ns_add_u32 s29, s29, 65536")
    k.srd(4, 36, S * D * 2)
    k("s_waitcnt vmcnt(11)\ns_barrier")
    check("pe2", 32, 2, 16)
    wissue()
    k(f"s_sub_u32 s26, s30, {4*32*FLS}\ns_sub_u32 s27, s31, {4*FLS}\ns_waitcnt vmcnt(11)\ns_barrier\ns_waitcnt vmcnt(9)")
    k(flag_txt([30, 26, 27] if efill else [30, 26, 31, 27], 12))
    wissue()
    k(f"s_waitcnt vmcnt({12 if efill else 13})\ns_barrier")
    wissue()
    k(f"s_waitcnt vmcnt(9)\ns_barrier\ns_add_u32 s32, s32, {FDL}\nbuffer_load_dwordx2 v[16:17], v2, s[12:15], s32 offen sc1")
    wissue()
    k("s_waitcnt vmcnt(9)")
    check("pe3", 32, 2, 16)
    k("s_barrier")
    wissue()
    k("s_waitcnt vmcnt(9)\ns_barrier")
    wissue()
    HC, SS, MU, OWN, RX, T0, BS = 36, 48, 58, 112, 64, 100, 136
    k(f"""
v_bfe_u32 v10, v0, 1, 2
v_and_b32 v9, 1, v0
v_lshlrev_b32 v9, 2, v9
{'v_lshlrev_b32 v10, 4, v10' if efill else 'v_lshl_add_u32 v10, v10, 4, v9'}
v_mul_u32_u24 v10, {FLS}, v10
s_andn2_b32 s59, s2, 6
s_lshl_b32 s59, s59, 3
s_add_u32 s59, s59, s33
s_mul_i32 s59, s59, {FLS}
s_add_u32 s59, s59, {FXOFF}
buffer_load_dwordx2 v[12:13], v10, s[12:15], s59 offen sc1
v_and_b32 v6, 31, v0
v_lshrrev_b32 v7, 5, v0
s_mul_i32 s54, s18, 9
s_add_u32 s55, s54, s19
s_add_u32 s54, s54, 8
s_waitcnt vmcnt(10)
s_barrier
s_waitcnt vmcnt(0)
""")
    check("px", 59, 10, 12)
    k("s_barrier")
    k(f"""
s_mul_i32 s58, s19, 3072
s_add_u32 s58, s58, s62
s_add_u32 s59, s58, {4*3072}
s_add_u32 s60, s62, {8*3072}
s_cmp_eq_u32 s19, s33
s_cselect_b32 s60, s60, {OOB}
s_mov_b32 s61, 0
v_mul_u32_u24 v8, 1152, v6
v_lshl_add_u32 v8, v7, 4, v8
s_mul_i32 s56, s28, {32*1152}
s_lshl_b32 s57, s55, 5
s_add_u32 s57, s57, s56
s_lshl_b32 s54, s54, 5
s_add_u32 s56, s56, s54
s_mov_b32 s63, {f2u(1.0/D):#x}
""")
    for j in range(1, 10):
        k(f"v_add_f32 v{SS}, v{SS}, v{SS+j}")
    k(f"""
v_mov_b32 v{SS+1}, v{SS}
v_mov_b32 v{SS+2}, {f2u(1e-5):#x}
s_nop 0
v_permlane32_swap_b32 v{SS}, v{SS+1}
v_add_f32 v{SS}, v{SS}, v{SS+1}
v_fma_f32 v{SS}, v{SS}, s63, v{SS+2}
v_rcp_f32 v{SS}, v{SS}
""")
    for i in range(3):
        for d in range(4):
            x = HC + 4*i + d
            k(f"v_lshlrev_b32 v{BS+8*i+2*d}, 16, v{x}\nv_and_b32 v{BS+8*i+2*d+1}, 0xffff0000, v{x}")
    for i in range(24):
        k(f"v_add_f32 v{BS+i}, v{BS+i}, v{MU}")
    k("s_barrier")
    k.mark(11)
    for i in range(6):
        k(f"ds_read_b128 {v(OWN+4*i,4)}, v{XV} offset:{i*1024}")
    k("s_waitcnt lgkmcnt(0)")
    for i in range(3):
        A = OWN + 8*i
        for r in range(4):
            k(f"v_permlane16_swap_b32 v{A+r}, v{A+4+r}")
    if sleep: k(f"s_sleep {sleep}")
    k.label("poll")
    for i in range(3):
        for q in range(3):
            k(f"buffer_load_dwordx4 {v(RX+12*i+4*q,4)}, v1, s[12:15], s{58+i} offen offset:{q*1024} sc1")
    k("s_waitcnt vmcnt(0)")
    k(f"v_max3_u32 v{T0}, v{RX}, v{RX+1}, v{RX+2}")
    k(f"v_max3_u32 v{T0+1}, v{RX+3}, v{RX+4}, v{RX+5}")
    for n, j in enumerate(range(6, 36, 2)):
        k(f"v_max3_u32 v{T0+(n&1)}, v{T0+(n&1)}, v{RX+j}, v{RX+j+1}")
    k(f"""
v_max_u32 v{T0}, v{T0}, v{T0+1}
v_cmp_eq_u32 vcc, -1, v{T0}
s_add_u32 s61, s61, 1
s_cmp_ge_u32 s61, {POLLMAX}
s_cbranch_scc1 {k.lab('got')}
s_cbranch_vccnz {k.lab('poll')}
""")
    k.label("got")
    k.mark(12)
    k("s_waitcnt lgkmcnt(0)")
    for i in range(3):
        if i == 2:
            k(f"s_cmp_lg_u32 s19, s33\ns_cbranch_scc1 {k.lab('fin')}")
        A = OWN + 8*i
        for q in range(3):
            for d in range(4):
                x = RX + 12*i + 4*q + d
                tt = T0 + 2*(d & 1)
                k(f"v_lshlrev_b32 v{tt}, 16, v{x}\nv_and_b32 v{tt+1}, 0xffff0000, v{x}\nv_pk_add_f32 {v(A+2*d,2)}, {v(A+2*d,2)}, {v(tt,2)}")
        for d in range(4):
            b = BS + 8*i + 2*d
            k(f"v_pk_fma_f32 {v(b,2)}, {v(A+2*d,2)}, {v(SS,2)}, {v(b,2)} op_sel_hi:[1,0,1]")
            k(f"v_cvt_pk_bf16_f32 v{HC+4*i+d}, v{b}, v{b+1}")
        so, off = [("s57", 0), ("s57", 128), ("s56", 0)][i]
        k(f"buffer_store_dwordx4 {v(HC+4*i,4)}, v8, s[4:7], {so} offen offset:{off} {ost}")
    k(f"s_branch {k.lab('fin')}")
    k.label("econs")
    hreg = lambda set_, kk, T: v(HV + 4 * (8*set_ + 2*kk + T), 4)
    def h_ops(p):
        return [f"buffer_load_dwordx4 {hreg(p//4,p%4,T)}, v{GV}, s[12:15], s20 offen offset:{T*256} {ld}" for T in range(2)] + \
               [f"s_add_u32 s20, s20, {4*CH if 'hoth' not in exp else 0}"]
    def rd(j):
        base, jj = ("v5", j) if j < 36 else ("v6", j - 36)
        return f"ds_read_b128 {v(WF+4*(j%PF),4)}, {base} offset:{jj*1024}"
    nyoung = last_unit()
    k(f"v_add_u32 v5, {SB}, v1\nv_add_u32 v6, {2*SB}, v1")
    for j in range(PF - 1):
        k(rd(j))
    for x in packs: k(x)
    k(f"s_mul_i32 s29, s16, 3072\ns_add_u32 s29, s29, {TL}\nv_add_u32 v7, s29, v1")
    for u in range(1):
        k(f"ds_write_b128 v7, {v(PR+8*u,4)} offset:{u*1024}")
    head()
    k(f"""
s_mov_b32 s26, {2*SB}
s_mov_b32 s27, 0
s_sub_u32 s52, s33, s19
s_and_b32 s52, s52, 3
s_lshl_b32 s52, s52, 10
s_add_u32 s52, s52, s62
s_add_u32 s52, s52, {8*3072-1024}
s_mov_b32 s53, 0xfffefffe
v_mov_b32 v14, 0
""")
    for i in range(36):
        if i == 24: k(f"s_waitcnt vmcnt({nyoung}) lgkmcnt(0)\ns_barrier")
        k(f"v_pk_mul_f32 {v(ACC+2*i,2)}, {v(14,2)}, {v(14,2)} op_sel_hi:[0,0]")
    k.mark(11)
    k(".p2align 6")
    k.label("eloop")
    for st3 in range(3):
        for kk in range(4):
            p = 4 * st3 + kk
            f = h_ops((p + LA) % 12)
            if p + LA == 12:
                f = [f"s_add_u32 s27, s27, 1\ns_cmp_ge_u32 s27, 3", f"s_cselect_b32 s20, {OOB}, s20"] + f
            if kk == 3:
                f = f + [f"s_add_u32 s26, s26, {SB}\ns_cmp_ge_u32 s26, {4*SB}", "s_cselect_b32 s26, 0, s26"]
            for t in range(9):
                j = 9 * kk + t
                if t % WG == 0:
                    w = f"lgkmcnt({PF-1-WG})"
                    if t == 0:
                        w = f"vmcnt({2*(LA-1)}) " + w
                    k("s_waitcnt " + w)
                if t == 0 and kk == 3:
                    k("s_barrier")
                for T in range(2):
                    d = v(ACC + (2*t+T)*4, 4)
                    k(f"{M} {d}, {v(WF+4*(j%PF),4)}, {hreg(st3,kk,T)}, {d}")
                    if T == 0:
                        k(rd(j + PF - 1))
                    elif f and t >= 1:
                        k(f.pop(0))
            assert not f, f
        k(f"v_mov_b32 v5, v6\nv_add_u32 v6, s26, v1")
        if st3 == 1:
            k(f"s_cmp_eq_u32 s27, 3\ns_cbranch_scc1 {k.lab('elast')}")
    k(f"s_branch {k.lab('eloop')}")
    k.label("elast")
    PKR = HV
    def pack(t, R):
        A0, A1 = ACC + 8*t, ACC + 8*t + 4
        return [f"v_cvt_pk_bf16_f32 v{R}, v{A0}, v{A0+1}\nv_cvt_pk_bf16_f32 v{R+2}, v{A1}, v{A1+1}",
                f"v_cvt_pk_bf16_f32 v{R+1}, v{A0+2}, v{A0+3}\nv_cvt_pk_bf16_f32 v{R+3}, v{A1+2}, v{A1+3}",
                f"v_min_u32 v{R}, s53, v{R}\nv_min_u32 v{R+2}, s53, v{R+2}",
                f"v_min_u32 v{R+1}, s53, v{R+1}\nv_min_u32 v{R+3}, s53, v{R+3}",
                f"v_permlane16_swap_b32 v{R}, v{R+2}",
                f"v_permlane16_swap_b32 v{R+1}, v{R+3}"]
    order = [(0, t) for t in range(8)]
    for t in (1, 2, 3, 5, 6, 7, 8, 0, 4):
        order += [(kk, t) for kk in range(4) if (kk, t) not in order]
    k(f"s_cmp_eq_u32 s19, s33\ns_cselect_b32 s52, {OOB}, s52")
    fq = []; delay = []
    ns = 0
    for n, (kk, t) in enumerate(order):
        left = len(order) - 1 - n
        w = f"lgkmcnt({min(PF - 2, left)})"
        if n == 0: w = f"vmcnt({2*(LA-1)}) " + w
        if n == 8: w = f"vmcnt(0) " + w
        k("s_waitcnt " + w)
        for T in range(2):
            d = v(ACC + (2*t+T)*4, 4)
            k(f"{M} {d}, {v(WF+4*(n%PF),4)}, {hreg(2,kk,T)}, {d}")
            if T == 0 and n + PF - 1 < len(order):
                k2, t2 = order[n + PF - 1]
                k(f"ds_read_b128 {v(WF+4*((n+PF-1)%PF),4)}, v5 offset:{(9*k2+t2)*1024}")
            if fq: k(fq.pop(0))
        fq += delay; delay = []
        if kk == 3 and t not in (0, 4):
            R = PKR + 4*ns; ns += 1
            if t < 8:
                ad = f"s_mul_i32 s29, s{40 + (t & 3)}, 3072\ns_add_u32 s29, s29, s62" + (f"\ns_add_u32 s29, s29, {4*3072}" if t >= 4 else "\ns_nop 0")
                st_ = f"buffer_store_dwordx4 {v(R,4)}, v1, s[12:15], s29 offen offset:{((t & 3) - 1)*1024} sc1"
            else:
                ad = "s_nop 2"; st_ = f"buffer_store_dwordx4 {v(R,4)}, v1, s[12:15], s52 offen sc1"
            pk = pack(t, R)
            delay = [ad + "\n" + pk[0]] + pk[1:5] + [pk[5] + "\n" + st_]
    for x in fq: k(x)
    k.mark(12)
    k("s_nop 4")
    for i, t in ((2, 8), (0, 0), (1, 4)):
        for T in range(2):
            k(f"ds_write_b128 v{XV}, {v(ACC+8*t+4*T,4)} offset:{(2*i+T)*1024}")
    k("s_waitcnt lgkmcnt(0)\ns_barrier")
```

```python
from common import *
from prep import *

SLOT = 34816
XB = 16384
NS = 4
LST = NS * SLOT
LCS = LST + 1024
LNO = LCS + 1024
QSCALE = (DH ** -0.5) * math.log2(math.e)
M = "v_mfma_f32_16x16x32_bf16"

def get_nonce(k, name, vt):
    k(f"s_mov_b32 s60, 0\ns_branch {k.lab(name + 'c')}")
    k.label(name)
    k(f"s_sleep 2\nglobal_load_dwordx2 v[{vt}:{vt+1}], v{vt+2}, s[38:39] sc1\ns_add_u32 s60, s60, 1\ns_waitcnt vmcnt(0)")
    k.label(name + "c")
    k(f"""
v_readfirstlane_b32 s{NLO}, v{vt}
v_readfirstlane_b32 s{NHI}, v{vt+1}
s_cmp_ge_u32 s60, {POLLMAX}
s_cbranch_scc1 {k.lab(name + 'x')}
s_cmp_eq_u32 s{NLO}, 0
s_cbranch_scc1 {k.lab(name)}
""")
    k.label(name + "x")

def phase_a(k, rot="0", RP=1, tr="", pf=0, cl2=2, NSW=26, wsl=0, nodup=True, wt=0):
    assert 8 * (37 - NSW) >= 81
    XV0, XV1, WV = 2, 3, 4
    XR, WR, XA, WA = 8, 10, 12, 14
    LT, LG = 22, 23
    ONE = 24
    WF = [28, 64]
    XF = [100, 108]
    ACC = 116
    T0 = 216
    k(f"""
v_and_b32 v{LT}, 15, v0
v_lshrrev_b32 v{LG}, 4, v0
s_and_b32 s3, s16, 3
s_and_b32 s26, s2, 7
s_lshr_b32 s27, s2, 3
s_lshr_b32 s17, s26, 1
s_lshl_b32 s17, s17, 2
s_and_b32 s50, s27, 3
s_add_u32 s17, s17, s50          ; rb
s_and_b32 s18, s26, 1
s_mul_i32 s18, s18, 6
s_lshr_b32 s51, s27, 2
s_add_u32 s18, s18, s51          ; nb
s_lshl_b32 s48, s17, 2
s_add_u32 s48, s48, s3
s_lshl_b32 s49, s3, 12
s_cmp_ge_u32 s2, 192
s_cbranch_scc1 {k.lab('aux')}
s_cmp_lt_u32 s16, 4
s_cbranch_scc1 {k.lab('acons')}
; ---- producer ----
""")
    if rot == "4":
        k("s_add_u32 s25, s51, s50\ns_and_b32 s25, s25, 3\ns_mul_i32 s25, s25, 9\ns_lshr_b32 s25, s25, 2")
    elif rot == "3":
        k("s_add_u32 s25, s51, s50\ns_mul_i32 s50, s25, 86\ns_lshr_b32 s50, s50, 8\ns_mul_i32 s50, s50, 3\ns_sub_u32 s25, s25, s50\ns_mul_i32 s25, s25, 3")
    elif rot == "0":
        k("s_mov_b32 s25, 0")
    elif rot == "2":
        k("s_add_u32 s25, s51, s50\ns_and_b32 s25, s25, 1\ns_lshl_b32 s25, s25, 2")
    else:
        k("""s_lshl_b32 s25, s51, 1
s_mul_i32 s50, s50, 7
s_add_u32 s25, s25, s50
s_lshr_b32 s50, s26, 1
s_add_u32 s25, s25, s50
s_and_b32 s50, s26, 1
s_mul_i32 s50, s50, 3
s_add_u32 s25, s25, s50
s_mul_i32 s50, s25, 7282
s_lshr_b32 s50, s50, 16
s_mul_i32 s50, s50, 9
s_sub_u32 s25, s25, s50""")
    k(f"""
s_mul_i32 s19, s48, {32*1152}
s_mul_i32 s20, s18, 288
v_lshrrev_b32 v{T0}, 3, v0
v_mul_u32_u24 v{T0}, 1152, v{T0}
v_and_b32 v{T0+1}, 7, v0
v_xor_b32 v{T0+1}, v{T0+1}, v{LG}
v_lshl_add_u32 v{XV0}, v{T0+1}, 4, v{T0}
v_xor_b32 v{T0+1}, 4, v{T0+1}
v_lshl_add_u32 v{XV1}, v{T0+1}, 4, v{T0}
""")
    for n in range(5):
        k(f"s_add_u32 s{52+n}, s3, {4*n}")
        if n == 4:
            k("s_add_u32 s50, s3, 12\ns_cmp_ge_u32 s56, 18\ns_cselect_b32 s56, s50, s56")
        k(f"""
s_lshl_b32 s50, s{52+n}, 6
v_add_u32 v{T0}, s50, v0
v_mul_u32_u24 v{T0+1}, 3641, v{T0}
v_lshrrev_b32 v{T0+1}, 16, v{T0+1}
v_mul_u32_u24 v{T0+2}, 18, v{T0+1}
v_sub_u32 v{T0+2}, v{T0}, v{T0+2}
v_and_b32 v{T0+3}, 0x33, v{T0+1}
v_and_b32 v{T0+4}, 4, v{T0+1}
v_lshl_or_b32 v{T0+3}, v{T0+4}, 1, v{T0+3}
v_bfe_u32 v{T0+4}, v{T0+1}, 3, 1
v_lshl_or_b32 v{T0+3}, v{T0+4}, 2, v{T0+3}
v_mul_u32_u24 v{T0+3}, 3456, v{T0+3}
v_lshl_add_u32 v{WV+n}, v{T0+2}, 4, v{T0+3}
s_lshl_b32 s{52+n}, s{52+n}, 10
s_add_u32 s{52+n}, s{52+n}, {XB}
""")
    if nodup:
        k(f"s_cmp_ge_u32 s3, 2\ns_cselect_b64 vcc, -1, 0\nv_mov_b32 v{T0}, {OOB}\ns_cselect_b32 s59, 0, -1\ns_cselect_b32 s56, {LNO + 1024}, s56\nv_cndmask_b32 v{WV+4}, v{WV+4}, v{T0}, vcc")
    k("s_waitcnt lgkmcnt(0)")
    k.srd(4, 28, S * D * 2)
    k.srd(8, 30, D * 3 * D * 2)
    k.srd(12, 34, WS_BYTES)
    k("s_mov_b32 s23, 0\ns_mov_b32 s24, 0\ns_mov_b32 s57, 0\nv_mov_b32 v12, 0\nv_mov_b32 v13, 0")
    TR = "s_memtime s[62:63]\ns_lshl_b32 m0, s24, 1\ns_waitcnt lgkmcnt(0)\ns_movreld_b32 s60, s62"
    k.label("ploop")
    k(f"""
s_lshl_b32 s21, s25, 7
s_add_u32 s21, s21, s19
s_mul_i32 s22, s25, {64*3456}
s_add_u32 s22, s22, s20
s_add_u32 s50, s49, s23
""")
    for n in range(4):
        k(f"s_add_u32 m0, s50, {n*1024}\ns_add_u32 s51, s21, {n*8*1152}\nbuffer_load_dwordx4 v{XV0 + (n & 1)}, s[4:7], s51 offen lds")
    for n in range(5):
        if n == 4 and nodup:
            k(f"s_and_b32 s51, s23, s59\ns_add_u32 m0, s56, s51\ns_nop 0\nbuffer_load_dwordx4 v{WV+n}, s[8:11], s22 offen lds")
        else:
            k(f"s_add_u32 m0, s{52+n}, s23\ns_nop 0\nbuffer_load_dwordx4 v{WV+n}, s[8:11], s22 offen lds")
    k(f"""
s_add_u32 s25, s25, 1
s_cmp_ge_u32 s25, 9
s_cselect_b32 s25, 0, s25
s_add_u32 s23, s23, {SLOT}
s_cmp_ge_u32 s23, {NS*SLOT}
s_cselect_b32 s23, 0, s23
s_add_u32 s24, s24, 1
s_cmp_eq_u32 s24, 1
s_cbranch_scc1 {k.lab('ploop')}
s_waitcnt vmcnt(9)
{TR if tr == "a0" else ""}
s_barrier
{TR if tr == "a1" else ""}
s_cmp_eq_u32 s16, 4
s_cbranch_scc1 {k.lab('pside')}
""")
    k.label("pback")
    k(f"""
s_cmp_lt_u32 s24, 9
s_cbranch_scc1 {k.lab('ploop')}
s_waitcnt vmcnt(0)
s_barrier
s_cmp_lg_u32 s16, 4
s_cbranch_scc1 {k.lab('pfin')}
""")
    k.mark(11)
    poll(k, "pa", 58, 13, 10, 60)
    side = f"""
s_mov_b32 m0, {LST}
s_lshl_b32 s50, s17, 10
s_add_u32 s50, s50, {STOFF}
buffer_load_dwordx4 v1, s[12:15], s50 offen sc1 lds
s_mov_b32 m0, {LCS}
s_mul_i32 s50, s18, 576
s_add_u32 s50, s50, {CSOFF}
buffer_load_dwordx4 v1, s[12:15], s50 offen sc1 lds
"""
    k(side + "s_waitcnt vmcnt(0)")
    k.label("pfin")
    k(f"s_barrier\ns_branch {k.lab('ajoin')}")
    k.label("pside")
    k(f"""
s_cmp_eq_u32 s24, 5
s_cbranch_scc1 {k.lab('ps5')}
s_cmp_eq_u32 s24, 8
s_cbranch_scc1 {k.lab('ps7')}
s_cmp_eq_u32 s24, 9
s_cbranch_scc1 {k.lab('ps8')}
s_cmp_lg_u32 s24, 4
s_cbranch_scc1 {k.lab('pback')}
global_load_dwordx2 v[10:11], v12, s[38:39] sc1
s_branch {k.lab('pback')}
""")
    k.label("ps5")
    get_nonce(k, "gn", 10)
    k(f"""
v_mov_b32 v14, {LNO}
ds_write_b64 v14, v[10:11]
s_lshl_b32 s50, s17, 3
v_and_b32 v13, 7, v0
v_add_u32 v13, s50, v13
s_mul_i32 s50, s18, 144
s_add_u32 s51, s50, 143
s_lshr_b32 s50, s50, 6
s_lshr_b32 s51, s51, 6
v_and_b32 v14, 3, v0
v_add_u32 v14, s50, v14
v_min_u32 v14, s51, v14
v_add_u32 v14, 209, v14
v_cmp_gt_u32 vcc, 8, v0
s_mov_b32 s58, {FSOFF}
s_waitcnt lgkmcnt(0)
v_cndmask_b32 v13, v14, v13, vcc
v_mul_u32_u24 v13, {FLS}, v13
s_branch {k.lab('pback')}
""")
    k.label("ps7")
    k(f"buffer_load_dwordx2 v[10:11], v13, s[12:15], s58 offen sc1\ns_branch {k.lab('pback')}")
    k.label("ps8")
    k(flag_check(10))
    k(f"s_nop 0\ns_cbranch_vccnz {k.lab('pback')}")
    k(side + f"s_waitcnt vmcnt(2)\ns_barrier\ns_waitcnt vmcnt(0)\ns_branch {k.lab('pfin')}")

    k.label("acons")
    k(f"""
s_cmp_lg_u32 s2, 0
s_cbranch_scc1 {k.lab('an')}
s_cmp_lg_u32 s16, 0
s_cbranch_scc1 {k.lab('an')}
s_memrealtime s[50:51]
s_waitcnt lgkmcnt(0)
s_lshr_b64 s[52:53], s[50:51], 29
s_xor_b32 s52, s52, 0x9e3779b9
s_lshl_b32 s50, s50, 2
s_or_b32 s50, s50, 0x80000000
v_mov_b32 v4, s50
v_mov_b32 v5, s52
v_mov_b32 v6, 0
s_mov_b64 exec, 1
global_store_dwordx2 v6, v[4:5], s[38:39] sc1
s_mov_b64 exec, -1
""")
    k.label("an")
    if pf:
        k(f"""
s_lshr_b32 s52, s26, 1
s_lshl_b32 s52, s52, 3
s_add_u32 s52, s52, s27
s_mul_i32 s52, s52, {64*1152}
v_mul_u32_u24 v2, 1152, v0
s_sub_u32 s53, s27, 8
s_lshl_b32 s53, s53, 6
v_add_u32 v3, s53, v0
v_mul_u32_u24 v4, 4682, v3
v_lshrrev_b32 v4, 16, v4
v_mul_u32_u24 v4, {3456 - 14*128}, v4
v_lshl_add_u32 v3, v3, 7, v4
s_and_b32 s53, s26, 1
s_mul_i32 s53, s53, 1664
s_mov_b32 s54, {64*3456}
s_cmp_lt_u32 s27, 8
s_cselect_b64 vcc, -1, 0
s_cselect_b32 s52, s52, s53
s_cselect_b32 s54, 128, s54
s_waitcnt lgkmcnt(0)
s_cselect_b64 s[4:5], s[28:29], s[30:31]
s_mov_b32 s6, {D*3*D*2}
s_cselect_b32 s6, {S*D*2}, s6
s_mov_b32 s7, 0x20000
v_cndmask_b32 v2, v3, v2, vcc
s_cmp_ge_u32 s27, 22
s_cselect_b32 s52, {OOB}, s52
s_mul_i32 s53, s54, s3
s_add_u32 s21, s52, s53
s_lshl_b32 s22, s54, 2
buffer_load_dword v7, v2, s[4:7], s21 offen
s_add_u32 s21, s21, s22
""")
        if pf == 1:
            k(f"buffer_load_dword v7, v2, s[4:7], s21 offen\ns_add_u32 s21, s21, s22\ns_cmp_eq_u32 s3, 0\ns_cselect_b32 s21, s21, {OOB}\nbuffer_load_dword v7, v2, s[4:7], s21 offen")
    if cl2 == 1:
        k.code_l2(k.name, k.lab("end"), 5, 5, 50)
    k("s_waitcnt lgkmcnt(0)")
    k.srd(12, 34, WS_BYTES)
    VO, VX = 20, 21
    k(f"""
s_lshr_b32 s19, s18, 2           ; which
s_and_b32 s20, s18, 3            ; hg
v_lshrrev_b32 v{T0}, 1, v{LT}
v_xor_b32 v{T0}, v{T0}, v{LG}
v_lshlrev_b32 v{T0}, 4, v{T0}
v_lshl_add_u32 v{T0}, v{LT}, 7, v{T0}
v_add_u32 v{XR}, s49, v{T0}
v_xor_b32 v{XR+1}, 64, v{XR}
v_lshrrev_b32 v{T0}, 5, v0
v_lshlrev_b32 v{T0}, 4, v{T0}
v_bfe_u32 v{T0+1}, v0, 2, 3
v_add_u32 v{T0}, v{T0}, v{T0+1}
v_mul_u32_u24 v{T0}, 288, v{T0}
v_add_u32 v{T0}, {XB}, v{T0}
v_bfe_u32 v{T0+1}, v0, 1, 1
v_mul_u32_u24 v{T0+1}, 40, v{T0+1}
v_and_b32 v{T0+2}, 1, v0
v_lshl_add_u32 v{T0+1}, v{T0+2}, 4, v{T0+1}
v_add_u32 v{WR}, v{T0}, v{T0+1}
v_and_b32 v{T0+2}, 3, v0
v_mul_u32_u24 v{T0+2}, 72, v{T0+2}
v_add3_u32 v{WR+1}, v{T0}, v{T0+2}, 32
s_mov_b32 s55, {KVHEAD}
s_mov_b32 s56, {KVBLK}
s_mov_b32 s60, {KV_K2}
s_mov_b32 s59, 512
s_cmp_eq_u32 s19, 0
s_cselect_b32 s55, {QHEAD}, s55          ; HS
s_cselect_b32 s56, {QBLK}, s56           ; BS
s_cselect_b32 s57, {QOFF}, {KVOFF}
s_cselect_b32 s60, 1024, s60             ; cx
s_cselect_b32 s62, {f2u(QSCALE):#x}, 1.0
s_cmp_eq_u32 s19, 2
s_cselect_b32 s58, {KV_V0}, 0            ; c0
s_cselect_b32 s59, {KV_V1-KV_V0}, s59    ; c1-c0
s_cselect_b32 s60, {KV_V2}, s60
s_cselect_b32 s61, 3, 2
s_mul_i32 s52, s48, s56
s_add_u32 s57, s57, s52
s_lshl_b32 s52, s20, 3
s_mul_i32 s52, s52, s55
s_add_u32 s57, s57, s52
s_add_u32 s60, s60, s57
s_add_u32 s57, s57, s58
v_lshrrev_b32 v{T0+2}, 1, v{LG}
v_mul_lo_u32 v{VO}, v{T0+2}, s55
v_lshlrev_b32 v{VX}, 2, v{VO}
v_and_b32 v{T0+3}, 1, v{LG}
v_mul_lo_u32 v{T0+4}, v{T0+3}, s59
v_lshlrev_b32 v{T0+5}, 4, v{LT}
v_add3_u32 v{VO}, v{VO}, v{T0+4}, v{T0+5}
v_and_b32 v{T0+4}, 31, v0
v_lshlrev_b32 v{T0+4}, s61, v{T0+4}
v_add_u32 v{VX}, v{VX}, v{T0+4}
v_mul_u32_u24 v18, 80, v{T0+2}
v_lshl_add_u32 v18, v{T0+3}, 5, v18
v_add_u32 v18, {LCS}, v18
v_mul_u32_u24 v19, 144, v{LG}
v_add_u32 v19, {LCS + 64}, v19
s_lshl_b32 s52, s3, 8
s_add_u32 s52, s52, {LST}
v_lshl_add_u32 v17, v{LT}, 3, s52
v_mov_b32 v16, 0
""")
    for i in range(36):
        k(f"v_pk_mul_f32 {v(ACC+2*i,2)}, {v(16,2)}, {v(16,2)} op_sel_hi:[0,0]")
    for i in range(2):
        k(f"v_mov_b32 v{XA+i}, v{XR+i}\nv_mov_b32 v{WA+i}, v{WR+i}")

    def reads(ks, buf):
        r = []
        for T in range(2):
            r.append(f"ds_read_b128 {v(XF[buf]+4*T,4)}, v{XA+ks} offset:{T*2048}")
        for t in range(9):
            for i in range(2):
                off = ks * 32 * 288 + i * 8 * 288 + (((t >> 1) * 72 + (t & 1) * 8) if t < 8 else 0)
                r.append(f"ds_read_b64_tr_b16 {v(WF[buf]+4*t+2*i,2)}, v{WA + (1 if t == 8 else 0)} offset:{off}")
        return r

    def half(buf, rd, extra):
        done = 0
        for t in range(9):
            need = 2 + 2 * (t + 1)
            k(f"s_waitcnt lgkmcnt({min(15, 20 - need + done)})")
            for T in range(2):
                d = v(ACC + (2*t+T)*4, 4)
                k(f"{M} {d}, {v(WF[buf]+4*t,4)}, {v(XF[buf]+4*T,4)}, {d}")
                n = 2 if (2*t + T) < 2 + 2*(RP-1) * 4 else 1
                for _ in range(n):
                    if rd:
                        k(rd.pop(0)); done += 1
        assert not rd
        for x in extra: k(x)
    if pf == 2:
        k(f"s_waitcnt vmcnt(0)\nbuffer_load_dword v7, v2, s[4:7], s21 offen\ns_add_u32 s21, s21, s22\ns_cmp_eq_u32 s3, 0\ns_cselect_b32 s21, s21, {OOB}\nbuffer_load_dword v7, v2, s[4:7], s21 offen")
    k.mark(0)
    k("s_barrier")
    k.mark(1)
    for r in reads(0, 0):
        k(r)
    k("s_mov_b32 s24, 0\ns_mov_b32 s25, 0")
    k(".p2align 6")
    k.label("aloop")
    upd = [f"s_add_u32 s24, s24, {SLOT}\ns_cmp_ge_u32 s24, {NS*SLOT}\ns_cselect_b32 s24, 0, s24\ns_add_u32 s25, s25, 1"] + \
          [f"v_add_u32 v{XA+i}, s24, v{XR+i}\nv_add_u32 v{WA+i}, s24, v{WR+i}" for i in range(2)] + ["s_barrier"]
    half(0, reads(1, 1), upd)
    half(1, reads(0, 0), [])
    k(f"s_cmp_lt_u32 s25, 9\ns_cbranch_scc1 {k.lab('aloop')}")
    k.mark(2)
    RS, CS, PK, OUT = 188, 64, 192, 28
    for T in range(2):
        k(f"ds_read_b64 {v(RS+2*T,2)}, v17 offset:{T*128}")
    for t in range(9):
        if t < 8:
            k(f"ds_read_b128 {v(CS+4*t,4)}, v18 offset:{(t>>1)*144 + (t&1)*16}")
        else:
            k(f"ds_read_b128 {v(CS+4*t,4)}, v19")
    k("s_lshl_b32 s56, s55, 1\ns_waitcnt lgkmcnt(7)")
    for T in range(2):
        k(f"v_mul_f32 v{RS+2*T}, s62, v{RS+2*T}\nv_mul_f32 v{RS+2*T+1}, v{RS+2*T}, -v{RS+2*T+1}")
    def fix(acc, cs, T, dst, tmp):
        rs = v(RS+2*T, 2)
        return f"""
v_pk_mul_f32 {v(tmp,2)}, {v(cs,2)}, {rs} op_sel:[0,1] op_sel_hi:[1,1]
v_pk_mul_f32 {v(tmp+2,2)}, {v(cs+2,2)}, {rs} op_sel:[0,1] op_sel_hi:[1,1]
v_pk_fma_f32 {v(tmp,2)}, {v(acc,2)}, {rs}, {v(tmp,2)} op_sel:[0,0,0] op_sel_hi:[1,0,1]
v_pk_fma_f32 {v(tmp+2,2)}, {v(acc+2,2)}, {rs}, {v(tmp+2,2)} op_sel:[0,0,0] op_sel_hi:[1,0,1]
v_cvt_pk_bf16_f32 v{dst[0]}, v{tmp}, v{tmp+1}
v_cvt_pk_bf16_f32 v{dst[1]}, v{tmp+2}, v{tmp+3}
"""
    for j in range(4):
        if j == 1:
            k("s_waitcnt lgkmcnt(0)")
        for T in range(2):
            o = OUT + (2*j+T)*4
            for t in range(2):
                k(fix(ACC + (2*(2*j+t)+T)*4, CS + 4*(2*j+t), T, (o + 2*t, o + 2*t + 1), PK + 4*t))
            k(f"buffer_store_dwordx4 {v(o,4)}, v{VO}, s[12:15], s57 offen offset:{T*256} sc1")
        k("s_add_u32 s57, s57, s56")
    XO = 200
    for T in range(2):
        k(fix(ACC + (16+T)*4, CS + 32, T, (XO + 4*T, XO + 4*T + 2), PK + 4*T))
    for i in range(4):
        k(f"v_mov_b32 v{XO+2*i+1}, 0x3f80")
    k(f"""
v_permlane16_swap_b32 v{XO}, v{XO+4}
v_permlane16_swap_b32 v{XO+2}, v{XO+6}
s_cmp_eq_u32 s19, 2
s_cbranch_scc1 {k.lab('xv')}
""")
    for i in range(4):
        k(f"buffer_store_dword v{XO+2*i}, v{VX}, s[12:15], s60 offen sc1\ns_add_u32 s60, s60, s55")
    k(f"s_branch {k.lab('ajoin')}")
    k.label("xv")
    for i in range(4):
        k(f"buffer_store_dwordx2 {v(XO+2*i,2)}, v{VX}, s[12:15], s60 offen sc1\ns_add_u32 s60, s60, s55")
    k.label("ajoin")
    k.mark(3)
    k(f"""
v_mov_b32 v4, {LNO}
ds_read_b64 v[4:5], v4
s_lshl_b32 s50, s18, 4
s_add_u32 s50, s50, s17
s_mul_i32 s50, s50, {FLS}
s_add_u32 s50, s50, {FAOFF}
s_cmp_lg_u32 s16, 0
s_cselect_b32 s50, {OOB}, s50
s_waitcnt lgkmcnt(0)
v_readfirstlane_b32 s{NLO}, v4
v_readfirstlane_b32 s{NHI}, v5
s_waitcnt vmcnt(0)
s_barrier
""")
    k.mark(12)
    set_flag(k, 50, 4)
    k(f"s_branch {k.lab('aend')}")

    k.label("aux")
    if cl2 == 2:
        k(f"s_cmp_lg_u32 s16, 7\ns_cbranch_scc1 {k.lab('aux2')}\ns_sub_u32 s53, s27, 24")
        k.code_l2_one(k.name, k.lab("end"), 53, 18, 50)
        k.label("aux2")
    for i in range(4):
        k(f"v_mov_b32 v{ONE+i}, 0x3f803f80")
    k("v_mov_b32 v14, 0\nv_mov_b32 v15, 0\nv_mov_b32 v16, 0\ns_waitcnt lgkmcnt(0)")
    k.srd(12, 34, WS_BYTES)
    k(f"""
s_sub_u32 s17, s2, 192
s_mov_b32 s63, {OOB}
s_cmp_lt_u32 s17, 27
s_cbranch_scc1 {k.lab('acs')}
s_sub_u32 s17, s17, 27
s_mul_i32 s18, s16, {NSW}
s_add_u32 s18, s18, s17
s_cmp_ge_u32 s18, 128
s_cselect_b32 s18, 999, s18
s_mul_i32 s19, s16, {37 - NSW}
s_add_u32 s19, s19, s17
s_add_u32 s19, s19, {128 - NSW}
s_cmp_lt_u32 s17, {NSW}
s_cselect_b32 s17, s18, s19      ; job
s_cmp_ge_u32 s17, 209
s_cbranch_scc1 {k.lab('aidle')}
s_mul_i32 s63, s17, {FLS}
s_add_u32 s63, s63, {FSOFF}
s_cmp_lt_u32 s17, 128
s_cbranch_scc1 {k.lab('ast')}
""")
    k.srd(24, 32, D * D * 2)
    if wsl: k(f"s_sleep {wsl}")
    k(f"""
s_cmp_ge_u32 s17, 173
s_cbranch_scc1 {k.lab('awb')}
s_sub_u32 s18, s17, 128
s_mov_b32 s50, 1152
s_mov_b32 s54, 36864
s_mov_b32 s55, 1024
s_mov_b32 s52, {36*1152}
s_mov_b32 s56, 8
s_mov_b32 s57, 20
s_mov_b32 s58, 4
s_mul_i32 s19, s18, 7282
s_lshr_b32 s19, s19, 16
s_mul_i32 s20, s19, 9
s_sub_u32 s20, s18, s20
s_mul_i32 s51, s19, {4*36*1152}
s_mul_i32 s53, s19, {4*36864}
s_add_u32 s53, s53, {WOOFF}
s_lshl_b32 s21, s20, 12
s_add_u32 s53, s53, s21
s_cmp_ge_u32 s18, 36
s_cselect_b32 s51, {16*1152}, s51
s_cselect_b32 s52, {288*1152}, s52
s_cselect_b32 s56, 72, s56
s_cselect_b32 s57, 144, s57
s_cselect_b32 s58, 36, s58
s_lshl_b32 s21, s20, 7
s_add_u32 s51, s51, s21
s_lshl_b32 s21, s16, 11
""")
    prep_addr(k, 2, 3, 4, 12, 21)
    prep_loads(k, range(4), 28, 2)
    k("global_load_dwordx2 v[14:15], v16, s[38:39] sc1")
    prep_process(k, 28, 92, 3, 4, total=17)
    k(f"s_branch {k.lab('asyn')}")
    k.label("awb")
    k(f"""
s_sub_u32 s17, s17, 173
s_lshr_b32 s18, s17, 1
s_and_b32 s19, s17, 1
s_mul_i32 s20, s18, 36
s_mul_i32 s21, s19, 20
s_add_u32 s20, s20, s21
v_add_u32 v2, s20, v{LT}
s_sub_u32 s20, s17, 32
s_mul_i32 s20, s20, 144
s_add_u32 s20, s20, 16
v_lshrrev_b32 v3, 2, v{LT}
v_mul_u32_u24 v3, 36, v3
v_and_b32 v4, 3, v{LT}
v_add3_u32 v3, v3, v4, s20
s_cmp_ge_u32 s17, 32
s_cselect_b64 vcc, -1, 0
s_mov_b32 s22, 1
v_cndmask_b32 v2, v2, v3, vcc
s_branch {k.lab('arow')}
""")
    k.label("ast")
    k.srd(24, 28, S * D * 2)
    k(f"s_lshl_b32 s20, s17, 4\nv_add_u32 v2, s20, v{LT}\ns_mov_b32 s22, 0")
    k.label("arow")
    k(f"v_mul_u32_u24 v2, 1152, v2\nv_lshl_add_u32 v2, v{LG}, 4, v2")
    for n in range(18):
        k(f"buffer_load_dwordx4 {v(28+4*n,4)}, v2, s[24:27], 0 offen offset:{n*64}")
    k("global_load_dwordx2 v[14:15], v16, s[38:39] sc1")
    for n in range(18):
        k(f"s_waitcnt vmcnt({18-n})")
        k(f"{M} v[4:7], {v(ONE,4)}, {v(28+4*n,4)}, {'0' if n == 0 else 'v[4:7]'}")
        k(f"{M} v[8:11], {v(28+4*n,4)}, {v(28+4*n,4)}, {'0' if n == 0 else 'v[8:11]'}")
    k(f"""
s_mov_b32 s50, {f2u(1.0/D):#x}
v_and_b32 v12, 1, v0
v_cmp_eq_u32 s[52:53], 1, v12
v_and_b32 v12, 2, v0
v_cmp_eq_u32 s[54:55], 2, v12
v_lshrrev_b32 v12, 2, v{LT}
v_cmp_eq_u32 s[56:57], v12, v{LG}
s_cmp_eq_u32 s22, 0
s_nop 0
v_mul_f32 v5, s50, v4
s_cbranch_scc1 {k.lab('ast2')}
s_lshl_b32 s51, s17, 5
s_add_u32 s51, s51, {WBAROFF}
v_lshlrev_b32 v2, 1, v{LT}
v_cvt_pk_bf16_f32 v6, v5, v5
v_and_b32 v7, 0xffff0000, v6
v_sub_f32 v7, v5, v7
v_cvt_pk_bf16_f32 v7, v7, v7
s_mov_b64 exec, 0xffff
buffer_store_short v6, v2, s[12:15], s51 offen sc1
buffer_store_short v7, v2, s[12:15], s51 offen offset:1152 sc1
s_mov_b64 exec, -1
s_branch {k.lab('asyn')}
""")
    k.label("ast2")
    k(f"""
v_cndmask_b32 v8, v8, v9, s[52:53]
v_cndmask_b32 v10, v10, v11, s[52:53]
v_cndmask_b32 v8, v8, v10, s[54:55]
v_mul_f32 v9, v5, v5
v_fma_f32 v8, v8, s50, -v9
v_max_f32 v8, 0, v8
v_add_f32 v8, {f2u(1e-5):#x}, v8
v_rsq_f32 v4, v8
s_lshl_b32 s51, s17, 7
s_add_u32 s51, s51, {STOFF}
v_lshlrev_b32 v2, 3, v{LT}
s_mov_b64 exec, s[56:57]
buffer_store_dwordx2 v[4:5], v2, s[12:15], s51 offen sc1
s_mov_b64 exec, -1
s_branch {k.lab('asyn')}
""")
    k.label("acs")
    k.srd(24, 30, D * 3 * D * 2)
    k(f"""
v_lshrrev_b32 v2, 3, v0
v_mul_u32_u24 v2, 3456, v2
v_and_b32 v3, 7, v0
v_lshl_add_u32 v2, v3, 4, v2
s_mul_i32 s18, s16, {72*3456}
s_lshl_b32 s19, s17, 7
s_add_u32 s18, s18, s19
""")
    for n in range(9):
        k(f"buffer_load_dwordx4 {v(28+4*n,4)}, v2, s[24:27], s18 offen\ns_add_u32 s18, s18, {8*3456}")
    for n in range(9):
        k(f"s_waitcnt vmcnt({8-n if n == 0 else 9-n})")
        if n == 0: k("global_load_dwordx2 v[14:15], v16, s[38:39] sc1")
        for d in range(4):
            if n == 0:
                k(f"v_lshlrev_b32 v{4+2*d}, 16, v{28+d}\nv_and_b32 v{5+2*d}, 0xffff0000, v{28+d}")
            else:
                k(f"v_lshlrev_b32 v12, 16, v{28+4*n+d}\nv_and_b32 v13, 0xffff0000, v{28+4*n+d}\nv_pk_add_f32 {v(4+2*d,2)}, {v(4+2*d,2)}, v[12:13]")
    k(f"""
s_lshl_b32 s18, s16, 11
v_lshl_add_u32 v2, v0, 5, s18
ds_write_b128 v2, v[4:7]
ds_write_b128 v2, v[8:11] offset:16
""")
    k(f"""
s_waitcnt lgkmcnt(0)
s_barrier
s_cmp_lg_u32 s16, 0
s_cbranch_scc1 {k.lab('asyn')}
v_lshlrev_b32 v2, 2, v0
""")
    for i in range(32):
        k(f"ds_read2st64_b32 {v(28+2*i,2)}, v2 offset0:{2*i} offset1:{2*i+1}")
    for i in range(1, 32):
        if i in (1, 17, 25): k(f"s_waitcnt lgkmcnt({ {1: 15, 17: 7, 25: 0}[i] })")
        k(f"v_pk_add_f32 {v(28+2*(i&1),2)}, {v(28+2*(i&1),2)}, {v(28+2*i,2)}" if i > 1 else "")
    k("v_pk_add_f32 v[8:9], v[28:29], v[30:31]")
    k(f"""
v_add_f32 v8, v8, v9
s_lshl_b32 s18, s17, 8
s_add_u32 s18, s18, {CSOFF}
buffer_store_dword v8, v2, s[12:15], s18 offen sc1
s_add_u32 s63, s17, 209
s_mul_i32 s63, s63, {FLS}
s_add_u32 s63, s63, {FSOFF}
""")
    k(f"s_branch {k.lab('asyn')}")
    k.label("aidle")
    k("s_sleep 40")
    k.label("asyn")
    k.mark(8)
    k("s_waitcnt vmcnt(0)")
    get_nonce(k, "ga", 14)
    k.mark(10)
    k("s_nop 0")
    set_flag(k, 63, 4)
    if wt:
        k(f"""
s_sub_u32 s17, s2, 192
s_cmp_ge_u32 s17, {27 + NSW}
s_cbranch_scc1 {k.lab('awt')}
s_lshl_b32 s17, s17, 3
s_add_u32 s17, s17, s16
s_lshl_b32 s17, s17, 13
v_lshlrev_b32 v2, 7, v0
""")
        for m in range(wt):
            k.srd(24, 40 + 2*m, D * F * 2)
            k("buffer_load_dword v15, v2, s[24:27], s17 offen")
        k.label("awt")
    k("s_barrier")
    k.label("aend")
```

```python
from common import *
from prep import *
from pa import phase_a
KNAME = 'sequential_preLN__softmax_full_mha__glu_gated_bilinear__prompt_kernel'

SCR = KVHEAD
UB = 36864
CB = 12288
HALF = 32 * KVBLK
OST = 163840 - UB
MRG = OST - 25600
MUL = OST - 1024
O2OFF = OOFF + 64 * CH
M16 = "v_mfma_f32_32x32x16_bf16"
M8 = "v_mfma_f32_32x32x8_bf16"
M = "v_mfma_f32_16x16x32_bf16"


def gen_km(diag=False, U=4, upto=9, ld="sc1", dbg="", NO=10, ST=(4, 5, 8, 9), NPRE=8, NF1=12, NF2=36, SL=2, one=True, CR=6, dopt={}, eopt={}, aopt={}, full=0xffff, wsc=True, pl='sc1', ps='sc1', warm=False, b0=False, otch=1, FPC=0, HP=1, efill=True, rot=False, u8=True, zv=False, fc=0, NX=12):
    if efill: dopt = dict(dopt, efill=True); eopt = dict(eopt, efill=True)
    assert ST[3] < NO and ST[0] > 2
    k = Kern(KNAME, 256, 512, 163840, vgpr=256, idx=1, diag=diag, nm=14, mb=64)
    SLEEP[0] = SL
    FULL[0] = full
    PL[0] = pl
    PS[0] = ps
    mk = k.mark
    if dbg == "a":
        late = lambda i: mk(i + 4) if i < 3 else None
    elif dbg == "c":
        late = lambda i: mk(i) if 2 <= i <= 8 else None
    else:
        late = mk
    k.stamp_start()
    AK1, AK2, AV = 2, 3, 4
    BK1 = 8
    SS = [16, 32]
    OO = [48, 96]
    P, K1, K2, V0, V1 = 64, 72, 76, 80, 84
    Q1 = [88, 112]
    Q2 = [92, 116]
    T0 = 118
    DAT, FR, PVS, PVW, PVR = 160, 224, 240, 241, 242
    M2B = 'v_mfma_f32_32x32x4_2b_bf16'
    SP = [16, 128]
    WV = 14
    k(f"""
s_cmp_ge_u32 s2, 256
s_cbranch_scc1 {k.lab('end')}
s_load_dwordx4 s[28:31], s[0:1], {ARG_X}
s_load_dwordx2 s[32:33], s[0:1], {ARG_WO}
s_load_dwordx2 s[34:35], s[0:1], {ARG_WS}
s_load_dwordx2 s[38:39], s[0:1], {ARG_DBG}
s_load_dwordx8 s[40:47], s[0:1], {ARG_WG}
v_lshrrev_b32 v1, 6, v0
v_and_b32 v0, 63, v0
v_readfirstlane_b32 s16, v1
v_lshlrev_b32 v1, 4, v0
s_mov_b32 s95, s16
""")
    if dbg != "a":
        k.mark = lambda i: None
    if dbg in ("a0", "a1"):
        aopt = dict(aopt, tr=dbg); late = lambda i: None
    phase_a(k, **aopt)
    k.mark = late
    k(f"""
s_and_b32 s17, s2, 7
s_lshl_b32 s17, s17, 2
s_bfe_u32 s18, s2, 0x20003
s_add_u32 s17, s17, s18          ; head
s_lshr_b32 s18, s2, 5
s_lshl_b32 s18, s18, 3
s_and_b32 s19, s16, 3
s_lshl_b32 s19, s19, 1
s_add_u32 s18, s18, s19
s_lshr_b32 s33, s16, 2           ; kh
s_mul_i32 s63, s17, {QHEAD}
s_mul_i32 s22, s18, {QBLK}
s_add_u32 s63, s63, s22
s_add_u32 s63, s63, {QOFF}
s_mul_i32 s22, s17, {KVHEAD}
s_lshl_b32 s23, s16, 10
v_and_b32 v{T0}, 31, v0
v_lshrrev_b32 v{T0+8}, 5, v0
v_mul_u32_u24 v{T0+8}, {QBLK}, v{T0+8}
v_lshl_add_u32 v{T0+8}, v{T0}, 2, v{T0+8}
""")
    def piece(off, base="s23"):
        return f"s_add_u32 m0, {base}, {off}\ns_add_u32 s24, s22, m0\nbuffer_load_dwordx4 v1, s[12:15], s24 offen {ld} lds"
    assert (2 * U + 2) * KVBLK <= 24576
    k(f"""
v_and_b32 v{T0+1}, 0x13, v{T0}
v_and_b32 v{T0+2}, 4, v{T0}
v_lshl_or_b32 v{T0+1}, v{T0+2}, 1, v{T0+1}
v_bfe_u32 v{T0+2}, v{T0}, 3, 1
v_lshl_or_b32 v{T0+1}, v{T0+2}, 2, v{T0+1}
v_lshrrev_b32 v{T0+2}, 5, v0
v_lshlrev_b32 v{T0+3}, 9, v{T0+2}
v_lshl_add_u32 v{BK1}, v{T0+1}, 4, v{T0+3}
v_lshlrev_b32 v{BK1+1}, 2, v{T0+1}
v_add_u32 v{BK1+1}, {KV_K2}, v{BK1+1}
v_bfe_u32 v{T0+3}, v0, 2, 2
v_lshl_add_u32 v{T0+3}, v{T0+2}, 3, v{T0+3}
v_and_b32 v{T0+4}, 1, v0
v_mul_u32_u24 v{T0+4}, {KV_V1-KV_V0}, v{T0+4}
v_bfe_u32 v{T0+5}, v0, 1, 1
v_lshl_add_u32 v{T0+4}, v{T0+5}, 3, v{T0+4}
v_add_u32 v{T0+4}, {KV_V0}, v{T0+4}
v_and_b32 v{T0+5}, 16, v0
v_cmp_eq_u32 vcc, 16, v{T0+5}
""")
    for m in range(2):
        for i in range(2):
            k(f"""
v_add_u32 v{T0+5}, {16*m+4*i}, v{T0+3}
v_lshl_add_u32 v{T0+6}, v{T0+5}, 4, v{T0+4}
v_lshlrev_b32 v{T0+5}, 3, v{T0+5}
v_add_u32 v{T0+5}, {KV_V2}, v{T0+5}
{f"v_and_b32 v{T0+7}, 2, v0" + chr(10) + f"v_lshl_add_u32 v{T0+5}, v{T0+7}, 19, v{T0+5}" if zv else ""}
v_cndmask_b32 v{BK1+2+2*m+i}, v{T0+6}, v{T0+5}, vcc
""")
    k(f"""
v_mov_b32 v{K2+1}, 0x3f803f80
v_cmp_gt_u32 s[30:31], 32, v0
s_mul_i32 s32, s33, {NO*U*KVBLK}
s_mul_i32 s3, s33, {(64//U - 2*NO) & 0xffffffff}
s_add_u32 s3, s3, {NO}
s_mov_b32 s48, 1
s_mov_b32 s21, {1 if fc == 2 else 2}
s_mov_b32 s36, s46
s_mov_b32 s37, s47
s_and_b32 s38, s2, 7
s_lshl_b32 s38, s38, 3
s_bfe_u32 s39, s2, 0x30003
s_add_u32 s38, s38, s39
s_lshr_b32 s39, s2, 6
s_xor_b32 s11, s16, 4
s_mul_i32 s49, s39, 9
s_lshl_b32 s19, s11, 1
s_add_u32 s49, s49, s19
s_lshl_b32 s62, s49, 10
s_add_u32 s62, s62, {WOOFF}
s_bfe_u32 s8, s2, 0x10002
s_lshl_b32 s8, s8, 2
s_bfe_u32 s9, s2, 0x20003
s_add_u32 s8, s8, s9
s_and_b32 s9, s2, 3
s_lshl_b32 s9, s9, 3
s_lshr_b32 s10, s2, 5
s_add_u32 s9, s9, s10
s_mul_i32 s10, s9, {9*UB}
s_add_u32 s10, s10, {WGUOFF}
s_lshl_b32 s61, s2, 2
s_add_u32 s61, s61, s16
s_mov_b32 s7, 0x20000
s_mov_b32 s56, 8
s_mov_b32 s57, 16
s_mov_b32 s58, 4
s_mov_b32 s6, {D*F*2}
s_cmp_ge_u32 s61, 648
s_cbranch_scc1 {k.lab('p1')}
s_cmp_ge_u32 s61, 324
s_cselect_b32 s4, s42, s40
s_cselect_b32 s5, s43, s41
s_cselect_b32 s60, 324, 0
s_cselect_b32 s53, 1024, 0
s_sub_u32 s60, s61, s60
s_mul_i32 s19, s60, 3641
s_lshr_b32 s19, s19, 16          ; ks
s_mul_i32 s59, s19, 18
s_sub_u32 s60, s60, s59          ; cg
s_mov_b32 s50, {F*2}
s_mul_i32 s51, s19, {32*F*2}
s_lshl_b32 s59, s60, 9
s_add_u32 s51, s51, s59
s_mov_b32 s52, 128
s_mul_i32 s59, s60, {16*36864}
s_add_u32 s53, s53, s59
s_lshl_b32 s59, s19, 11
s_add_u32 s53, s53, s59
s_add_u32 s53, s53, {WGUOFF}
s_mov_b32 s54, {4*36864}
s_mov_b32 s55, 36864
""")
    for e in range(8):
        k(f"s_add_u32 s{40+e}, s51, {(e//2)*128 + (e&1)*16*F*2}")
    k(f"s_branch {k.lab('pgo')}")
    k.label("p1")
    k(f"""
s_mov_b32 s50, 1152
s_mov_b32 s54, 36864
s_mov_b32 s55, 1024
s_mov_b32 s4, s44
s_mov_b32 s5, s45
s_mov_b32 s52, {32*1152}
s_sub_u32 s60, s61, 648
s_mul_i32 s19, s60, 7282
s_lshr_b32 s19, s19, 16          ; kg = r/9
s_mul_i32 s59, s19, 9
s_sub_u32 s60, s60, s59          ; cs
s_mul_i32 s53, s19, {4*36864}
s_add_u32 s53, s53, {WDOFF}
s_lshl_b32 s59, s60, 12
s_add_u32 s53, s53, s59
; k-slot order: position pos (16 rows) of quarter kq holds unit 72kq + 9*((pos%24)/3) + 3*(pos/24) + pos%3
s_lshl_b32 s51, s60, 7
s_mul_i32 s59, s19, 7282
s_lshr_b32 s59, s59, 16
s_mul_i32 s60, s59, 9
s_sub_u32 s19, s19, s60          ; kg%9
s_mul_i32 s59, s59, {72*16*1152}
s_add_u32 s51, s51, s59
s_mul_i32 s59, s19, 86
s_lshr_b32 s59, s59, 8           ; gamma = (kg%9)/3
s_mul_i32 s60, s59, 3
s_sub_u32 s19, s19, s60
s_lshl_b32 s19, s19, 3           ; pos%24 of the first half block
s_mul_i32 s60, s60, {16*1152}
s_add_u32 s51, s51, s60
""")
    for e in range(8):
        k(f"""
s_add_u32 s59, s19, {e}
s_mul_i32 s60, s59, 86
s_lshr_b32 s60, s60, 8
s_mul_i32 s60, s60, 6
s_add_u32 s59, s59, s60
s_mul_i32 s59, s59, {16*1152}
s_add_u32 s{40+e}, s51, s59
""")
    k.label("pgo")
    k(f"s_lshl_b32 s19, s16, 11\ns_add_u32 s19, s19, {SCR}")
    prep_addr(k, PVS, PVW, PVR, PVR + 1, 19)
    if warm:
        k(f"""
s_lshl_b32 s25, s18, 5
s_add_u32 s25, s25, s17
s_mul_i32 s25, s25, {FLS}
s_add_u32 s25, s25, {FBOFF}
s_add_u32 s26, s25, {32*FLS}
s_mul_i32 s59, s61, {FLS}
s_add_u32 s59, s59, {FPOFF}
s_lshl_b32 s60, s38, 2
s_add_u32 s60, s60, s39
s_mul_i32 s60, s60, {FLS}
s_add_u32 s60, s60, {FCOFF}
s_cmp_lg_u32 s16, 2
s_cselect_b32 s60, {OOB}, s60
s_cmp_lt_u32 s16, 4
s_cselect_b32 s25, s59, s25
s_cselect_b32 s26, s60, s26
v_mov_b32 v16, 0
v_mov_b32 v17, 0
v_lshlrev_b32 v18, 3, v0
""")
    def clears():
        k(f"v_mov_b32 v{P+4}, 0")
        for r in [OO[q] + 2*i for q in range(2) for i in range(8)] + [P + 4, P + 6, V1, V1 + 2]:
            k(f"v_pk_mul_f32 {v(r,2)}, {v(P+4,2)}, {v(P+4,2)} op_sel_hi:[0,0]")
    clears()
    k(f"""
s_cmp_eq_u32 s16, 5
s_cbranch_scc1 {k.lab('q5')}
s_cmp_lg_u32 s16, 4
s_cbranch_scc1 {k.lab('pqx')}
s_lshr_b32 s59, s17, 3
s_lshl_b32 s59, s59, 4           ; hg*16
v_and_b32 v{T0}, 15, v0
v_bfe_u32 v{T0+1}, v0, 4, 1
v_lshl_add_u32 v{T0}, v{T0+1}, 6, v{T0}
v_add_u32 v{T0}, 64, v{T0}
s_lshr_b32 s60, s2, 5
s_lshl_b32 s60, s60, 1
v_and_b32 v{T0+1}, 1, v0
v_add_u32 v{T0+1}, s60, v{T0+1}
s_mul_i32 s59, s59, {FLS}
s_add_u32 s59, s59, {FAOFF}
v_cndmask_b32 v{T0}, v{T0+1}, v{T0}, s[30:31]
s_branch {k.lab('q6')}
""")
    k.label("q5")
    k(f"""
; lanes 0..14: Wo jobs 128 + (l/3)*9 + cs0 + l%3 ; 15..50: wbar jobs ; 51..: statistics 2tb + (l&1)
s_mul_i32 s60, s39, 9
s_lshr_b32 s60, s60, 2
s_add_u32 s60, s60, 128
v_mul_u32_u24 v{T0}, 21846, v0
v_lshrrev_b32 v{T0}, 16, v{T0}
v_mad_u32_u24 v{T0}, v{T0}, 6, v0
v_add_u32 v{T0}, s60, v{T0}
v_add_u32 v{T0+1}, {173-15}, v0
v_cmp_gt_u32 vcc, 15, v0
s_lshl_b32 s60, s38, 1
v_and_b32 v{T0+2}, 1, v0
v_cndmask_b32 v{T0}, v{T0+1}, v{T0}, vcc
v_cmp_gt_u32 vcc, 51, v0
v_add_u32 v{T0+2}, s60, v{T0+2}
s_mov_b32 s59, {FSOFF}
v_cndmask_b32 v{T0}, v{T0+2}, v{T0}, vcc
""")
    k.label("q6")
    k(f"v_mul_u32_u24 v{T0}, {FLS}, v{T0}")
    poll(k, "pq", 59, T0, T0 + 2, 60)
    k("s_barrier")
    if dbg == "a": mk(7)
    QL = f"""
buffer_load_dwordx4 {v(Q1[0],4)}, v1, s[12:15], s63 offen {ld}
buffer_load_dword v{Q2[0]}, v{T0+8}, s[12:15], s63 offen offset:1024 {ld}
buffer_load_dwordx4 {v(Q1[1],4)}, v1, s[12:15], s63 offen offset:{QBLK} {ld}
"""
    k(piece(0))
    if fc:
        k(f"s_cmp_lg_u32 s33, 0\ns_cbranch_scc1 {k.lab('nq')}")
    k(QL)
    k.label("nq")
    k(piece(8192))
    if fc < 2: k(piece(16384))
    k(f"s_waitcnt vmcnt(0)\ns_barrier")
    if warm:
        k("s_mov_b64 exec, 0xffff\nbuffer_store_dwordx2 v[16:17], v18, s[12:15], s25 offen sc1\nbuffer_store_dwordx2 v[16:17], v18, s[12:15], s26 offen sc1\ns_mov_b64 exec, -1")
    k.mark(0)
    k(f"""
s_setprio 1
s_cmp_eq_u32 s33, 0
s_cbranch_scc1 {k.lab('restart')}
s_setprio 0
s_mov_b32 s21, 99
s_add_u32 s23, s23, {(24576 if fc < 2 else 16384) - 4096}
""")
    if fc: k(QL)
    for n in range(NPRE):
        k(piece(n * 4096))
    k(f"s_add_u32 s23, s23, {NPRE*4096}")
    if fc: k(f"s_waitcnt vmcnt({NPRE})")
    B0B = (f"s_cmp_lg_u32 s48, 1\ns_cbranch_scc1 {k.lab('b0b')}\ns_waitcnt vmcnt({NPRE + (1 if warm else 0)})\ns_cmp_lg_u32 s33, 0\ns_cbranch_scc1 {k.lab('b0a')}\n"
           f"s_waitcnt vmcnt({1 if warm else 0})\n{k.lab('b0a')}:\ns_barrier\n{k.lab('b0b')}:")
    k.label("restart")
    k(f"""
v_mov_b32 v{Q2[0]+1}, 0
v_mov_b32 v{T0}, 0xff800000
v_mov_b32 v{T0+1}, 0xff800000
v_mov_b32 v{AK1}, v{BK1}
v_mov_b32 v{AK2}, v{BK1+1}
s_mov_b32 s20, s48
""")
    k.label("mx")
    k(f"""
ds_read_b128 {v(K1,4)}, v{AK1}
ds_read_b32 v{K2}, v{AK2}
v_add_u32 v{AK1}, {KVBLK}, v{AK1}
v_add_u32 v{AK2}, {KVBLK}, v{AK2}
s_waitcnt lgkmcnt(0)
{M16} {v(SS[0],16)}, {v(K1,4)}, {v(Q1[0],4)}, 0
{M16} {v(SS[1],16)}, {v(K1,4)}, {v(Q1[1],4)}, 0
s_sub_u32 s20, s20, 1
s_nop 8
{M2B} {v(SS[0],32)}, {v(K2,2)}, {v(Q2[0],2)}, {v(SS[0],32)}
s_nop 15
s_nop 3
""")
    for q in range(2):
        for i in range(8):
            k(f"v_max3_f32 v{T0+q}, v{T0+q}, v{SS[q]+2*i}, v{SS[q]+2*i+1}")
    k(f"""
s_cmp_lg_u32 s20, 0
s_cbranch_scc1 {k.lab('mx')}
v_mov_b32 v{T0+2}, v{T0}
v_mov_b32 v{T0+3}, v{T0+1}
""")
    for i in range(6):
        k(f"v_add_u32 v{AK1+i}, s32, v{BK1+i}")
    k(f"""
v_permlane32_swap_b32 v{T0}, v{T0+2}
v_permlane32_swap_b32 v{T0+1}, v{T0+3}
{B0B if b0 else ""}
s_and_b32 s19, s33, s48
s_cbranch_scc0 {k.lab('kvx')}
""")
    if fc == 2:
        for n in range(NX):
            k(piece(n * 4096))
        k(f"s_add_u32 s23, s23, {NX*4096}\ns_waitcnt vmcnt({NPRE + NX - 2})\ns_barrier")
    k.label("kv")
    k(piece(0))
    k(f"""
s_add_u32 s23, s23, 4096
s_cmp_lt_u32 s23, {KVHEAD}
s_cbranch_scc1 {k.lab('kv')}
s_waitcnt vmcnt(0)
s_barrier
""")
    WC = 112
    def wcreg(ks, sl):
        i = 2 * ks + sl
        return 160 + 4 * i if i < 24 else WC + 4 * (i - 24)
    for ks in range(12):
        for sl in range(2):
            k(f"buffer_load_dwordx4 {v(wcreg(ks,sl),4)}, v1, s[12:15], s62 offen offset:{sl*1024}")
        k("s_add_u32 s62, s62, 36864")
    if otch:
        k.srd(24, 36, S * D * 2)
        k(f"""
s_lshl_b32 s59, s11, 8
s_add_u32 s59, s59, s2
s_lshl_b32 s59, s59, 13
v_lshlrev_b32 v14, 7, v0
buffer_load_dword v15, v14, s[24:27], s59 offen {otch if otch != 1 else ""}
""")
    k.label("kvx")
    V1B = [T0 + 6, V1]
    k(f"""
ds_read_b128 {v(K1,4)}, v{AK1}
ds_read_b32 v{K2}, v{AK2}
ds_read_b64_tr_b16 {v(V0,2)}, v{AV}
ds_read_b64_tr_b16 {v(V1B[0],2)}, v{AV+2}
ds_read_b64_tr_b16 {v(V1B[0]+2,2)}, v{AV+3}
v_max_f32 v{T0}, v{T0}, v{T0+2}
v_max_f32 v{T0+1}, v{T0+1}, v{T0+3}
v_cndmask_b32 v{T0}, v{T0+1}, v{T0}, s[30:31]
s_waitcnt lgkmcnt(4)
{M16} {v(SS[0],16)}, {v(K1,4)}, {v(Q1[0],4)}, 0
{M16} {v(SS[1],16)}, {v(K1,4)}, {v(Q1[1],4)}, 0
ds_read_b128 {v(K1,4)}, v{AK1} offset:{KVBLK}
v_sub_f32 v{T0}, 0, v{T0}
v_cvt_pk_bf16_f32 v{T0+4}, v{T0}, v{T0}
v_and_b32 v{T0+4}, 0xffff0000, v{T0+4}
v_sub_f32 v{T0+5}, v{T0}, v{T0+4}
v_cvt_pk_bf16_f32 v{Q2[0]+1}, v{T0+4}, v{T0+5}
s_waitcnt lgkmcnt(4)
s_nop 2
{M2B} {v(SS[0],32)}, {v(K2,2)}, {v(Q2[0],2)}, {v(SS[0],32)}
ds_read_b32 v{K2}, v{AK2} offset:{KVBLK}
s_nop 15
s_nop 1
s_waitcnt lgkmcnt(0)
""")
    k.mark(1)
    k(".p2align 6")
    k.label("loop")
    UU = 2 * U if u8 else U
    ret = lambda it: k.lab("mid" if (u8 and it % 2) else "loop")
    assert not u8 or NO % 2 == 0
    for t in range(UU):
        if t == U:
            k(f"s_cbranch_scc1 {k.lab('stub')}")
            k.label("mid")
        b = t & 1
        cp, np_ = SP[b], SP[1-b]
        at = {
            (0, 1): f"{M16} {v(OO[1],16)}, {v(V1B[1-b],4)}, {v(P+4,4)}, {v(OO[1],16)}\nds_read_b64_tr_b16 {v(V0+2,2)}, v{AV+1} offset:{t*KVBLK}",
            (0, 5): f"{M2B} {v(np_,32)}, {v(K2,2)}, {v(Q2[0],2)}, 0\nds_read_b32 v{K2}, v{AK2} offset:{(t+2)*KVBLK}",
            (0, 13): f"s_waitcnt lgkmcnt(0)\n{M16} {v(OO[0],16)}, {v(V0,4)}, {v(P,4)}, {v(OO[0],16)}"
                     + ("\ns_add_u32 s20, s20, 1\ns_cmp_eq_u32 s20, s21" if t % U == U - 1 else ""),
            (1, 1): f"{M16} {v(OO[0],16)}, {v(V1B[b],4)}, {v(P+4,4)}, {v(OO[0],16)}\nds_read_b64_tr_b16 {v(V1B[1-b],2)}, v{AV+2} offset:{(t+1)*KVBLK}",
            (1, 5): f"{M16} {v(np_,16)}, {v(K1,4)}, {v(Q1[0],4)}, {v(np_,16)}\nds_read_b64_tr_b16 {v(V1B[1-b]+2,2)}, v{AV+3} offset:{(t+1)*KVBLK}",
            (1, 9): f"{M16} {v(np_+16,16)}, {v(K1,4)}, {v(Q1[1],4)}, {v(np_+16,16)}\nds_read_b128 {v(K1,4)}, v{AK1} offset:{(t+2)*KVBLK}",
            (1, 13): f"{M16} {v(OO[1],16)}, {v(V0,4)}, {v(P,4)}, {v(OO[1],16)}\nds_read_b64_tr_b16 {v(V0,2)}, v{AV} offset:{(t+1)*KVBLK}",
        }
        for ph in range(2):
            cur = cp + 16 * ph
            for i in range(16):
                k(f"v_exp_f32 v{cur+i}, v{cur+i}")
                if (ph, i) in at: k(at[(ph, i)])
                if i % 4 == 3:
                    j = i // 2 - 1
                    k(f"v_cvt_pk_bf16_f32 v{P+j}, v{cur+2*j}, v{cur+2*j+1}\nv_cvt_pk_bf16_f32 v{P+j+1}, v{cur+2*j+2}, v{cur+2*j+3}")
    for i in range(6):
        k(f"v_add_u32 v{AK1+i}, {UU*KVBLK}, v{AK1+i}")
    k(f"""
s_cbranch_scc1 {k.lab('stub')}
s_cmp_lt_u32 s20, s3
s_cbranch_scc1 {k.lab('loop')}
{M16} {v(OO[1],16)}, {v(V1,4)}, {v(P+4,4)}, {v(OO[1],16)}
""")
    k.mark(2)
    BADF = 16384
    k(f"""
s_setprio 0
s_waitcnt lgkmcnt(0)
s_and_b32 s19, s16, 3
s_lshl_b32 s24, s19, 12
v_add_u32 v{T0+2}, s24, v1
s_lshl_b32 s24, s19, 11
s_add_u32 s24, s24, {SCR}
v_add_u32 v{T0+3}, s24, v1
v_mov_b32 v{T0+4}, {BADF}
s_waitcnt lgkmcnt(0)
s_cmp_eq_u32 s48, 1
s_cbranch_scc1 {k.lab('x0')}
s_barrier
""")
    k.label("x0")
    k(f"s_cmp_lg_u32 s33, 0\ns_cbranch_scc1 {k.lab('xy')}")
    for q in range(2):
        for j in range(2):
            k(f"ds_write_b128 v{T0+2}, {v(OO[q]+4*j,4)} offset:{(2*q+j)*1024}")
        k(f"ds_write_b128 v{T0+3}, {v(OO[q]+8,4)} offset:{q*1024}")
    k(f"""
s_cmp_lg_u32 s21, 98
s_cbranch_scc1 {k.lab('x1')}
s_mov_b32 s21, 99
s_mul_i32 s59, s61, {FLS}
s_add_u32 s59, s59, {FPOFF}
s_waitcnt vmcnt(0)
""")
    set_flag(k, 59, T0 + 6)
    k(f"""
v_and_b32 v{T0+6}, 1, v0
v_mul_u32_u24 v{T0+6}, 1152, v{T0+6}
v_lshrrev_b32 v{T0+7}, 4, v0
v_lshl_add_u32 v{T0+6}, v{T0+7}, 4, v{T0+6}
s_mul_i32 s60, s39, 9216
s_add_u32 s60, s60, {WOOFF + 8192}
s_mov_b32 s59, 36864
s_bitcmp1_b32 s16, 0
s_cselect_b32 s60, {WBAROFF}, s60
s_cselect_b32 s59, 64, s59
s_cselect_b64 vcc, -1, 0
s_lshr_b32 s58, s16, 1
s_add_u32 s57, s58, 16
s_mul_i32 s57, s57, s59
s_add_u32 s57, s57, s60
s_lshl_b32 s58, s58, 3
s_mul_i32 s58, s58, s59
s_add_u32 s60, s60, s58
v_cndmask_b32 v{T0+6}, v1, v{T0+6}, vcc
""")
    for i in range(8):
        k(f"buffer_load_dwordx4 {v(160+4*i,4)}, v{T0+6}, s[12:15], s60 offen\ns_add_u32 s60, s60, s59")
    k(f"buffer_load_dwordx4 {v(192,4)}, v{T0+6}, s[12:15], s57 offen")
    if efill:
        k(f"""
s_and_b32 s57, s2, 1
s_lshl_b32 s57, s57, 3
s_bfe_u32 s58, s2, 0x30003
s_add_u32 s57, s57, s58
s_lshl_b32 s57, s57, 2
s_add_u32 s57, s57, s16
s_mul_i32 s57, s57, 36
s_mul_i32 s58, s39, 9
s_add_u32 s57, s57, s58
s_mul_i32 s57, s57, 3072
s_add_u32 s57, s57, {EXOFF}
s_bfe_u32 s58, s2, 0x20001
s_mul_i32 s59, s58, 3072
s_add_u32 s59, s59, s57
s_add_u32 s60, s59, {4*3072}
s_add_u32 s57, s57, {8*3072}
""")
        for i in range(4):
            k(f"v_mov_b32 v{SS[0]+i}, -1")
        for so in (59, 60, 57):
            if so == 57:
                k(f"s_cmp_lg_u32 s58, s16\ns_cbranch_scc1 {k.lab('x1')}")
            for i in range(3):
                k(f"buffer_store_dwordx4 {v(SS[0],4)}, v1, s[12:15], s{so} offen offset:{i*1024} sc1")
    k.label("x1")
    k.mark(3)
    k(f"s_waitcnt lgkmcnt(0)\ns_barrier\ns_branch {k.lab('x2')}")
    k.label("xy")
    k(f"""
s_lshl_b32 s24, s17, 16
s_lshl_b32 s23, s18, 9
s_add_u32 s24, s24, s23
s_add_u32 s24, s24, {OOFF}
s_lshl_b32 s19, s18, 5
s_add_u32 s19, s19, s17
s_lshl_b32 s23, s19, 7
s_add_u32 s23, s23, {O2OFF}
s_add_u32 s22, s23, 4096
s_mul_i32 s19, s19, {FLS}
s_add_u32 s19, s19, {FBOFF}
s_add_u32 s25, s19, {32*FLS}
s_mov_b32 s26, {f2u(2.0**60):#x}
v_and_b32 v{T0+1}, 31, v0
v_lshrrev_b32 v{T0+5}, 5, v0
v_lshlrev_b32 v{T0+1}, 4, v{T0+1}
v_lshl_add_u32 v{T0+5}, v{T0+5}, 15, v{T0+1}
v_lshlrev_b32 v{T0+1}, 2, v0
""")
    k.mark(3)
    k("s_barrier")
    for q in range(2):
        k(f"ds_read_b128 {v(SS[q]+8,4)}, v{T0+3} offset:{q*1024}")
        for j in range(2):
            k(f"ds_read_b128 {v(SS[q]+4*j,4)}, v{T0+2} offset:{(2*q+j)*1024}")
    for q in range(2):
        O = OO[q]
        PQ = [P, V0][q]
        k(f"s_waitcnt lgkmcnt({5 - 3*q})\nv_add_f32 v{O+10}, v{O+10}, v{SS[q]+10}\nv_rcp_f32 v{T0+6+q}, v{O+10}\ns_waitcnt lgkmcnt({3 - 3*q})")
        for i in range(5):
            k(f"v_pk_add_f32 {v(O+2*i,2)}, {v(O+2*i,2)}, {v(SS[q]+2*i,2)}")
        for i in range(5):
            k(f"v_pk_mul_f32 {v(O+2*i,2)}, {v(O+2*i,2)}, {v(T0+6,2)} op_sel:[0,{q}] op_sel_hi:[1,{q}]")
        for i in range(5):
            k(f"v_cvt_pk_bf16_f32 v{PQ+i}, v{O+2*i}, v{O+2*i+1}")
        k(f"""
buffer_store_dwordx4 {v(PQ,4)}, v{T0+5}, s[12:15], s24 offen offset:{q*512} sc1
s_mov_b64 exec, s[30:31]
buffer_store_dword v{PQ+4}, v{T0+1}, s[12:15], s{23-q} offen sc1
s_mov_b64 exec, -1
""")
    k(f"""
v_add_f32 v{T0}, v{OO[0]+10}, v{OO[1]+10}
v_cmp_ngt_f32 vcc, s26, v{T0}
s_lshl_b32 s26, s16, 2
s_add_u32 s26, s26, {BADF - 16}
v_mov_b32 v{T0}, s26
s_cmp_lg_u64 vcc, 0
s_cselect_b32 s26, 1, 0
v_mov_b32 v{T0+2}, s26
ds_write_b32 v{T0}, v{T0+2}
s_waitcnt lgkmcnt(0)
""")
    k.label("x2")
    if dbg == "c": mk(0)
    k(f"""
s_barrier
ds_read_b128 {v(K1,4)}, v{T0+4}
s_waitcnt lgkmcnt(0)
v_or3_b32 v{K1}, v{K1}, v{K1+1}, v{K1+2}
v_or_b32 v{K1}, v{K1}, v{K1+3}
s_nop 0
v_readfirstlane_b32 s26, v{K1}
s_and_b32 s26, s26, s48
s_cmp_eq_u32 s26, 1
s_cbranch_scc1 {k.lab('fallback')}
""")
    if dbg == "c": mk(1)
    LT, LG = 2, 3
    GV = 4
    XV, W1V, FV = 5, 6, 7
    ACC, OF, X, MU = 16, 32, 48, 56
    TC = 60
    k.srd(4, 28, S * D * 2)
    k(f"""
v_and_b32 v{LT}, 15, v0
v_lshrrev_b32 v{LG}, 4, v0
v_lshlrev_b32 v{GV}, 15, v{LG}
v_lshl_add_u32 v{GV}, v{LT}, 4, v{GV}
v_and_b32 v{FV}, 31, v0
v_mul_u32_u24 v{FV}, {FLS}, v{FV}
v_mul_u32_u24 v{XV}, 1152, v{LT}
v_lshl_add_u32 v{XV}, v{LG}, 3, v{XV}
v_lshlrev_b32 v{W1V}, 2, v{LT}
s_mul_i32 s24, s38, {32*1152}
s_lshl_b32 s23, s49, 5
s_add_u32 s24, s24, s23
s_add_u32 s23, s24, {16*1152}
s_lshl_b32 s26, s38, 7
s_lshl_b32 s27, s38, 8
s_add_u32 s27, s27, {STOFF + 4}
v_lshlrev_b32 v9, 3, v{LT}
s_cmp_lt_u32 s16, 2
s_cbranch_scc1 {k.lab('ppx')}
s_cmp_lt_u32 s16, 4
s_cbranch_scc1 {k.lab('cfp')}
s_waitcnt vmcnt(0)
{flag_txt([19, 25], TC)}
s_branch {k.lab('ppx')}
{k.lab('cfp')}:
; waves 2,3: re-layout jobs read by phases D/E.  lanes 0..35: job = lane*18 + cg ; lanes 36..: 648 + (9kq + j/3)*9 + cs0 + j%3
s_mul_i32 s59, s9, 9
s_sub_u32 s60, s16, 2
s_lshl_b32 s60, s60, 3
s_add_u32 s59, s59, s60
s_lshr_b32 s55, s59, 4           ; cg
s_bfe_u32 s59, s2, 0x20001
s_mul_i32 s59, s59, 81
s_mul_i32 s60, s39, 9
s_lshr_b32 s60, s60, 2
s_add_u32 s59, s59, s60
s_add_u32 s59, s59, 648
v_subrev_u32 v9, 36, v0
v_min_u32 v9, 26, v9
v_mul_u32_u24 v10, 21846, v9
v_lshrrev_b32 v10, 16, v10
v_mad_u32_u24 v9, v10, 6, v9
v_add_u32 v9, s59, v9
v_mul_u32_u24 v10, 18, v0
v_add_u32 v10, s55, v10
v_cmp_gt_u32 vcc, 36, v0
s_mov_b32 s59, {FPOFF}
s_nop 0
v_cndmask_b32 v11, v9, v10, vcc
v_mul_u32_u24 v11, {FLS}, v11
""")
    poll(k, "pp", 59, 11, TC, 60)
    k.mark(4)
    k(f"s_barrier\ns_cmp_gt_u32 s11, 4\ns_cbranch_scc1 {k.lab('cnx')}")
    for T in range(2):
        for i in range(2):
            k(f"buffer_load_dwordx2 {v(X+2*(2*i+T),2)}, v{XV}, s[4:7], s{[24,23][T]} offen offset:{i*32}")
        k(f"buffer_load_dword v{MU+T}, v9, s[12:15], s27 offen offset:{T*128} {ld}")
    k(f"s_cmp_eq_u32 s11, 4\ns_cbranch_scc1 {k.lab('cnx')}")
    for ks in range(12, 18):
        for sl in range(2):
            k(f"buffer_load_dwordx4 {v(wcreg(ks,sl),4)}, v1, s[12:15], s62 offen offset:{sl*1024}")
        k("s_add_u32 s62, s62, 36864")
    k.label("cnx")
    k(f"""
s_mul_i32 s59, s38, {32*FLS}
s_add_u32 s59, s59, {FBOFF}
s_lshl_b32 s57, s38, 9
s_add_u32 s57, s57, {OOFF}
s_lshr_b32 s58, s16, 1
s_lshl_b32 s58, s58, 17
s_add_u32 s57, s57, s58
s_and_b32 s58, s16, 1
s_lshl_b32 s58, s58, 8
s_add_u32 s57, s57, s58
s_lshl_b32 s58, s16, 10
s_lshl_b32 s56, s38, 12
s_add_u32 s56, s56, s58
s_add_u32 s56, s56, {O2OFF}
s_add_u32 s58, s58, {OST}
v_add_u32 v{XV}, {OST}, v1
v_lshlrev_b32 v8, 9, v{LG}
v_add3_u32 v8, v8, v{W1V}, s58
""".replace("v_add3_u32 v8, v8, v{W1V}, s58".format(W1V=W1V), f"v_add_u32 v8, v8, v{W1V}\nv_add_u32 v8, {OST + 32768}, v8"))
    k(f"""
s_add_u32 s47, s8, s9
s_mul_i32 s46, s47, 21846
s_lshr_b32 s46, s46, 16
s_mul_i32 s46, s46, 3
s_sub_u32 s47, s47, s46
{"" if rot else "s_mov_b32 s47, 0"}
s_mul_i32 s40, s47, {CB}
s_add_u32 s41, s40, {CB}
s_cmp_ge_u32 s41, {UB}
s_cselect_b32 s41, 0, s41
s_add_u32 s42, s41, {CB}
s_cmp_ge_u32 s42, {UB}
s_cselect_b32 s42, 0, s42
s_mov_b32 s43, s47
""")
    def feed(p0, p1):
        k(f"s_mul_i32 s22, s34, {UB}\ns_add_u32 s22, s22, s10\ns_mul_i32 s34, s34, {CB}")
        for p_ in range(p0, p1):
            if p_ % 4 == 0:
                k(f"s_add_u32 m0, s34, {(p_//12)*UB + (p_%12)*1024}\ns_add_u32 s35, s22, s{40 + p_//12}\ns_add_u32 s35, s35, {(p_%12)*1024}")
            k(f"buffer_load_dwordx4 v1, s[12:15], s35 offen offset:{(p_%4)*1024} lds")
            if FPC and p0 == 0: k(f"s_waitcnt vmcnt({FPC})")
    k(f"""
s_cmp_ge_u32 s16, 4
s_cbranch_scc1 {k.lab('pbx')}
s_cmp_eq_u32 s16, 1
s_cbranch_scc1 {k.lab('pb0')}
s_sub_u32 s34, s16, 1
s_max_i32 s34, s34, 0
""")
    feed(0, NF1)
    k(f"s_branch {k.lab('pbx')}")
    k.label("pb0")
    poll(k, "pb", 59, FV, TC, 60)
    k("s_barrier")
    k.mark(5)
    for n in range(4):
        k(f"s_add_u32 m0, s58, {n*8192}\ns_add_u32 s62, s57, {n*4*4*CH}\nbuffer_load_dwordx4 v{GV}, s[12:15], s62 offen {ld} lds")
    k(f"s_cmp_ge_u32 s16, 4\ns_cbranch_scc1 {k.lab('co')}")
    k(f"s_add_u32 m0, s58, {4*8192}\ns_nop 0\nbuffer_load_dwordx4 v1, s[12:15], s56 offen {ld} lds")
    k.label("co")
    k(f"s_waitcnt vmcnt(0)\ns_barrier")
    k.mark(6)
    HL = 3 * UB
    k(f"v_add_u32 v10, {HL}, v1\ns_cmp_lt_u32 s16, 4\ns_cbranch_scc1 {k.lab('chelp')}")
    OR = 64
    def rdo(ks):
        b = OR + 8 * (ks % CR)
        if ks >= 16:
            r = []
            if ks == 17: r.append("v_add_u32 v8, 2048, v8")
            for T in range(2):
                for h in range(2):
                    r.append(f"ds_read2_b32 {v(b+4*T+2*h,2)}, v8 offset0:{16*T+64*h} offset1:{16*T+64*h+32}")
            return r
        return [f"ds_read_b128 {v(b+4*T,4)}, v{XV} offset:{(2*ks+T)*1024}" for T in range(2)]
    nrd = lambda ks: 4 if ks >= 16 else 2
    for ks in range(CR - 1):
        for r in rdo(ks): k(r)
    for ks in range(18):
        k(f"s_waitcnt lgkmcnt({sum(nrd(q) for q in range(ks + 1, min(ks + CR - 1, 18)))})")
        r = rdo(ks + CR - 1) if ks + CR - 1 < 18 else []
        for sl in range(2):
            for T in range(2):
                d = v(ACC + (2*sl+T)*4, 4)
                k(f"{M} {d}, {v(wcreg(ks,sl),4)}, {v(OR+8*(ks%CR)+4*T,4)}, {'0' if ks == 0 else d}")
                if r: k(r.pop(0))
        for x in r: k(x)
    k.label("cepi")
    if dbg == 'c': mk(9)
    SQ = 58
    k(f"""
s_lshl_b32 s24, s49, 16
s_lshl_b32 s23, s38, 9
s_add_u32 s24, s24, s23
s_add_u32 s24, s24, {HCOFF}
v_lshrrev_b32 v8, 5, v0
v_lshlrev_b32 v8, 15, v8
v_and_b32 v9, 31, v0
v_lshl_add_u32 v8, v9, 4, v8
v_lshlrev_b32 v9, 2, v9
v_mov_b32 v{SQ}, 0
v_mov_b32 v{SQ+1}, 0
""")
    for sl in range(2):
        for T in range(2):
            x = X + 2*(2*sl+T)
            r = OF + 4*(2*sl+T)
            k(f"v_lshlrev_b32 v{r}, 16, v{x}\nv_and_b32 v{r+1}, 0xffff0000, v{x}\nv_lshlrev_b32 v{r+2}, 16, v{x+1}\nv_and_b32 v{r+3}, 0xffff0000, v{x+1}")
    k("s_barrier")
    if dbg == 'c': mk(10)
    for T in range(2):
        for hh in range(2):
            k(f"ds_read_b64 {v(64+4*T+2*hh,2)}, v10 offset:{(1+2*hh)*2048 + T*1024}")
    for T in range(2):
        k(f"ds_read_b128 {v(72+4*T,4)}, v10 offset:{2*2048 + T*1024}")
    for i in range(8):
        k(f"v_pk_add_f32 {v(ACC+2*i,2)}, {v(ACC+2*i,2)}, {v(OF+2*i,2)}")
    k("s_waitcnt lgkmcnt(0)")
    for T in range(2):
        k(f"v_pk_add_f32 {v(64+4*T,2)}, {v(64+4*T,2)}, {v(66+4*T,2)}\nv_add_f32 v{MU+T}, v{MU+T}, v{64+4*T}\nv_add_f32 v{MU+T}, v{MU+T}, v{65+4*T}")
    k(f"s_cmp_lg_u32 s11, 4\ns_cbranch_scc1 {k.lab('cn8')}")
    for i in range(4):
        k(f"v_pk_add_f32 {v(ACC+2*i,2)}, {v(ACC+2*i,2)}, {v(72+2*i,2)}")
    k.label("cn8")
    for sl in range(2):
        if sl == 1:
            k(f"s_cmp_eq_u32 s11, 4\ns_cbranch_scc1 {k.lab('cq')}")
        R = X + 4*sl
        for T in range(2):
            ac = ACC + (2*sl+T)*4
            for r in range(4):
                k(f"v_sub_f32 v{ac+r}, v{ac+r}, v{MU+T}")
            k(f"v_cvt_pk_bf16_f32 v{R+2*T}, v{ac}, v{ac+1}\nv_cvt_pk_bf16_f32 v{R+2*T+1}, v{ac+2}, v{ac+3}")
            for r in range(4):
                k(f"v_fmac_f32 v{SQ+T}, v{ac+r}, v{ac+r}")
        k(f"""
v_permlane16_swap_b32 v{R}, v{R+2}
v_permlane16_swap_b32 v{R+1}, v{R+3}
buffer_store_dwordx4 {v(R,4)}, v8, s[12:15], s24 offen sc1
s_add_u32 s24, s24, 65536
""")
    k.label("cq")
    k(f"""
s_mul_i32 s23, s39, 5
s_add_u32 s23, s23, s11
v_permlane16_swap_b32 v{SQ}, v{SQ+1}
v_permlane16_swap_b32 v{MU}, v{MU+1}
s_lshl_b32 s27, s23, 13
s_add_u32 s27, s27, s26
s_add_u32 s27, s27, {SSQOFF}
v_add_f32 v{SQ}, v{SQ}, v{SQ+1}
v_mov_b32 v{SQ+1}, v{SQ}
s_add_u32 s26, s26, {MUHOFF}
s_cmp_lg_u32 s23, 0
s_cselect_b32 s26, {OOB}, s26
v_permlane32_swap_b32 v{SQ}, v{SQ+1}
v_add_f32 v{SQ}, v{SQ}, v{SQ+1}
s_mov_b32 exec_hi, 0
buffer_store_dword v{SQ}, v9, s[12:15], s27 offen sc1
buffer_store_dword v{MU}, v9, s[12:15], s26 offen sc1
s_mov_b64 exec, -1
s_lshl_b32 s3, s38, 5
s_add_u32 s3, s3, s23
s_mul_i32 s3, s3, {FLS}
s_add_u32 s3, s3, {FCOFF}
s_branch {k.lab('dstart')}
""")
    k.label("chelp")
    if NF1 < NF2:
        k(f"s_cmp_eq_u32 s16, 0\ns_cbranch_scc1 {k.lab('ch2')}\ns_sub_u32 s34, s16, 1")
        feed(NF1, NF2)
        k.label("ch2")
    k(f"""
s_lshr_b32 s23, s16, 1
s_lshl_b32 s24, s23, 14
v_add_u32 v{XV}, s24, v{XV}
s_lshl_b32 s24, s23, 11
v_add_u32 v8, s24, v8
s_lshl_b32 s24, s16, 11
v_add_u32 v11, s24, v10
s_setprio {HP}
""")
    HB = 64
    for i in range(8):
        for T in range(2):
            k(f"ds_read_b128 {v(HB+8*i+4*T,4)}, v{XV} offset:{(2*i+T)*1024}")
        if i == 5: k("s_waitcnt lgkmcnt(8)")
    for T in range(2):
        for h in range(2):
            k(f"ds_read2_b32 {v(HB+64+4*T+2*h,2)}, v8 offset0:{16*T+64*h} offset1:{16*T+64*h+32}")
    for i in range(9):
        k(f"s_waitcnt lgkmcnt({max(0, min(15, 2*(7-i) + 4)) if i < 8 else 0})")
        for T in range(2):
            d = v(ACC + 4*T, 4)
            k(f"{M} {d}, {v(160+4*i,4)}, {v(HB+8*i+4*T,4)}, {'0' if i == 0 else d}")
    k(f"""
s_setprio 0
s_mov_b32 s3, {OOB}
s_cmp_eq_u32 s16, 0
s_cbranch_scc1 {k.lab('cepi')}
s_nop 3
ds_write_b128 v11, {v(ACC,4)}
ds_write_b128 v11, {v(ACC+4,4)} offset:1024
""")
    k("s_waitcnt lgkmcnt(0)\ns_barrier")
    k.label("dstart")
    if dopt.get("wgf", 1):
        k(f"""
s_lshl_b32 s3, s38, 2
s_add_u32 s3, s3, s39
s_mul_i32 s3, s3, {FLS}
s_add_u32 s3, s3, {FCOFF}
s_cmp_lg_u32 s16, 2
s_cselect_b32 s3, {OOB}, s3
""")
    k.mark(7)
    if upto >= 4:
        assert NF2 >= 12
        def late_feed():
            if NF2 < 36:
                k(f"s_sub_u32 s34, s16, 5\ns_cmp_ge_u32 s34, 3\ns_cbranch_scc1 {k.lab('lf')}")
                feed(NF2, 36)
                k.label("lf")
        tails, dside, last_unit = phase_d(k, GV, FV, WV, ld, late_feed, **dopt)
    if upto >= 5:
        i0 = len(k.L)
        phase_e(k, GV, ld, tails, last_unit, **eopt)
        if dbg in ("e0", "e1"):
            i1 = k.L.index(k.lab("econs") + ":")
            n = 0; out = []
            for l in k.L[i0:i1]:
                if l.strip() == "s_barrier" and n < 10:
                    m_ = f"  s_memtime s[{k.mb+2*n}:{k.mb+2*n+1}]"; n += 1
                    out += [m_, l] if dbg == "e0" else [l, m_]
                else:
                    out.append(l)
            k.L[i0:i1] = out
    k(f"s_branch {k.lab('fin')}")
    if upto >= 4:
        k(dside)
    k.label("stub")
    k(f"""
s_cmp_eq_u32 s21, 1
s_cbranch_scc1 {k.lab('stubx')}
s_cmp_eq_u32 s21, 2
s_cbranch_scc1 {k.lab('stub0')}
s_cmp_eq_u32 s21, {ST[1]}
s_cbranch_scc1 {k.lab('stub2')}
s_cmp_eq_u32 s21, {ST[2]}
s_cbranch_scc1 {k.lab('stub3')}
s_cmp_eq_u32 s21, {ST[3]}
s_cbranch_scc1 {k.lab('stub4')}
s_mov_b32 s21, {ST[1]}
""")
    prep_loads_tab(k, (0, 1), DAT, PVS, 4, 40)
    k(f"s_branch {ret(ST[0])}")
    k.label("stub2")
    k(f"s_mov_b32 s21, {ST[2]}")
    prep_loads_tab(k, (2, 3), DAT, PVS, 4, 40)
    k(f"s_branch {ret(ST[1])}")
    k.label("stub3")
    k(f"s_mov_b32 s21, {ST[3]}")
    prep_process(k, DAT, FR, PVW, PVR, ns=(0, 1), dbl=False)
    k(f"s_branch {ret(ST[2])}")
    k.label("stub4")
    k(f"s_mov_b32 s21, 98")
    prep_process(k, DAT, FR, PVW, PVR, ns=(2, 3), dbl=False)
    k(f"s_branch {ret(ST[3])}")
    k.label("stubx")
    k(f"s_barrier\ns_mov_b32 s21, 2\ns_branch {ret(1)}")
    k.label("stub0")
    k(f"s_barrier\ns_cmp_ge_u32 s61, 972\ns_cselect_b32 s21, 98, {ST[0]}\ns_branch {k.lab('loop')}")
    k.label("fallback")
    k(f"""
s_waitcnt vmcnt(0)
s_barrier
s_mov_b32 s48, 64
s_mul_i32 s22, s17, {KVHEAD}
s_lshl_b32 s23, s16, 10
""")
    clears()
    k.label("fb1")
    k(piece(0))
    k(f"""
s_add_u32 s23, s23, 8192
s_cmp_lt_u32 s23, {KVHEAD}
s_cbranch_scc1 {k.lab('fb1')}
s_waitcnt vmcnt(0)
s_barrier
s_branch {k.lab('restart')}
""")
    for i, l in enumerate(k.L):
        if l.strip().startswith("buffer_load") and "s[12:15]" in l and " sc1" not in l and wsc:
            k.L[i] = l[:-4] + " sc1 lds" if l.endswith(" lds") else l.rstrip() + " sc1"
    k.label("fin")
    k.stamp_end(12)
    k.label("end")
    k("s_endpgm")
    return k


def phase_d(k, GV, FV, WV, ld, late_feed, PF=6, LA=4, WG=2, exp='', prio=0, DS=5, tch=False, pre=12, psl=None, wgf=2, NPF=5, PS0=6, PST=2, efill=False, nodup=True):
    ACC = [16, 32, 48]
    WF, PR, HV = 64, 88, 112
    SV, A0, A1, AB, FILL = 3, 5, 6, 2, 8
    hreg = lambda ks, T: v(HV + 4*(2*ks+T), 4)
    k(f"""
s_lshl_b32 s11, s8, 3
s_add_u32 s11, s11, s16
s_lshl_b32 s21, s11, 9
s_add_u32 s20, s21, {HCOFF}      ; h soffset
s_mul_i32 s22, s43, {6*4*CH}
s_add_u32 s20, s20, s22
s_mov_b32 s34, {4*CH}
s_mov_b32 s35, {4*CH}
s_cmp_eq_u32 s43, 2
s_cselect_b32 s34, {(-17*4*CH) & 0xffffffff}, s34
s_cmp_eq_u32 s43, 1
s_cselect_b32 s35, {(-17*4*CH) & 0xffffffff}, s35
s_mul_i32 s43, s43, {CB}
s_lshr_b32 s22, s9, 3
s_mul_i32 s22, s22, {72*65536}
s_add_u32 s21, s21, s22
s_and_b32 s22, s9, 7
s_mul_i32 s22, s22, {3*65536}
s_add_u32 s21, s21, s22
s_add_u32 s21, s21, {HIDOFF}     ; hid store soffset
s_and_b32 s17, s2, 1
s_lshl_b32 s17, s17, 3
s_bfe_u32 s18, s2, 0x30003
s_add_u32 s17, s17, s18
s_lshr_b32 s18, s2, 6
s_bfe_u32 s19, s2, 0x20001
""")
    for n in range(5):
        k(f"s_add_u32 s28, s16, {8*n}")
        if n == 4:
            k("s_add_u32 s29, s16, 24\ns_cmp_ge_u32 s28, 36\ns_cselect_b32 s28, s29, s28")
        k(f"""
s_lshl_b32 s{44+n}, s28, 10
s_add_u32 s{54+n}, s{44+n}, s43
s_cmp_ge_u32 s{54+n}, {UB}
s_cselect_b32 s29, {UB}, 0
s_sub_u32 s{54+n}, s{54+n}, s29
s_mul_i32 s29, s28, 7282
s_lshr_b32 s29, s29, 16
s_mul_i32 s30, s29, 9
s_sub_u32 s28, s28, s30
s_add_u32 s30, s28, s19
s_and_b32 s30, s30, 3
s_and_b32 s31, s28, 4
s_or_b32 s30, s30, s31
s_cmp_eq_u32 s28, 8
s_cselect_b32 s30, 8, s30
s_lshl_b32 s30, s30, 10
s_mul_i32 s29, s29, 36864
s_add_u32 s{38+n}, s29, s30
""")
    k(f"""
s_add_u32 s51, s10, {3*UB}
s_mov_b32 s50, {UB}
s_mov_b32 s24, {3*UB}
s_mul_i32 s53, s19, {36*36864}
s_mul_i32 s29, s18, 9216
s_add_u32 s53, s53, s29
s_add_u32 s53, s53, {WDOFF}
v_lshrrev_b32 v{SV}, 5, v0
v_lshlrev_b32 v{SV}, 15, v{SV}
v_and_b32 v{A0}, 31, v0
v_lshl_add_u32 v{SV}, v{A0}, 4, v{SV}
v_mov_b32 v{A0}, v1
v_add_u32 v{A1}, {UB}, v1
s_mov_b32 s26, {UB}
{["v_min_u32 v%d, 19, v0", "v_and_b32 v%d, 31, v0", "v_and_b32 v%d, 3, v0"][wgf] % FV}
v_mul_u32_u24 v{FV}, {FLS}, v{FV}
{[f"s_mul_i32 s61, s11, {32*FLS}", f"s_mul_i32 s61, s8, {32*FLS}", f"s_mul_i32 s61, s11, {4*FLS}"][wgf]}
s_add_u32 s61, s61, {FCOFF}
s_lshl_b32 s28, s17, 2
s_and_b32 s29, s16, 3
s_add_u32 s28, s28, s29
s_mul_i32 s52, s28, 36
s_mul_i32 s29, s18, 9
s_add_u32 s52, s52, s29
s_mul_i32 s52, s52, 3072
s_add_u32 s62, s52, {EXOFF}
s_and_b32 s29, s16, 4
s_add_u32 s29, s29, s19
s_mul_i32 s29, s29, 3072
s_add_u32 s52, s62, s29
s_add_u32 s63, s62, {8*3072}
s_cmp_eq_u32 s16, s19
s_cselect_b32 s63, s63, {OOB}
s_mov_b32 s27, 0
s_lshl_b32 s30, s11, 5
s_add_u32 s30, s30, s9
s_mul_i32 s30, s30, {FLS}
s_add_u32 s30, s30, {FDOFF}
s_lshl_b32 s31, s2, 3
s_add_u32 s31, s31, s16
s_mul_i32 s31, s31, {FLS}
s_add_u32 s31, s31, {FXOFF}
s_lshl_b32 s32, s28, 2
s_add_u32 s32, s32, s19
s_mul_i32 s32, s32, {8*FLS}
s_add_u32 s32, s32, {FDOFF}
v_and_b32 v2, 7, v0
v_mul_u32_u24 v2, {FLS}, v2
""")
    if wgf:
        k(f"""
s_waitcnt vmcnt(0)
s_barrier
{flag_txt([3], 12)}
""")
    else:
        k(f"""
s_waitcnt vmcnt(0)
{flag_txt([3], 12)}
s_barrier
""")
    late_feed()
    def rd(n, lin=False):
        base = A0 if n < 36 else A1
        j = n % 36
        if lin:
            return [f"ds_read_b128 {v(WF+4*(n%PF),4)}, v{base} offset:{j*1024}", ""]
        ks, u, m = j // 6, (j % 6) // 2, j % 2
        return [f"ds_read_b128 {v(WF+4*(n%PF),4)}, v{base} offset:{u*CB + (2*ks+m)*1024}", ""]
    for n in range(PF - 1):
        for x in rd(n): k(x)
    for i in range(4):
        k(f"v_mov_b32 v{FILL+i}, -1")
    if prio:
        k(f"s_cmp_lt_u32 s16, 4\ns_cbranch_scc1 {k.lab('dp')}\ns_setprio 1")
        k.label("dp")
    if wgf == 1:
        k(f"s_cmp_lg_u32 s16, 1\ns_cbranch_scc1 {k.lab('pcx')}")
    if pre: k(f"s_sleep {pre}")
    poll(k, "pc", 61, FV, 12, 60, sleep=psl)
    if wgf == 1:
        k("s_barrier")
    k.mark(8)
    def h_ops(ks):
        return [f"buffer_load_dwordx4 {hreg(ks,T)}, v{GV}, s[12:15], s20 offen offset:{T*256} {ld}" for T in range(2)] + \
               [f"s_add_u32 s20, s20, { {5: 's34', 11: 's35'}.get(ks, 4*CH) }"]
    def tail(u):
        R = PR + 8*u
        return [f"v_cvt_pk_bf16_f32 v{R}, v{R}, v{R+1}", f"v_cvt_pk_bf16_f32 v{R+1}, v{R+2}, v{R+3}",
                f"v_cvt_pk_bf16_f32 v{R+2}, v{R+4}, v{R+5}", f"v_cvt_pk_bf16_f32 v{R+3}, v{R+6}, v{R+7}\ns_nop 0",
                f"v_permlane16_swap_b32 v{R}, v{R+2}", f"v_permlane16_swap_b32 v{R+1}, v{R+3}",
                f"buffer_store_dwordx4 {v(R,4)}, v{SV}, s[12:15], s21 offen sc1", f"s_add_u32 s21, s21, {65536 if u < 2 else 22*65536}"]
    uid = [0]
    def dma():
        ops = [f"s_add_u32 m0, s24, s{44+n}\ns_add_u32 s22, s51, s{54+n}\nbuffer_load_dwordx4 v1, s[12:15], s22 offen lds" for n in range(5)]
        if nodup:
            uid[0] += 1
            L_ = k.lab(f"nd{uid[0]}")
            ops[4] = f"s_cmp_ge_u32 s16, 4\ns_cbranch_scc1 {L_}\n" + ops[4].replace("buffer_", "BUF_") + f"\n{L_}:"
            ops = [ops[4]] + ops[:4]
        ops.append(f"s_add_u32 s51, s51, s50")
        ops.append(f"s_add_u32 s24, s24, {UB}\ns_cmp_ge_u32 s24, {4*UB}\ns_cselect_b32 s24, 0, s24")
        return ops
    nxt = f"s_add_u32 s26, s26, {UB}\ns_cmp_ge_u32 s26, {4*UB}\ns_cselect_b32 s26, 0, s26"
    fill = [f"buffer_store_dwordx4 {v(FILL,4)}, v1, s[12:15], s52 offen sc1" if 'nofill' not in exp else "s_nop 0", "s_add_u32 s52, s52, 1024"]
    if efill: fill = []
    NV = (6 if efill else 7) - (1 if nodup else 0)
    tot = [2 * LA]; hm = {ks: 2 * ks + 2 for ks in range(LA)}
    def stage(c, f1, f2, f3, pre=0):
        pend = []
        nvm = 0
        for j in range(36):
            if c is None:
                ks, u, m = j // 2, 0, j % 2
            else:
                ks, u, m = 6 * c + j // 6, (j % 6) // 2, j % 2
            hw = c is not None and j % 6 == 0
            if hw and ks + LA < 18:
                pend += h_ops(ks + LA)
            if j % WG == 0:
                w = f"lgkmcnt({PF-1-WG})"
                vm = []
                if hw: vm.append(tot[0] - hm[ks])
                if j == 30 and not ('novm' in exp and c is None): vm.append(nvm)
                if vm: w = f"vmcnt({min(vm)}) " + w
                k("s_waitcnt " + w)
            if j == 30:
                k("s_barrier")
            r = rd(j + PF - 1, lin=(c is None or (c == 2 and j + PF - 1 >= 36)))
            for T in range(2):
                d = v(ACC[u] + (m*2+T)*4, 4)
                k(f"{M} {d}, {v(WF+4*(j%PF),4)}, {hreg(ks,T)}, {'0' if ks == 0 else d}")
                k(r[T])
                if T == 0 and pre and ks >= PS0 and (ks - PS0) % PST == 0 and (ks - PS0) // PST < pre:
                    k(h_ops((ks - PS0) // PST)[m] + ("\n" + h_ops(0)[2] if m else "")); nvm += 1
                if T == 1:
                    x = None
                    if f2 and j % DS == DS - 1: x = f2.pop(0)
                    elif pend: x = pend.pop(0)
                    elif f1: x = f1.pop(0)
                    elif not f2 and f3: x = f3.pop(0)
                    if x:
                        k(x.replace("BUF_", "buffer_")); nvm += x.count("buffer_"); tot[0] += x.count("buffer_")
                        if x.startswith("buffer_load") and "offset:256" in x: hm[len(hm)] = tot[0]
        assert not f1 and not f2 and not f3 and not pend, (f1, f2, f3, pend)
        k(f"v_mov_b32 v{A0}, v{A1}\nv_add_u32 v{A1}, s26, v1")
    def prod(u, slot):
        for h in range(4):
            k(f"v_pk_mul_f32 {v(PR+8*slot+2*h,2)}, {v(ACC[u]+2*h,2)}, {v(ACC[u]+8+2*h,2)}")
    for ks in range(LA):
        for x in h_ops(ks): k(x)
    stage(0, [], [], [nxt])
    for c in (1, 2):
        d_ = dma()
        stage(c, [], d_[:5], d_[5:] + [nxt])
    k("s_mov_b32 s27, 4\ns_lshr_b32 s49, s16, 2\ns_add_u32 s49, s49, 8")
    prod(0, 0); prod(1, 1); k("s_nop 1"); prod(2, 2)
    k.mark(9)
    tl = tail(0) + tail(1) + tail(2)
    d_ = dma()
    stage(None, [tl[2*i] + "\n" + tl[2*i+1] for i in range(12)] + fill, d_[:5], d_[5:] + [nxt])
    k("s_nop 5")
    prod(0, 0)
    k(".p2align 6")
    k.label("dloop")
    d_ = dma()
    stage(None, [f"s_branch {k.lab('dside')}\n{k.lab('dback')}:"] + tail(0) + fill, d_[:5], d_[5:] + [nxt])
    k(f"s_add_u32 s27, s27, 1\ns_cmp_lt_u32 s27, s49\ns_nop 3")
    prod(0, 0)
    k(f"s_cbranch_scc1 {k.lab('dloop')}")
    def last_unit():
        k(f"""
s_lshl_b32 s20, s28, 9
s_mul_i32 s29, s19, {36*4*CH}
s_add_u32 s20, s20, s29
s_add_u32 s20, s20, {HIDOFF}
s_waitcnt vmcnt({NV})
{flag_check(32)}
s_nop 0
s_cbranch_vccz {k.lab('pdx')}
""")
        poll(k, "pd", 32, 2, 32, 60)
        d_ = dma()
        tl = tail(0)
        i0 = len(k.L)
        stage(None, [flag_txt([30], 12)] + [tl[2*i] + "\n" + tl[2*i+1] for i in range(4)] + fill[:1] + d_[:5], [], [], pre=NPF)
        vm = [l for l in k.L[i0:] if "buffer_" in l]
        crit = max(i for i, l in enumerate(vm) if "store" in l or " lds" in l)
        k("s_nop 5")
        prod(0, 0)
        k.mark(10)
        return len(vm) - 1 - crit
    side = f"""
{k.lab('dside')}:
s_cmp_eq_u32 s27, 6
s_cbranch_scc1 {k.lab('ds6')}
s_cmp_eq_u32 s27, 7
s_cbranch_scc1 {k.lab('ds7')}
s_cmp_eq_u32 s27, 4
s_cbranch_scc1 {k.lab('dback')}
{flag_txt([30], 12)}
s_add_u32 s30, s30, {FDL}
s_cmp_lg_u32 s27, 8
s_cbranch_scc1 {k.lab('dback')}
s_waitcnt vmcnt({NV+1})
{flag_check(32)}
s_nop 0
s_cbranch_vccz {k.lab('pgx')}
@POLL@
@EPI@
s_branch {k.lab('dback')}
{k.lab('ds6')}:
s_mov_b32 s52, s63
s_branch {k.lab('dback')}
{k.lab('ds7')}:
s_add_u32 s21, s21, {21*65536}
s_mov_b32 s51, s53
s_mov_b32 s50, {4*36864}
s_mov_b64 s[54:55], s[38:39]
s_mov_b64 s[56:57], s[40:41]
s_mov_b32 s58, s42
buffer_load_dwordx2 v[32:33], v2, s[12:15], s32 offen sc1
s_branch {k.lab('dback')}
"""
    k2 = Kern(k.name, 1, 1, 0, 1)
    poll(k2, "pg", 32, 2, 32, 60)
    side = side.replace("@POLL@", "\n".join(k2.L))
    HC, SS, MU = 36, 48, 58
    epi = f"""
v_and_b32 v60, 31, v0
v_lshrrev_b32 v61, 5, v0
v_mul_u32_u24 v61, {10*8192}, v61
v_lshlrev_b32 v60, 2, v60
v_add_u32 v61, v61, v60
s_mul_i32 s22, s18, 9
s_add_u32 s23, s22, s19
s_lshl_b32 s23, s23, 16
s_lshl_b32 s29, s28, 9
s_add_u32 s29, s29, {HCOFF}
s_add_u32 s23, s23, s29
buffer_load_dwordx4 {v(HC,4)}, v3, s[12:15], s23 offen {ld}
s_add_u32 s23, s23, {4*65536}
buffer_load_dwordx4 {v(HC+4,4)}, v3, s[12:15], s23 offen {ld}
s_add_u32 s22, s22, 8
s_lshl_b32 s23, s22, 16
s_add_u32 s23, s23, s29
buffer_load_dwordx4 {v(HC+8,4)}, v3, s[12:15], s23 offen {ld}
s_lshl_b32 s23, s28, 7
s_add_u32 s29, s23, {MUHOFF}
s_add_u32 s23, s23, {SSQOFF}
buffer_load_dword v{MU}, v60, s[12:15], s29 offen {ld}
""" + "\n".join(f"buffer_load_dword v{SS+j}, v61, s[12:15], s23 offen {ld}\ns_add_u32 s23, s23, 8192" for j in range(10))
    side = side.replace("@EPI@", epi)
    return tail(0), side, last_unit


def phase_e(k, GV, ld, tails, last_unit, PF=9, WG=3, LA=5, tch=False, P3=6, exp='', hl=None, prio=0, sleep=9, ost='sc1', pace='', efill=False):
    ld = ld if hl is None else hl
    SB = UB
    ACC, WF, HV, XV = 16, 208, 112, 11
    FLG = flag_txt([30, 31], 12)
    XL = 3 * SB
    k(f"s_cmp_lt_u32 s16, 4\ns_cbranch_scc1 {k.lab('econs')}")
    k.mark(10)
    assert 5 <= LA <= 8
    def head():
        k("s_and_b32 s33, s16, 3")
        for t in range(4):
            k(f"s_add_u32 s{40+t}, s19, {t}\ns_and_b32 s{40+t}, s{40+t}, 3\ns_lshl_b32 s{44+t}, s{40+t}, 10")
        k(f"s_mul_i32 s29, s33, 6144\ns_add_u32 s29, s29, {XL}\nv_add_u32 v{XV}, s29, v1")
    PR = 88
    TL = 4 * SB
    packs = [x for x in tails if not x.startswith(("buffer", "s_add"))]
    def wissue():
        for n in range(9):
            if pace and n: k(pace)
            if n < 4:
                k(f"s_add_u32 m0, s24, {n*1024}\ns_add_u32 s{48+n}, s23, s{44+n}\nbuffer_load_dwordx4 v1, s[12:15], s{48+n} offen lds")
            elif n < 8:
                k(f"s_add_u32 m0, s24, {n*1024}\ns_add_u32 s25, s{48+n-4}, 4096\nbuffer_load_dwordx4 v1, s[12:15], s25 offen lds")
            else:
                k(f"s_add_u32 m0, s24, {n*1024}\ns_add_u32 s25, s23, 8192\nbuffer_load_dwordx4 v1, s[12:15], s25 offen lds")
        k(f"s_add_u32 s23, s23, {4*36864 if 'hotw' not in exp else 0}\ns_add_u32 s24, s24, {SB}\ns_cmp_ge_u32 s24, {4*SB}\ns_cselect_b32 s24, s22, s24")
    def check(name, soff, voff, vt):
        k(flag_check(vt))
        k(f"s_nop 0\ns_cbranch_vccz {k.lab(name + 'x')}")
        poll(k, name, soff, voff, vt, 60)
    k(f"s_add_u32 s32, s32, {FDL}\nbuffer_load_dwordx2 v[16:17], v2, s[12:15], s32 offen sc1")
    head()
    k(f"""
s_mul_i32 s23, s33, 36864
s_add_u32 s23, s23, s53
s_add_u32 s23, s23, {8*36864 if 'now' not in exp else OOB}
s_mul_i32 s22, s33, 9216
s_add_u32 s24, s22, {3*SB}
""")
    for x in packs: k(x)
    k(f"s_mul_i32 s29, s33, 3072\ns_add_u32 s29, s29, {TL}\nv_add_u32 v5, s29, v1\ns_sub_u32 s29, s21, 2048\ns_barrier")
    for u in range(1):
        k(f"ds_read_b128 {v(PR+8*u+4,4)}, v5 offset:{u*1024}")
    wissue()
    for u in range(1):
        k(f"buffer_store_dwordx4 {v(PR+8*u,4)}, v3, s[12:15], s21 offen sc1\ns_add_u32 s21, s21, 65536")
    k("s_waitcnt lgkmcnt(0)")
    for u in range(1):
        k(f"buffer_store_dwordx4 {v(PR+8*u+4,4)}, v3, s[12:15], s29 offen sc1\ns_add_u32 s29, s29, 65536")
    k.srd(4, 36, S * D * 2)
    k("s_waitcnt vmcnt(11)\ns_barrier")
    check("pe2", 32, 2, 16)
    wissue()
    k(f"s_sub_u32 s26, s30, {4*32*FLS}\ns_sub_u32 s27, s31, {4*FLS}\ns_waitcnt vmcnt(11)\ns_barrier\ns_waitcnt vmcnt(9)")
    k(flag_txt([30, 26, 27] if efill else [30, 26, 31, 27], 12))
    wissue()
    k(f"s_waitcnt vmcnt({12 if efill else 13})\ns_barrier")
    wissue()
    k(f"s_waitcnt vmcnt(9)\ns_barrier\ns_add_u32 s32, s32, {FDL}\nbuffer_load_dwordx2 v[16:17], v2, s[12:15], s32 offen sc1")
    wissue()
    k("s_waitcnt vmcnt(9)")
    check("pe3", 32, 2, 16)
    k("s_barrier")
    wissue()
    k("s_waitcnt vmcnt(9)\ns_barrier")
    wissue()
    HC, SS, MU, OWN, RX, T0, BS = 36, 48, 58, 112, 64, 100, 136
    k(f"""
v_bfe_u32 v10, v0, 1, 2
v_and_b32 v9, 1, v0
v_lshlrev_b32 v9, 2, v9
{'v_lshlrev_b32 v10, 4, v10' if efill else 'v_lshl_add_u32 v10, v10, 4, v9'}
v_mul_u32_u24 v10, {FLS}, v10
s_andn2_b32 s59, s2, 6
s_lshl_b32 s59, s59, 3
s_add_u32 s59, s59, s33
s_mul_i32 s59, s59, {FLS}
s_add_u32 s59, s59, {FXOFF}
buffer_load_dwordx2 v[12:13], v10, s[12:15], s59 offen sc1
v_and_b32 v6, 31, v0
v_lshrrev_b32 v7, 5, v0
s_mul_i32 s54, s18, 9
s_add_u32 s55, s54, s19
s_add_u32 s54, s54, 8
s_waitcnt vmcnt(10)
s_barrier
s_waitcnt vmcnt(0)
""")
    check("px", 59, 10, 12)
    k("s_barrier")
    k(f"""
s_mul_i32 s58, s19, 3072
s_add_u32 s58, s58, s62
s_add_u32 s59, s58, {4*3072}
s_add_u32 s60, s62, {8*3072}
s_cmp_eq_u32 s19, s33
s_cselect_b32 s60, s60, {OOB}
s_mov_b32 s61, 0
v_mul_u32_u24 v8, 1152, v6
v_lshl_add_u32 v8, v7, 4, v8
s_mul_i32 s56, s28, {32*1152}
s_lshl_b32 s57, s55, 5
s_add_u32 s57, s57, s56
s_lshl_b32 s54, s54, 5
s_add_u32 s56, s56, s54
s_mov_b32 s63, {f2u(1.0/D):#x}
""")
    for j in range(1, 10):
        k(f"v_add_f32 v{SS}, v{SS}, v{SS+j}")
    k(f"""
v_mov_b32 v{SS+1}, v{SS}
v_mov_b32 v{SS+2}, {f2u(1e-5):#x}
s_nop 0
v_permlane32_swap_b32 v{SS}, v{SS+1}
v_add_f32 v{SS}, v{SS}, v{SS+1}
v_fma_f32 v{SS}, v{SS}, s63, v{SS+2}
v_rcp_f32 v{SS}, v{SS}
""")
    for i in range(3):
        for d in range(4):
            x = HC + 4*i + d
            k(f"v_lshlrev_b32 v{BS+8*i+2*d}, 16, v{x}\nv_and_b32 v{BS+8*i+2*d+1}, 0xffff0000, v{x}")
    for i in range(24):
        k(f"v_add_f32 v{BS+i}, v{BS+i}, v{MU}")
    k("s_barrier")
    k.mark(11)
    for i in range(6):
        k(f"ds_read_b128 {v(OWN+4*i,4)}, v{XV} offset:{i*1024}")
    k("s_waitcnt lgkmcnt(0)")
    for i in range(3):
        A = OWN + 8*i
        for r in range(4):
            k(f"v_permlane16_swap_b32 v{A+r}, v{A+4+r}")
    if sleep: k(f"s_sleep {sleep}")
    k.label("poll")
    for i in range(3):
        for q in range(3):
            k(f"buffer_load_dwordx4 {v(RX+12*i+4*q,4)}, v1, s[12:15], s{58+i} offen offset:{q*1024} sc1")
    k("s_waitcnt vmcnt(0)")
    k(f"v_max3_u32 v{T0}, v{RX}, v{RX+1}, v{RX+2}")
    k(f"v_max3_u32 v{T0+1}, v{RX+3}, v{RX+4}, v{RX+5}")
    for n, j in enumerate(range(6, 36, 2)):
        k(f"v_max3_u32 v{T0+(n&1)}, v{T0+(n&1)}, v{RX+j}, v{RX+j+1}")
    k(f"""
v_max_u32 v{T0}, v{T0}, v{T0+1}
v_cmp_eq_u32 vcc, -1, v{T0}
s_add_u32 s61, s61, 1
s_cmp_ge_u32 s61, {POLLMAX}
s_cbranch_scc1 {k.lab('got')}
s_cbranch_vccnz {k.lab('poll')}
""")
    k.label("got")
    k.mark(12)
    k("s_waitcnt lgkmcnt(0)")
    for i in range(3):
        if i == 2:
            k(f"s_cmp_lg_u32 s19, s33\ns_cbranch_scc1 {k.lab('fin')}")
        A = OWN + 8*i
        for q in range(3):
            for d in range(4):
                x = RX + 12*i + 4*q + d
                tt = T0 + 2*(d & 1)
                k(f"v_lshlrev_b32 v{tt}, 16, v{x}\nv_and_b32 v{tt+1}, 0xffff0000, v{x}\nv_pk_add_f32 {v(A+2*d,2)}, {v(A+2*d,2)}, {v(tt,2)}")
        for d in range(4):
            b = BS + 8*i + 2*d
            k(f"v_pk_fma_f32 {v(b,2)}, {v(A+2*d,2)}, {v(SS,2)}, {v(b,2)} op_sel_hi:[1,0,1]")
            k(f"v_cvt_pk_bf16_f32 v{HC+4*i+d}, v{b}, v{b+1}")
        so, off = [("s57", 0), ("s57", 128), ("s56", 0)][i]
        k(f"buffer_store_dwordx4 {v(HC+4*i,4)}, v8, s[4:7], {so} offen offset:{off} {ost}")
    k(f"s_branch {k.lab('fin')}")
    k.label("econs")
    hreg = lambda set_, kk, T: v(HV + 4 * (8*set_ + 2*kk + T), 4)
    def h_ops(p):
        return [f"buffer_load_dwordx4 {hreg(p//4,p%4,T)}, v{GV}, s[12:15], s20 offen offset:{T*256} {ld}" for T in range(2)] + \
               [f"s_add_u32 s20, s20, {4*CH if 'hoth' not in exp else 0}"]
    def rd(j):
        base, jj = ("v5", j) if j < 36 else ("v6", j - 36)
        return f"ds_read_b128 {v(WF+4*(j%PF),4)}, {base} offset:{jj*1024}"
    nyoung = last_unit()
    k(f"v_add_u32 v5, {SB}, v1\nv_add_u32 v6, {2*SB}, v1")
    for j in range(PF - 1):
        k(rd(j))
    for x in packs: k(x)
    k(f"s_mul_i32 s29, s16, 3072\ns_add_u32 s29, s29, {TL}\nv_add_u32 v7, s29, v1")
    for u in range(1):
        k(f"ds_write_b128 v7, {v(PR+8*u,4)} offset:{u*1024}")
    head()
    k(f"""
s_mov_b32 s26, {2*SB}
s_mov_b32 s27, 0
s_sub_u32 s52, s33, s19
s_and_b32 s52, s52, 3
s_lshl_b32 s52, s52, 10
s_add_u32 s52, s52, s62
s_add_u32 s52, s52, {8*3072-1024}
s_mov_b32 s53, 0xfffefffe
v_mov_b32 v14, 0
""")
    for i in range(36):
        if i == 24: k(f"s_waitcnt vmcnt({nyoung}) lgkmcnt(0)\ns_barrier")
        k(f"v_pk_mul_f32 {v(ACC+2*i,2)}, {v(14,2)}, {v(14,2)} op_sel_hi:[0,0]")
    k.mark(11)
    k(".p2align 6")
    k.label("eloop")
    for st3 in range(3):
        for kk in range(4):
            p = 4 * st3 + kk
            f = h_ops((p + LA) % 12)
            if p + LA == 12:
                f = [f"s_add_u32 s27, s27, 1\ns_cmp_ge_u32 s27, 3", f"s_cselect_b32 s20, {OOB}, s20"] + f
            if kk == 3:
                f = f + [f"s_add_u32 s26, s26, {SB}\ns_cmp_ge_u32 s26, {4*SB}", "s_cselect_b32 s26, 0, s26"]
            for t in range(9):
                j = 9 * kk + t
                if t % WG == 0:
                    w = f"lgkmcnt({PF-1-WG})"
                    if t == 0:
                        w = f"vmcnt({2*(LA-1)}) " + w
                    k("s_waitcnt " + w)
                if t == 0 and kk == 3:
                    k("s_barrier")
                for T in range(2):
                    d = v(ACC + (2*t+T)*4, 4)
                    k(f"{M} {d}, {v(WF+4*(j%PF),4)}, {hreg(st3,kk,T)}, {d}")
                    if T == 0:
                        k(rd(j + PF - 1))
                    elif f and t >= 1:
                        k(f.pop(0))
            assert not f, f
        k(f"v_mov_b32 v5, v6\nv_add_u32 v6, s26, v1")
        if st3 == 1:
            k(f"s_cmp_eq_u32 s27, 3\ns_cbranch_scc1 {k.lab('elast')}")
    k(f"s_branch {k.lab('eloop')}")
    k.label("elast")
    PKR = HV
    def pack(t, R):
        A0, A1 = ACC + 8*t, ACC + 8*t + 4
        return [f"v_cvt_pk_bf16_f32 v{R}, v{A0}, v{A0+1}\nv_cvt_pk_bf16_f32 v{R+2}, v{A1}, v{A1+1}",
                f"v_cvt_pk_bf16_f32 v{R+1}, v{A0+2}, v{A0+3}\nv_cvt_pk_bf16_f32 v{R+3}, v{A1+2}, v{A1+3}",
                f"v_min_u32 v{R}, s53, v{R}\nv_min_u32 v{R+2}, s53, v{R+2}",
                f"v_min_u32 v{R+1}, s53, v{R+1}\nv_min_u32 v{R+3}, s53, v{R+3}",
                f"v_permlane16_swap_b32 v{R}, v{R+2}",
                f"v_permlane16_swap_b32 v{R+1}, v{R+3}"]
    order = [(0, t) for t in range(8)]
    for t in (1, 2, 3, 5, 6, 7, 8, 0, 4):
        order += [(kk, t) for kk in range(4) if (kk, t) not in order]
    k(f"s_cmp_eq_u32 s19, s33\ns_cselect_b32 s52, {OOB}, s52")
    fq = []; delay = []
    ns = 0
    for n, (kk, t) in enumerate(order):
        left = len(order) - 1 - n
        w = f"lgkmcnt({min(PF - 2, left)})"
        if n == 0: w = f"vmcnt({2*(LA-1)}) " + w
        if n == 8: w = f"vmcnt(0) " + w
        k("s_waitcnt " + w)
        for T in range(2):
            d = v(ACC + (2*t+T)*4, 4)
            k(f"{M} {d}, {v(WF+4*(n%PF),4)}, {hreg(2,kk,T)}, {d}")
            if T == 0 and n + PF - 1 < len(order):
                k2, t2 = order[n + PF - 1]
                k(f"ds_read_b128 {v(WF+4*((n+PF-1)%PF),4)}, v5 offset:{(9*k2+t2)*1024}")
            if fq: k(fq.pop(0))
        fq += delay; delay = []
        if kk == 3 and t not in (0, 4):
            R = PKR + 4*ns; ns += 1
            if t < 8:
                ad = f"s_mul_i32 s29, s{40 + (t & 3)}, 3072\ns_add_u32 s29, s29, s62" + (f"\ns_add_u32 s29, s29, {4*3072}" if t >= 4 else "\ns_nop 0")
                st_ = f"buffer_store_dwordx4 {v(R,4)}, v1, s[12:15], s29 offen offset:{((t & 3) - 1)*1024} sc1"
            else:
                ad = "s_nop 2"; st_ = f"buffer_store_dwordx4 {v(R,4)}, v1, s[12:15], s52 offen sc1"
            pk = pack(t, R)
            delay = [ad + "\n" + pk[0]] + pk[1:5] + [pk[5] + "\n" + st_]
    for x in fq: k(x)
    k.mark(12)
    k("s_nop 4")
    for i, t in ((2, 8), (0, 0), (1, 4)):
        for T in range(2):
            k(f"ds_write_b128 v{XV}, {v(ACC+8*t+4*T,4)} offset:{(2*i+T)*1024}")
    k("s_waitcnt lgkmcnt(0)\ns_barrier")
```

```python
from common import *
from prep import *
from pa import phase_a
KNAME = 'sequential_preLN__softmax_full_mha__glu_gated_bilinear__prompt_kernel'

SCR = KVHEAD
UB = 36864
CB = 12288
HALF = 32 * KVBLK
OST = 163840 - UB
MRG = OST - 25600
MUL = OST - 1024
O2OFF = OOFF + 64 * CH
M16 = "v_mfma_f32_32x32x16_bf16"
M8 = "v_mfma_f32_32x32x8_bf16"
M = "v_mfma_f32_16x16x32_bf16"


def gen_km(diag=False, U=4, upto=9, ld="sc1", dbg="", NO=10, ST=(4, 5, 8, 9), NPRE=8, NF1=12, NF2=36, SL=2, one=True, CR=6, dopt={}, eopt={}, aopt={}, full=0xffff, wsc=True, pl='sc1', ps='sc1', warm=False, b0=False, otch=1, FPC=0, HP=1, efill=True, rot=False, u8=True, zv=False, fc=0, NX=12, NF3=36, qpre=0, qsl=None, bpre=0, bsl=None):
    if efill: dopt = dict(dopt, efill=True); eopt = dict(eopt, efill=True)
    assert ST[3] < NO and ST[0] > 2
    k = Kern(KNAME, 256, 512, 163840, vgpr=256, idx=1, diag=diag, nm=14, mb=64)
    SLEEP[0] = SL
    FULL[0] = full
    PL[0] = pl
    PS[0] = ps
    mk = k.mark
    if dbg == "a":
        late = lambda i: mk(i + 4) if i < 3 else None
    elif dbg == "c":
        late = lambda i: mk(i) if 2 <= i <= 8 else None
    else:
        late = mk
    k.stamp_start()
    AK1, AK2, AV = 2, 3, 4
    BK1 = 8
    SS = [16, 32]
    OO = [48, 96]
    P, K1, K2, V0, V1 = 64, 72, 76, 80, 84
    Q1 = [88, 112]
    Q2 = [92, 116]
    T0 = 118
    DAT, FR, PVS, PVW, PVR = 160, 224, 240, 241, 242
    M2B = 'v_mfma_f32_32x32x4_2b_bf16'
    SP = [16, 128]
    WV = 14
    k(f"""
s_cmp_ge_u32 s2, 256
s_cbranch_scc1 {k.lab('end')}
s_load_dwordx4 s[28:31], s[0:1], {ARG_X}
s_load_dwordx2 s[32:33], s[0:1], {ARG_WO}
s_load_dwordx2 s[34:35], s[0:1], {ARG_WS}
s_load_dwordx2 s[38:39], s[0:1], {ARG_DBG}
s_load_dwordx8 s[40:47], s[0:1], {ARG_WG}
v_lshrrev_b32 v1, 6, v0
v_and_b32 v0, 63, v0
v_readfirstlane_b32 s16, v1
v_lshlrev_b32 v1, 4, v0
s_mov_b32 s95, s16
""")
    if dbg != "a":
        k.mark = lambda i: None
    if dbg in ("a0", "a1"):
        aopt = dict(aopt, tr=dbg); late = lambda i: None
    phase_a(k, **aopt)
    k.mark = late
    k(f"""
s_and_b32 s17, s2, 7
s_lshl_b32 s17, s17, 2
s_bfe_u32 s18, s2, 0x20003
s_add_u32 s17, s17, s18          ; head
s_lshr_b32 s18, s2, 5
s_lshl_b32 s18, s18, 3
s_and_b32 s19, s16, 3
s_lshl_b32 s19, s19, 1
s_add_u32 s18, s18, s19
s_lshr_b32 s33, s16, 2           ; kh
s_mul_i32 s63, s17, {QHEAD}
s_mul_i32 s22, s18, {QBLK}
s_add_u32 s63, s63, s22
s_add_u32 s63, s63, {QOFF}
s_mul_i32 s22, s17, {KVHEAD}
s_lshl_b32 s23, s16, 10
v_and_b32 v{T0}, 31, v0
v_lshrrev_b32 v{T0+8}, 5, v0
v_mul_u32_u24 v{T0+8}, {QBLK}, v{T0+8}
v_lshl_add_u32 v{T0+8}, v{T0}, 2, v{T0+8}
""")
    def piece(off, base="s23"):
        return f"s_add_u32 m0, {base}, {off}\ns_add_u32 s24, s22, m0\nbuffer_load_dwordx4 v1, s[12:15], s24 offen {ld} lds"
    assert (2 * U + 2) * KVBLK <= 24576
    k(f"""
v_and_b32 v{T0+1}, 0x13, v{T0}
v_and_b32 v{T0+2}, 4, v{T0}
v_lshl_or_b32 v{T0+1}, v{T0+2}, 1, v{T0+1}
v_bfe_u32 v{T0+2}, v{T0}, 3, 1
v_lshl_or_b32 v{T0+1}, v{T0+2}, 2, v{T0+1}
v_lshrrev_b32 v{T0+2}, 5, v0
v_lshlrev_b32 v{T0+3}, 9, v{T0+2}
v_lshl_add_u32 v{BK1}, v{T0+1}, 4, v{T0+3}
v_lshlrev_b32 v{BK1+1}, 2, v{T0+1}
v_add_u32 v{BK1+1}, {KV_K2}, v{BK1+1}
v_bfe_u32 v{T0+3}, v0, 2, 2
v_lshl_add_u32 v{T0+3}, v{T0+2}, 3, v{T0+3}
v_and_b32 v{T0+4}, 1, v0
v_mul_u32_u24 v{T0+4}, {KV_V1-KV_V0}, v{T0+4}
v_bfe_u32 v{T0+5}, v0, 1, 1
v_lshl_add_u32 v{T0+4}, v{T0+5}, 3, v{T0+4}
v_add_u32 v{T0+4}, {KV_V0}, v{T0+4}
v_and_b32 v{T0+5}, 16, v0
v_cmp_eq_u32 vcc, 16, v{T0+5}
""")
    for m in range(2):
        for i in range(2):
            k(f"""
v_add_u32 v{T0+5}, {16*m+4*i}, v{T0+3}
v_lshl_add_u32 v{T0+6}, v{T0+5}, 4, v{T0+4}
v_lshlrev_b32 v{T0+5}, 3, v{T0+5}
v_add_u32 v{T0+5}, {KV_V2}, v{T0+5}
{f"v_and_b32 v{T0+7}, 2, v0" + chr(10) + f"v_lshl_add_u32 v{T0+5}, v{T0+7}, 19, v{T0+5}" if zv else ""}
v_cndmask_b32 v{BK1+2+2*m+i}, v{T0+6}, v{T0+5}, vcc
""")
    k(f"""
v_mov_b32 v{K2+1}, 0x3f803f80
v_cmp_gt_u32 s[30:31], 32, v0
s_mul_i32 s32, s33, {NO*U*KVBLK}
s_mul_i32 s3, s33, {(64//U - 2*NO) & 0xffffffff}
s_add_u32 s3, s3, {NO}
s_mov_b32 s48, 1
s_mov_b32 s21, {1 if fc == 2 else 2}
s_mov_b32 s36, s46
s_mov_b32 s37, s47
s_and_b32 s38, s2, 7
s_lshl_b32 s38, s38, 3
s_bfe_u32 s39, s2, 0x30003
s_add_u32 s38, s38, s39
s_lshr_b32 s39, s2, 6
s_xor_b32 s11, s16, 4
s_mul_i32 s49, s39, 9
s_lshl_b32 s19, s11, 1
s_add_u32 s49, s49, s19
s_lshl_b32 s62, s49, 10
s_add_u32 s62, s62, {WOOFF}
s_bfe_u32 s8, s2, 0x10002
s_lshl_b32 s8, s8, 2
s_bfe_u32 s9, s2, 0x20003
s_add_u32 s8, s8, s9
s_and_b32 s9, s2, 3
s_lshl_b32 s9, s9, 3
s_lshr_b32 s10, s2, 5
s_add_u32 s9, s9, s10
s_mul_i32 s10, s9, {9*UB}
s_add_u32 s10, s10, {WGUOFF}
s_lshl_b32 s61, s2, 2
s_add_u32 s61, s61, s16
s_mov_b32 s7, 0x20000
s_mov_b32 s56, 8
s_mov_b32 s57, 16
s_mov_b32 s58, 4
s_mov_b32 s6, {D*F*2}
s_cmp_ge_u32 s61, 648
s_cbranch_scc1 {k.lab('p1')}
s_cmp_ge_u32 s61, 324
s_cselect_b32 s4, s42, s40
s_cselect_b32 s5, s43, s41
s_cselect_b32 s60, 324, 0
s_cselect_b32 s53, 1024, 0
s_sub_u32 s60, s61, s60
s_mul_i32 s19, s60, 3641
s_lshr_b32 s19, s19, 16          ; ks
s_mul_i32 s59, s19, 18
s_sub_u32 s60, s60, s59          ; cg
s_mov_b32 s50, {F*2}
s_mul_i32 s51, s19, {32*F*2}
s_lshl_b32 s59, s60, 9
s_add_u32 s51, s51, s59
s_mov_b32 s52, 128
s_mul_i32 s59, s60, {16*36864}
s_add_u32 s53, s53, s59
s_lshl_b32 s59, s19, 11
s_add_u32 s53, s53, s59
s_add_u32 s53, s53, {WGUOFF}
s_mov_b32 s54, {4*36864}
s_mov_b32 s55, 36864
""")
    for e in range(8):
        k(f"s_add_u32 s{40+e}, s51, {(e//2)*128 + (e&1)*16*F*2}")
    k(f"s_branch {k.lab('pgo')}")
    k.label("p1")
    k(f"""
s_mov_b32 s50, 1152
s_mov_b32 s54, 36864
s_mov_b32 s55, 1024
s_mov_b32 s4, s44
s_mov_b32 s5, s45
s_mov_b32 s52, {32*1152}
s_sub_u32 s60, s61, 648
s_mul_i32 s19, s60, 7282
s_lshr_b32 s19, s19, 16          ; kg = r/9
s_mul_i32 s59, s19, 9
s_sub_u32 s60, s60, s59          ; cs
s_mul_i32 s53, s19, {4*36864}
s_add_u32 s53, s53, {WDOFF}
s_lshl_b32 s59, s60, 12
s_add_u32 s53, s53, s59
; k-slot order: position pos (16 rows) of quarter kq holds unit 72kq + 9*((pos%24)/3) + 3*(pos/24) + pos%3
s_lshl_b32 s51, s60, 7
s_mul_i32 s59, s19, 7282
s_lshr_b32 s59, s59, 16
s_mul_i32 s60, s59, 9
s_sub_u32 s19, s19, s60          ; kg%9
s_mul_i32 s59, s59, {72*16*1152}
s_add_u32 s51, s51, s59
s_mul_i32 s59, s19, 86
s_lshr_b32 s59, s59, 8           ; gamma = (kg%9)/3
s_mul_i32 s60, s59, 3
s_sub_u32 s19, s19, s60
s_lshl_b32 s19, s19, 3           ; pos%24 of the first half block
s_mul_i32 s60, s60, {16*1152}
s_add_u32 s51, s51, s60
""")
    for e in range(8):
        k(f"""
s_add_u32 s59, s19, {e}
s_mul_i32 s60, s59, 86
s_lshr_b32 s60, s60, 8
s_mul_i32 s60, s60, 6
s_add_u32 s59, s59, s60
s_mul_i32 s59, s59, {16*1152}
s_add_u32 s{40+e}, s51, s59
""")
    k.label("pgo")
    k(f"s_lshl_b32 s19, s16, 11\ns_add_u32 s19, s19, {SCR}")
    prep_addr(k, PVS, PVW, PVR, PVR + 1, 19)
    if warm:
        k(f"""
s_lshl_b32 s25, s18, 5
s_add_u32 s25, s25, s17
s_mul_i32 s25, s25, {FLS}
s_add_u32 s25, s25, {FBOFF}
s_add_u32 s26, s25, {32*FLS}
s_mul_i32 s59, s61, {FLS}
s_add_u32 s59, s59, {FPOFF}
s_lshl_b32 s60, s38, 2
s_add_u32 s60, s60, s39
s_mul_i32 s60, s60, {FLS}
s_add_u32 s60, s60, {FCOFF}
s_cmp_lg_u32 s16, 2
s_cselect_b32 s60, {OOB}, s60
s_cmp_lt_u32 s16, 4
s_cselect_b32 s25, s59, s25
s_cselect_b32 s26, s60, s26
v_mov_b32 v16, 0
v_mov_b32 v17, 0
v_lshlrev_b32 v18, 3, v0
""")
    def clears():
        k(f"v_mov_b32 v{P+4}, 0")
        for r in [OO[q] + 2*i for q in range(2) for i in range(8)] + [P + 4, P + 6, V1, V1 + 2]:
            k(f"v_pk_mul_f32 {v(r,2)}, {v(P+4,2)}, {v(P+4,2)} op_sel_hi:[0,0]")
    clears()
    k(f"""
s_cmp_eq_u32 s16, 5
s_cbranch_scc1 {k.lab('q5')}
s_cmp_lg_u32 s16, 4
s_cbranch_scc1 {k.lab('pqx')}
s_lshr_b32 s59, s17, 3
s_lshl_b32 s59, s59, 4           ; hg*16
v_and_b32 v{T0}, 15, v0
v_bfe_u32 v{T0+1}, v0, 4, 1
v_lshl_add_u32 v{T0}, v{T0+1}, 6, v{T0}
v_add_u32 v{T0}, 64, v{T0}
s_lshr_b32 s60, s2, 5
s_lshl_b32 s60, s60, 1
v_and_b32 v{T0+1}, 1, v0
v_add_u32 v{T0+1}, s60, v{T0+1}
s_mul_i32 s59, s59, {FLS}
s_add_u32 s59, s59, {FAOFF}
v_cndmask_b32 v{T0}, v{T0+1}, v{T0}, s[30:31]
s_branch {k.lab('q6')}
""")
    k.label("q5")
    k(f"""
; lanes 0..14: Wo jobs 128 + (l/3)*9 + cs0 + l%3 ; 15..50: wbar jobs ; 51..: statistics 2tb + (l&1)
s_mul_i32 s60, s39, 9
s_lshr_b32 s60, s60, 2
s_add_u32 s60, s60, 128
v_mul_u32_u24 v{T0}, 21846, v0
v_lshrrev_b32 v{T0}, 16, v{T0}
v_mad_u32_u24 v{T0}, v{T0}, 6, v0
v_add_u32 v{T0}, s60, v{T0}
v_add_u32 v{T0+1}, {173-15}, v0
v_cmp_gt_u32 vcc, 15, v0
s_lshl_b32 s60, s38, 1
v_and_b32 v{T0+2}, 1, v0
v_cndmask_b32 v{T0}, v{T0+1}, v{T0}, vcc
v_cmp_gt_u32 vcc, 51, v0
v_add_u32 v{T0+2}, s60, v{T0+2}
s_mov_b32 s59, {FSOFF}
v_cndmask_b32 v{T0}, v{T0+2}, v{T0}, vcc
""")
    k.label("q6")
    k(f"v_mul_u32_u24 v{T0}, {FLS}, v{T0}")
    if qpre: k(f"s_sleep {qpre}")
    poll(k, "pq", 59, T0, T0 + 2, 60, sleep=qsl)
    k("s_barrier")
    if dbg == "a": mk(7)
    QL = f"""
buffer_load_dwordx4 {v(Q1[0],4)}, v1, s[12:15], s63 offen {ld}
buffer_load_dword v{Q2[0]}, v{T0+8}, s[12:15], s63 offen offset:1024 {ld}
buffer_load_dwordx4 {v(Q1[1],4)}, v1, s[12:15], s63 offen offset:{QBLK} {ld}
"""
    k(piece(0))
    if fc:
        k(f"s_cmp_lg_u32 s33, 0\ns_cbranch_scc1 {k.lab('nq')}")
    k(QL)
    k.label("nq")
    k(piece(8192))
    if fc < 2: k(piece(16384))
    k(f"s_waitcnt vmcnt(0)\ns_barrier")
    if warm:
        k("s_mov_b64 exec, 0xffff\nbuffer_store_dwordx2 v[16:17], v18, s[12:15], s25 offen sc1\nbuffer_store_dwordx2 v[16:17], v18, s[12:15], s26 offen sc1\ns_mov_b64 exec, -1")
    k.mark(0)
    k(f"""
s_setprio 1
s_cmp_eq_u32 s33, 0
s_cbranch_scc1 {k.lab('restart')}
s_setprio 0
s_mov_b32 s21, 99
s_add_u32 s23, s23, {(24576 if fc < 2 else 16384) - 4096}
""")
    if fc: k(QL)
    for n in range(NPRE):
        k(piece(n * 4096))
    k(f"s_add_u32 s23, s23, {NPRE*4096}")
    if fc: k(f"s_waitcnt vmcnt({NPRE})")
    B0B = (f"s_cmp_lg_u32 s48, 1\ns_cbranch_scc1 {k.lab('b0b')}\ns_waitcnt vmcnt({NPRE + (1 if warm else 0)})\ns_cmp_lg_u32 s33, 0\ns_cbranch_scc1 {k.lab('b0a')}\n"
           f"s_waitcnt vmcnt({1 if warm else 0})\n{k.lab('b0a')}:\ns_barrier\n{k.lab('b0b')}:")
    k.label("restart")
    k(f"""
v_mov_b32 v{Q2[0]+1}, 0
v_mov_b32 v{T0}, 0xff800000
v_mov_b32 v{T0+1}, 0xff800000
v_mov_b32 v{AK1}, v{BK1}
v_mov_b32 v{AK2}, v{BK1+1}
s_mov_b32 s20, s48
""")
    k.label("mx")
    k(f"""
ds_read_b128 {v(K1,4)}, v{AK1}
ds_read_b32 v{K2}, v{AK2}
v_add_u32 v{AK1}, {KVBLK}, v{AK1}
v_add_u32 v{AK2}, {KVBLK}, v{AK2}
s_waitcnt lgkmcnt(0)
{M16} {v(SS[0],16)}, {v(K1,4)}, {v(Q1[0],4)}, 0
{M16} {v(SS[1],16)}, {v(K1,4)}, {v(Q1[1],4)}, 0
s_sub_u32 s20, s20, 1
s_nop 8
{M2B} {v(SS[0],32)}, {v(K2,2)}, {v(Q2[0],2)}, {v(SS[0],32)}
s_nop 15
s_nop 3
""")
    for q in range(2):
        for i in range(8):
            k(f"v_max3_f32 v{T0+q}, v{T0+q}, v{SS[q]+2*i}, v{SS[q]+2*i+1}")
    k(f"""
s_cmp_lg_u32 s20, 0
s_cbranch_scc1 {k.lab('mx')}
v_mov_b32 v{T0+2}, v{T0}
v_mov_b32 v{T0+3}, v{T0+1}
""")
    for i in range(6):
        k(f"v_add_u32 v{AK1+i}, s32, v{BK1+i}")
    k(f"""
v_permlane32_swap_b32 v{T0}, v{T0+2}
v_permlane32_swap_b32 v{T0+1}, v{T0+3}
{B0B if b0 else ""}
s_and_b32 s19, s33, s48
s_cbranch_scc0 {k.lab('kvx')}
""")
    if fc == 2:
        for n in range(NX):
            k(piece(n * 4096))
        k(f"s_add_u32 s23, s23, {NX*4096}\ns_waitcnt vmcnt({NPRE + NX - 2})\ns_barrier")
    k.label("kv")
    k(piece(0))
    k(f"""
s_add_u32 s23, s23, 4096
s_cmp_lt_u32 s23, {KVHEAD}
s_cbranch_scc1 {k.lab('kv')}
s_waitcnt vmcnt(0)
s_barrier
""")
    WC = 112
    def wcreg(ks, sl):
        i = 2 * ks + sl
        return 160 + 4 * i if i < 24 else WC + 4 * (i - 24)
    for ks in range(12):
        for sl in range(2):
            k(f"buffer_load_dwordx4 {v(wcreg(ks,sl),4)}, v1, s[12:15], s62 offen offset:{sl*1024}")
        k("s_add_u32 s62, s62, 36864")
    if otch:
        k.srd(24, 36, S * D * 2)
        k(f"""
s_lshl_b32 s59, s11, 8
s_add_u32 s59, s59, s2
s_lshl_b32 s59, s59, 13
v_lshlrev_b32 v14, 7, v0
buffer_load_dword v15, v14, s[24:27], s59 offen {otch if otch != 1 else ""}
""")
    k.label("kvx")
    V1B = [T0 + 6, V1]
    k(f"""
ds_read_b128 {v(K1,4)}, v{AK1}
ds_read_b32 v{K2}, v{AK2}
ds_read_b64_tr_b16 {v(V0,2)}, v{AV}
ds_read_b64_tr_b16 {v(V1B[0],2)}, v{AV+2}
ds_read_b64_tr_b16 {v(V1B[0]+2,2)}, v{AV+3}
v_max_f32 v{T0}, v{T0}, v{T0+2}
v_max_f32 v{T0+1}, v{T0+1}, v{T0+3}
v_cndmask_b32 v{T0}, v{T0+1}, v{T0}, s[30:31]
s_waitcnt lgkmcnt(4)
{M16} {v(SS[0],16)}, {v(K1,4)}, {v(Q1[0],4)}, 0
{M16} {v(SS[1],16)}, {v(K1,4)}, {v(Q1[1],4)}, 0
ds_read_b128 {v(K1,4)}, v{AK1} offset:{KVBLK}
v_sub_f32 v{T0}, 0, v{T0}
v_cvt_pk_bf16_f32 v{T0+4}, v{T0}, v{T0}
v_and_b32 v{T0+4}, 0xffff0000, v{T0+4}
v_sub_f32 v{T0+5}, v{T0}, v{T0+4}
v_cvt_pk_bf16_f32 v{Q2[0]+1}, v{T0+4}, v{T0+5}
s_waitcnt lgkmcnt(4)
s_nop 2
{M2B} {v(SS[0],32)}, {v(K2,2)}, {v(Q2[0],2)}, {v(SS[0],32)}
ds_read_b32 v{K2}, v{AK2} offset:{KVBLK}
s_nop 15
s_nop 1
s_waitcnt lgkmcnt(0)
""")
    k.mark(1)
    k(".p2align 6")
    k.label("loop")
    UU = 2 * U if u8 else U
    ret = lambda it: k.lab("mid" if (u8 and it % 2) else "loop")
    assert not u8 or NO % 2 == 0
    for t in range(UU):
        if t == U:
            k(f"s_cbranch_scc1 {k.lab('stub')}")
            k.label("mid")
        b = t & 1
        cp, np_ = SP[b], SP[1-b]
        at = {
            (0, 1): f"{M16} {v(OO[1],16)}, {v(V1B[1-b],4)}, {v(P+4,4)}, {v(OO[1],16)}\nds_read_b64_tr_b16 {v(V0+2,2)}, v{AV+1} offset:{t*KVBLK}",
            (0, 5): f"{M2B} {v(np_,32)}, {v(K2,2)}, {v(Q2[0],2)}, 0\nds_read_b32 v{K2}, v{AK2} offset:{(t+2)*KVBLK}",
            (0, 13): f"s_waitcnt lgkmcnt(0)\n{M16} {v(OO[0],16)}, {v(V0,4)}, {v(P,4)}, {v(OO[0],16)}"
                     + ("\ns_add_u32 s20, s20, 1\ns_cmp_eq_u32 s20, s21" if t % U == U - 1 else ""),
            (1, 1): f"{M16} {v(OO[0],16)}, {v(V1B[b],4)}, {v(P+4,4)}, {v(OO[0],16)}\nds_read_b64_tr_b16 {v(V1B[1-b],2)}, v{AV+2} offset:{(t+1)*KVBLK}",
            (1, 5): f"{M16} {v(np_,16)}, {v(K1,4)}, {v(Q1[0],4)}, {v(np_,16)}\nds_read_b64_tr_b16 {v(V1B[1-b]+2,2)}, v{AV+3} offset:{(t+1)*KVBLK}",
            (1, 9): f"{M16} {v(np_+16,16)}, {v(K1,4)}, {v(Q1[1],4)}, {v(np_+16,16)}\nds_read_b128 {v(K1,4)}, v{AK1} offset:{(t+2)*KVBLK}",
            (1, 13): f"{M16} {v(OO[1],16)}, {v(V0,4)}, {v(P,4)}, {v(OO[1],16)}\nds_read_b64_tr_b16 {v(V0,2)}, v{AV} offset:{(t+1)*KVBLK}",
        }
        for ph in range(2):
            cur = cp + 16 * ph
            for i in range(16):
                k(f"v_exp_f32 v{cur+i}, v{cur+i}")
                if (ph, i) in at: k(at[(ph, i)])
                if i % 4 == 3:
                    j = i // 2 - 1
                    k(f"v_cvt_pk_bf16_f32 v{P+j}, v{cur+2*j}, v{cur+2*j+1}\nv_cvt_pk_bf16_f32 v{P+j+1}, v{cur+2*j+2}, v{cur+2*j+3}")
    for i in range(6):
        k(f"v_add_u32 v{AK1+i}, {UU*KVBLK}, v{AK1+i}")
    k(f"""
s_cbranch_scc1 {k.lab('stub')}
s_cmp_lt_u32 s20, s3
s_cbranch_scc1 {k.lab('loop')}
{M16} {v(OO[1],16)}, {v(V1,4)}, {v(P+4,4)}, {v(OO[1],16)}
""")
    k.mark(2)
    BADF = 16384
    k(f"""
s_setprio 0
s_waitcnt lgkmcnt(0)
s_and_b32 s19, s16, 3
s_lshl_b32 s24, s19, 12
v_add_u32 v{T0+2}, s24, v1
s_lshl_b32 s24, s19, 11
s_add_u32 s24, s24, {SCR}
v_add_u32 v{T0+3}, s24, v1
v_mov_b32 v{T0+4}, {BADF}
s_waitcnt lgkmcnt(0)
s_cmp_eq_u32 s48, 1
s_cbranch_scc1 {k.lab('x0')}
s_barrier
""")
    k.label("x0")
    k(f"s_cmp_lg_u32 s33, 0\ns_cbranch_scc1 {k.lab('xy')}")
    for q in range(2):
        for j in range(2):
            k(f"ds_write_b128 v{T0+2}, {v(OO[q]+4*j,4)} offset:{(2*q+j)*1024}")
        k(f"ds_write_b128 v{T0+3}, {v(OO[q]+8,4)} offset:{q*1024}")
    k(f"""
s_cmp_lg_u32 s21, 98
s_cbranch_scc1 {k.lab('x1')}
s_mov_b32 s21, 99
s_mul_i32 s59, s61, {FLS}
s_add_u32 s59, s59, {FPOFF}
s_waitcnt vmcnt(0)
""")
    set_flag(k, 59, T0 + 6)
    k(f"""
v_and_b32 v{T0+6}, 1, v0
v_mul_u32_u24 v{T0+6}, 1152, v{T0+6}
v_lshrrev_b32 v{T0+7}, 4, v0
v_lshl_add_u32 v{T0+6}, v{T0+7}, 4, v{T0+6}
s_mul_i32 s60, s39, 9216
s_add_u32 s60, s60, {WOOFF + 8192}
s_mov_b32 s59, 36864
s_bitcmp1_b32 s16, 0
s_cselect_b32 s60, {WBAROFF}, s60
s_cselect_b32 s59, 64, s59
s_cselect_b64 vcc, -1, 0
s_lshr_b32 s58, s16, 1
s_add_u32 s57, s58, 16
s_mul_i32 s57, s57, s59
s_add_u32 s57, s57, s60
s_lshl_b32 s58, s58, 3
s_mul_i32 s58, s58, s59
s_add_u32 s60, s60, s58
v_cndmask_b32 v{T0+6}, v1, v{T0+6}, vcc
""")
    for i in range(8):
        k(f"buffer_load_dwordx4 {v(160+4*i,4)}, v{T0+6}, s[12:15], s60 offen\ns_add_u32 s60, s60, s59")
    k(f"buffer_load_dwordx4 {v(192,4)}, v{T0+6}, s[12:15], s57 offen")
    if efill:
        k(f"""
s_and_b32 s57, s2, 1
s_lshl_b32 s57, s57, 3
s_bfe_u32 s58, s2, 0x30003
s_add_u32 s57, s57, s58
s_lshl_b32 s57, s57, 2
s_add_u32 s57, s57, s16
s_mul_i32 s57, s57, 36
s_mul_i32 s58, s39, 9
s_add_u32 s57, s57, s58
s_mul_i32 s57, s57, 3072
s_add_u32 s57, s57, {EXOFF}
s_bfe_u32 s58, s2, 0x20001
s_mul_i32 s59, s58, 3072
s_add_u32 s59, s59, s57
s_add_u32 s60, s59, {4*3072}
s_add_u32 s57, s57, {8*3072}
""")
        for i in range(4):
            k(f"v_mov_b32 v{SS[0]+i}, -1")
        for so in (59, 60, 57):
            if so == 57:
                k(f"s_cmp_lg_u32 s58, s16\ns_cbranch_scc1 {k.lab('x1')}")
            for i in range(3):
                k(f"buffer_store_dwordx4 {v(SS[0],4)}, v1, s[12:15], s{so} offen offset:{i*1024} sc1")
    k.label("x1")
    k.mark(3)
    k(f"s_waitcnt lgkmcnt(0)\ns_barrier\ns_branch {k.lab('x2')}")
    k.label("xy")
    k(f"""
s_lshl_b32 s24, s17, 16
s_lshl_b32 s23, s18, 9
s_add_u32 s24, s24, s23
s_add_u32 s24, s24, {OOFF}
s_lshl_b32 s19, s18, 5
s_add_u32 s19, s19, s17
s_lshl_b32 s23, s19, 7
s_add_u32 s23, s23, {O2OFF}
s_add_u32 s22, s23, 4096
s_mul_i32 s19, s19, {FLS}
s_add_u32 s19, s19, {FBOFF}
s_add_u32 s25, s19, {32*FLS}
s_mov_b32 s26, {f2u(2.0**60):#x}
v_and_b32 v{T0+1}, 31, v0
v_lshrrev_b32 v{T0+5}, 5, v0
v_lshlrev_b32 v{T0+1}, 4, v{T0+1}
v_lshl_add_u32 v{T0+5}, v{T0+5}, 15, v{T0+1}
v_lshlrev_b32 v{T0+1}, 2, v0
""")
    k.mark(3)
    k("s_barrier")
    for q in range(2):
        k(f"ds_read_b128 {v(SS[q]+8,4)}, v{T0+3} offset:{q*1024}")
        for j in range(2):
            k(f"ds_read_b128 {v(SS[q]+4*j,4)}, v{T0+2} offset:{(2*q+j)*1024}")
    for q in range(2):
        O = OO[q]
        PQ = [P, V0][q]
        k(f"s_waitcnt lgkmcnt({5 - 3*q})\nv_add_f32 v{O+10}, v{O+10}, v{SS[q]+10}\nv_rcp_f32 v{T0+6+q}, v{O+10}\ns_waitcnt lgkmcnt({3 - 3*q})")
        for i in range(5):
            k(f"v_pk_add_f32 {v(O+2*i,2)}, {v(O+2*i,2)}, {v(SS[q]+2*i,2)}")
        for i in range(5):
            k(f"v_pk_mul_f32 {v(O+2*i,2)}, {v(O+2*i,2)}, {v(T0+6,2)} op_sel:[0,{q}] op_sel_hi:[1,{q}]")
        for i in range(5):
            k(f"v_cvt_pk_bf16_f32 v{PQ+i}, v{O+2*i}, v{O+2*i+1}")
        k(f"""
buffer_store_dwordx4 {v(PQ,4)}, v{T0+5}, s[12:15], s24 offen offset:{q*512} sc1
s_mov_b64 exec, s[30:31]
buffer_store_dword v{PQ+4}, v{T0+1}, s[12:15], s{23-q} offen sc1
s_mov_b64 exec, -1
""")
    k(f"""
v_add_f32 v{T0}, v{OO[0]+10}, v{OO[1]+10}
v_cmp_ngt_f32 vcc, s26, v{T0}
s_lshl_b32 s26, s16, 2
s_add_u32 s26, s26, {BADF - 16}
v_mov_b32 v{T0}, s26
s_cmp_lg_u64 vcc, 0
s_cselect_b32 s26, 1, 0
v_mov_b32 v{T0+2}, s26
ds_write_b32 v{T0}, v{T0+2}
s_waitcnt lgkmcnt(0)
""")
    k.label("x2")
    if dbg == "c": mk(0)
    k(f"""
s_barrier
ds_read_b128 {v(K1,4)}, v{T0+4}
s_waitcnt lgkmcnt(0)
v_or3_b32 v{K1}, v{K1}, v{K1+1}, v{K1+2}
v_or_b32 v{K1}, v{K1}, v{K1+3}
s_nop 0
v_readfirstlane_b32 s26, v{K1}
s_and_b32 s26, s26, s48
s_cmp_eq_u32 s26, 1
s_cbranch_scc1 {k.lab('fallback')}
""")
    if dbg == "c": mk(1)
    LT, LG = 2, 3
    GV = 4
    XV, W1V, FV = 5, 6, 7
    ACC, OF, X, MU = 16, 32, 48, 56
    TC = 60
    k.srd(4, 28, S * D * 2)
    k(f"""
v_and_b32 v{LT}, 15, v0
v_lshrrev_b32 v{LG}, 4, v0
v_lshlrev_b32 v{GV}, 15, v{LG}
v_lshl_add_u32 v{GV}, v{LT}, 4, v{GV}
v_and_b32 v{FV}, 31, v0
v_mul_u32_u24 v{FV}, {FLS}, v{FV}
v_mul_u32_u24 v{XV}, 1152, v{LT}
v_lshl_add_u32 v{XV}, v{LG}, 3, v{XV}
v_lshlrev_b32 v{W1V}, 2, v{LT}
s_mul_i32 s24, s38, {32*1152}
s_lshl_b32 s23, s49, 5
s_add_u32 s24, s24, s23
s_add_u32 s23, s24, {16*1152}
s_lshl_b32 s26, s38, 7
s_lshl_b32 s27, s38, 8
s_add_u32 s27, s27, {STOFF + 4}
v_lshlrev_b32 v9, 3, v{LT}
s_cmp_lt_u32 s16, 2
s_cbranch_scc1 {k.lab('ppx')}
s_cmp_lt_u32 s16, 4
s_cbranch_scc1 {k.lab('cfp')}
s_waitcnt vmcnt(0)
{flag_txt([19, 25], TC)}
s_branch {k.lab('ppx')}
{k.lab('cfp')}:
; waves 2,3: re-layout jobs read by phases D/E.  lanes 0..35: job = lane*18 + cg ; lanes 36..: 648 + (9kq + j/3)*9 + cs0 + j%3
s_mul_i32 s59, s9, 9
s_sub_u32 s60, s16, 2
s_lshl_b32 s60, s60, 3
s_add_u32 s59, s59, s60
s_lshr_b32 s55, s59, 4           ; cg
s_bfe_u32 s59, s2, 0x20001
s_mul_i32 s59, s59, 81
s_mul_i32 s60, s39, 9
s_lshr_b32 s60, s60, 2
s_add_u32 s59, s59, s60
s_add_u32 s59, s59, 648
v_subrev_u32 v9, 36, v0
v_min_u32 v9, 26, v9
v_mul_u32_u24 v10, 21846, v9
v_lshrrev_b32 v10, 16, v10
v_mad_u32_u24 v9, v10, 6, v9
v_add_u32 v9, s59, v9
v_mul_u32_u24 v10, 18, v0
v_add_u32 v10, s55, v10
v_cmp_gt_u32 vcc, 36, v0
s_mov_b32 s59, {FPOFF}
s_nop 0
v_cndmask_b32 v11, v9, v10, vcc
v_mul_u32_u24 v11, {FLS}, v11
""")
    poll(k, "pp", 59, 11, TC, 60)
    k.mark(4)
    k(f"s_barrier\ns_cmp_gt_u32 s11, 4\ns_cbranch_scc1 {k.lab('cnx')}")
    for T in range(2):
        for i in range(2):
            k(f"buffer_load_dwordx2 {v(X+2*(2*i+T),2)}, v{XV}, s[4:7], s{[24,23][T]} offen offset:{i*32}")
        k(f"buffer_load_dword v{MU+T}, v9, s[12:15], s27 offen offset:{T*128} {ld}")
    k(f"s_cmp_eq_u32 s11, 4\ns_cbranch_scc1 {k.lab('cnx')}")
    for ks in range(12, 18):
        for sl in range(2):
            k(f"buffer_load_dwordx4 {v(wcreg(ks,sl),4)}, v1, s[12:15], s62 offen offset:{sl*1024}")
        k("s_add_u32 s62, s62, 36864")
    k.label("cnx")
    k(f"""
s_mul_i32 s59, s38, {32*FLS}
s_add_u32 s59, s59, {FBOFF}
s_lshl_b32 s57, s38, 9
s_add_u32 s57, s57, {OOFF}
s_lshr_b32 s58, s16, 1
s_lshl_b32 s58, s58, 17
s_add_u32 s57, s57, s58
s_and_b32 s58, s16, 1
s_lshl_b32 s58, s58, 8
s_add_u32 s57, s57, s58
s_lshl_b32 s58, s16, 10
s_lshl_b32 s56, s38, 12
s_add_u32 s56, s56, s58
s_add_u32 s56, s56, {O2OFF}
s_add_u32 s58, s58, {OST}
v_add_u32 v{XV}, {OST}, v1
v_lshlrev_b32 v8, 9, v{LG}
v_add3_u32 v8, v8, v{W1V}, s58
""".replace("v_add3_u32 v8, v8, v{W1V}, s58".format(W1V=W1V), f"v_add_u32 v8, v8, v{W1V}\nv_add_u32 v8, {OST + 32768}, v8"))
    k(f"""
s_add_u32 s47, s8, s9
s_mul_i32 s46, s47, 21846
s_lshr_b32 s46, s46, 16
s_mul_i32 s46, s46, 3
s_sub_u32 s47, s47, s46
{"" if rot else "s_mov_b32 s47, 0"}
s_mul_i32 s40, s47, {CB}
s_add_u32 s41, s40, {CB}
s_cmp_ge_u32 s41, {UB}
s_cselect_b32 s41, 0, s41
s_add_u32 s42, s41, {CB}
s_cmp_ge_u32 s42, {UB}
s_cselect_b32 s42, 0, s42
s_mov_b32 s43, s47
""")
    def feed(p0, p1):
        k(f"s_mul_i32 s22, s34, {UB}\ns_add_u32 s22, s22, s10\ns_mul_i32 s34, s34, {CB}")
        for p_ in range(p0, p1):
            if p_ % 4 == 0:
                k(f"s_add_u32 m0, s34, {(p_//12)*UB + (p_%12)*1024}\ns_add_u32 s35, s22, s{40 + p_//12}\ns_add_u32 s35, s35, {(p_%12)*1024}")
            k(f"buffer_load_dwordx4 v1, s[12:15], s35 offen offset:{(p_%4)*1024} lds")
            if FPC and p0 == 0: k(f"s_waitcnt vmcnt({FPC})")
    k(f"""
s_cmp_ge_u32 s16, 4
s_cbranch_scc1 {k.lab('pbx')}
s_cmp_eq_u32 s16, 1
s_cbranch_scc1 {k.lab('pb0')}
s_sub_u32 s34, s16, 1
s_max_i32 s34, s34, 0
""")
    feed(0, NF1)
    k(f"s_branch {k.lab('pbx')}")
    k.label("pb0")
    if bpre: k(f"s_sleep {bpre}")
    poll(k, "pb", 59, FV, TC, 60, sleep=bsl)
    k("s_barrier")
    k.mark(5)
    for n in range(4):
        k(f"s_add_u32 m0, s58, {n*8192}\ns_add_u32 s62, s57, {n*4*4*CH}\nbuffer_load_dwordx4 v{GV}, s[12:15], s62 offen {ld} lds")
    k(f"s_cmp_ge_u32 s16, 4\ns_cbranch_scc1 {k.lab('co')}")
    k(f"s_add_u32 m0, s58, {4*8192}\ns_nop 0\nbuffer_load_dwordx4 v1, s[12:15], s56 offen {ld} lds")
    k.label("co")
    k(f"s_waitcnt vmcnt(0)\ns_barrier")
    k.mark(6)
    HL = 3 * UB
    k(f"v_add_u32 v10, {HL}, v1\ns_cmp_lt_u32 s16, 4\ns_cbranch_scc1 {k.lab('chelp')}")
    OR = 64
    def rdo(ks):
        b = OR + 8 * (ks % CR)
        if ks >= 16:
            r = []
            if ks == 17: r.append("v_add_u32 v8, 2048, v8")
            for T in range(2):
                for h in range(2):
                    r.append(f"ds_read2_b32 {v(b+4*T+2*h,2)}, v8 offset0:{16*T+64*h} offset1:{16*T+64*h+32}")
            return r
        return [f"ds_read_b128 {v(b+4*T,4)}, v{XV} offset:{(2*ks+T)*1024}" for T in range(2)]
    nrd = lambda ks: 4 if ks >= 16 else 2
    for ks in range(CR - 1):
        for r in rdo(ks): k(r)
    for ks in range(18):
        k(f"s_waitcnt lgkmcnt({sum(nrd(q) for q in range(ks + 1, min(ks + CR - 1, 18)))})")
        r = rdo(ks + CR - 1) if ks + CR - 1 < 18 else []
        for sl in range(2):
            for T in range(2):
                d = v(ACC + (2*sl+T)*4, 4)
                k(f"{M} {d}, {v(wcreg(ks,sl),4)}, {v(OR+8*(ks%CR)+4*T,4)}, {'0' if ks == 0 else d}")
                if r: k(r.pop(0))
        for x in r: k(x)
    k.label("cepi")
    if dbg == 'c': mk(9)
    SQ = 58
    k(f"""
s_lshl_b32 s24, s49, 16
s_lshl_b32 s23, s38, 9
s_add_u32 s24, s24, s23
s_add_u32 s24, s24, {HCOFF}
v_lshrrev_b32 v8, 5, v0
v_lshlrev_b32 v8, 15, v8
v_and_b32 v9, 31, v0
v_lshl_add_u32 v8, v9, 4, v8
v_lshlrev_b32 v9, 2, v9
v_mov_b32 v{SQ}, 0
v_mov_b32 v{SQ+1}, 0
""")
    for sl in range(2):
        for T in range(2):
            x = X + 2*(2*sl+T)
            r = OF + 4*(2*sl+T)
            k(f"v_lshlrev_b32 v{r}, 16, v{x}\nv_and_b32 v{r+1}, 0xffff0000, v{x}\nv_lshlrev_b32 v{r+2}, 16, v{x+1}\nv_and_b32 v{r+3}, 0xffff0000, v{x+1}")
    k("s_barrier")
    if dbg == 'c': mk(10)
    for T in range(2):
        for hh in range(2):
            k(f"ds_read_b64 {v(64+4*T+2*hh,2)}, v10 offset:{(1+2*hh)*2048 + T*1024}")
    for T in range(2):
        k(f"ds_read_b128 {v(72+4*T,4)}, v10 offset:{2*2048 + T*1024}")
    for i in range(8):
        k(f"v_pk_add_f32 {v(ACC+2*i,2)}, {v(ACC+2*i,2)}, {v(OF+2*i,2)}")
    k("s_waitcnt lgkmcnt(0)")
    for T in range(2):
        k(f"v_pk_add_f32 {v(64+4*T,2)}, {v(64+4*T,2)}, {v(66+4*T,2)}\nv_add_f32 v{MU+T}, v{MU+T}, v{64+4*T}\nv_add_f32 v{MU+T}, v{MU+T}, v{65+4*T}")
    k(f"s_cmp_lg_u32 s11, 4\ns_cbranch_scc1 {k.lab('cn8')}")
    for i in range(4):
        k(f"v_pk_add_f32 {v(ACC+2*i,2)}, {v(ACC+2*i,2)}, {v(72+2*i,2)}")
    k.label("cn8")
    for sl in range(2):
        if sl == 1:
            k(f"s_cmp_eq_u32 s11, 4\ns_cbranch_scc1 {k.lab('cq')}")
        R = X + 4*sl
        for T in range(2):
            ac = ACC + (2*sl+T)*4
            for r in range(4):
                k(f"v_sub_f32 v{ac+r}, v{ac+r}, v{MU+T}")
            k(f"v_cvt_pk_bf16_f32 v{R+2*T}, v{ac}, v{ac+1}\nv_cvt_pk_bf16_f32 v{R+2*T+1}, v{ac+2}, v{ac+3}")
            for r in range(4):
                k(f"v_fmac_f32 v{SQ+T}, v{ac+r}, v{ac+r}")
        k(f"""
v_permlane16_swap_b32 v{R}, v{R+2}
v_permlane16_swap_b32 v{R+1}, v{R+3}
buffer_store_dwordx4 {v(R,4)}, v8, s[12:15], s24 offen sc1
s_add_u32 s24, s24, 65536
""")
    k.label("cq")
    k(f"""
s_mul_i32 s23, s39, 5
s_add_u32 s23, s23, s11
v_permlane16_swap_b32 v{SQ}, v{SQ+1}
v_permlane16_swap_b32 v{MU}, v{MU+1}
s_lshl_b32 s27, s23, 13
s_add_u32 s27, s27, s26
s_add_u32 s27, s27, {SSQOFF}
v_add_f32 v{SQ}, v{SQ}, v{SQ+1}
v_mov_b32 v{SQ+1}, v{SQ}
s_add_u32 s26, s26, {MUHOFF}
s_cmp_lg_u32 s23, 0
s_cselect_b32 s26, {OOB}, s26
v_permlane32_swap_b32 v{SQ}, v{SQ+1}
v_add_f32 v{SQ}, v{SQ}, v{SQ+1}
s_mov_b32 exec_hi, 0
buffer_store_dword v{SQ}, v9, s[12:15], s27 offen sc1
buffer_store_dword v{MU}, v9, s[12:15], s26 offen sc1
s_mov_b64 exec, -1
s_lshl_b32 s3, s38, 5
s_add_u32 s3, s3, s23
s_mul_i32 s3, s3, {FLS}
s_add_u32 s3, s3, {FCOFF}
s_branch {k.lab('dstart')}
""")
    k.label("chelp")
    if NF1 < NF3:
        k(f"s_cmp_eq_u32 s16, 0\ns_cbranch_scc1 {k.lab('ch2')}\ns_sub_u32 s34, s16, 1")
        feed(NF1, NF3)
        k.label("ch2")
    k(f"""
s_lshr_b32 s23, s16, 1
s_lshl_b32 s24, s23, 14
v_add_u32 v{XV}, s24, v{XV}
s_lshl_b32 s24, s23, 11
v_add_u32 v8, s24, v8
s_lshl_b32 s24, s16, 11
v_add_u32 v11, s24, v10
s_setprio {HP}
""")
    HB = 64
    for i in range(8):
        for T in range(2):
            k(f"ds_read_b128 {v(HB+8*i+4*T,4)}, v{XV} offset:{(2*i+T)*1024}")
        if i == 5: k("s_waitcnt lgkmcnt(8)")
    for T in range(2):
        for h in range(2):
            k(f"ds_read2_b32 {v(HB+64+4*T+2*h,2)}, v8 offset0:{16*T+64*h} offset1:{16*T+64*h+32}")
    for i in range(9):
        k(f"s_waitcnt lgkmcnt({max(0, min(15, 2*(7-i) + 4)) if i < 8 else 0})")
        for T in range(2):
            d = v(ACC + 4*T, 4)
            k(f"{M} {d}, {v(160+4*i,4)}, {v(HB+8*i+4*T,4)}, {'0' if i == 0 else d}")
    k(f"""
s_setprio 0
s_mov_b32 s3, {OOB}
s_cmp_eq_u32 s16, 0
s_cbranch_scc1 {k.lab('cepi')}
s_nop 3
ds_write_b128 v11, {v(ACC,4)}
ds_write_b128 v11, {v(ACC+4,4)} offset:1024
""")
    if NF3 < 36:
        k("s_sub_u32 s34, s16, 1")
        feed(NF3, 36)
    k("s_waitcnt lgkmcnt(0)\ns_barrier")
    k.label("dstart")
    if dopt.get("wgf", 1):
        k(f"""
s_lshl_b32 s3, s38, 2
s_add_u32 s3, s3, s39
s_mul_i32 s3, s3, {FLS}
s_add_u32 s3, s3, {FCOFF}
s_cmp_lg_u32 s16, 2
s_cselect_b32 s3, {OOB}, s3
""")
    k.mark(7)
    if upto >= 4:
        assert NF2 >= 12
        def late_feed():
            if NF2 < 36:
                k(f"s_sub_u32 s34, s16, 5\ns_cmp_ge_u32 s34, 3\ns_cbranch_scc1 {k.lab('lf')}")
                feed(NF2, 36)
                k.label("lf")
        tails, dside, last_unit = phase_d(k, GV, FV, WV, ld, late_feed, **dopt)
    if upto >= 5:
        i0 = len(k.L)
        phase_e(k, GV, ld, tails, last_unit, **eopt)
        if dbg in ("e0", "e1"):
            i1 = k.L.index(k.lab("econs") + ":")
            n = 0; out = []
            for l in k.L[i0:i1]:
                if l.strip() == "s_barrier" and n < 10:
                    m_ = f"  s_memtime s[{k.mb+2*n}:{k.mb+2*n+1}]"; n += 1
                    out += [m_, l] if dbg == "e0" else [l, m_]
                else:
                    out.append(l)
            k.L[i0:i1] = out
    k(f"s_branch {k.lab('fin')}")
    if upto >= 4:
        k(dside)
    k.label("stub")
    k(f"""
s_cmp_eq_u32 s21, 1
s_cbranch_scc1 {k.lab('stubx')}
s_cmp_eq_u32 s21, 2
s_cbranch_scc1 {k.lab('stub0')}
s_cmp_eq_u32 s21, {ST[1]}
s_cbranch_scc1 {k.lab('stub2')}
s_cmp_eq_u32 s21, {ST[2]}
s_cbranch_scc1 {k.lab('stub3')}
s_cmp_eq_u32 s21, {ST[3]}
s_cbranch_scc1 {k.lab('stub4')}
s_mov_b32 s21, {ST[1]}
""")
    prep_loads_tab(k, (0, 1), DAT, PVS, 4, 40)
    k(f"s_branch {ret(ST[0])}")
    k.label("stub2")
    k(f"s_mov_b32 s21, {ST[2]}")
    prep_loads_tab(k, (2, 3), DAT, PVS, 4, 40)
    k(f"s_branch {ret(ST[1])}")
    k.label("stub3")
    k(f"s_mov_b32 s21, {ST[3]}")
    prep_process(k, DAT, FR, PVW, PVR, ns=(0, 1), dbl=False)
    k(f"s_branch {ret(ST[2])}")
    k.label("stub4")
    k(f"s_mov_b32 s21, 98")
    prep_process(k, DAT, FR, PVW, PVR, ns=(2, 3), dbl=False)
    k(f"s_branch {ret(ST[3])}")
    k.label("stubx")
    k(f"s_barrier\ns_mov_b32 s21, 2\ns_branch {ret(1)}")
    k.label("stub0")
    k(f"s_barrier\ns_cmp_ge_u32 s61, 972\ns_cselect_b32 s21, 98, {ST[0]}\ns_branch {k.lab('loop')}")
    k.label("fallback")
    k(f"""
s_waitcnt vmcnt(0)
s_barrier
s_mov_b32 s48, 64
s_mul_i32 s22, s17, {KVHEAD}
s_lshl_b32 s23, s16, 10
""")
    clears()
    k.label("fb1")
    k(piece(0))
    k(f"""
s_add_u32 s23, s23, 8192
s_cmp_lt_u32 s23, {KVHEAD}
s_cbranch_scc1 {k.lab('fb1')}
s_waitcnt vmcnt(0)
s_barrier
s_branch {k.lab('restart')}
""")
    for i, l in enumerate(k.L):
        if l.strip().startswith("buffer_load") and "s[12:15]" in l and " sc1" not in l and wsc:
            k.L[i] = l[:-4] + " sc1 lds" if l.endswith(" lds") else l.rstrip() + " sc1"
    k.label("fin")
    k.stamp_end(12)
    k.label("end")
    k("s_endpgm")
    return k


def phase_d(k, GV, FV, WV, ld, late_feed, PF=6, LA=4, WG=2, exp='', prio=0, DS=5, tch=False, pre=12, psl=None, wgf=2, NPF=5, PS0=6, PST=2, efill=False, nodup=True, nw=True):
    ACC = [16, 32, 48]
    WF, PR, HV = 64, 88, 112
    SV, A0, A1, AB, FILL = 3, 5, 6, 2, 8
    hreg = lambda ks, T: v(HV + 4*(2*ks+T), 4)
    k(f"""
s_lshl_b32 s11, s8, 3
s_add_u32 s11, s11, s16
s_lshl_b32 s21, s11, 9
s_add_u32 s20, s21, {HCOFF}      ; h soffset
s_mul_i32 s22, s43, {6*4*CH}
s_add_u32 s20, s20, s22
s_mov_b32 s34, {4*CH}
s_mov_b32 s35, {4*CH}
s_cmp_eq_u32 s43, 2
s_cselect_b32 s34, {(-17*4*CH) & 0xffffffff}, s34
s_cmp_eq_u32 s43, 1
s_cselect_b32 s35, {(-17*4*CH) & 0xffffffff}, s35
s_mul_i32 s43, s43, {CB}
s_lshr_b32 s22, s9, 3
s_mul_i32 s22, s22, {72*65536}
s_add_u32 s21, s21, s22
s_and_b32 s22, s9, 7
s_mul_i32 s22, s22, {3*65536}
s_add_u32 s21, s21, s22
s_add_u32 s21, s21, {HIDOFF}     ; hid store soffset
s_and_b32 s17, s2, 1
s_lshl_b32 s17, s17, 3
s_bfe_u32 s18, s2, 0x30003
s_add_u32 s17, s17, s18
s_lshr_b32 s18, s2, 6
s_bfe_u32 s19, s2, 0x20001
""")
    for n in range(5):
        k(f"s_add_u32 s28, s16, {8*n}")
        if n == 4:
            k("s_add_u32 s29, s16, 24\ns_cmp_ge_u32 s28, 36\ns_cselect_b32 s28, s29, s28")
        k(f"""
s_lshl_b32 s{44+n}, s28, 10
s_add_u32 s{54+n}, s{44+n}, s43
s_cmp_ge_u32 s{54+n}, {UB}
s_cselect_b32 s29, {UB}, 0
s_sub_u32 s{54+n}, s{54+n}, s29
s_mul_i32 s29, s28, 7282
s_lshr_b32 s29, s29, 16
s_mul_i32 s30, s29, 9
s_sub_u32 s28, s28, s30
s_add_u32 s30, s28, s19
s_and_b32 s30, s30, 3
s_and_b32 s31, s28, 4
s_or_b32 s30, s30, s31
s_cmp_eq_u32 s28, 8
s_cselect_b32 s30, 8, s30
s_lshl_b32 s30, s30, 10
s_mul_i32 s29, s29, 36864
s_add_u32 s{38+n}, s29, s30
""")
    k(f"""
s_add_u32 s51, s10, {3*UB}
s_mov_b32 s50, {UB}
s_mov_b32 s24, {3*UB}
s_mul_i32 s53, s19, {36*36864}
s_mul_i32 s29, s18, 9216
s_add_u32 s53, s53, s29
s_add_u32 s53, s53, {WDOFF}
v_lshrrev_b32 v{SV}, 5, v0
v_lshlrev_b32 v{SV}, 15, v{SV}
v_and_b32 v{A0}, 31, v0
v_lshl_add_u32 v{SV}, v{A0}, 4, v{SV}
v_mov_b32 v{A0}, v1
v_add_u32 v{A1}, {UB}, v1
s_mov_b32 s26, {UB}
{["v_min_u32 v%d, 19, v0", "v_and_b32 v%d, 31, v0", "v_and_b32 v%d, 3, v0"][wgf] % FV}
v_mul_u32_u24 v{FV}, {FLS}, v{FV}
{[f"s_mul_i32 s61, s11, {32*FLS}", f"s_mul_i32 s61, s8, {32*FLS}", f"s_mul_i32 s61, s11, {4*FLS}"][wgf]}
s_add_u32 s61, s61, {FCOFF}
s_lshl_b32 s28, s17, 2
s_and_b32 s29, s16, 3
s_add_u32 s28, s28, s29
s_mul_i32 s52, s28, 36
s_mul_i32 s29, s18, 9
s_add_u32 s52, s52, s29
s_mul_i32 s52, s52, 3072
s_add_u32 s62, s52, {EXOFF}
s_and_b32 s29, s16, 4
s_add_u32 s29, s29, s19
s_mul_i32 s29, s29, 3072
s_add_u32 s52, s62, s29
s_add_u32 s63, s62, {8*3072}
s_cmp_eq_u32 s16, s19
s_cselect_b32 s63, s63, {OOB}
s_mov_b32 s27, 0
s_lshl_b32 s30, s11, 5
s_add_u32 s30, s30, s9
s_mul_i32 s30, s30, {FLS}
s_add_u32 s30, s30, {FDOFF}
s_lshl_b32 s31, s2, 3
s_add_u32 s31, s31, s16
s_mul_i32 s31, s31, {FLS}
s_add_u32 s31, s31, {FXOFF}
s_lshl_b32 s32, s28, 2
s_add_u32 s32, s32, s19
s_mul_i32 s32, s32, {8*FLS}
s_add_u32 s32, s32, {FDOFF}
v_and_b32 v2, 7, v0
v_mul_u32_u24 v2, {FLS}, v2
""")
    if wgf:
        k(f"""
{("s_sub_u32 s22, s16, 1@s_cmp_lt_u32 s22, 3@s_cbranch_scc1 " + k.lab('z0')).replace("@", chr(10)) if nw else ""}
s_waitcnt vmcnt(0)
{k.lab('z0')}:
s_barrier
{flag_txt([3], 12)}
""")
    else:
        k(f"""
s_waitcnt vmcnt(0)
{flag_txt([3], 12)}
s_barrier
""")
    late_feed()
    def rd(n, lin=False):
        base = A0 if n < 36 else A1
        j = n % 36
        if lin:
            return [f"ds_read_b128 {v(WF+4*(n%PF),4)}, v{base} offset:{j*1024}", ""]
        ks, u, m = j // 6, (j % 6) // 2, j % 2
        return [f"ds_read_b128 {v(WF+4*(n%PF),4)}, v{base} offset:{u*CB + (2*ks+m)*1024}", ""]
    for n in range(PF - 1):
        for x in rd(n): k(x)
    for i in range(4):
        k(f"v_mov_b32 v{FILL+i}, -1")
    if prio:
        k(f"s_cmp_lt_u32 s16, 4\ns_cbranch_scc1 {k.lab('dp')}\ns_setprio 1")
        k.label("dp")
    if wgf == 1:
        k(f"s_cmp_lg_u32 s16, 1\ns_cbranch_scc1 {k.lab('pcx')}")
    if pre: k(f"s_sleep {pre}")
    poll(k, "pc", 61, FV, 12, 60, sleep=psl)
    if wgf == 1:
        k("s_barrier")
    k.mark(8)
    def h_ops(ks):
        return [f"buffer_load_dwordx4 {hreg(ks,T)}, v{GV}, s[12:15], s20 offen offset:{T*256} {ld}" for T in range(2)] + \
               [f"s_add_u32 s20, s20, { {5: 's34', 11: 's35'}.get(ks, 4*CH) }"]
    def tail(u):
        R = PR + 8*u
        return [f"v_cvt_pk_bf16_f32 v{R}, v{R}, v{R+1}", f"v_cvt_pk_bf16_f32 v{R+1}, v{R+2}, v{R+3}",
                f"v_cvt_pk_bf16_f32 v{R+2}, v{R+4}, v{R+5}", f"v_cvt_pk_bf16_f32 v{R+3}, v{R+6}, v{R+7}\ns_nop 0",
                f"v_permlane16_swap_b32 v{R}, v{R+2}", f"v_permlane16_swap_b32 v{R+1}, v{R+3}",
                f"buffer_store_dwordx4 {v(R,4)}, v{SV}, s[12:15], s21 offen sc1", f"s_add_u32 s21, s21, {65536 if u < 2 else 22*65536}"]
    uid = [0]
    def dma():
        ops = [f"s_add_u32 m0, s24, s{44+n}\ns_add_u32 s22, s51, s{54+n}\nbuffer_load_dwordx4 v1, s[12:15], s22 offen lds" for n in range(5)]
        if nodup:
            uid[0] += 1
            L_ = k.lab(f"nd{uid[0]}")
            ops[4] = f"s_cmp_ge_u32 s16, 4\ns_cbranch_scc1 {L_}\n" + ops[4].replace("buffer_", "BUF_") + f"\n{L_}:"
            ops = [ops[4]] + ops[:4]
        ops.append(f"s_add_u32 s51, s51, s50")
        ops.append(f"s_add_u32 s24, s24, {UB}\ns_cmp_ge_u32 s24, {4*UB}\ns_cselect_b32 s24, 0, s24")
        return ops
    nxt = f"s_add_u32 s26, s26, {UB}\ns_cmp_ge_u32 s26, {4*UB}\ns_cselect_b32 s26, 0, s26"
    fill = [f"buffer_store_dwordx4 {v(FILL,4)}, v1, s[12:15], s52 offen sc1" if 'nofill' not in exp else "s_nop 0", "s_add_u32 s52, s52, 1024"]
    if efill: fill = []
    NV = (6 if efill else 7) - (1 if nodup else 0)
    tot = [2 * LA]; hm = {ks: 2 * ks + 2 for ks in range(LA)}
    def stage(c, f1, f2, f3, pre=0):
        pend = []
        nvm = 0
        for j in range(36):
            if c is None:
                ks, u, m = j // 2, 0, j % 2
            else:
                ks, u, m = 6 * c + j // 6, (j % 6) // 2, j % 2
            hw = c is not None and j % 6 == 0
            if hw and ks + LA < 18:
                pend += h_ops(ks + LA)
            if j % WG == 0:
                w = f"lgkmcnt({PF-1-WG})"
                vm = []
                if hw: vm.append(tot[0] - hm[ks])
                if j == 30 and not ('novm' in exp and c is None): vm.append(nvm)
                if vm: w = f"vmcnt({min(vm)}) " + w
                k("s_waitcnt " + w)
            if j == 30:
                k("s_barrier")
            r = rd(j + PF - 1, lin=(c is None or (c == 2 and j + PF - 1 >= 36)))
            for T in range(2):
                d = v(ACC[u] + (m*2+T)*4, 4)
                k(f"{M} {d}, {v(WF+4*(j%PF),4)}, {hreg(ks,T)}, {'0' if ks == 0 else d}")
                k(r[T])
                if T == 0 and pre and ks >= PS0 and (ks - PS0) % PST == 0 and (ks - PS0) // PST < pre:
                    k(h_ops((ks - PS0) // PST)[m] + ("\n" + h_ops(0)[2] if m else "")); nvm += 1
                if T == 1:
                    x = None
                    if f2 and j % DS == DS - 1: x = f2.pop(0)
                    elif pend: x = pend.pop(0)
                    elif f1: x = f1.pop(0)
                    elif not f2 and f3: x = f3.pop(0)
                    if x:
                        k(x.replace("BUF_", "buffer_")); nvm += x.count("buffer_"); tot[0] += x.count("buffer_")
                        if x.startswith("buffer_load") and "offset:256" in x: hm[len(hm)] = tot[0]
        assert not f1 and not f2 and not f3 and not pend, (f1, f2, f3, pend)
        k(f"v_mov_b32 v{A0}, v{A1}\nv_add_u32 v{A1}, s26, v1")
    def prod(u, slot):
        for h in range(4):
            k(f"v_pk_mul_f32 {v(PR+8*slot+2*h,2)}, {v(ACC[u]+2*h,2)}, {v(ACC[u]+8+2*h,2)}")
    for ks in range(LA):
        for x in h_ops(ks): k(x)
    stage(0, [], [], [nxt])
    for c in (1, 2):
        d_ = dma()
        stage(c, [], d_[:5], d_[5:] + [nxt])
    k("s_mov_b32 s27, 4\ns_lshr_b32 s49, s16, 2\ns_add_u32 s49, s49, 8")
    prod(0, 0); prod(1, 1); k("s_nop 1"); prod(2, 2)
    k.mark(9)
    tl = tail(0) + tail(1) + tail(2)
    d_ = dma()
    stage(None, [tl[2*i] + "\n" + tl[2*i+1] for i in range(12)] + fill, d_[:5], d_[5:] + [nxt])
    k("s_nop 5")
    prod(0, 0)
    k(".p2align 6")
    k.label("dloop")
    d_ = dma()
    stage(None, [f"s_branch {k.lab('dside')}\n{k.lab('dback')}:"] + tail(0) + fill, d_[:5], d_[5:] + [nxt])
    k(f"s_add_u32 s27, s27, 1\ns_cmp_lt_u32 s27, s49\ns_nop 3")
    prod(0, 0)
    k(f"s_cbranch_scc1 {k.lab('dloop')}")
    def last_unit():
        k(f"""
s_lshl_b32 s20, s28, 9
s_mul_i32 s29, s19, {36*4*CH}
s_add_u32 s20, s20, s29
s_add_u32 s20, s20, {HIDOFF}
s_waitcnt vmcnt({NV})
{flag_check(32)}
s_nop 0
s_cbranch_vccz {k.lab('pdx')}
""")
        poll(k, "pd", 32, 2, 32, 60)
        d_ = dma()
        tl = tail(0)
        i0 = len(k.L)
        stage(None, [flag_txt([30], 12)] + [tl[2*i] + "\n" + tl[2*i+1] for i in range(4)] + fill[:1] + d_[:5], [], [], pre=NPF)
        vm = [l for l in k.L[i0:] if "buffer_" in l]
        crit = max(i for i, l in enumerate(vm) if "store" in l or " lds" in l)
        k("s_nop 5")
        prod(0, 0)
        k.mark(10)
        return len(vm) - 1 - crit
    side = f"""
{k.lab('dside')}:
s_cmp_eq_u32 s27, 6
s_cbranch_scc1 {k.lab('ds6')}
s_cmp_eq_u32 s27, 7
s_cbranch_scc1 {k.lab('ds7')}
s_cmp_eq_u32 s27, 4
s_cbranch_scc1 {k.lab('dback')}
{flag_txt([30], 12)}
s_add_u32 s30, s30, {FDL}
s_cmp_lg_u32 s27, 8
s_cbranch_scc1 {k.lab('dback')}
s_waitcnt vmcnt({NV+1})
{flag_check(32)}
s_nop 0
s_cbranch_vccz {k.lab('pgx')}
@POLL@
@EPI@
s_branch {k.lab('dback')}
{k.lab('ds6')}:
s_mov_b32 s52, s63
s_branch {k.lab('dback')}
{k.lab('ds7')}:
s_add_u32 s21, s21, {21*65536}
s_mov_b32 s51, s53
s_mov_b32 s50, {4*36864}
s_mov_b64 s[54:55], s[38:39]
s_mov_b64 s[56:57], s[40:41]
s_mov_b32 s58, s42
buffer_load_dwordx2 v[32:33], v2, s[12:15], s32 offen sc1
s_branch {k.lab('dback')}
"""
    k2 = Kern(k.name, 1, 1, 0, 1)
    poll(k2, "pg", 32, 2, 32, 60)
    side = side.replace("@POLL@", "\n".join(k2.L))
    HC, SS, MU = 36, 48, 58
    epi = f"""
v_and_b32 v60, 31, v0
v_lshrrev_b32 v61, 5, v0
v_mul_u32_u24 v61, {10*8192}, v61
v_lshlrev_b32 v60, 2, v60
v_add_u32 v61, v61, v60
s_mul_i32 s22, s18, 9
s_add_u32 s23, s22, s19
s_lshl_b32 s23, s23, 16
s_lshl_b32 s29, s28, 9
s_add_u32 s29, s29, {HCOFF}
s_add_u32 s23, s23, s29
buffer_load_dwordx4 {v(HC,4)}, v3, s[12:15], s23 offen {ld}
s_add_u32 s23, s23, {4*65536}
buffer_load_dwordx4 {v(HC+4,4)}, v3, s[12:15], s23 offen {ld}
s_add_u32 s22, s22, 8
s_lshl_b32 s23, s22, 16
s_add_u32 s23, s23, s29
buffer_load_dwordx4 {v(HC+8,4)}, v3, s[12:15], s23 offen {ld}
s_lshl_b32 s23, s28, 7
s_add_u32 s29, s23, {MUHOFF}
s_add_u32 s23, s23, {SSQOFF}
buffer_load_dword v{MU}, v60, s[12:15], s29 offen {ld}
""" + "\n".join(f"buffer_load_dword v{SS+j}, v61, s[12:15], s23 offen {ld}\ns_add_u32 s23, s23, 8192" for j in range(10))
    side = side.replace("@EPI@", epi)
    return tail(0), side, last_unit


def phase_e(k, GV, ld, tails, last_unit, PF=9, WG=3, LA=5, tch=False, P3=6, exp='', hl=None, prio=0, sleep=9, ost='sc1', pace='', efill=False):
    ld = ld if hl is None else hl
    SB = UB
    ACC, WF, HV, XV = 16, 208, 112, 11
    FLG = flag_txt([30, 31], 12)
    XL = 3 * SB
    k(f"s_cmp_lt_u32 s16, 4\ns_cbranch_scc1 {k.lab('econs')}")
    k.mark(10)
    assert 5 <= LA <= 8
    def head():
        k("s_and_b32 s33, s16, 3")
        for t in range(4):
            k(f"s_add_u32 s{40+t}, s19, {t}\ns_and_b32 s{40+t}, s{40+t}, 3\ns_lshl_b32 s{44+t}, s{40+t}, 10")
        k(f"s_mul_i32 s29, s33, 6144\ns_add_u32 s29, s29, {XL}\nv_add_u32 v{XV}, s29, v1")
    PR = 88
    TL = 4 * SB
    packs = [x for x in tails if not x.startswith(("buffer", "s_add"))]
    def wissue():
        for n in range(9):
            if pace and n: k(pace)
            if n < 4:
                k(f"s_add_u32 m0, s24, {n*1024}\ns_add_u32 s{48+n}, s23, s{44+n}\nbuffer_load_dwordx4 v1, s[12:15], s{48+n} offen lds")
            elif n < 8:
                k(f"s_add_u32 m0, s24, {n*1024}\ns_add_u32 s25, s{48+n-4}, 4096\nbuffer_load_dwordx4 v1, s[12:15], s25 offen lds")
            else:
                k(f"s_add_u32 m0, s24, {n*1024}\ns_add_u32 s25, s23, 8192\nbuffer_load_dwordx4 v1, s[12:15], s25 offen lds")
        k(f"s_add_u32 s23, s23, {4*36864 if 'hotw' not in exp else 0}\ns_add_u32 s24, s24, {SB}\ns_cmp_ge_u32 s24, {4*SB}\ns_cselect_b32 s24, s22, s24")
    def check(name, soff, voff, vt):
        k(flag_check(vt))
        k(f"s_nop 0\ns_cbranch_vccz {k.lab(name + 'x')}")
        poll(k, name, soff, voff, vt, 60)
    k(f"s_add_u32 s32, s32, {FDL}\nbuffer_load_dwordx2 v[16:17], v2, s[12:15], s32 offen sc1")
    head()
    k(f"""
s_mul_i32 s23, s33, 36864
s_add_u32 s23, s23, s53
s_add_u32 s23, s23, {8*36864 if 'now' not in exp else OOB}
s_mul_i32 s22, s33, 9216
s_add_u32 s24, s22, {3*SB}
""")
    for x in packs: k(x)
    k(f"s_mul_i32 s29, s33, 3072\ns_add_u32 s29, s29, {TL}\nv_add_u32 v5, s29, v1\ns_sub_u32 s29, s21, 2048\ns_barrier")
    for u in range(1):
        k(f"ds_read_b128 {v(PR+8*u+4,4)}, v5 offset:{u*1024}")
    wissue()
    for u in range(1):
        k(f"buffer_store_dwordx4 {v(PR+8*u,4)}, v3, s[12:15], s21 offen sc1\ns_add_u32 s21, s21, 65536")
    k("s_waitcnt lgkmcnt(0)")
    for u in range(1):
        k(f"buffer_store_dwordx4 {v(PR+8*u+4,4)}, v3, s[12:15], s29 offen sc1\ns_add_u32 s29, s29, 65536")
    k.srd(4, 36, S * D * 2)
    k("s_waitcnt vmcnt(11)\ns_barrier")
    check("pe2", 32, 2, 16)
    wissue()
    k(f"s_sub_u32 s26, s30, {4*32*FLS}\ns_sub_u32 s27, s31, {4*FLS}\ns_waitcnt vmcnt(11)\ns_barrier\ns_waitcnt vmcnt(9)")
    k(flag_txt([30, 26, 27] if efill else [30, 26, 31, 27], 12))
    wissue()
    k(f"s_waitcnt vmcnt({12 if efill else 13})\ns_barrier")
    wissue()
    k(f"s_waitcnt vmcnt(9)\ns_barrier\ns_add_u32 s32, s32, {FDL}\nbuffer_load_dwordx2 v[16:17], v2, s[12:15], s32 offen sc1")
    wissue()
    k("s_waitcnt vmcnt(9)")
    check("pe3", 32, 2, 16)
    k("s_barrier")
    wissue()
    k("s_waitcnt vmcnt(9)\ns_barrier")
    wissue()
    HC, SS, MU, OWN, RX, T0, BS = 36, 48, 58, 112, 64, 100, 136
    k(f"""
v_bfe_u32 v10, v0, 1, 2
v_and_b32 v9, 1, v0
v_lshlrev_b32 v9, 2, v9
{'v_lshlrev_b32 v10, 4, v10' if efill else 'v_lshl_add_u32 v10, v10, 4, v9'}
v_mul_u32_u24 v10, {FLS}, v10
s_andn2_b32 s59, s2, 6
s_lshl_b32 s59, s59, 3
s_add_u32 s59, s59, s33
s_mul_i32 s59, s59, {FLS}
s_add_u32 s59, s59, {FXOFF}
buffer_load_dwordx2 v[12:13], v10, s[12:15], s59 offen sc1
v_and_b32 v6, 31, v0
v_lshrrev_b32 v7, 5, v0
s_mul_i32 s54, s18, 9
s_add_u32 s55, s54, s19
s_add_u32 s54, s54, 8
s_waitcnt vmcnt(10)
s_barrier
s_waitcnt vmcnt(0)
""")
    check("px", 59, 10, 12)
    k("s_barrier")
    k(f"""
s_mul_i32 s58, s19, 3072
s_add_u32 s58, s58, s62
s_add_u32 s59, s58, {4*3072}
s_add_u32 s60, s62, {8*3072}
s_cmp_eq_u32 s19, s33
s_cselect_b32 s60, s60, {OOB}
s_mov_b32 s61, 0
v_mul_u32_u24 v8, 1152, v6
v_lshl_add_u32 v8, v7, 4, v8
s_mul_i32 s56, s28, {32*1152}
s_lshl_b32 s57, s55, 5
s_add_u32 s57, s57, s56
s_lshl_b32 s54, s54, 5
s_add_u32 s56, s56, s54
s_mov_b32 s63, {f2u(1.0/D):#x}
""")
    for j in range(1, 10):
        k(f"v_add_f32 v{SS}, v{SS}, v{SS+j}")
    k(f"""
v_mov_b32 v{SS+1}, v{SS}
v_mov_b32 v{SS+2}, {f2u(1e-5):#x}
s_nop 0
v_permlane32_swap_b32 v{SS}, v{SS+1}
v_add_f32 v{SS}, v{SS}, v{SS+1}
v_fma_f32 v{SS}, v{SS}, s63, v{SS+2}
v_rcp_f32 v{SS}, v{SS}
""")
    for i in range(3):
        for d in range(4):
            x = HC + 4*i + d
            k(f"v_lshlrev_b32 v{BS+8*i+2*d}, 16, v{x}\nv_and_b32 v{BS+8*i+2*d+1}, 0xffff0000, v{x}")
    for i in range(24):
        k(f"v_add_f32 v{BS+i}, v{BS+i}, v{MU}")
    k("s_barrier")
    k.mark(11)
    for i in range(6):
        k(f"ds_read_b128 {v(OWN+4*i,4)}, v{XV} offset:{i*1024}")
    k("s_waitcnt lgkmcnt(0)")
    for i in range(3):
        A = OWN + 8*i
        for r in range(4):
            k(f"v_permlane16_swap_b32 v{A+r}, v{A+4+r}")
    if sleep: k(f"s_sleep {sleep}")
    k.label("poll")
    for i in range(3):
        for q in range(3):
            k(f"buffer_load_dwordx4 {v(RX+12*i+4*q,4)}, v1, s[12:15], s{58+i} offen offset:{q*1024} sc1")
    k("s_waitcnt vmcnt(0)")
    k(f"v_max3_u32 v{T0}, v{RX}, v{RX+1}, v{RX+2}")
    k(f"v_max3_u32 v{T0+1}, v{RX+3}, v{RX+4}, v{RX+5}")
    for n, j in enumerate(range(6, 36, 2)):
        k(f"v_max3_u32 v{T0+(n&1)}, v{T0+(n&1)}, v{RX+j}, v{RX+j+1}")
    k(f"""
v_max_u32 v{T0}, v{T0}, v{T0+1}
v_cmp_eq_u32 vcc, -1, v{T0}
s_add_u32 s61, s61, 1
s_cmp_ge_u32 s61, {POLLMAX}
s_cbranch_scc1 {k.lab('got')}
s_cbranch_vccnz {k.lab('poll')}
""")
    k.label("got")
    k.mark(12)
    k("s_waitcnt lgkmcnt(0)")
    for i in range(3):
        if i == 2:
            k(f"s_cmp_lg_u32 s19, s33\ns_cbranch_scc1 {k.lab('fin')}")
        A = OWN + 8*i
        for q in range(3):
            for d in range(4):
                x = RX + 12*i + 4*q + d
                tt = T0 + 2*(d & 1)
                k(f"v_lshlrev_b32 v{tt}, 16, v{x}\nv_and_b32 v{tt+1}, 0xffff0000, v{x}\nv_pk_add_f32 {v(A+2*d,2)}, {v(A+2*d,2)}, {v(tt,2)}")
        for d in range(4):
            b = BS + 8*i + 2*d
            k(f"v_pk_fma_f32 {v(b,2)}, {v(A+2*d,2)}, {v(SS,2)}, {v(b,2)} op_sel_hi:[1,0,1]")
            k(f"v_cvt_pk_bf16_f32 v{HC+4*i+d}, v{b}, v{b+1}")
        so, off = [("s57", 0), ("s57", 128), ("s56", 0)][i]
        k(f"buffer_store_dwordx4 {v(HC+4*i,4)}, v8, s[4:7], {so} offen offset:{off} {ost}")
    k(f"s_branch {k.lab('fin')}")
    k.label("econs")
    hreg = lambda set_, kk, T: v(HV + 4 * (8*set_ + 2*kk + T), 4)
    def h_ops(p):
        return [f"buffer_load_dwordx4 {hreg(p//4,p%4,T)}, v{GV}, s[12:15], s20 offen offset:{T*256} {ld}" for T in range(2)] + \
               [f"s_add_u32 s20, s20, {4*CH if 'hoth' not in exp else 0}"]
    def rd(j):
        base, jj = ("v5", j) if j < 36 else ("v6", j - 36)
        return f"ds_read_b128 {v(WF+4*(j%PF),4)}, {base} offset:{jj*1024}"
    nyoung = last_unit()
    k(f"v_add_u32 v5, {SB}, v1\nv_add_u32 v6, {2*SB}, v1")
    for j in range(PF - 1):
        k(rd(j))
    for x in packs: k(x)
    k(f"s_mul_i32 s29, s16, 3072\ns_add_u32 s29, s29, {TL}\nv_add_u32 v7, s29, v1")
    for u in range(1):
        k(f"ds_write_b128 v7, {v(PR+8*u,4)} offset:{u*1024}")
    head()
    k(f"""
s_mov_b32 s26, {2*SB}
s_mov_b32 s27, 0
s_sub_u32 s52, s33, s19
s_and_b32 s52, s52, 3
s_lshl_b32 s52, s52, 10
s_add_u32 s52, s52, s62
s_add_u32 s52, s52, {8*3072-1024}
s_mov_b32 s53, 0xfffefffe
v_mov_b32 v14, 0
""")
    for i in range(36):
        if i == 24: k(f"s_waitcnt vmcnt({nyoung}) lgkmcnt(0)\ns_barrier")
        k(f"v_pk_mul_f32 {v(ACC+2*i,2)}, {v(14,2)}, {v(14,2)} op_sel_hi:[0,0]")
    k.mark(11)
    k(".p2align 6")
    k.label("eloop")
    for st3 in range(3):
        for kk in range(4):
            p = 4 * st3 + kk
            f = h_ops((p + LA) % 12)
            if p + LA == 12:
                f = [f"s_add_u32 s27, s27, 1\ns_cmp_ge_u32 s27, 3", f"s_cselect_b32 s20, {OOB}, s20"] + f
            if kk == 3:
                f = f + [f"s_add_u32 s26, s26, {SB}\ns_cmp_ge_u32 s26, {4*SB}", "s_cselect_b32 s26, 0, s26"]
            for t in range(9):
                j = 9 * kk + t
                if t % WG == 0:
                    w = f"lgkmcnt({PF-1-WG})"
                    if t == 0:
                        w = f"vmcnt({2*(LA-1)}) " + w
                    k("s_waitcnt " + w)
                if t == 0 and kk == 3:
                    k("s_barrier")
                for T in range(2):
                    d = v(ACC + (2*t+T)*4, 4)
                    k(f"{M} {d}, {v(WF+4*(j%PF),4)}, {hreg(st3,kk,T)}, {d}")
                    if T == 0:
                        k(rd(j + PF - 1))
                    elif f and t >= 1:
                        k(f.pop(0))
            assert not f, f
        k(f"v_mov_b32 v5, v6\nv_add_u32 v6, s26, v1")
        if st3 == 1:
            k(f"s_cmp_eq_u32 s27, 3\ns_cbranch_scc1 {k.lab('elast')}")
    k(f"s_branch {k.lab('eloop')}")
    k.label("elast")
    PKR = HV
    def pack(t, R):
        A0, A1 = ACC + 8*t, ACC + 8*t + 4
        return [f"v_cvt_pk_bf16_f32 v{R}, v{A0}, v{A0+1}\nv_cvt_pk_bf16_f32 v{R+2}, v{A1}, v{A1+1}",
                f"v_cvt_pk_bf16_f32 v{R+1}, v{A0+2}, v{A0+3}\nv_cvt_pk_bf16_f32 v{R+3}, v{A1+2}, v{A1+3}",
                f"v_min_u32 v{R}, s53, v{R}\nv_min_u32 v{R+2}, s53, v{R+2}",
                f"v_min_u32 v{R+1}, s53, v{R+1}\nv_min_u32 v{R+3}, s53, v{R+3}",
                f"v_permlane16_swap_b32 v{R}, v{R+2}",
                f"v_permlane16_swap_b32 v{R+1}, v{R+3}"]
    order = [(0, t) for t in range(8)]
    for t in (1, 2, 3, 5, 6, 7, 8, 0, 4):
        order += [(kk, t) for kk in range(4) if (kk, t) not in order]
    k(f"s_cmp_eq_u32 s19, s33\ns_cselect_b32 s52, {OOB}, s52")
    fq = []; delay = []
    ns = 0
    for n, (kk, t) in enumerate(order):
        left = len(order) - 1 - n
        w = f"lgkmcnt({min(PF - 2, left)})"
        if n == 0: w = f"vmcnt({2*(LA-1)}) " + w
        if n == 8: w = f"vmcnt(0) " + w
        k("s_waitcnt " + w)
        for T in range(2):
            d = v(ACC + (2*t+T)*4, 4)
            k(f"{M} {d}, {v(WF+4*(n%PF),4)}, {hreg(2,kk,T)}, {d}")
            if T == 0 and n + PF - 1 < len(order):
                k2, t2 = order[n + PF - 1]
                k(f"ds_read_b128 {v(WF+4*((n+PF-1)%PF),4)}, v5 offset:{(9*k2+t2)*1024}")
            if fq: k(fq.pop(0))
        fq += delay; delay = []
        if kk == 3 and t not in (0, 4):
            R = PKR + 4*ns; ns += 1
            if t < 8:
                ad = f"s_mul_i32 s29, s{40 + (t & 3)}, 3072\ns_add_u32 s29, s29, s62" + (f"\ns_add_u32 s29, s29, {4*3072}" if t >= 4 else "\ns_nop 0")
                st_ = f"buffer_store_dwordx4 {v(R,4)}, v1, s[12:15], s29 offen offset:{((t & 3) - 1)*1024} sc1"
            else:
                ad = "s_nop 2"; st_ = f"buffer_store_dwordx4 {v(R,4)}, v1, s[12:15], s52 offen sc1"
            pk = pack(t, R)
            delay = [ad + "\n" + pk[0]] + pk[1:5] + [pk[5] + "\n" + st_]
    for x in fq: k(x)
    k.mark(12)
    k("s_nop 4")
    for i, t in ((2, 8), (0, 0), (1, 4)):
        for T in range(2):
            k(f"ds_write_b128 v{XV}, {v(ACC+8*t+4*T,4)} offset:{(2*i+T)*1024}")
    k("s_waitcnt lgkmcnt(0)\ns_barrier")
```

```python
from common import *
from prep import *

SLOT = 34816
XB = 16384
NS = 4
LST = NS * SLOT
LCS = LST + 1024
LNO = LCS + 1024
QSCALE = (DH ** -0.5) * math.log2(math.e)
M = "v_mfma_f32_16x16x32_bf16"

def get_nonce(k, name, vt):
    k(f"s_mov_b32 s60, 0\ns_branch {k.lab(name + 'c')}")
    k.label(name)
    k(f"s_sleep 2\nglobal_load_dwordx2 v[{vt}:{vt+1}], v{vt+2}, s[38:39] sc1\ns_add_u32 s60, s60, 1\ns_waitcnt vmcnt(0)")
    k.label(name + "c")
    k(f"""
v_readfirstlane_b32 s{NLO}, v{vt}
v_readfirstlane_b32 s{NHI}, v{vt+1}
s_cmp_ge_u32 s60, {POLLMAX}
s_cbranch_scc1 {k.lab(name + 'x')}
s_cmp_eq_u32 s{NLO}, 0
s_cbranch_scc1 {k.lab(name)}
""")
    k.label(name + "x")

def phase_a(k, rot="w42", RP=1, tr="", pf=0, cl2=2, NSW=26, wsl=90, nodup=True, wt=0, mix=1):
    assert 8 * (37 - NSW) >= 81
    XV0, XV1, WV = 2, 3, 4
    XR, WR, XA, WA = 8, 10, 12, 14
    LT, LG = 22, 23
    ONE = 24
    WF = [28, 64]
    XF = [100, 108]
    ACC = 116
    T0 = 216
    k(f"""
v_and_b32 v{LT}, 15, v0
v_lshrrev_b32 v{LG}, 4, v0
s_and_b32 s3, s16, 3
s_and_b32 s26, s2, 7
s_lshr_b32 s27, s2, 3
s_lshr_b32 s17, s26, 1
s_lshl_b32 s17, s17, 2
s_and_b32 s50, s27, 3
s_add_u32 s17, s17, s50          ; rb
s_and_b32 s18, s26, 1
s_mul_i32 s18, s18, 6
s_lshr_b32 s51, s27, 2
s_add_u32 s18, s18, s51          ; nb
s_lshl_b32 s48, s17, 2
s_add_u32 s48, s48, s3
s_lshl_b32 s49, s3, 12
s_cmp_ge_u32 s2, 192
s_cbranch_scc1 {k.lab('aux')}
s_cmp_lt_u32 s16, 4
s_cbranch_scc1 {k.lab('acons')}
; ---- producer ----
""")
    if rot == "4":
        k("s_add_u32 s25, s51, s50\ns_and_b32 s25, s25, 3\ns_mul_i32 s25, s25, 9\ns_lshr_b32 s25, s25, 2")
    elif rot == "3":
        k("s_add_u32 s25, s51, s50\ns_mul_i32 s50, s25, 86\ns_lshr_b32 s50, s50, 8\ns_mul_i32 s50, s50, 3\ns_sub_u32 s25, s25, s50\ns_mul_i32 s25, s25, 3")
    elif rot[0] == "w":
        W0, NG = int(rot[1]), int(rot[2])
        k(f"s_add_u32 s61, s51, s50\ns_mul_i32 s50, s61, {65536 // NG + 1}\ns_lshr_b32 s50, s50, 16\ns_mul_i32 s50, s50, {NG}\ns_sub_u32 s61, s61, s50\n"
          f"s_mul_i32 s61, s61, {((9 - W0) * 256) // NG}\ns_add_u32 s61, s61, 128\ns_lshr_b32 s61, s61, 8\ns_add_u32 s61, s61, {W0}\ns_mov_b32 s25, 0")
    elif rot == "0":
        k("s_mov_b32 s25, 0")
    elif rot == "2":
        k("s_add_u32 s25, s51, s50\ns_and_b32 s25, s25, 1\ns_lshl_b32 s25, s25, 2")
    else:
        k("""s_lshl_b32 s25, s51, 1
s_mul_i32 s50, s50, 7
s_add_u32 s25, s25, s50
s_lshr_b32 s50, s26, 1
s_add_u32 s25, s25, s50
s_and_b32 s50, s26, 1
s_mul_i32 s50, s50, 3
s_add_u32 s25, s25, s50
s_mul_i32 s50, s25, 7282
s_lshr_b32 s50, s50, 16
s_mul_i32 s50, s50, 9
s_sub_u32 s25, s25, s50""")
    k(f"""
s_mul_i32 s19, s48, {32*1152}
s_mul_i32 s20, s18, 288
v_lshrrev_b32 v{T0}, 3, v0
v_mul_u32_u24 v{T0}, 1152, v{T0}
v_and_b32 v{T0+1}, 7, v0
v_xor_b32 v{T0+1}, v{T0+1}, v{LG}
v_lshl_add_u32 v{XV0}, v{T0+1}, 4, v{T0}
v_xor_b32 v{T0+1}, 4, v{T0+1}
v_lshl_add_u32 v{XV1}, v{T0+1}, 4, v{T0}
""")
    for n in range(5):
        k(f"s_add_u32 s{52+n}, s3, {4*n}")
        if n == 4:
            k("s_add_u32 s50, s3, 12\ns_cmp_ge_u32 s56, 18\ns_cselect_b32 s56, s50, s56")
        k(f"""
s_lshl_b32 s50, s{52+n}, 6
v_add_u32 v{T0}, s50, v0
v_mul_u32_u24 v{T0+1}, 3641, v{T0}
v_lshrrev_b32 v{T0+1}, 16, v{T0+1}
v_mul_u32_u24 v{T0+2}, 18, v{T0+1}
v_sub_u32 v{T0+2}, v{T0}, v{T0+2}
v_and_b32 v{T0+3}, 0x33, v{T0+1}
v_and_b32 v{T0+4}, 4, v{T0+1}
v_lshl_or_b32 v{T0+3}, v{T0+4}, 1, v{T0+3}
v_bfe_u32 v{T0+4}, v{T0+1}, 3, 1
v_lshl_or_b32 v{T0+3}, v{T0+4}, 2, v{T0+3}
v_mul_u32_u24 v{T0+3}, 3456, v{T0+3}
v_lshl_add_u32 v{WV+n}, v{T0+2}, 4, v{T0+3}
s_lshl_b32 s{52+n}, s{52+n}, 10
s_add_u32 s{52+n}, s{52+n}, {XB}
""")
    if nodup:
        k(f"s_cmp_ge_u32 s3, 2\ns_cselect_b64 vcc, -1, 0\nv_mov_b32 v{T0}, {OOB}\ns_cselect_b32 s59, 0, -1\ns_cselect_b32 s56, {LNO + 1024}, s56\nv_cndmask_b32 v{WV+4}, v{WV+4}, v{T0}, vcc")
    k("s_waitcnt lgkmcnt(0)")
    k.srd(4, 28, S * D * 2)
    k.srd(8, 30, D * 3 * D * 2)
    k.srd(12, 34, WS_BYTES)
    k("s_mov_b32 s23, 0\ns_mov_b32 s24, 0\ns_mov_b32 s57, 0\nv_mov_b32 v12, 0\nv_mov_b32 v13, 0")
    TR = "s_memtime s[62:63]\ns_lshl_b32 m0, s24, 1\ns_waitcnt lgkmcnt(0)\ns_movreld_b32 s60, s62"
    k.label("ploop")
    k(f"""
s_lshl_b32 s21, s25, 7
s_add_u32 s21, s21, s19
s_mul_i32 s22, s25, {64*3456}
s_add_u32 s22, s22, s20
s_add_u32 s50, s49, s23
""")
    for n in range(4):
        k(f"s_add_u32 m0, s50, {n*1024}\ns_add_u32 s51, s21, {n*8*1152}\nbuffer_load_dwordx4 v{XV0 + (n & 1)}, s[4:7], s51 offen lds")
    for n in range(5):
        if n == 4 and nodup:
            k(f"s_and_b32 s51, s23, s59\ns_add_u32 m0, s56, s51\ns_nop 0\nbuffer_load_dwordx4 v{WV+n}, s[8:11], s22 offen lds")
        else:
            k(f"s_add_u32 m0, s{52+n}, s23\ns_nop 0\nbuffer_load_dwordx4 v{WV+n}, s[8:11], s22 offen lds")
    k(f"""
s_add_u32 s25, s25, 1
s_cmp_ge_u32 s25, 9
s_cselect_b32 s25, {int(rot[1]) if rot[0] == "w" else 0}, s25
{("s_cmp_eq_u32 s24, %d@s_cselect_b32 s25, s61, s25" % (int(rot[1]) - 1)).replace("@", chr(10)) if rot[0] == "w" else ""}
s_add_u32 s23, s23, {SLOT}
s_cmp_ge_u32 s23, {NS*SLOT}
s_cselect_b32 s23, 0, s23
s_add_u32 s24, s24, 1
s_cmp_eq_u32 s24, 1
s_cbranch_scc1 {k.lab('ploop')}
s_waitcnt vmcnt(9)
{TR if tr == "a0" else ""}
s_barrier
{TR if tr == "a1" else ""}
s_cmp_eq_u32 s16, 4
s_cbranch_scc1 {k.lab('pside')}
""")
    k.label("pback")
    k(f"""
s_cmp_lt_u32 s24, 9
s_cbranch_scc1 {k.lab('ploop')}
s_cmp_lg_u32 s16, 4
s_cbranch_scc1 {k.lab('pfin')}
buffer_load_dwordx2 v[10:11], v13, s[12:15], s58 offen sc1
s_waitcnt vmcnt(0)
{flag_check(10)}
s_nop 0
s_cbranch_vccz {k.lab('pax')}
s_barrier
s_mov_b32 s57, 1
""")
    k.mark(11)
    poll(k, "pa", 58, 13, 10, 60)
    side = f"""
s_mov_b32 m0, {LST}
s_lshl_b32 s50, s17, 10
s_add_u32 s50, s50, {STOFF}
buffer_load_dwordx4 v1, s[12:15], s50 offen sc1 lds
s_mov_b32 m0, {LCS}
s_mul_i32 s50, s18, 576
s_add_u32 s50, s50, {CSOFF}
buffer_load_dwordx4 v1, s[12:15], s50 offen sc1 lds
"""
    k(side + f"s_cmp_eq_u32 s57, 1\ns_cbranch_scc1 {k.lab('pf2')}\ns_barrier\ns_branch {k.lab('pf2')}")
    k.label("pfin")
    k("s_waitcnt vmcnt(0)\ns_barrier")
    k.label("pf2")
    k(f"s_waitcnt vmcnt(0)\ns_barrier\ns_branch {k.lab('ajoin')}")
    k.label("pside")
    k(f"""
s_cmp_eq_u32 s24, 5
s_cbranch_scc1 {k.lab('ps5')}
s_cmp_lg_u32 s24, 4
s_cbranch_scc1 {k.lab('pback')}
global_load_dwordx2 v[10:11], v12, s[38:39] sc1
s_branch {k.lab('pback')}
""")
    k.label("ps5")
    get_nonce(k, "gn", 10)
    k(f"""
v_mov_b32 v14, {LNO}
ds_write_b64 v14, v[10:11]
s_lshl_b32 s50, s17, 3
v_and_b32 v13, 7, v0
v_add_u32 v13, s50, v13
s_mul_i32 s50, s18, 144
s_add_u32 s51, s50, 143
s_lshr_b32 s50, s50, 6
s_lshr_b32 s51, s51, 6
v_and_b32 v14, 3, v0
v_add_u32 v14, s50, v14
v_min_u32 v14, s51, v14
v_add_u32 v14, 209, v14
v_cmp_gt_u32 vcc, 8, v0
s_mov_b32 s58, {FSOFF}
s_waitcnt lgkmcnt(0)
v_cndmask_b32 v13, v14, v13, vcc
v_mul_u32_u24 v13, {FLS}, v13
s_branch {k.lab('pback')}
""")

    k.label("acons")
    k(f"""
s_cmp_lg_u32 s2, 0
s_cbranch_scc1 {k.lab('an')}
s_cmp_lg_u32 s16, 0
s_cbranch_scc1 {k.lab('an')}
s_memrealtime s[50:51]
s_waitcnt lgkmcnt(0)
s_lshr_b64 s[52:53], s[50:51], 29
s_xor_b32 s52, s52, 0x9e3779b9
s_lshl_b32 s50, s50, 2
s_or_b32 s50, s50, 0x80000000
v_mov_b32 v4, s50
v_mov_b32 v5, s52
v_mov_b32 v6, 0
s_mov_b64 exec, 1
global_store_dwordx2 v6, v[4:5], s[38:39] sc1
s_mov_b64 exec, -1
""")
    k.label("an")
    if pf:
        k(f"""
s_lshr_b32 s52, s26, 1
s_lshl_b32 s52, s52, 3
s_add_u32 s52, s52, s27
s_mul_i32 s52, s52, {64*1152}
v_mul_u32_u24 v2, 1152, v0
s_sub_u32 s53, s27, 8
s_lshl_b32 s53, s53, 6
v_add_u32 v3, s53, v0
v_mul_u32_u24 v4, 4682, v3
v_lshrrev_b32 v4, 16, v4
v_mul_u32_u24 v4, {3456 - 14*128}, v4
v_lshl_add_u32 v3, v3, 7, v4
s_and_b32 s53, s26, 1
s_mul_i32 s53, s53, 1664
s_mov_b32 s54, {64*3456}
s_cmp_lt_u32 s27, 8
s_cselect_b64 vcc, -1, 0
s_cselect_b32 s52, s52, s53
s_cselect_b32 s54, 128, s54
s_waitcnt lgkmcnt(0)
s_cselect_b64 s[4:5], s[28:29], s[30:31]
s_mov_b32 s6, {D*3*D*2}
s_cselect_b32 s6, {S*D*2}, s6
s_mov_b32 s7, 0x20000
v_cndmask_b32 v2, v3, v2, vcc
s_cmp_ge_u32 s27, 22
s_cselect_b32 s52, {OOB}, s52
s_mul_i32 s53, s54, s3
s_add_u32 s21, s52, s53
s_lshl_b32 s22, s54, 2
buffer_load_dword v7, v2, s[4:7], s21 offen
s_add_u32 s21, s21, s22
""")
        if pf == 1:
            k(f"buffer_load_dword v7, v2, s[4:7], s21 offen\ns_add_u32 s21, s21, s22\ns_cmp_eq_u32 s3, 0\ns_cselect_b32 s21, s21, {OOB}\nbuffer_load_dword v7, v2, s[4:7], s21 offen")
    if cl2 == 1:
        k.code_l2(k.name, k.lab("end"), 5, 5, 50)
    k("s_waitcnt lgkmcnt(0)")
    k.srd(12, 34, WS_BYTES)
    VO, VX = 20, 21
    k(f"""
s_lshr_b32 s19, s18, 2           ; which
s_and_b32 s20, s18, 3            ; hg
v_lshrrev_b32 v{T0}, 1, v{LT}
v_xor_b32 v{T0}, v{T0}, v{LG}
v_lshlrev_b32 v{T0}, 4, v{T0}
v_lshl_add_u32 v{T0}, v{LT}, 7, v{T0}
v_add_u32 v{XR}, s49, v{T0}
v_xor_b32 v{XR+1}, 64, v{XR}
v_lshrrev_b32 v{T0}, 5, v0
v_lshlrev_b32 v{T0}, 4, v{T0}
v_bfe_u32 v{T0+1}, v0, 2, 3
v_add_u32 v{T0}, v{T0}, v{T0+1}
v_mul_u32_u24 v{T0}, 288, v{T0}
v_add_u32 v{T0}, {XB}, v{T0}
v_bfe_u32 v{T0+1}, v0, 1, 1
v_mul_u32_u24 v{T0+1}, 40, v{T0+1}
v_and_b32 v{T0+2}, 1, v0
v_lshl_add_u32 v{T0+1}, v{T0+2}, 4, v{T0+1}
v_add_u32 v{WR}, v{T0}, v{T0+1}
v_and_b32 v{T0+2}, 3, v0
v_mul_u32_u24 v{T0+2}, 72, v{T0+2}
v_add3_u32 v{WR+1}, v{T0}, v{T0+2}, 32
s_mov_b32 s55, {KVHEAD}
s_mov_b32 s56, {KVBLK}
s_mov_b32 s60, {KV_K2}
s_mov_b32 s59, 512
s_cmp_eq_u32 s19, 0
s_cselect_b32 s55, {QHEAD}, s55          ; HS
s_cselect_b32 s56, {QBLK}, s56           ; BS
s_cselect_b32 s57, {QOFF}, {KVOFF}
s_cselect_b32 s60, 1024, s60             ; cx
s_cselect_b32 s62, {f2u(QSCALE):#x}, 1.0
s_cmp_eq_u32 s19, 2
s_cselect_b32 s58, {KV_V0}, 0            ; c0
s_cselect_b32 s59, {KV_V1-KV_V0}, s59    ; c1-c0
s_cselect_b32 s60, {KV_V2}, s60
s_cselect_b32 s61, 3, 2
s_mul_i32 s52, s48, s56
s_add_u32 s57, s57, s52
s_lshl_b32 s52, s20, 3
s_mul_i32 s52, s52, s55
s_add_u32 s57, s57, s52
s_add_u32 s60, s60, s57
s_add_u32 s57, s57, s58
v_lshrrev_b32 v{T0+2}, 1, v{LG}
v_mul_lo_u32 v{VO}, v{T0+2}, s55
v_lshlrev_b32 v{VX}, 2, v{VO}
v_and_b32 v{T0+3}, 1, v{LG}
v_mul_lo_u32 v{T0+4}, v{T0+3}, s59
v_lshlrev_b32 v{T0+5}, 4, v{LT}
v_add3_u32 v{VO}, v{VO}, v{T0+4}, v{T0+5}
v_and_b32 v{T0+4}, 31, v0
v_lshlrev_b32 v{T0+4}, s61, v{T0+4}
v_add_u32 v{VX}, v{VX}, v{T0+4}
v_mul_u32_u24 v18, 80, v{T0+2}
v_lshl_add_u32 v18, v{T0+3}, 5, v18
v_add_u32 v18, {LCS}, v18
v_mul_u32_u24 v19, 144, v{LG}
v_add_u32 v19, {LCS + 64}, v19
s_lshl_b32 s52, s3, 8
s_add_u32 s52, s52, {LST}
v_lshl_add_u32 v17, v{LT}, 3, s52
v_mov_b32 v16, 0
""")
    for i in range(36):
        k(f"v_pk_mul_f32 {v(ACC+2*i,2)}, {v(16,2)}, {v(16,2)} op_sel_hi:[0,0]")
    for i in range(2):
        k(f"v_mov_b32 v{XA+i}, v{XR+i}\nv_mov_b32 v{WA+i}, v{WR+i}")

    def reads(ks, buf):
        r = []
        for T in range(2):
            r.append(f"ds_read_b128 {v(XF[buf]+4*T,4)}, v{XA+ks} offset:{T*2048}")
        for t in range(9):
            for i in range(2):
                off = ks * 32 * 288 + i * 8 * 288 + (((t >> 1) * 72 + (t & 1) * 8) if t < 8 else 0)
                r.append(f"ds_read_b64_tr_b16 {v(WF[buf]+4*t+2*i,2)}, v{WA + (1 if t == 8 else 0)} offset:{off}")
        return r

    def half(buf, rd, extra):
        done = 0
        for t in range(9):
            need = 2 + 2 * (t + 1)
            k(f"s_waitcnt lgkmcnt({min(15, 20 - need + done)})")
            for T in range(2):
                d = v(ACC + (2*t+T)*4, 4)
                k(f"{M} {d}, {v(WF[buf]+4*t,4)}, {v(XF[buf]+4*T,4)}, {d}")
                n = 2 if (2*t + T) < 2 + 2*(RP-1) * 4 else 1
                for _ in range(n):
                    if rd:
                        k(rd.pop(0)); done += 1
        assert not rd
        for x in extra: k(x)
    if pf == 2:
        k(f"s_waitcnt vmcnt(0)\nbuffer_load_dword v7, v2, s[4:7], s21 offen\ns_add_u32 s21, s21, s22\ns_cmp_eq_u32 s3, 0\ns_cselect_b32 s21, s21, {OOB}\nbuffer_load_dword v7, v2, s[4:7], s21 offen")
    k.mark(0)
    k("s_barrier")
    k.mark(1)
    for r in reads(0, 0):
        k(r)
    k("s_mov_b32 s24, 0\ns_mov_b32 s25, 0")
    k(".p2align 6")
    k.label("aloop")
    upd = [f"s_add_u32 s24, s24, {SLOT}\ns_cmp_ge_u32 s24, {NS*SLOT}\ns_cselect_b32 s24, 0, s24\ns_add_u32 s25, s25, 1"] + \
          [f"v_add_u32 v{XA+i}, s24, v{XR+i}\nv_add_u32 v{WA+i}, s24, v{WR+i}" for i in range(2)] + ["s_barrier"]
    half(0, reads(1, 1), upd)
    half(1, reads(0, 0), [])
    k(f"s_cmp_lt_u32 s25, 9\ns_cbranch_scc1 {k.lab('aloop')}")
    k.mark(2)
    RS, CS, PK, OUT = 188, 64, 192, 28
    for T in range(2):
        k(f"ds_read_b64 {v(RS+2*T,2)}, v17 offset:{T*128}")
    for t in range(9):
        if t < 8:
            k(f"ds_read_b128 {v(CS+4*t,4)}, v18 offset:{(t>>1)*144 + (t&1)*16}")
        else:
            k(f"ds_read_b128 {v(CS+4*t,4)}, v19")
    k("s_lshl_b32 s56, s55, 1\ns_waitcnt lgkmcnt(7)")
    for T in range(2):
        k(f"v_mul_f32 v{RS+2*T}, s62, v{RS+2*T}\nv_mul_f32 v{RS+2*T+1}, v{RS+2*T}, -v{RS+2*T+1}")
    def fix(acc, cs, T, dst, tmp):
        rs = v(RS+2*T, 2)
        return f"""
v_pk_mul_f32 {v(tmp,2)}, {v(cs,2)}, {rs} op_sel:[0,1] op_sel_hi:[1,1]
v_pk_mul_f32 {v(tmp+2,2)}, {v(cs+2,2)}, {rs} op_sel:[0,1] op_sel_hi:[1,1]
v_pk_fma_f32 {v(tmp,2)}, {v(acc,2)}, {rs}, {v(tmp,2)} op_sel:[0,0,0] op_sel_hi:[1,0,1]
v_pk_fma_f32 {v(tmp+2,2)}, {v(acc+2,2)}, {rs}, {v(tmp+2,2)} op_sel:[0,0,0] op_sel_hi:[1,0,1]
v_cvt_pk_bf16_f32 v{dst[0]}, v{tmp}, v{tmp+1}
v_cvt_pk_bf16_f32 v{dst[1]}, v{tmp+2}, v{tmp+3}
"""
    for j in range(4):
        if j == 1:
            k("s_waitcnt lgkmcnt(0)")
        for T in range(2):
            o = OUT + (2*j+T)*4
            for t in range(2):
                k(fix(ACC + (2*(2*j+t)+T)*4, CS + 4*(2*j+t), T, (o + 2*t, o + 2*t + 1), PK + 4*t))
            k(f"buffer_store_dwordx4 {v(o,4)}, v{VO}, s[12:15], s57 offen offset:{T*256} sc1")
        k("s_add_u32 s57, s57, s56")
    XO = 200
    for T in range(2):
        k(fix(ACC + (16+T)*4, CS + 32, T, (XO + 4*T, XO + 4*T + 2), PK + 4*T))
    for i in range(4):
        k(f"v_mov_b32 v{XO+2*i+1}, 0x3f80")
    k(f"""
v_permlane16_swap_b32 v{XO}, v{XO+4}
v_permlane16_swap_b32 v{XO+2}, v{XO+6}
s_cmp_eq_u32 s19, 2
s_cbranch_scc1 {k.lab('xv')}
""")
    for i in range(4):
        k(f"buffer_store_dword v{XO+2*i}, v{VX}, s[12:15], s60 offen sc1\ns_add_u32 s60, s60, s55")
    k(f"s_branch {k.lab('ajoin')}")
    k.label("xv")
    for i in range(4):
        k(f"buffer_store_dwordx2 {v(XO+2*i,2)}, v{VX}, s[12:15], s60 offen sc1\ns_add_u32 s60, s60, s55")
    k.label("ajoin")
    k.mark(3)
    k(f"""
v_mov_b32 v4, {LNO}
ds_read_b64 v[4:5], v4
s_lshl_b32 s50, s18, 4
s_add_u32 s50, s50, s17
s_mul_i32 s50, s50, {FLS}
s_add_u32 s50, s50, {FAOFF}
s_cmp_lg_u32 s16, 0
s_cselect_b32 s50, {OOB}, s50
s_waitcnt lgkmcnt(0)
v_readfirstlane_b32 s{NLO}, v4
v_readfirstlane_b32 s{NHI}, v5
s_waitcnt vmcnt(0)
s_barrier
""")
    k.mark(12)
    set_flag(k, 50, 4)
    k(f"s_branch {k.lab('aend')}")

    k.label("aux")
    if cl2 == 2:
        k(f"s_cmp_lg_u32 s16, 7\ns_cbranch_scc1 {k.lab('aux2')}\ns_sub_u32 s53, s27, 24")
        k.code_l2_one(k.name, k.lab("end"), 53, 18, 50)
        k.label("aux2")
    for i in range(4):
        k(f"v_mov_b32 v{ONE+i}, 0x3f803f80")
    k("v_mov_b32 v14, 0\nv_mov_b32 v15, 0\nv_mov_b32 v16, 0\ns_waitcnt lgkmcnt(0)")
    k.srd(12, 34, WS_BYTES)
    k(f"""
s_sub_u32 s17, s2, 192
s_mov_b32 s63, {OOB}
s_cmp_lt_u32 s17, 27
s_cbranch_scc1 {k.lab('acs')}
s_sub_u32 s17, s17, 27
s_mul_i32 s18, s16, {NSW}
s_add_u32 s18, s18, s17
s_cmp_ge_u32 s18, 128
s_cselect_b32 s18, 999, s18
s_mul_i32 s19, s16, {37 - NSW}
s_add_u32 s19, s19, s17
s_add_u32 s19, s19, {128 - NSW}
s_cmp_lt_u32 s17, {NSW}
s_cselect_b32 s17, s18, s19      ; job
{"s_sub_u32 s17, s2, 219@s_mul_i32 s18, s16, 37@s_add_u32 s17, s17, s18".replace("@", chr(10)) if mix else ""}
s_cmp_ge_u32 s17, 209
s_cbranch_scc1 {k.lab('aidle')}
s_mul_i32 s63, s17, {FLS}
s_add_u32 s63, s63, {FSOFF}
s_cmp_lt_u32 s17, 128
s_cbranch_scc1 {k.lab('ast')}
""")
    k.srd(24, 32, D * D * 2)
    k("s_barrier")
    k(f"""
s_cmp_ge_u32 s17, 173
s_cbranch_scc1 {k.lab('awb')}
s_sub_u32 s18, s17, 128
s_mov_b32 s50, 1152
s_mov_b32 s54, 36864
s_mov_b32 s55, 1024
s_mov_b32 s52, {36*1152}
s_mov_b32 s56, 8
s_mov_b32 s57, 20
s_mov_b32 s58, 4
s_mul_i32 s19, s18, 7282
s_lshr_b32 s19, s19, 16
s_mul_i32 s20, s19, 9
s_sub_u32 s20, s18, s20
s_mul_i32 s51, s19, {4*36*1152}
s_mul_i32 s53, s19, {4*36864}
s_add_u32 s53, s53, {WOOFF}
s_lshl_b32 s21, s20, 12
s_add_u32 s53, s53, s21
s_cmp_ge_u32 s18, 36
s_cselect_b32 s51, {16*1152}, s51
s_cselect_b32 s52, {288*1152}, s52
s_cselect_b32 s56, 72, s56
s_cselect_b32 s57, 144, s57
s_cselect_b32 s58, 36, s58
s_lshl_b32 s21, s20, 7
s_add_u32 s51, s51, s21
s_lshl_b32 s21, s16, 11
""")
    prep_addr(k, 2, 3, 4, 12, 21)
    prep_loads(k, range(4), 28, 2)
    k("global_load_dwordx2 v[14:15], v16, s[38:39] sc1")
    prep_process(k, 28, 92, 3, 4, total=17)
    k(f"s_branch {k.lab('asyn')}")
    k.label("awb")
    k(f"""
s_sub_u32 s17, s17, 173
s_lshr_b32 s18, s17, 1
s_and_b32 s19, s17, 1
s_mul_i32 s20, s18, 36
s_mul_i32 s21, s19, 20
s_add_u32 s20, s20, s21
v_add_u32 v2, s20, v{LT}
s_sub_u32 s20, s17, 32
s_mul_i32 s20, s20, 144
s_add_u32 s20, s20, 16
v_lshrrev_b32 v3, 2, v{LT}
v_mul_u32_u24 v3, 36, v3
v_and_b32 v4, 3, v{LT}
v_add3_u32 v3, v3, v4, s20
s_cmp_ge_u32 s17, 32
s_cselect_b64 vcc, -1, 0
s_mov_b32 s22, 1
v_cndmask_b32 v2, v2, v3, vcc
s_branch {k.lab('arow')}
""")
    k.label("ast")
    k.srd(24, 28, S * D * 2)
    k(f"s_lshl_b32 s20, s17, 4\nv_add_u32 v2, s20, v{LT}\ns_mov_b32 s22, 0")
    k.label("arow")
    k(f"v_mul_u32_u24 v2, 1152, v2\nv_lshl_add_u32 v2, v{LG}, 4, v2")
    for n in range(18):
        k(f"buffer_load_dwordx4 {v(28+4*n,4)}, v2, s[24:27], 0 offen offset:{n*64}")
    k("global_load_dwordx2 v[14:15], v16, s[38:39] sc1")
    for n in range(18):
        k(f"s_waitcnt vmcnt({18-n})")
        k(f"{M} v[4:7], {v(ONE,4)}, {v(28+4*n,4)}, {'0' if n == 0 else 'v[4:7]'}")
        k(f"{M} v[8:11], {v(28+4*n,4)}, {v(28+4*n,4)}, {'0' if n == 0 else 'v[8:11]'}")
    k(f"""
s_mov_b32 s50, {f2u(1.0/D):#x}
v_and_b32 v12, 1, v0
v_cmp_eq_u32 s[52:53], 1, v12
v_and_b32 v12, 2, v0
v_cmp_eq_u32 s[54:55], 2, v12
v_lshrrev_b32 v12, 2, v{LT}
v_cmp_eq_u32 s[56:57], v12, v{LG}
s_cmp_eq_u32 s22, 0
s_nop 0
v_mul_f32 v5, s50, v4
s_cbranch_scc1 {k.lab('ast2')}
s_lshl_b32 s51, s17, 5
s_add_u32 s51, s51, {WBAROFF}
v_lshlrev_b32 v2, 1, v{LT}
v_cvt_pk_bf16_f32 v6, v5, v5
v_and_b32 v7, 0xffff0000, v6
v_sub_f32 v7, v5, v7
v_cvt_pk_bf16_f32 v7, v7, v7
s_mov_b64 exec, 0xffff
buffer_store_short v6, v2, s[12:15], s51 offen sc1
buffer_store_short v7, v2, s[12:15], s51 offen offset:1152 sc1
s_mov_b64 exec, -1
s_branch {k.lab('asyn')}
""")
    k.label("ast2")
    k(f"""
@EARLY@
v_cndmask_b32 v8, v8, v9, s[52:53]
v_cndmask_b32 v10, v10, v11, s[52:53]
v_cndmask_b32 v8, v8, v10, s[54:55]
v_mul_f32 v9, v5, v5
v_fma_f32 v8, v8, s50, -v9
v_max_f32 v8, 0, v8
v_add_f32 v8, {f2u(1e-5):#x}, v8
v_rsq_f32 v4, v8
s_lshl_b32 s51, s17, 7
s_add_u32 s51, s51, {STOFF}
v_lshlrev_b32 v2, 3, v{LT}
s_mov_b64 exec, s[56:57]
buffer_store_dwordx2 v[4:5], v2, s[12:15], s51 offen sc1
s_mov_b64 exec, -1
s_barrier
s_branch {k.lab('asyn')}
""".replace("@EARLY@", ""))
    k.label("acs")
    k.srd(24, 30, D * 3 * D * 2)
    k(f"""
v_lshrrev_b32 v2, 3, v0
v_mul_u32_u24 v2, 3456, v2
v_and_b32 v3, 7, v0
v_lshl_add_u32 v2, v3, 4, v2
s_mul_i32 s18, s16, {72*3456}
s_lshl_b32 s19, s17, 7
s_add_u32 s18, s18, s19
""")
    for n in range(9):
        k(f"buffer_load_dwordx4 {v(28+4*n,4)}, v2, s[24:27], s18 offen\ns_add_u32 s18, s18, {8*3456}")
    for n in range(9):
        k(f"s_waitcnt vmcnt({8-n if n == 0 else 9-n})")
        if n == 0: k("global_load_dwordx2 v[14:15], v16, s[38:39] sc1")
        for d in range(4):
            if n == 0:
                k(f"v_lshlrev_b32 v{4+2*d}, 16, v{28+d}\nv_and_b32 v{5+2*d}, 0xffff0000, v{28+d}")
            else:
                k(f"v_lshlrev_b32 v12, 16, v{28+4*n+d}\nv_and_b32 v13, 0xffff0000, v{28+4*n+d}\nv_pk_add_f32 {v(4+2*d,2)}, {v(4+2*d,2)}, v[12:13]")
    k(f"""
s_lshl_b32 s18, s16, 11
v_lshl_add_u32 v2, v0, 5, s18
ds_write_b128 v2, v[4:7]
ds_write_b128 v2, v[8:11] offset:16
""")
    k(f"""
s_waitcnt lgkmcnt(0)
s_barrier
s_cmp_lg_u32 s16, 0
s_cbranch_scc1 {k.lab('asyn')}
v_lshlrev_b32 v2, 2, v0
""")
    for i in range(32):
        k(f"ds_read2st64_b32 {v(28+2*i,2)}, v2 offset0:{2*i} offset1:{2*i+1}")
    for i in range(1, 32):
        if i in (1, 17, 25): k(f"s_waitcnt lgkmcnt({ {1: 15, 17: 7, 25: 0}[i] })")
        k(f"v_pk_add_f32 {v(28+2*(i&1),2)}, {v(28+2*(i&1),2)}, {v(28+2*i,2)}" if i > 1 else "")
    k("v_pk_add_f32 v[8:9], v[28:29], v[30:31]")
    k(f"""
v_add_f32 v8, v8, v9
s_lshl_b32 s18, s17, 8
s_add_u32 s18, s18, {CSOFF}
buffer_store_dword v8, v2, s[12:15], s18 offen sc1
s_add_u32 s63, s17, 209
s_mul_i32 s63, s63, {FLS}
s_add_u32 s63, s63, {FSOFF}
""")
    k(f"s_branch {k.lab('asyn')}")
    k.label("aidle")
    k("s_barrier")
    k.label("asyn")
    k.mark(8)
    k("s_waitcnt vmcnt(0)")
    get_nonce(k, "ga", 14)
    k.mark(10)
    k("s_nop 0")
    set_flag(k, 63, 4)
    if wt:
        k(f"""
s_sub_u32 s17, s2, 192
s_cmp_ge_u32 s17, {27 + NSW}
s_cbranch_scc1 {k.lab('awt')}
s_lshl_b32 s17, s17, 3
s_add_u32 s17, s17, s16
s_lshl_b32 s17, s17, 13
v_lshlrev_b32 v2, 7, v0
""")
        for m in range(wt):
            k.srd(24, 40 + 2*m, D * F * 2)
            k("buffer_load_dword v15, v2, s[24:27], s17 offen")
        k.label("awt")
    k("s_barrier")
    k.label("aend")
```

```python
from common import *
from prep import *
from pa import phase_a
KNAME = 'sequential_preLN__softmax_full_mha__glu_gated_bilinear__prompt_kernel'

SCR = KVHEAD
UB = 36864
CB = 12288
HALF = 32 * KVBLK
OST = 163840 - UB
MRG = OST - 25600
MUL = OST - 1024
O2OFF = OOFF + 64 * CH
M16 = "v_mfma_f32_32x32x16_bf16"
M8 = "v_mfma_f32_32x32x8_bf16"
M = "v_mfma_f32_16x16x32_bf16"


def gen_km(diag=False, U=4, upto=9, ld="sc1", dbg="", NO=10, ST=(4, 5, 8, 9), NPRE=8, NF1=12, NF2=36, SL=2, one=True, CR=6, dopt={}, eopt={}, aopt={}, full=0xffff, wsc=True, pl='sc1', ps='sc1', warm=False, b0=False, otch=1, FPC=0, HP=1, efill=True, rot=False, u8=True, zv=False, fc=0, NX=12, NF3=36, qpre=0, qsl=None, bpre=0, bsl=None):
    if efill: dopt = dict(dopt, efill=True); eopt = dict(eopt, efill=True)
    assert ST[3] < NO and ST[0] > 2
    k = Kern(KNAME, 256, 512, 163840, vgpr=256, idx=1, diag=diag, nm=14, mb=64)
    SLEEP[0] = SL
    FULL[0] = full
    PL[0] = pl
    PS[0] = ps
    mk = k.mark
    if dbg == "a":
        late = lambda i: mk(i + 4) if i < 3 else None
    elif dbg == "c":
        late = lambda i: mk(i) if 2 <= i <= 8 else None
    else:
        late = mk
    k.stamp_start()
    AK1, AK2, AV = 2, 3, 4
    BK1 = 8
    SS = [16, 32]
    OO = [48, 96]
    P, K1, K2, V0, V1 = 64, 72, 76, 80, 84
    Q1 = [88, 112]
    Q2 = [92, 116]
    T0 = 118
    DAT, FR, PVS, PVW, PVR = 160, 224, 240, 241, 242
    M2B = 'v_mfma_f32_32x32x4_2b_bf16'
    SP = [16, 128]
    WV = 14
    k(f"""
s_cmp_ge_u32 s2, 256
s_cbranch_scc1 {k.lab('end')}
s_load_dwordx4 s[28:31], s[0:1], {ARG_X}
s_load_dwordx2 s[32:33], s[0:1], {ARG_WO}
s_load_dwordx2 s[34:35], s[0:1], {ARG_WS}
s_load_dwordx2 s[38:39], s[0:1], {ARG_DBG}
s_load_dwordx8 s[40:47], s[0:1], {ARG_WG}
v_lshrrev_b32 v1, 6, v0
v_and_b32 v0, 63, v0
v_readfirstlane_b32 s16, v1
v_lshlrev_b32 v1, 4, v0
s_mov_b32 s95, s16
""")
    if dbg != "a":
        k.mark = lambda i: None
    if dbg in ("a0", "a1"):
        aopt = dict(aopt, tr=dbg); late = lambda i: None
    phase_a(k, **aopt)
    k.mark = late
    k(f"""
s_and_b32 s17, s2, 7
s_lshl_b32 s17, s17, 2
s_bfe_u32 s18, s2, 0x20003
s_add_u32 s17, s17, s18          ; head
s_lshr_b32 s18, s2, 5
s_lshl_b32 s18, s18, 3
s_and_b32 s19, s16, 3
s_lshl_b32 s19, s19, 1
s_add_u32 s18, s18, s19
s_lshr_b32 s33, s16, 2           ; kh
s_mul_i32 s63, s17, {QHEAD}
s_mul_i32 s22, s18, {QBLK}
s_add_u32 s63, s63, s22
s_add_u32 s63, s63, {QOFF}
s_mul_i32 s22, s17, {KVHEAD}
s_lshl_b32 s23, s16, 10
v_and_b32 v{T0}, 31, v0
v_lshrrev_b32 v{T0+8}, 5, v0
v_mul_u32_u24 v{T0+8}, {QBLK}, v{T0+8}
v_lshl_add_u32 v{T0+8}, v{T0}, 2, v{T0+8}
""")
    def piece(off, base="s23"):
        return f"s_add_u32 m0, {base}, {off}\ns_add_u32 s24, s22, m0\nbuffer_load_dwordx4 v1, s[12:15], s24 offen {ld} lds"
    assert (2 * U + 2) * KVBLK <= 24576
    k(f"""
v_and_b32 v{T0+1}, 0x13, v{T0}
v_and_b32 v{T0+2}, 4, v{T0}
v_lshl_or_b32 v{T0+1}, v{T0+2}, 1, v{T0+1}
v_bfe_u32 v{T0+2}, v{T0}, 3, 1
v_lshl_or_b32 v{T0+1}, v{T0+2}, 2, v{T0+1}
v_lshrrev_b32 v{T0+2}, 5, v0
v_lshlrev_b32 v{T0+3}, 9, v{T0+2}
v_lshl_add_u32 v{BK1}, v{T0+1}, 4, v{T0+3}
v_lshlrev_b32 v{BK1+1}, 2, v{T0+1}
v_add_u32 v{BK1+1}, {KV_K2}, v{BK1+1}
v_bfe_u32 v{T0+3}, v0, 2, 2
v_lshl_add_u32 v{T0+3}, v{T0+2}, 3, v{T0+3}
v_and_b32 v{T0+4}, 1, v0
v_mul_u32_u24 v{T0+4}, {KV_V1-KV_V0}, v{T0+4}
v_bfe_u32 v{T0+5}, v0, 1, 1
v_lshl_add_u32 v{T0+4}, v{T0+5}, 3, v{T0+4}
v_add_u32 v{T0+4}, {KV_V0}, v{T0+4}
v_and_b32 v{T0+5}, 16, v0
v_cmp_eq_u32 vcc, 16, v{T0+5}
""")
    for m in range(2):
        for i in range(2):
            k(f"""
v_add_u32 v{T0+5}, {16*m+4*i}, v{T0+3}
v_lshl_add_u32 v{T0+6}, v{T0+5}, 4, v{T0+4}
v_lshlrev_b32 v{T0+5}, 3, v{T0+5}
v_add_u32 v{T0+5}, {KV_V2}, v{T0+5}
{f"v_and_b32 v{T0+7}, 2, v0" + chr(10) + f"v_lshl_add_u32 v{T0+5}, v{T0+7}, 19, v{T0+5}" if zv else ""}
v_cndmask_b32 v{BK1+2+2*m+i}, v{T0+6}, v{T0+5}, vcc
""")
    k(f"""
v_mov_b32 v{K2+1}, 0x3f803f80
v_cmp_gt_u32 s[30:31], 32, v0
s_mul_i32 s32, s33, {NO*U*KVBLK}
s_mul_i32 s3, s33, {(64//U - 2*NO) & 0xffffffff}
s_add_u32 s3, s3, {NO}
s_mov_b32 s48, 1
s_mov_b32 s21, {1 if fc == 2 else 2}
s_mov_b32 s36, s46
s_mov_b32 s37, s47
s_and_b32 s38, s2, 7
s_lshl_b32 s38, s38, 3
s_bfe_u32 s39, s2, 0x30003
s_add_u32 s38, s38, s39
s_lshr_b32 s39, s2, 6
s_xor_b32 s11, s16, 4
s_mul_i32 s49, s39, 9
s_lshl_b32 s19, s11, 1
s_add_u32 s49, s49, s19
s_lshl_b32 s62, s49, 10
s_add_u32 s62, s62, {WOOFF}
s_bfe_u32 s8, s2, 0x10002
s_lshl_b32 s8, s8, 2
s_bfe_u32 s9, s2, 0x20003
s_add_u32 s8, s8, s9
s_and_b32 s9, s2, 3
s_lshl_b32 s9, s9, 3
s_lshr_b32 s10, s2, 5
s_add_u32 s9, s9, s10
s_mul_i32 s10, s9, {9*UB}
s_add_u32 s10, s10, {WGUOFF}
s_lshl_b32 s61, s2, 2
s_add_u32 s61, s61, s16
s_mov_b32 s7, 0x20000
s_mov_b32 s56, 8
s_mov_b32 s57, 16
s_mov_b32 s58, 4
s_mov_b32 s6, {D*F*2}
s_cmp_ge_u32 s61, 648
s_cbranch_scc1 {k.lab('p1')}
s_cmp_ge_u32 s61, 324
s_cselect_b32 s4, s42, s40
s_cselect_b32 s5, s43, s41
s_cselect_b32 s60, 324, 0
s_cselect_b32 s53, 1024, 0
s_sub_u32 s60, s61, s60
s_mul_i32 s19, s60, 3641
s_lshr_b32 s19, s19, 16          ; ks
s_mul_i32 s59, s19, 18
s_sub_u32 s60, s60, s59          ; cg
s_mov_b32 s50, {F*2}
s_mul_i32 s51, s19, {32*F*2}
s_lshl_b32 s59, s60, 9
s_add_u32 s51, s51, s59
s_mov_b32 s52, 128
s_mul_i32 s59, s60, {16*36864}
s_add_u32 s53, s53, s59
s_lshl_b32 s59, s19, 11
s_add_u32 s53, s53, s59
s_add_u32 s53, s53, {WGUOFF}
s_mov_b32 s54, {4*36864}
s_mov_b32 s55, 36864
""")
    for e in range(8):
        k(f"s_add_u32 s{40+e}, s51, {(e//2)*128 + (e&1)*16*F*2}")
    k(f"s_branch {k.lab('pgo')}")
    k.label("p1")
    k(f"""
s_mov_b32 s50, 1152
s_mov_b32 s54, 36864
s_mov_b32 s55, 1024
s_mov_b32 s4, s44
s_mov_b32 s5, s45
s_mov_b32 s52, {32*1152}
s_sub_u32 s60, s61, 648
s_mul_i32 s19, s60, 7282
s_lshr_b32 s19, s19, 16          ; kg = r/9
s_mul_i32 s59, s19, 9
s_sub_u32 s60, s60, s59          ; cs
s_mul_i32 s53, s19, {4*36864}
s_add_u32 s53, s53, {WDOFF}
s_lshl_b32 s59, s60, 12
s_add_u32 s53, s53, s59
; k-slot order: position pos (16 rows) of quarter kq holds unit 72kq + 9*((pos%24)/3) + 3*(pos/24) + pos%3
s_lshl_b32 s51, s60, 7
s_mul_i32 s59, s19, 7282
s_lshr_b32 s59, s59, 16
s_mul_i32 s60, s59, 9
s_sub_u32 s19, s19, s60          ; kg%9
s_mul_i32 s59, s59, {72*16*1152}
s_add_u32 s51, s51, s59
s_mul_i32 s59, s19, 86
s_lshr_b32 s59, s59, 8           ; gamma = (kg%9)/3
s_mul_i32 s60, s59, 3
s_sub_u32 s19, s19, s60
s_lshl_b32 s19, s19, 3           ; pos%24 of the first half block
s_mul_i32 s60, s60, {16*1152}
s_add_u32 s51, s51, s60
""")
    for e in range(8):
        k(f"""
s_add_u32 s59, s19, {e}
s_mul_i32 s60, s59, 86
s_lshr_b32 s60, s60, 8
s_mul_i32 s60, s60, 6
s_add_u32 s59, s59, s60
s_mul_i32 s59, s59, {16*1152}
s_add_u32 s{40+e}, s51, s59
""")
    k.label("pgo")
    k(f"s_lshl_b32 s19, s16, 11\ns_add_u32 s19, s19, {SCR}")
    prep_addr(k, PVS, PVW, PVR, PVR + 1, 19)
    if warm:
        k(f"""
s_lshl_b32 s25, s18, 5
s_add_u32 s25, s25, s17
s_mul_i32 s25, s25, {FLS}
s_add_u32 s25, s25, {FBOFF}
s_add_u32 s26, s25, {32*FLS}
s_mul_i32 s59, s61, {FLS}
s_add_u32 s59, s59, {FPOFF}
s_lshl_b32 s60, s38, 2
s_add_u32 s60, s60, s39
s_mul_i32 s60, s60, {FLS}
s_add_u32 s60, s60, {FCOFF}
s_cmp_lg_u32 s16, 2
s_cselect_b32 s60, {OOB}, s60
s_cmp_lt_u32 s16, 4
s_cselect_b32 s25, s59, s25
s_cselect_b32 s26, s60, s26
v_mov_b32 v16, 0
v_mov_b32 v17, 0
v_lshlrev_b32 v18, 3, v0
""")
    def clears():
        k(f"v_mov_b32 v{P+4}, 0")
        for r in [OO[q] + 2*i for q in range(2) for i in range(8)] + [P + 4, P + 6, V1, V1 + 2]:
            k(f"v_pk_mul_f32 {v(r,2)}, {v(P+4,2)}, {v(P+4,2)} op_sel_hi:[0,0]")
    clears()
    k(f"""
s_cmp_eq_u32 s16, 5
s_cbranch_scc1 {k.lab('q5')}
s_cmp_lg_u32 s16, 4
s_cbranch_scc1 {k.lab('pqx')}
s_lshr_b32 s59, s17, 3
s_lshl_b32 s59, s59, 4           ; hg*16
v_and_b32 v{T0}, 15, v0
v_bfe_u32 v{T0+1}, v0, 4, 1
v_lshl_add_u32 v{T0}, v{T0+1}, 6, v{T0}
v_add_u32 v{T0}, 64, v{T0}
s_lshr_b32 s60, s2, 5
s_lshl_b32 s60, s60, 1
v_and_b32 v{T0+1}, 1, v0
v_add_u32 v{T0+1}, s60, v{T0+1}
s_mul_i32 s59, s59, {FLS}
s_add_u32 s59, s59, {FAOFF}
v_cndmask_b32 v{T0}, v{T0+1}, v{T0}, s[30:31]
s_branch {k.lab('q6')}
""")
    k.label("q5")
    k(f"""
; lanes 0..14: Wo jobs 128 + (l/3)*9 + cs0 + l%3 ; 15..50: wbar jobs ; 51..: statistics 2tb + (l&1)
s_mul_i32 s60, s39, 9
s_lshr_b32 s60, s60, 2
s_add_u32 s60, s60, 128
v_mul_u32_u24 v{T0}, 21846, v0
v_lshrrev_b32 v{T0}, 16, v{T0}
v_mad_u32_u24 v{T0}, v{T0}, 6, v0
v_add_u32 v{T0}, s60, v{T0}
v_add_u32 v{T0+1}, {173-15}, v0
v_cmp_gt_u32 vcc, 15, v0
s_lshl_b32 s60, s38, 1
v_and_b32 v{T0+2}, 1, v0
v_cndmask_b32 v{T0}, v{T0+1}, v{T0}, vcc
v_cmp_gt_u32 vcc, 51, v0
v_add_u32 v{T0+2}, s60, v{T0+2}
s_mov_b32 s59, {FSOFF}
v_cndmask_b32 v{T0}, v{T0+2}, v{T0}, vcc
""")
    k.label("q6")
    k(f"v_mul_u32_u24 v{T0}, {FLS}, v{T0}")
    if qpre: k(f"s_sleep {qpre}")
    poll(k, "pq", 59, T0, T0 + 2, 60, sleep=qsl)
    k("s_barrier")
    if dbg == "a": mk(7)
    QL = f"""
buffer_load_dwordx4 {v(Q1[0],4)}, v1, s[12:15], s63 offen {ld}
buffer_load_dword v{Q2[0]}, v{T0+8}, s[12:15], s63 offen offset:1024 {ld}
buffer_load_dwordx4 {v(Q1[1],4)}, v1, s[12:15], s63 offen offset:{QBLK} {ld}
"""
    k(piece(0))
    if fc:
        k(f"s_cmp_lg_u32 s33, 0\ns_cbranch_scc1 {k.lab('nq')}")
    k(QL)
    k.label("nq")
    k(piece(8192))
    if fc < 2: k(piece(16384))
    k(f"s_waitcnt vmcnt(0)\ns_barrier")
    if warm:
        k("s_mov_b64 exec, 0xffff\nbuffer_store_dwordx2 v[16:17], v18, s[12:15], s25 offen sc1\nbuffer_store_dwordx2 v[16:17], v18, s[12:15], s26 offen sc1\ns_mov_b64 exec, -1")
    k.mark(0)
    k(f"""
s_setprio 1
s_cmp_eq_u32 s33, 0
s_cbranch_scc1 {k.lab('restart')}
s_setprio 0
s_mov_b32 s21, 99
s_add_u32 s23, s23, {(24576 if fc < 2 else 16384) - 4096}
""")
    if fc: k(QL)
    for n in range(NPRE):
        k(piece(n * 4096))
    k(f"s_add_u32 s23, s23, {NPRE*4096}")
    if fc: k(f"s_waitcnt vmcnt({NPRE})")
    B0B = (f"s_cmp_lg_u32 s48, 1\ns_cbranch_scc1 {k.lab('b0b')}\ns_waitcnt vmcnt({NPRE + (1 if warm else 0)})\ns_cmp_lg_u32 s33, 0\ns_cbranch_scc1 {k.lab('b0a')}\n"
           f"s_waitcnt vmcnt({1 if warm else 0})\n{k.lab('b0a')}:\ns_barrier\n{k.lab('b0b')}:")
    k.label("restart")
    k(f"""
v_mov_b32 v{Q2[0]+1}, 0
v_mov_b32 v{T0}, 0xff800000
v_mov_b32 v{T0+1}, 0xff800000
v_mov_b32 v{AK1}, v{BK1}
v_mov_b32 v{AK2}, v{BK1+1}
s_mov_b32 s20, s48
""")
    k.label("mx")
    k(f"""
ds_read_b128 {v(K1,4)}, v{AK1}
ds_read_b32 v{K2}, v{AK2}
v_add_u32 v{AK1}, {KVBLK}, v{AK1}
v_add_u32 v{AK2}, {KVBLK}, v{AK2}
s_waitcnt lgkmcnt(0)
{M16} {v(SS[0],16)}, {v(K1,4)}, {v(Q1[0],4)}, 0
{M16} {v(SS[1],16)}, {v(K1,4)}, {v(Q1[1],4)}, 0
s_sub_u32 s20, s20, 1
s_nop 8
{M2B} {v(SS[0],32)}, {v(K2,2)}, {v(Q2[0],2)}, {v(SS[0],32)}
s_nop 15
s_nop 3
""")
    for q in range(2):
        for i in range(8):
            k(f"v_max3_f32 v{T0+q}, v{T0+q}, v{SS[q]+2*i}, v{SS[q]+2*i+1}")
    k(f"""
s_cmp_lg_u32 s20, 0
s_cbranch_scc1 {k.lab('mx')}
v_mov_b32 v{T0+2}, v{T0}
v_mov_b32 v{T0+3}, v{T0+1}
""")
    for i in range(6):
        k(f"v_add_u32 v{AK1+i}, s32, v{BK1+i}")
    k(f"""
v_permlane32_swap_b32 v{T0}, v{T0+2}
v_permlane32_swap_b32 v{T0+1}, v{T0+3}
{B0B if b0 else ""}
s_and_b32 s19, s33, s48
s_cbranch_scc0 {k.lab('kvx')}
""")
    if fc == 2:
        for n in range(NX):
            k(piece(n * 4096))
        k(f"s_add_u32 s23, s23, {NX*4096}\ns_waitcnt vmcnt({NPRE + NX - 2})\ns_barrier")
    k.label("kv")
    k(piece(0))
    k(f"""
s_add_u32 s23, s23, 4096
s_cmp_lt_u32 s23, {KVHEAD}
s_cbranch_scc1 {k.lab('kv')}
s_waitcnt vmcnt(0)
s_barrier
""")
    WC = 112
    def wcreg(ks, sl):
        i = 2 * ks + sl
        return 160 + 4 * i if i < 24 else WC + 4 * (i - 24)
    for ks in range(12):
        for sl in range(2):
            k(f"buffer_load_dwordx4 {v(wcreg(ks,sl),4)}, v1, s[12:15], s62 offen offset:{sl*1024}")
        k("s_add_u32 s62, s62, 36864")
    if otch:
        k.srd(24, 36, S * D * 2)
        k(f"""
s_lshl_b32 s59, s11, 8
s_add_u32 s59, s59, s2
s_lshl_b32 s59, s59, 13
v_lshlrev_b32 v14, 7, v0
buffer_load_dword v15, v14, s[24:27], s59 offen {otch if otch != 1 else ""}
""")
    k.label("kvx")
    V1B = [T0 + 6, V1]
    k(f"""
ds_read_b128 {v(K1,4)}, v{AK1}
ds_read_b32 v{K2}, v{AK2}
ds_read_b64_tr_b16 {v(V0,2)}, v{AV}
ds_read_b64_tr_b16 {v(V1B[0],2)}, v{AV+2}
ds_read_b64_tr_b16 {v(V1B[0]+2,2)}, v{AV+3}
v_max_f32 v{T0}, v{T0}, v{T0+2}
v_max_f32 v{T0+1}, v{T0+1}, v{T0+3}
v_cndmask_b32 v{T0}, v{T0+1}, v{T0}, s[30:31]
s_waitcnt lgkmcnt(4)
{M16} {v(SS[0],16)}, {v(K1,4)}, {v(Q1[0],4)}, 0
{M16} {v(SS[1],16)}, {v(K1,4)}, {v(Q1[1],4)}, 0
ds_read_b128 {v(K1,4)}, v{AK1} offset:{KVBLK}
v_sub_f32 v{T0}, 0, v{T0}
v_cvt_pk_bf16_f32 v{T0+4}, v{T0}, v{T0}
v_and_b32 v{T0+4}, 0xffff0000, v{T0+4}
v_sub_f32 v{T0+5}, v{T0}, v{T0+4}
v_cvt_pk_bf16_f32 v{Q2[0]+1}, v{T0+4}, v{T0+5}
s_waitcnt lgkmcnt(4)
s_nop 2
{M2B} {v(SS[0],32)}, {v(K2,2)}, {v(Q2[0],2)}, {v(SS[0],32)}
ds_read_b32 v{K2}, v{AK2} offset:{KVBLK}
s_nop 15
s_nop 1
s_waitcnt lgkmcnt(0)
""")
    k.mark(1)
    k(".p2align 6")
    k.label("loop")
    UU = 2 * U if u8 else U
    ret = lambda it: k.lab("mid" if (u8 and it % 2) else "loop")
    assert not u8 or NO % 2 == 0
    for t in range(UU):
        if t == U:
            k(f"s_cbranch_scc1 {k.lab('stub')}")
            k.label("mid")
        b = t & 1
        cp, np_ = SP[b], SP[1-b]
        at = {
            (0, 1): f"{M16} {v(OO[1],16)}, {v(V1B[1-b],4)}, {v(P+4,4)}, {v(OO[1],16)}\nds_read_b64_tr_b16 {v(V0+2,2)}, v{AV+1} offset:{t*KVBLK}",
            (0, 5): f"{M2B} {v(np_,32)}, {v(K2,2)}, {v(Q2[0],2)}, 0\nds_read_b32 v{K2}, v{AK2} offset:{(t+2)*KVBLK}",
            (0, 13): f"s_waitcnt lgkmcnt(0)\n{M16} {v(OO[0],16)}, {v(V0,4)}, {v(P,4)}, {v(OO[0],16)}"
                     + ("\ns_add_u32 s20, s20, 1\ns_cmp_eq_u32 s20, s21" if t % U == U - 1 else ""),
            (1, 1): f"{M16} {v(OO[0],16)}, {v(V1B[b],4)}, {v(P+4,4)}, {v(OO[0],16)}\nds_read_b64_tr_b16 {v(V1B[1-b],2)}, v{AV+2} offset:{(t+1)*KVBLK}",
            (1, 5): f"{M16} {v(np_,16)}, {v(K1,4)}, {v(Q1[0],4)}, {v(np_,16)}\nds_read_b64_tr_b16 {v(V1B[1-b]+2,2)}, v{AV+3} offset:{(t+1)*KVBLK}",
            (1, 9): f"{M16} {v(np_+16,16)}, {v(K1,4)}, {v(Q1[1],4)}, {v(np_+16,16)}\nds_read_b128 {v(K1,4)}, v{AK1} offset:{(t+2)*KVBLK}",
            (1, 13): f"{M16} {v(OO[1],16)}, {v(V0,4)}, {v(P,4)}, {v(OO[1],16)}\nds_read_b64_tr_b16 {v(V0,2)}, v{AV} offset:{(t+1)*KVBLK}",
        }
        for ph in range(2):
            cur = cp + 16 * ph
            for i in range(16):
                k(f"v_exp_f32 v{cur+i}, v{cur+i}")
                if (ph, i) in at: k(at[(ph, i)])
                if i % 4 == 3:
                    j = i // 2 - 1
                    k(f"v_cvt_pk_bf16_f32 v{P+j}, v{cur+2*j}, v{cur+2*j+1}\nv_cvt_pk_bf16_f32 v{P+j+1}, v{cur+2*j+2}, v{cur+2*j+3}")
    for i in range(6):
        k(f"v_add_u32 v{AK1+i}, {UU*KVBLK}, v{AK1+i}")
    k(f"""
s_cbranch_scc1 {k.lab('stub')}
s_cmp_lt_u32 s20, s3
s_cbranch_scc1 {k.lab('loop')}
{M16} {v(OO[1],16)}, {v(V1,4)}, {v(P+4,4)}, {v(OO[1],16)}
""")
    k.mark(2)
    BADF = 16384
    k(f"""
s_setprio 0
s_waitcnt lgkmcnt(0)
s_and_b32 s19, s16, 3
s_lshl_b32 s24, s19, 12
v_add_u32 v{T0+2}, s24, v1
s_lshl_b32 s24, s19, 11
s_add_u32 s24, s24, {SCR}
v_add_u32 v{T0+3}, s24, v1
v_mov_b32 v{T0+4}, {BADF}
s_waitcnt lgkmcnt(0)
s_cmp_eq_u32 s48, 1
s_cbranch_scc1 {k.lab('x0')}
s_barrier
""")
    k.label("x0")
    k(f"s_cmp_lg_u32 s33, 0\ns_cbranch_scc1 {k.lab('xy')}")
    for q in range(2):
        for j in range(2):
            k(f"ds_write_b128 v{T0+2}, {v(OO[q]+4*j,4)} offset:{(2*q+j)*1024}")
        k(f"ds_write_b128 v{T0+3}, {v(OO[q]+8,4)} offset:{q*1024}")
    k(f"""
s_cmp_lg_u32 s21, 98
s_cbranch_scc1 {k.lab('x1')}
s_mov_b32 s21, 99
s_mul_i32 s59, s61, {FLS}
s_add_u32 s59, s59, {FPOFF}
s_waitcnt vmcnt(0)
""")
    set_flag(k, 59, T0 + 6)
    k(f"""
v_and_b32 v{T0+6}, 1, v0
v_mul_u32_u24 v{T0+6}, 1152, v{T0+6}
v_lshrrev_b32 v{T0+7}, 4, v0
v_lshl_add_u32 v{T0+6}, v{T0+7}, 4, v{T0+6}
s_mul_i32 s60, s39, 9216
s_add_u32 s60, s60, {WOOFF + 8192}
s_mov_b32 s59, 36864
s_bitcmp1_b32 s16, 0
s_cselect_b32 s60, {WBAROFF}, s60
s_cselect_b32 s59, 64, s59
s_cselect_b64 vcc, -1, 0
s_lshr_b32 s58, s16, 1
s_add_u32 s57, s58, 16
s_mul_i32 s57, s57, s59
s_add_u32 s57, s57, s60
s_lshl_b32 s58, s58, 3
s_mul_i32 s58, s58, s59
s_add_u32 s60, s60, s58
v_cndmask_b32 v{T0+6}, v1, v{T0+6}, vcc
""")
    for i in range(8):
        k(f"buffer_load_dwordx4 {v(160+4*i,4)}, v{T0+6}, s[12:15], s60 offen\ns_add_u32 s60, s60, s59")
    k(f"buffer_load_dwordx4 {v(192,4)}, v{T0+6}, s[12:15], s57 offen")
    if efill:
        k(f"""
s_and_b32 s57, s2, 1
s_lshl_b32 s57, s57, 3
s_bfe_u32 s58, s2, 0x30003
s_add_u32 s57, s57, s58
s_lshl_b32 s57, s57, 2
s_add_u32 s57, s57, s16
s_mul_i32 s57, s57, 36
s_mul_i32 s58, s39, 9
s_add_u32 s57, s57, s58
s_mul_i32 s57, s57, 3072
s_add_u32 s57, s57, {EXOFF}
s_bfe_u32 s58, s2, 0x20001
s_mul_i32 s59, s58, 3072
s_add_u32 s59, s59, s57
s_add_u32 s60, s59, {4*3072}
s_add_u32 s57, s57, {8*3072}
""")
        for i in range(4):
            k(f"v_mov_b32 v{SS[0]+i}, -1")
        for so in (59, 60, 57):
            if so == 57:
                k(f"s_cmp_lg_u32 s58, s16\ns_cbranch_scc1 {k.lab('x1')}")
            for i in range(3):
                k(f"buffer_store_dwordx4 {v(SS[0],4)}, v1, s[12:15], s{so} offen offset:{i*1024} sc1")
    k.label("x1")
    k.mark(3)
    k(f"s_waitcnt lgkmcnt(0)\ns_barrier\ns_branch {k.lab('x2')}")
    k.label("xy")
    k(f"""
s_lshl_b32 s24, s17, 16
s_lshl_b32 s23, s18, 9
s_add_u32 s24, s24, s23
s_add_u32 s24, s24, {OOFF}
s_lshl_b32 s19, s18, 5
s_add_u32 s19, s19, s17
s_lshl_b32 s23, s19, 7
s_add_u32 s23, s23, {O2OFF}
s_add_u32 s22, s23, 4096
s_mul_i32 s19, s19, {FLS}
s_add_u32 s19, s19, {FBOFF}
s_add_u32 s25, s19, {32*FLS}
s_mov_b32 s26, {f2u(2.0**60):#x}
v_and_b32 v{T0+1}, 31, v0
v_lshrrev_b32 v{T0+5}, 5, v0
v_lshlrev_b32 v{T0+1}, 4, v{T0+1}
v_lshl_add_u32 v{T0+5}, v{T0+5}, 15, v{T0+1}
v_lshlrev_b32 v{T0+1}, 2, v0
""")
    k.mark(3)
    k("s_barrier")
    for q in range(2):
        k(f"ds_read_b128 {v(SS[q]+8,4)}, v{T0+3} offset:{q*1024}")
        for j in range(2):
            k(f"ds_read_b128 {v(SS[q]+4*j,4)}, v{T0+2} offset:{(2*q+j)*1024}")
    for q in range(2):
        O = OO[q]
        PQ = [P, V0][q]
        k(f"s_waitcnt lgkmcnt({5 - 3*q})\nv_add_f32 v{O+10}, v{O+10}, v{SS[q]+10}\nv_rcp_f32 v{T0+6+q}, v{O+10}\ns_waitcnt lgkmcnt({3 - 3*q})")
        for i in range(5):
            k(f"v_pk_add_f32 {v(O+2*i,2)}, {v(O+2*i,2)}, {v(SS[q]+2*i,2)}")
        for i in range(5):
            k(f"v_pk_mul_f32 {v(O+2*i,2)}, {v(O+2*i,2)}, {v(T0+6,2)} op_sel:[0,{q}] op_sel_hi:[1,{q}]")
        for i in range(5):
            k(f"v_cvt_pk_bf16_f32 v{PQ+i}, v{O+2*i}, v{O+2*i+1}")
        k(f"""
buffer_store_dwordx4 {v(PQ,4)}, v{T0+5}, s[12:15], s24 offen offset:{q*512} sc1
s_mov_b64 exec, s[30:31]
buffer_store_dword v{PQ+4}, v{T0+1}, s[12:15], s{23-q} offen sc1
s_mov_b64 exec, -1
""")
    k(f"""
v_add_f32 v{T0}, v{OO[0]+10}, v{OO[1]+10}
v_cmp_ngt_f32 vcc, s26, v{T0}
s_lshl_b32 s26, s16, 2
s_add_u32 s26, s26, {BADF - 16}
v_mov_b32 v{T0}, s26
s_cmp_lg_u64 vcc, 0
s_cselect_b32 s26, 1, 0
v_mov_b32 v{T0+2}, s26
ds_write_b32 v{T0}, v{T0+2}
s_waitcnt lgkmcnt(0)
""")
    k.label("x2")
    if dbg == "c": mk(0)
    k(f"""
s_barrier
ds_read_b128 {v(K1,4)}, v{T0+4}
s_waitcnt lgkmcnt(0)
v_or3_b32 v{K1}, v{K1}, v{K1+1}, v{K1+2}
v_or_b32 v{K1}, v{K1}, v{K1+3}
s_nop 0
v_readfirstlane_b32 s26, v{K1}
s_and_b32 s26, s26, s48
s_cmp_eq_u32 s26, 1
s_cbranch_scc1 {k.lab('fallback')}
""")
    if dbg == "c": mk(1)
    LT, LG = 2, 3
    GV = 4
    XV, W1V, FV = 5, 6, 7
    ACC, OF, X, MU = 16, 32, 48, 56
    TC = 60
    k.srd(4, 28, S * D * 2)
    k(f"""
v_and_b32 v{LT}, 15, v0
v_lshrrev_b32 v{LG}, 4, v0
v_lshlrev_b32 v{GV}, 15, v{LG}
v_lshl_add_u32 v{GV}, v{LT}, 4, v{GV}
v_and_b32 v{FV}, 31, v0
v_mul_u32_u24 v{FV}, {FLS}, v{FV}
v_mul_u32_u24 v{XV}, 1152, v{LT}
v_lshl_add_u32 v{XV}, v{LG}, 3, v{XV}
v_lshlrev_b32 v{W1V}, 2, v{LT}
s_mul_i32 s24, s38, {32*1152}
s_lshl_b32 s23, s49, 5
s_add_u32 s24, s24, s23
s_add_u32 s23, s24, {16*1152}
s_lshl_b32 s26, s38, 7
s_lshl_b32 s27, s38, 8
s_add_u32 s27, s27, {STOFF + 4}
v_lshlrev_b32 v9, 3, v{LT}
s_cmp_lt_u32 s16, 2
s_cbranch_scc1 {k.lab('ppx')}
s_cmp_lt_u32 s16, 4
s_cbranch_scc1 {k.lab('cfp')}
s_waitcnt vmcnt(0)
{flag_txt([19, 25], TC)}
s_branch {k.lab('ppx')}
{k.lab('cfp')}:
; waves 2,3: re-layout jobs read by phases D/E.  lanes 0..35: job = lane*18 + cg ; lanes 36..: 648 + (9kq + j/3)*9 + cs0 + j%3
s_mul_i32 s59, s9, 9
s_sub_u32 s60, s16, 2
s_lshl_b32 s60, s60, 3
s_add_u32 s59, s59, s60
s_lshr_b32 s55, s59, 4           ; cg
s_bfe_u32 s59, s2, 0x20001
s_mul_i32 s59, s59, 81
s_mul_i32 s60, s39, 9
s_lshr_b32 s60, s60, 2
s_add_u32 s59, s59, s60
s_add_u32 s59, s59, 648
v_subrev_u32 v9, 36, v0
v_min_u32 v9, 26, v9
v_mul_u32_u24 v10, 21846, v9
v_lshrrev_b32 v10, 16, v10
v_mad_u32_u24 v9, v10, 6, v9
v_add_u32 v9, s59, v9
v_mul_u32_u24 v10, 18, v0
v_add_u32 v10, s55, v10
v_cmp_gt_u32 vcc, 36, v0
s_mov_b32 s59, {FPOFF}
s_nop 0
v_cndmask_b32 v11, v9, v10, vcc
v_mul_u32_u24 v11, {FLS}, v11
""")
    poll(k, "pp", 59, 11, TC, 60)
    k.mark(4)
    k(f"s_barrier\ns_cmp_gt_u32 s11, 4\ns_cbranch_scc1 {k.lab('cnx')}")
    for T in range(2):
        for i in range(2):
            k(f"buffer_load_dwordx2 {v(X+2*(2*i+T),2)}, v{XV}, s[4:7], s{[24,23][T]} offen offset:{i*32}")
        k(f"buffer_load_dword v{MU+T}, v9, s[12:15], s27 offen offset:{T*128} {ld}")
    k(f"s_cmp_eq_u32 s11, 4\ns_cbranch_scc1 {k.lab('cnx')}")
    for ks in range(12, 18):
        for sl in range(2):
            k(f"buffer_load_dwordx4 {v(wcreg(ks,sl),4)}, v1, s[12:15], s62 offen offset:{sl*1024}")
        k("s_add_u32 s62, s62, 36864")
    k.label("cnx")
    k(f"""
s_mul_i32 s59, s38, {32*FLS}
s_add_u32 s59, s59, {FBOFF}
s_lshl_b32 s57, s38, 9
s_add_u32 s57, s57, {OOFF}
s_lshr_b32 s58, s16, 1
s_lshl_b32 s58, s58, 17
s_add_u32 s57, s57, s58
s_and_b32 s58, s16, 1
s_lshl_b32 s58, s58, 8
s_add_u32 s57, s57, s58
s_lshl_b32 s58, s16, 10
s_lshl_b32 s56, s38, 12
s_add_u32 s56, s56, s58
s_add_u32 s56, s56, {O2OFF}
s_add_u32 s58, s58, {OST}
v_add_u32 v{XV}, {OST}, v1
v_lshlrev_b32 v8, 9, v{LG}
v_add3_u32 v8, v8, v{W1V}, s58
""".replace("v_add3_u32 v8, v8, v{W1V}, s58".format(W1V=W1V), f"v_add_u32 v8, v8, v{W1V}\nv_add_u32 v8, {OST + 32768}, v8"))
    k(f"""
s_add_u32 s47, s8, s9
s_mul_i32 s46, s47, 21846
s_lshr_b32 s46, s46, 16
s_mul_i32 s46, s46, 3
s_sub_u32 s47, s47, s46
{"" if rot else "s_mov_b32 s47, 0"}
s_mul_i32 s40, s47, {CB}
s_add_u32 s41, s40, {CB}
s_cmp_ge_u32 s41, {UB}
s_cselect_b32 s41, 0, s41
s_add_u32 s42, s41, {CB}
s_cmp_ge_u32 s42, {UB}
s_cselect_b32 s42, 0, s42
s_mov_b32 s43, s47
""")
    def feed(p0, p1):
        k(f"s_mul_i32 s22, s34, {UB}\ns_add_u32 s22, s22, s10\ns_mul_i32 s34, s34, {CB}")
        for p_ in range(p0, p1):
            if p_ % 4 == 0:
                k(f"s_add_u32 m0, s34, {(p_//12)*UB + (p_%12)*1024}\ns_add_u32 s35, s22, s{40 + p_//12}\ns_add_u32 s35, s35, {(p_%12)*1024}")
            k(f"buffer_load_dwordx4 v1, s[12:15], s35 offen offset:{(p_%4)*1024} lds")
            if FPC and p0 == 0: k(f"s_waitcnt vmcnt({FPC})")
    k(f"""
s_cmp_ge_u32 s16, 4
s_cbranch_scc1 {k.lab('pbx')}
s_cmp_eq_u32 s16, 1
s_cbranch_scc1 {k.lab('pb0')}
s_sub_u32 s34, s16, 1
s_max_i32 s34, s34, 0
""")
    feed(0, NF1)
    k(f"s_branch {k.lab('pbx')}")
    k.label("pb0")
    if bpre: k(f"s_sleep {bpre}")
    poll(k, "pb", 59, FV, TC, 60, sleep=bsl)
    k("s_barrier")
    k.mark(5)
    for n in range(4):
        k(f"s_add_u32 m0, s58, {n*8192}\ns_add_u32 s62, s57, {n*4*4*CH}\nbuffer_load_dwordx4 v{GV}, s[12:15], s62 offen {ld} lds")
    k(f"s_cmp_ge_u32 s16, 4\ns_cbranch_scc1 {k.lab('co')}")
    k(f"s_add_u32 m0, s58, {4*8192}\ns_nop 0\nbuffer_load_dwordx4 v1, s[12:15], s56 offen {ld} lds")
    k.label("co")
    k(f"s_waitcnt vmcnt(0)\ns_barrier")
    k.mark(6)
    HL = 3 * UB
    k(f"v_add_u32 v10, {HL}, v1\ns_cmp_lt_u32 s16, 4\ns_cbranch_scc1 {k.lab('chelp')}")
    OR = 64
    def rdo(ks):
        b = OR + 8 * (ks % CR)
        if ks >= 16:
            r = []
            if ks == 17: r.append("v_add_u32 v8, 2048, v8")
            for T in range(2):
                for h in range(2):
                    r.append(f"ds_read2_b32 {v(b+4*T+2*h,2)}, v8 offset0:{16*T+64*h} offset1:{16*T+64*h+32}")
            return r
        return [f"ds_read_b128 {v(b+4*T,4)}, v{XV} offset:{(2*ks+T)*1024}" for T in range(2)]
    nrd = lambda ks: 4 if ks >= 16 else 2
    for ks in range(CR - 1):
        for r in rdo(ks): k(r)
    for ks in range(18):
        k(f"s_waitcnt lgkmcnt({sum(nrd(q) for q in range(ks + 1, min(ks + CR - 1, 18)))})")
        r = rdo(ks + CR - 1) if ks + CR - 1 < 18 else []
        for sl in range(2):
            for T in range(2):
                d = v(ACC + (2*sl+T)*4, 4)
                k(f"{M} {d}, {v(wcreg(ks,sl),4)}, {v(OR+8*(ks%CR)+4*T,4)}, {'0' if ks == 0 else d}")
                if r: k(r.pop(0))
        for x in r: k(x)
    k.label("cepi")
    if dbg == 'c': mk(9)
    SQ = 58
    k(f"""
s_lshl_b32 s24, s49, 16
s_lshl_b32 s23, s38, 9
s_add_u32 s24, s24, s23
s_add_u32 s24, s24, {HCOFF}
v_lshrrev_b32 v8, 5, v0
v_lshlrev_b32 v8, 15, v8
v_and_b32 v9, 31, v0
v_lshl_add_u32 v8, v9, 4, v8
v_lshlrev_b32 v9, 2, v9
v_mov_b32 v{SQ}, 0
v_mov_b32 v{SQ+1}, 0
""")
    for sl in range(2):
        for T in range(2):
            x = X + 2*(2*sl+T)
            r = OF + 4*(2*sl+T)
            k(f"v_lshlrev_b32 v{r}, 16, v{x}\nv_and_b32 v{r+1}, 0xffff0000, v{x}\nv_lshlrev_b32 v{r+2}, 16, v{x+1}\nv_and_b32 v{r+3}, 0xffff0000, v{x+1}")
    k("s_barrier")
    if dbg == 'c': mk(10)
    for T in range(2):
        for hh in range(2):
            k(f"ds_read_b64 {v(64+4*T+2*hh,2)}, v10 offset:{(1+2*hh)*2048 + T*1024}")
    for T in range(2):
        k(f"ds_read_b128 {v(72+4*T,4)}, v10 offset:{2*2048 + T*1024}")
    for i in range(8):
        k(f"v_pk_add_f32 {v(ACC+2*i,2)}, {v(ACC+2*i,2)}, {v(OF+2*i,2)}")
    k("s_waitcnt lgkmcnt(0)")
    for T in range(2):
        k(f"v_pk_add_f32 {v(64+4*T,2)}, {v(64+4*T,2)}, {v(66+4*T,2)}\nv_add_f32 v{MU+T}, v{MU+T}, v{64+4*T}\nv_add_f32 v{MU+T}, v{MU+T}, v{65+4*T}")
    k(f"s_cmp_lg_u32 s11, 4\ns_cbranch_scc1 {k.lab('cn8')}")
    for i in range(4):
        k(f"v_pk_add_f32 {v(ACC+2*i,2)}, {v(ACC+2*i,2)}, {v(72+2*i,2)}")
    k.label("cn8")
    for sl in range(2):
        if sl == 1:
            k(f"s_cmp_eq_u32 s11, 4\ns_cbranch_scc1 {k.lab('cq')}")
        R = X + 4*sl
        for T in range(2):
            ac = ACC + (2*sl+T)*4
            for r in range(4):
                k(f"v_sub_f32 v{ac+r}, v{ac+r}, v{MU+T}")
            k(f"v_cvt_pk_bf16_f32 v{R+2*T}, v{ac}, v{ac+1}\nv_cvt_pk_bf16_f32 v{R+2*T+1}, v{ac+2}, v{ac+3}")
            for r in range(4):
                k(f"v_fmac_f32 v{SQ+T}, v{ac+r}, v{ac+r}")
        k(f"""
v_permlane16_swap_b32 v{R}, v{R+2}
v_permlane16_swap_b32 v{R+1}, v{R+3}
buffer_store_dwordx4 {v(R,4)}, v8, s[12:15], s24 offen sc1
s_add_u32 s24, s24, 65536
""")
    k.label("cq")
    k(f"""
s_mul_i32 s23, s39, 5
s_add_u32 s23, s23, s11
v_permlane16_swap_b32 v{SQ}, v{SQ+1}
v_permlane16_swap_b32 v{MU}, v{MU+1}
s_lshl_b32 s27, s23, 13
s_add_u32 s27, s27, s26
s_add_u32 s27, s27, {SSQOFF}
v_add_f32 v{SQ}, v{SQ}, v{SQ+1}
v_mov_b32 v{SQ+1}, v{SQ}
s_add_u32 s26, s26, {MUHOFF}
s_cmp_lg_u32 s23, 0
s_cselect_b32 s26, {OOB}, s26
v_permlane32_swap_b32 v{SQ}, v{SQ+1}
v_add_f32 v{SQ}, v{SQ}, v{SQ+1}
s_mov_b32 exec_hi, 0
buffer_store_dword v{SQ}, v9, s[12:15], s27 offen sc1
buffer_store_dword v{MU}, v9, s[12:15], s26 offen sc1
s_mov_b64 exec, -1
s_lshl_b32 s3, s38, 5
s_add_u32 s3, s3, s23
s_mul_i32 s3, s3, {FLS}
s_add_u32 s3, s3, {FCOFF}
s_branch {k.lab('dstart')}
""")
    k.label("chelp")
    if NF1 < NF3:
        k(f"s_cmp_eq_u32 s16, 0\ns_cbranch_scc1 {k.lab('ch2')}\ns_sub_u32 s34, s16, 1")
        feed(NF1, NF3)
        k.label("ch2")
    k(f"""
s_lshr_b32 s23, s16, 1
s_lshl_b32 s24, s23, 14
v_add_u32 v{XV}, s24, v{XV}
s_lshl_b32 s24, s23, 11
v_add_u32 v8, s24, v8
s_lshl_b32 s24, s16, 11
v_add_u32 v11, s24, v10
s_setprio {HP}
""")
    HB = 64
    for i in range(8):
        for T in range(2):
            k(f"ds_read_b128 {v(HB+8*i+4*T,4)}, v{XV} offset:{(2*i+T)*1024}")
        if i == 5: k("s_waitcnt lgkmcnt(8)")
    for T in range(2):
        for h in range(2):
            k(f"ds_read2_b32 {v(HB+64+4*T+2*h,2)}, v8 offset0:{16*T+64*h} offset1:{16*T+64*h+32}")
    for i in range(9):
        k(f"s_waitcnt lgkmcnt({max(0, min(15, 2*(7-i) + 4)) if i < 8 else 0})")
        for T in range(2):
            d = v(ACC + 4*T, 4)
            k(f"{M} {d}, {v(160+4*i,4)}, {v(HB+8*i+4*T,4)}, {'0' if i == 0 else d}")
    k(f"""
s_setprio 0
s_mov_b32 s3, {OOB}
s_cmp_eq_u32 s16, 0
s_cbranch_scc1 {k.lab('cepi')}
s_nop 3
ds_write_b128 v11, {v(ACC,4)}
ds_write_b128 v11, {v(ACC+4,4)} offset:1024
""")
    if NF3 < 36:
        k("s_sub_u32 s34, s16, 1")
        feed(NF3, 36)
    k("s_waitcnt lgkmcnt(0)\ns_barrier")
    k.label("dstart")
    if dopt.get("wgf", 1):
        k(f"""
s_lshl_b32 s3, s38, 2
s_add_u32 s3, s3, s39
s_mul_i32 s3, s3, {FLS}
s_add_u32 s3, s3, {FCOFF}
s_cmp_lg_u32 s16, 2
s_cselect_b32 s3, {OOB}, s3
""")
    k.mark(7)
    if upto >= 4:
        assert NF2 >= 12
        def late_feed():
            if NF2 < 36:
                k(f"s_sub_u32 s34, s16, 5\ns_cmp_ge_u32 s34, 3\ns_cbranch_scc1 {k.lab('lf')}")
                feed(NF2, 36)
                k.label("lf")
        tails, dside, last_unit = phase_d(k, GV, FV, WV, ld, late_feed, **dopt)
    if upto >= 5:
        i0 = len(k.L)
        phase_e(k, GV, ld, tails, last_unit, **eopt)
        if dbg in ("e0", "e1"):
            i1 = k.L.index(k.lab("econs") + ":")
            n = 0; out = []
            for l in k.L[i0:i1]:
                if l.strip() == "s_barrier" and n < 10:
                    m_ = f"  s_memtime s[{k.mb+2*n}:{k.mb+2*n+1}]"; n += 1
                    out += [m_, l] if dbg == "e0" else [l, m_]
                else:
                    out.append(l)
            k.L[i0:i1] = out
    k(f"s_branch {k.lab('fin')}")
    if upto >= 4:
        k(dside)
    k.label("stub")
    k(f"""
s_cmp_eq_u32 s21, 1
s_cbranch_scc1 {k.lab('stubx')}
s_cmp_eq_u32 s21, 2
s_cbranch_scc1 {k.lab('stub0')}
s_cmp_eq_u32 s21, {ST[1]}
s_cbranch_scc1 {k.lab('stub2')}
s_cmp_eq_u32 s21, {ST[2]}
s_cbranch_scc1 {k.lab('stub3')}
s_cmp_eq_u32 s21, {ST[3]}
s_cbranch_scc1 {k.lab('stub4')}
s_mov_b32 s21, {ST[1]}
""")
    prep_loads_tab(k, (0, 1), DAT, PVS, 4, 40)
    k(f"s_branch {ret(ST[0])}")
    k.label("stub2")
    k(f"s_mov_b32 s21, {ST[2]}")
    prep_loads_tab(k, (2, 3), DAT, PVS, 4, 40)
    k(f"s_branch {ret(ST[1])}")
    k.label("stub3")
    k(f"s_mov_b32 s21, {ST[3]}")
    prep_process(k, DAT, FR, PVW, PVR, ns=(0, 1), dbl=False)
    k(f"s_branch {ret(ST[2])}")
    k.label("stub4")
    k(f"s_mov_b32 s21, 98")
    prep_process(k, DAT, FR, PVW, PVR, ns=(2, 3), dbl=False)
    k(f"s_branch {ret(ST[3])}")
    k.label("stubx")
    k(f"s_barrier\ns_mov_b32 s21, 2\ns_branch {ret(1)}")
    k.label("stub0")
    k(f"s_barrier\ns_cmp_ge_u32 s61, 972\ns_cselect_b32 s21, 98, {ST[0]}\ns_branch {k.lab('loop')}")
    k.label("fallback")
    k(f"""
s_waitcnt vmcnt(0)
s_barrier
s_mov_b32 s48, 64
s_mul_i32 s22, s17, {KVHEAD}
s_lshl_b32 s23, s16, 10
""")
    clears()
    k.label("fb1")
    k(piece(0))
    k(f"""
s_add_u32 s23, s23, 8192
s_cmp_lt_u32 s23, {KVHEAD}
s_cbranch_scc1 {k.lab('fb1')}
s_waitcnt vmcnt(0)
s_barrier
s_branch {k.lab('restart')}
""")
    for i, l in enumerate(k.L):
        if l.strip().startswith("buffer_load") and "s[12:15]" in l and " sc1" not in l and wsc:
            k.L[i] = l[:-4] + " sc1 lds" if l.endswith(" lds") else l.rstrip() + " sc1"
    k.label("fin")
    k.stamp_end(12)
    k.label("end")
    k("s_endpgm")
    return k


def phase_d(k, GV, FV, WV, ld, late_feed, PF=6, LA=4, WG=2, exp='', prio=0, DS=5, tch=False, pre=12, psl=None, wgf=2, NPF=5, PS0=6, PST=2, efill=False, nodup=True, nw=True):
    ACC = [16, 32, 48]
    WF, PR, HV = 64, 88, 112
    SV, A0, A1, AB, FILL = 3, 5, 6, 2, 8
    hreg = lambda ks, T: v(HV + 4*(2*ks+T), 4)
    k(f"""
s_lshl_b32 s11, s8, 3
s_add_u32 s11, s11, s16
s_lshl_b32 s21, s11, 9
s_add_u32 s20, s21, {HCOFF}      ; h soffset
s_mul_i32 s22, s43, {6*4*CH}
s_add_u32 s20, s20, s22
s_mov_b32 s34, {4*CH}
s_mov_b32 s35, {4*CH}
s_cmp_eq_u32 s43, 2
s_cselect_b32 s34, {(-17*4*CH) & 0xffffffff}, s34
s_cmp_eq_u32 s43, 1
s_cselect_b32 s35, {(-17*4*CH) & 0xffffffff}, s35
s_mul_i32 s43, s43, {CB}
s_lshr_b32 s22, s9, 3
s_mul_i32 s22, s22, {72*65536}
s_add_u32 s21, s21, s22
s_and_b32 s22, s9, 7
s_mul_i32 s22, s22, {3*65536}
s_add_u32 s21, s21, s22
s_add_u32 s21, s21, {HIDOFF}     ; hid store soffset
s_and_b32 s17, s2, 1
s_lshl_b32 s17, s17, 3
s_bfe_u32 s18, s2, 0x30003
s_add_u32 s17, s17, s18
s_lshr_b32 s18, s2, 6
s_bfe_u32 s19, s2, 0x20001
""")
    for n in range(5):
        k(f"s_add_u32 s28, s16, {8*n}")
        if n == 4:
            k("s_add_u32 s29, s16, 24\ns_cmp_ge_u32 s28, 36\ns_cselect_b32 s28, s29, s28")
        k(f"""
s_lshl_b32 s{44+n}, s28, 10
s_add_u32 s{54+n}, s{44+n}, s43
s_cmp_ge_u32 s{54+n}, {UB}
s_cselect_b32 s29, {UB}, 0
s_sub_u32 s{54+n}, s{54+n}, s29
s_mul_i32 s29, s28, 7282
s_lshr_b32 s29, s29, 16
s_mul_i32 s30, s29, 9
s_sub_u32 s28, s28, s30
s_add_u32 s30, s28, s19
s_and_b32 s30, s30, 3
s_and_b32 s31, s28, 4
s_or_b32 s30, s30, s31
s_cmp_eq_u32 s28, 8
s_cselect_b32 s30, 8, s30
s_lshl_b32 s30, s30, 10
s_mul_i32 s29, s29, 36864
s_add_u32 s{38+n}, s29, s30
""")
    k(f"""
s_add_u32 s51, s10, {3*UB}
s_mov_b32 s50, {UB}
s_mov_b32 s24, {3*UB}
s_mul_i32 s53, s19, {36*36864}
s_mul_i32 s29, s18, 9216
s_add_u32 s53, s53, s29
s_add_u32 s53, s53, {WDOFF}
v_lshrrev_b32 v{SV}, 5, v0
v_lshlrev_b32 v{SV}, 15, v{SV}
v_and_b32 v{A0}, 31, v0
v_lshl_add_u32 v{SV}, v{A0}, 4, v{SV}
v_mov_b32 v{A0}, v1
v_add_u32 v{A1}, {UB}, v1
s_mov_b32 s26, {UB}
{["v_min_u32 v%d, 19, v0", "v_and_b32 v%d, 31, v0", "v_and_b32 v%d, 3, v0"][wgf] % FV}
v_mul_u32_u24 v{FV}, {FLS}, v{FV}
{[f"s_mul_i32 s61, s11, {32*FLS}", f"s_mul_i32 s61, s8, {32*FLS}", f"s_mul_i32 s61, s11, {4*FLS}"][wgf]}
s_add_u32 s61, s61, {FCOFF}
s_lshl_b32 s28, s17, 2
s_and_b32 s29, s16, 3
s_add_u32 s28, s28, s29
s_mul_i32 s52, s28, 36
s_mul_i32 s29, s18, 9
s_add_u32 s52, s52, s29
s_mul_i32 s52, s52, 3072
s_add_u32 s62, s52, {EXOFF}
s_and_b32 s29, s16, 4
s_add_u32 s29, s29, s19
s_mul_i32 s29, s29, 3072
s_add_u32 s52, s62, s29
s_add_u32 s63, s62, {8*3072}
s_cmp_eq_u32 s16, s19
s_cselect_b32 s63, s63, {OOB}
s_mov_b32 s27, 0
s_lshl_b32 s30, s11, 5
s_add_u32 s30, s30, s9
s_mul_i32 s30, s30, {FLS}
s_add_u32 s30, s30, {FDOFF}
s_lshl_b32 s31, s2, 3
s_add_u32 s31, s31, s16
s_mul_i32 s31, s31, {FLS}
s_add_u32 s31, s31, {FXOFF}
s_lshl_b32 s32, s28, 2
s_add_u32 s32, s32, s19
s_mul_i32 s32, s32, {8*FLS}
s_add_u32 s32, s32, {FDOFF}
v_and_b32 v2, 7, v0
v_mul_u32_u24 v2, {FLS}, v2
""")
    if wgf:
        k(f"""
{("s_sub_u32 s22, s16, 1@s_cmp_lt_u32 s22, 3@s_cbranch_scc1 " + k.lab('z0')).replace("@", chr(10)) if nw else ""}
s_waitcnt vmcnt(0)
{k.lab('z0')}:
s_barrier
{flag_txt([3], 12)}
""")
    else:
        k(f"""
s_waitcnt vmcnt(0)
{flag_txt([3], 12)}
s_barrier
""")
    late_feed()
    def rd(n, lin=False):
        base = A0 if n < 36 else A1
        j = n % 36
        if lin:
            return [f"ds_read_b128 {v(WF+4*(n%PF),4)}, v{base} offset:{j*1024}", ""]
        ks, u, m = j // 6, (j % 6) // 2, j % 2
        return [f"ds_read_b128 {v(WF+4*(n%PF),4)}, v{base} offset:{u*CB + (2*ks+m)*1024}", ""]
    for n in range(PF - 1):
        for x in rd(n): k(x)
    for i in range(4):
        k(f"v_mov_b32 v{FILL+i}, -1")
    if prio:
        k(f"s_cmp_lt_u32 s16, 4\ns_cbranch_scc1 {k.lab('dp')}\ns_setprio 1")
        k.label("dp")
    if wgf == 1:
        k(f"s_cmp_lg_u32 s16, 1\ns_cbranch_scc1 {k.lab('pcx')}")
    if pre: k(f"s_sleep {pre}")
    poll(k, "pc", 61, FV, 12, 60, sleep=psl)
    if wgf == 1:
        k("s_barrier")
    k.mark(8)
    def h_ops(ks):
        return [f"buffer_load_dwordx4 {hreg(ks,T)}, v{GV}, s[12:15], s20 offen offset:{T*256} {ld}" for T in range(2)] + \
               [f"s_add_u32 s20, s20, { {5: 's34', 11: 's35'}.get(ks, 4*CH) }"]
    def tail(u):
        R = PR + 8*u
        return [f"v_cvt_pk_bf16_f32 v{R}, v{R}, v{R+1}", f"v_cvt_pk_bf16_f32 v{R+1}, v{R+2}, v{R+3}",
                f"v_cvt_pk_bf16_f32 v{R+2}, v{R+4}, v{R+5}", f"v_cvt_pk_bf16_f32 v{R+3}, v{R+6}, v{R+7}\ns_nop 0",
                f"v_permlane16_swap_b32 v{R}, v{R+2}", f"v_permlane16_swap_b32 v{R+1}, v{R+3}",
                f"buffer_store_dwordx4 {v(R,4)}, v{SV}, s[12:15], s21 offen sc1", f"s_add_u32 s21, s21, {65536 if u < 2 else 22*65536}"]
    uid = [0]
    def dma():
        ops = [f"s_add_u32 m0, s24, s{44+n}\ns_add_u32 s22, s51, s{54+n}\nbuffer_load_dwordx4 v1, s[12:15], s22 offen lds" for n in range(5)]
        if nodup:
            uid[0] += 1
            L_ = k.lab(f"nd{uid[0]}")
            ops[4] = f"s_cmp_ge_u32 s16, 4\ns_cbranch_scc1 {L_}\n" + ops[4].replace("buffer_", "BUF_") + f"\n{L_}:"
            ops = [ops[4]] + ops[:4]
        ops.append(f"s_add_u32 s51, s51, s50")
        ops.append(f"s_add_u32 s24, s24, {UB}\ns_cmp_ge_u32 s24, {4*UB}\ns_cselect_b32 s24, 0, s24")
        return ops
    nxt = f"s_add_u32 s26, s26, {UB}\ns_cmp_ge_u32 s26, {4*UB}\ns_cselect_b32 s26, 0, s26"
    fill = [f"buffer_store_dwordx4 {v(FILL,4)}, v1, s[12:15], s52 offen sc1" if 'nofill' not in exp else "s_nop 0", "s_add_u32 s52, s52, 1024"]
    if efill: fill = []
    NV = (6 if efill else 7) - (1 if nodup else 0)
    tot = [2 * LA]; hm = {ks: 2 * ks + 2 for ks in range(LA)}
    def stage(c, f1, f2, f3, pre=0):
        pend = []
        nvm = 0
        for j in range(36):
            if c is None:
                ks, u, m = j // 2, 0, j % 2
            else:
                ks, u, m = 6 * c + j // 6, (j % 6) // 2, j % 2
            hw = c is not None and j % 6 == 0
            if hw and ks + LA < 18:
                pend += h_ops(ks + LA)
            if j % WG == 0:
                w = f"lgkmcnt({PF-1-WG})"
                vm = []
                if hw: vm.append(tot[0] - hm[ks])
                if j == 30 and not ('novm' in exp and c is None): vm.append(nvm)
                if vm: w = f"vmcnt({min(vm)}) " + w
                k("s_waitcnt " + w)
            if j == 30:
                k("s_barrier")
            r = rd(j + PF - 1, lin=(c is None or (c == 2 and j + PF - 1 >= 36)))
            for T in range(2):
                d = v(ACC[u] + (m*2+T)*4, 4)
                k(f"{M} {d}, {v(WF+4*(j%PF),4)}, {hreg(ks,T)}, {'0' if ks == 0 else d}")
                k(r[T])
                if T == 0 and pre and ks >= PS0 and (ks - PS0) % PST == 0 and (ks - PS0) // PST < pre:
                    k(h_ops((ks - PS0) // PST)[m] + ("\n" + h_ops(0)[2] if m else "")); nvm += 1
                if T == 1:
                    x = None
                    if f2 and j % DS == DS - 1: x = f2.pop(0)
                    elif pend: x = pend.pop(0)
                    elif f1: x = f1.pop(0)
                    elif not f2 and f3: x = f3.pop(0)
                    if x:
                        k(x.replace("BUF_", "buffer_")); nvm += x.count("buffer_"); tot[0] += x.count("buffer_")
                        if x.startswith("buffer_load") and "offset:256" in x: hm[len(hm)] = tot[0]
        assert not f1 and not f2 and not f3 and not pend, (f1, f2, f3, pend)
        k(f"v_mov_b32 v{A0}, v{A1}\nv_add_u32 v{A1}, s26, v1")
    def prod(u, slot):
        for h in range(4):
            k(f"v_pk_mul_f32 {v(PR+8*slot+2*h,2)}, {v(ACC[u]+2*h,2)}, {v(ACC[u]+8+2*h,2)}")
    for ks in range(LA):
        for x in h_ops(ks): k(x)
    stage(0, [], [], [nxt])
    for c in (1, 2):
        d_ = dma()
        stage(c, [], d_[:5], d_[5:] + [nxt])
    k("s_mov_b32 s27, 4\ns_lshr_b32 s49, s16, 2\ns_add_u32 s49, s49, 8")
    prod(0, 0); prod(1, 1); k("s_nop 1"); prod(2, 2)
    k.mark(9)
    tl = tail(0) + tail(1) + tail(2)
    d_ = dma()
    stage(None, [tl[2*i] + "\n" + tl[2*i+1] for i in range(12)] + fill, d_[:5], d_[5:] + [nxt])
    k("s_nop 5")
    prod(0, 0)
    k(".p2align 6")
    k.label("dloop")
    d_ = dma()
    stage(None, [f"s_branch {k.lab('dside')}\n{k.lab('dback')}:"] + tail(0) + fill, d_[:5], d_[5:] + [nxt])
    k(f"s_add_u32 s27, s27, 1\ns_cmp_lt_u32 s27, s49\ns_nop 3")
    prod(0, 0)
    k(f"s_cbranch_scc1 {k.lab('dloop')}")
    def last_unit():
        k(f"""
s_lshl_b32 s20, s28, 9
s_mul_i32 s29, s19, {36*4*CH}
s_add_u32 s20, s20, s29
s_add_u32 s20, s20, {HIDOFF}
s_waitcnt vmcnt({NV})
{flag_check(32)}
s_nop 0
s_cbranch_vccz {k.lab('pdx')}
""")
        poll(k, "pd", 32, 2, 32, 60)
        d_ = dma()
        tl = tail(0)
        i0 = len(k.L)
        stage(None, [flag_txt([30], 12)] + [tl[2*i] + "\n" + tl[2*i+1] for i in range(4)] + fill[:1] + d_[:5], [], [], pre=NPF)
        vm = [l for l in k.L[i0:] if "buffer_" in l]
        crit = max(i for i, l in enumerate(vm) if "store" in l or " lds" in l)
        k("s_nop 5")
        prod(0, 0)
        k.mark(10)
        return len(vm) - 1 - crit
    side = f"""
{k.lab('dside')}:
s_cmp_eq_u32 s27, 6
s_cbranch_scc1 {k.lab('ds6')}
s_cmp_eq_u32 s27, 7
s_cbranch_scc1 {k.lab('ds7')}
s_cmp_eq_u32 s27, 4
s_cbranch_scc1 {k.lab('dback')}
{flag_txt([30], 12)}
s_add_u32 s30, s30, {FDL}
s_cmp_lg_u32 s27, 8
s_cbranch_scc1 {k.lab('dback')}
s_waitcnt vmcnt({NV+1})
{flag_check(32)}
s_nop 0
s_cbranch_vccz {k.lab('pgx')}
@POLL@
@EPI@
s_branch {k.lab('dback')}
{k.lab('ds6')}:
s_mov_b32 s52, s63
s_branch {k.lab('dback')}
{k.lab('ds7')}:
s_add_u32 s21, s21, {21*65536}
s_mov_b32 s51, s53
s_mov_b32 s50, {4*36864}
s_mov_b64 s[54:55], s[38:39]
s_mov_b64 s[56:57], s[40:41]
s_mov_b32 s58, s42
buffer_load_dwordx2 v[32:33], v2, s[12:15], s32 offen sc1
s_branch {k.lab('dback')}
"""
    k2 = Kern(k.name, 1, 1, 0, 1)
    poll(k2, "pg", 32, 2, 32, 60)
    side = side.replace("@POLL@", "\n".join(k2.L))
    HC, SS, MU = 36, 48, 58
    epi = f"""
v_and_b32 v60, 31, v0
v_lshrrev_b32 v61, 5, v0
v_mul_u32_u24 v61, {10*8192}, v61
v_lshlrev_b32 v60, 2, v60
v_add_u32 v61, v61, v60
s_mul_i32 s22, s18, 9
s_add_u32 s23, s22, s19
s_lshl_b32 s23, s23, 16
s_lshl_b32 s29, s28, 9
s_add_u32 s29, s29, {HCOFF}
s_add_u32 s23, s23, s29
buffer_load_dwordx4 {v(HC,4)}, v3, s[12:15], s23 offen {ld}
s_add_u32 s23, s23, {4*65536}
buffer_load_dwordx4 {v(HC+4,4)}, v3, s[12:15], s23 offen {ld}
s_add_u32 s22, s22, 8
s_lshl_b32 s23, s22, 16
s_add_u32 s23, s23, s29
buffer_load_dwordx4 {v(HC+8,4)}, v3, s[12:15], s23 offen {ld}
s_lshl_b32 s23, s28, 7
s_add_u32 s29, s23, {MUHOFF}
s_add_u32 s23, s23, {SSQOFF}
buffer_load_dword v{MU}, v60, s[12:15], s29 offen {ld}
""" + "\n".join(f"buffer_load_dword v{SS+j}, v61, s[12:15], s23 offen {ld}\ns_add_u32 s23, s23, 8192" for j in range(10))
    side = side.replace("@EPI@", epi)
    return tail(0), side, last_unit


def phase_e(k, GV, ld, tails, last_unit, PF=9, WG=3, LA=5, tch=False, P3=6, exp='', hl=None, prio=0, sleep=0, ost='sc1', pace='', efill=False, defer=True, BSN=None, persend=False, psl=1):
    ld = ld if hl is None else hl
    SB = UB
    ACC, WF, HV, XV = 16, 208, 112, 11
    FLG = flag_txt([30, 31], 12)
    XL = (2 if defer else 3) * SB
    k(f"s_cmp_lt_u32 s16, 4\ns_cbranch_scc1 {k.lab('econs')}")
    k.mark(10)
    assert 5 <= LA <= 8
    def head():
        k("s_and_b32 s33, s16, 3")
        for t in range(4):
            k(f"s_add_u32 s{40+t}, s19, {t}\ns_and_b32 s{40+t}, s{40+t}, 3\ns_lshl_b32 s{44+t}, s{40+t}, 10")
        k(f"s_mul_i32 s29, s33, 6144\ns_add_u32 s29, s29, {XL}\nv_add_u32 v{XV}, s29, v1")
    PR = 88
    TL = 4 * SB
    packs = [x for x in tails if not x.startswith(("buffer", "s_add"))]
    def wissue():
        for n in range(9):
            if pace and n: k(pace)
            if n < 4:
                k(f"s_add_u32 m0, s24, {n*1024}\ns_add_u32 s{48+n}, s23, s{44+n}\nbuffer_load_dwordx4 v1, s[12:15], s{48+n} offen lds")
            elif n < 8:
                k(f"s_add_u32 m0, s24, {n*1024}\ns_add_u32 s25, s{48+n-4}, 4096\nbuffer_load_dwordx4 v1, s[12:15], s25 offen lds")
            else:
                k(f"s_add_u32 m0, s24, {n*1024}\ns_add_u32 s25, s23, 8192\nbuffer_load_dwordx4 v1, s[12:15], s25 offen lds")
        k(f"s_add_u32 s23, s23, {4*36864 if 'hotw' not in exp else 0}\ns_add_u32 s24, s24, {SB}\ns_cmp_ge_u32 s24, {4*SB}\ns_cselect_b32 s24, s22, s24")
    def check(name, soff, voff, vt):
        k(flag_check(vt))
        k(f"s_nop 0\ns_cbranch_vccz {k.lab(name + 'x')}")
        poll(k, name, soff, voff, vt, 60)
    k(f"s_add_u32 s32, s32, {FDL}\nbuffer_load_dwordx2 v[16:17], v2, s[12:15], s32 offen sc1")
    head()
    k(f"""
s_mul_i32 s23, s33, 36864
s_add_u32 s23, s23, s53
s_add_u32 s23, s23, {8*36864 if 'now' not in exp else OOB}
s_mul_i32 s22, s33, 9216
s_add_u32 s24, s22, {3*SB}
""")
    for x in packs: k(x)
    k(f"s_mul_i32 s29, s33, 3072\ns_add_u32 s29, s29, {TL}\nv_add_u32 v5, s29, v1\ns_sub_u32 s29, s21, 2048\ns_barrier")
    for u in range(1):
        k(f"ds_read_b128 {v(PR+8*u+4,4)}, v5 offset:{u*1024}")
    wissue()
    for u in range(1):
        k(f"buffer_store_dwordx4 {v(PR+8*u,4)}, v3, s[12:15], s21 offen sc1\ns_add_u32 s21, s21, 65536")
    k("s_waitcnt lgkmcnt(0)")
    for u in range(1):
        k(f"buffer_store_dwordx4 {v(PR+8*u+4,4)}, v3, s[12:15], s29 offen sc1\ns_add_u32 s29, s29, 65536")
    k.srd(4, 36, S * D * 2)
    k("s_waitcnt vmcnt(11)\ns_barrier")
    check("pe2", 32, 2, 16)
    wissue()
    k(f"s_sub_u32 s26, s30, {4*32*FLS}\ns_sub_u32 s27, s31, {4*FLS}\ns_waitcnt vmcnt(11)\ns_barrier\ns_waitcnt vmcnt(9)")
    k(flag_txt([30, 26, 27] if efill else [30, 26, 31, 27], 12))
    wissue()
    k(f"s_waitcnt vmcnt({12 if efill else 13})\ns_barrier")
    wissue()
    k(f"s_waitcnt vmcnt(9)\ns_barrier\ns_add_u32 s32, s32, {FDL}\nbuffer_load_dwordx2 v[16:17], v2, s[12:15], s32 offen sc1")
    wissue()
    k("s_waitcnt vmcnt(9)")
    check("pe3", 32, 2, 16)
    k("s_barrier")
    wissue()
    k("s_waitcnt vmcnt(9)\ns_barrier")
    wissue()
    HC, SS, MU, OWN, RX, T0, BS = 36, 48, 58, 112, 64, 100, 136
    k(f"""
v_bfe_u32 v10, v0, 1, 2
v_and_b32 v9, 1, v0
v_lshlrev_b32 v9, 2, v9
{'v_lshlrev_b32 v10, 4, v10' if efill else 'v_lshl_add_u32 v10, v10, 4, v9'}
v_mul_u32_u24 v10, {FLS}, v10
s_andn2_b32 s59, s2, 6
s_lshl_b32 s59, s59, 3
s_add_u32 s59, s59, s33
s_mul_i32 s59, s59, {FLS}
s_add_u32 s59, s59, {FXOFF}
buffer_load_dwordx2 v[12:13], v10, s[12:15], s59 offen sc1
v_and_b32 v6, 31, v0
v_lshrrev_b32 v7, 5, v0
s_mul_i32 s54, s18, 9
s_add_u32 s55, s54, s19
s_add_u32 s54, s54, 8
s_waitcnt vmcnt(10)
s_barrier
s_waitcnt vmcnt(0)
""")
    check("px", 59, 10, 12)
    k("s_barrier")
    k(f"""
s_mul_i32 s58, s19, 3072
s_add_u32 s58, s58, s62
s_add_u32 s59, s58, {4*3072}
s_add_u32 s60, s62, {8*3072}
s_cmp_eq_u32 s19, s33
s_cselect_b32 s60, s60, {OOB}
s_mov_b32 s61, 0
v_mul_u32_u24 v8, 1152, v6
v_lshl_add_u32 v8, v7, 4, v8
s_mul_i32 s56, s28, {32*1152}
s_lshl_b32 s57, s55, 5
s_add_u32 s57, s57, s56
s_lshl_b32 s54, s54, 5
s_add_u32 s56, s56, s54
s_mov_b32 s63, {f2u(1.0/D):#x}
""")
    for j in range(1, 10):
        k(f"v_add_f32 v{SS}, v{SS}, v{SS+j}")
    k(f"""
v_mov_b32 v{SS+1}, v{SS}
v_mov_b32 v{SS+2}, {f2u(1e-5):#x}
s_nop 0
v_permlane32_swap_b32 v{SS}, v{SS+1}
v_add_f32 v{SS}, v{SS}, v{SS+1}
v_fma_f32 v{SS}, v{SS}, s63, v{SS+2}
v_rcp_f32 v{SS}, v{SS}
""")
    for i in range(3):
        for d in range(4):
            x = HC + 4*i + d
            k(f"v_lshlrev_b32 v{BS+8*i+2*d}, 16, v{x}\nv_and_b32 v{BS+8*i+2*d+1}, 0xffff0000, v{x}")
    for i in range(24):
        k(f"v_add_f32 v{BS+i}, v{BS+i}, v{MU}")
    def getown():
        k("s_barrier")
        k.mark(11)
        for i in range(6):
            k(f"ds_read_b128 {v(OWN+4*i,4)}, v{XV} offset:{i*1024}")
        k("s_waitcnt lgkmcnt(0)")
        for i in range(3):
            A = OWN + 8*i
            for r in range(4):
                k(f"v_permlane16_swap_b32 v{A+r}, v{A+4+r}")
    if BSN is None:
        getown()
    else:
        k("s_barrier")
    if sleep: k(f"s_sleep {sleep}")
    if persend:
        ldq = lambda q: [f"buffer_load_dwordx4 {v(RX+12*i+4*q,4)}, v1, s[12:15], s{58+i} offen offset:{q*1024} sc1" for i in range(3)]
        for q in range(3):
            for x in ldq(q): k(x)
        for q in range(3):
            rg = [RX + 12*i + 4*q + d for i in range(3) for d in range(4)]
            k(f"s_waitcnt vmcnt({6 - 3*q})\ns_branch {k.lab(f'pc{q}')}")
            k.label(f"pl{q}")
            if psl: k(f"s_sleep {psl}")
            for x in ldq(q): k(x)
            k("s_add_u32 s61, s61, 1\ns_waitcnt vmcnt(0)")
            k.label(f"pc{q}")
            k(f"v_max3_u32 v{T0}, v{rg[0]}, v{rg[1]}, v{rg[2]}\nv_max3_u32 v{T0+1}, v{rg[3]}, v{rg[4]}, v{rg[5]}")
            k(f"v_max3_u32 v{T0}, v{T0}, v{rg[6]}, v{rg[7]}\nv_max3_u32 v{T0+1}, v{T0+1}, v{rg[8]}, v{rg[9]}")
            k(f"v_max3_u32 v{T0}, v{T0}, v{rg[10]}, v{rg[11]}\nv_max_u32 v{T0}, v{T0}, v{T0+1}")
            k(f"v_cmp_eq_u32 vcc, -1, v{T0}\ns_cmp_ge_u32 s61, {POLLMAX}\ns_cbranch_scc1 {k.lab(f'po{q}')}\ns_cbranch_vccnz {k.lab(f'pl{q}')}")
            k.label(f"po{q}")
            for i in range(3):
                for d in range(4):
                    x = RX + 12*i + 4*q + d
                    tt = T0 + 2*(d & 1)
                    k(f"v_lshlrev_b32 v{tt}, 16, v{x}\nv_and_b32 v{tt+1}, 0xffff0000, v{x}\nv_pk_add_f32 {v(OWN+8*i+2*d,2)}, {v(OWN+8*i+2*d,2)}, {v(tt,2)}")
    else:
        k.label("poll")
        for i in range(3):
            for q in range(3):
                k(f"buffer_load_dwordx4 {v(RX+12*i+4*q,4)}, v1, s[12:15], s{58+i} offen offset:{q*1024} sc1")
        k("s_waitcnt vmcnt(0)")
        k(f"v_max3_u32 v{T0}, v{RX}, v{RX+1}, v{RX+2}")
        k(f"v_max3_u32 v{T0+1}, v{RX+3}, v{RX+4}, v{RX+5}")
        for n, j in enumerate(range(6, 36, 2)):
            k(f"v_max3_u32 v{T0+(n&1)}, v{T0+(n&1)}, v{RX+j}, v{RX+j+1}")
        k(f"""
v_max_u32 v{T0}, v{T0}, v{T0+1}
v_cmp_eq_u32 vcc, -1, v{T0}
s_add_u32 s61, s61, 1
s_cmp_ge_u32 s61, {POLLMAX}
s_cbranch_scc1 {k.lab('got')}
s_cbranch_vccnz {k.lab('poll')}
""")
        k.label("got")
    k.mark(12)
    SM = 160
    if BSN is not None:
        for i in range(3):
            for q in range(3):
                for d in range(4):
                    x = RX + 12*i + 4*q + d
                    a_ = SM + 8*i + 2*d
                    if q == 0:
                        k(f"v_lshlrev_b32 v{a_}, 16, v{x}\nv_and_b32 v{a_+1}, 0xffff0000, v{x}")
                    else:
                        tt = T0 + 2*(d & 1)
                        k(f"v_lshlrev_b32 v{tt}, 16, v{x}\nv_and_b32 v{tt+1}, 0xffff0000, v{x}\nv_pk_add_f32 {v(a_,2)}, {v(a_,2)}, {v(tt,2)}")
            for d in range(4):
                b_ = BS + 8*i + 2*d
                k(f"v_pk_fma_f32 {v(b_,2)}, {v(SM+8*i+2*d,2)}, {v(SS,2)}, {v(b_,2)} op_sel_hi:[1,0,1]")
        getown()
    for i in range(3):
        if i == 2:
            k(f"s_cmp_lg_u32 s19, s33\ns_cbranch_scc1 {k.lab('fin')}")
        A = OWN + 8*i
        for q in range(3 if (BSN is None and not persend) else 0):
            for d in range(4):
                x = RX + 12*i + 4*q + d
                tt = T0 + 2*(d & 1)
                k(f"v_lshlrev_b32 v{tt}, 16, v{x}\nv_and_b32 v{tt+1}, 0xffff0000, v{x}\nv_pk_add_f32 {v(A+2*d,2)}, {v(A+2*d,2)}, {v(tt,2)}")
        for d in range(4):
            b_ = BS + 8*i + 2*d
            k(f"v_pk_fma_f32 {v(b_,2)}, {v(A+2*d,2)}, {v(SS,2)}, {v(b_,2)} op_sel_hi:[1,0,1]")
            k(f"v_cvt_pk_bf16_f32 v{HC+4*i+d}, v{b_}, v{b_+1}")
        so, off = [("s57", 0), ("s57", 128), ("s56", 0)][i]
        k(f"buffer_store_dwordx4 {v(HC+4*i,4)}, v8, s[4:7], {so} offen offset:{off} {ost}")
    k(f"s_branch {k.lab('fin')}")
    k.label("econs")
    hreg = lambda set_, kk, T: v(HV + 4 * (8*set_ + 2*kk + T), 4)
    def h_ops(p):
        return [f"buffer_load_dwordx4 {hreg(p//4,p%4,T)}, v{GV}, s[12:15], s20 offen offset:{T*256} {ld}" for T in range(2)] + \
               [f"s_add_u32 s20, s20, {4*CH if 'hoth' not in exp else 0}"]
    def rd(j):
        base, jj = ("v5", j) if j < 36 else ("v6", j - 36)
        return f"ds_read_b128 {v(WF+4*(j%PF),4)}, {base} offset:{jj*1024}"
    nyoung = last_unit()
    k(f"v_add_u32 v5, {SB}, v1\nv_add_u32 v6, {2*SB}, v1")
    for j in range(PF - 1):
        k(rd(j))
    for x in packs: k(x)
    k(f"s_mul_i32 s29, s16, 3072\ns_add_u32 s29, s29, {TL}\nv_add_u32 v7, s29, v1")
    for u in range(1):
        k(f"ds_write_b128 v7, {v(PR+8*u,4)} offset:{u*1024}")
    head()
    k(f"""
s_mov_b32 s26, {2*SB}
s_mov_b32 s27, 0
s_sub_u32 s52, s33, s19
s_and_b32 s52, s52, 3
s_lshl_b32 s52, s52, 10
s_add_u32 s52, s52, s62
s_add_u32 s52, s52, {8*3072-1024}
s_mov_b32 s53, 0xfffefffe
v_mov_b32 v14, 0
""")
    for i in range(36):
        if i == 24: k(f"s_waitcnt vmcnt({nyoung}) lgkmcnt(0)\ns_barrier")
        k(f"v_pk_mul_f32 {v(ACC+2*i,2)}, {v(14,2)}, {v(14,2)} op_sel_hi:[0,0]")
    k.mark(11)
    k(".p2align 6")
    k.label("eloop")
    for st3 in range(3):
        for kk in range(4):
            p = 4 * st3 + kk
            f = h_ops((p + LA) % 12)
            if p + LA == 12:
                f = [f"s_add_u32 s27, s27, 1\ns_cmp_ge_u32 s27, 3", f"s_cselect_b32 s20, {OOB}, s20"] + f
            if kk == 3:
                f = f + [f"s_add_u32 s26, s26, {SB}\ns_cmp_ge_u32 s26, {4*SB}", "s_cselect_b32 s26, 0, s26"]
            for t in range(9):
                j = 9 * kk + t
                if t % WG == 0:
                    w = f"lgkmcnt({PF-1-WG})"
                    if t == 0:
                        w = f"vmcnt({2*(LA-1)}) " + w
                    k("s_waitcnt " + w)
                if t == 0 and kk == 3:
                    k("s_barrier")
                for T in range(2):
                    d = v(ACC + (2*t+T)*4, 4)
                    k(f"{M} {d}, {v(WF+4*(j%PF),4)}, {hreg(st3,kk,T)}, {d}")
                    if T == 0:
                        k(rd(j + PF - 1))
                    elif f and t >= 1:
                        k(f.pop(0))
            assert not f, f
        k(f"v_mov_b32 v5, v6\nv_add_u32 v6, s26, v1")
        if st3 == 1 and not defer:
            k(f"s_cmp_eq_u32 s27, 3\ns_cbranch_scc1 {k.lab('elast')}")
    if defer:
        k(f"s_cmp_lt_u32 s27, 2\ns_cbranch_scc1 {k.lab('eloop')}")
    else:
        k(f"s_branch {k.lab('eloop')}")
    k.label("elast")
    PKR = HV
    def pack(t, R):
        A0, A1 = ACC + 8*t, ACC + 8*t + 4
        return [f"v_cvt_pk_bf16_f32 v{R}, v{A0}, v{A0+1}\nv_cvt_pk_bf16_f32 v{R+2}, v{A1}, v{A1+1}",
                f"v_cvt_pk_bf16_f32 v{R+1}, v{A0+2}, v{A0+3}\nv_cvt_pk_bf16_f32 v{R+3}, v{A1+2}, v{A1+3}",
                f"v_min_u32 v{R}, s53, v{R}\nv_min_u32 v{R+2}, s53, v{R+2}",
                f"v_min_u32 v{R+1}, s53, v{R+1}\nv_min_u32 v{R+3}, s53, v{R+3}",
                f"v_permlane16_swap_b32 v{R}, v{R+2}",
                f"v_permlane16_swap_b32 v{R+1}, v{R+3}"]
    if not defer:
        order = [(0, t) for t in range(8)]
        for t in (1, 2, 3, 5, 6, 7, 8, 0, 4):
            order += [(kk, t) for kk in range(4) if (kk, t) not in order]
        k(f"s_cmp_eq_u32 s19, s33\ns_cselect_b32 s52, {OOB}, s52")
        fq = []; delay = []
        ns = 0
        for n, (kk, t) in enumerate(order):
            left = len(order) - 1 - n
            w = f"lgkmcnt({min(PF - 2, left)})"
            if n == 0: w = f"vmcnt({2*(LA-1)}) " + w
            if n == 8: w = f"vmcnt(0) " + w
            k("s_waitcnt " + w)
            for T in range(2):
                d = v(ACC + (2*t+T)*4, 4)
                k(f"{M} {d}, {v(WF+4*(n%PF),4)}, {hreg(2,kk,T)}, {d}")
                if T == 0 and n + PF - 1 < len(order):
                    k2, t2 = order[n + PF - 1]
                    k(f"ds_read_b128 {v(WF+4*((n+PF-1)%PF),4)}, v5 offset:{(9*k2+t2)*1024}")
                if fq: k(fq.pop(0))
            fq += delay; delay = []
            if kk == 3 and t not in (0, 4):
                R = PKR + 4*ns; ns += 1
                if t < 8:
                    ad = f"s_mul_i32 s29, s{40 + (t & 3)}, 3072\ns_add_u32 s29, s29, s62" + (f"\ns_add_u32 s29, s29, {4*3072}" if t >= 4 else "\ns_nop 0")
                    st_ = f"buffer_store_dwordx4 {v(R,4)}, v1, s[12:15], s29 offen offset:{((t & 3) - 1)*1024} sc1"
                else:
                    ad = "s_nop 2"; st_ = f"buffer_store_dwordx4 {v(R,4)}, v1, s[12:15], s52 offen sc1"
                pk = pack(t, R)
                delay = [ad + "\n" + pk[0]] + pk[1:5] + [pk[5] + "\n" + st_]
    else:
        NO_ = (1, 2, 3, 5, 6, 7, 8)
        order = [(0, t) for t in range(9)]
        order += [(p, t) for p in range(1, 8) for t in NO_]
        order += [(p, t) for t in NO_ for p in range(8, 12)]
        order += [(p, t) for p in range(1, 12) for t in (0, 4)]
        base = ["v5", "v6", "v7"]
        k(f"v_add_u32 v7, {SB}, v1\ns_cmp_eq_u32 s19, s33\ns_cselect_b32 s52, {OOB}, s52")
        RP = [88, 92, 96, 100, 104, 108, 244]
        fq = []; delay = []; ns = 0
        issued = LA; seen = set(); bar = {0}
        for n, (p, t) in enumerate(order):
            left = len(order) - 1 - n
            w = f"lgkmcnt({min(PF - 2, left)})"
            if p not in seen:
                seen.add(p)
                assert p < issued and not any(x.startswith("buffer_load") for x in fq)
                if ns == 0: w = f"vmcnt({2*(issued - p - 1)}) " + w
                if issued < 12:
                    fq += h_ops(issued); issued += 1
            k("s_waitcnt " + w)
            nx = order[n + PF - 1] if n + PF - 1 < len(order) else None
            if BSN is not None and left == BSN: k("s_barrier")
            if nx and nx[0] // 4 not in bar:
                bar.add(nx[0] // 4); k("s_barrier")
            for T in range(2):
                d = v(ACC + (2*t+T)*4, 4)
                k(f"{M} {d}, {v(WF+4*(n%PF),4)}, {hreg(p//4,p%4,T)}, {d}")
                if T == 0 and nx:
                    k(f"ds_read_b128 {v(WF+4*((n+PF-1)%PF),4)}, {base[nx[0]//4]} offset:{(9*(nx[0]%4)+nx[1])*1024}")
                if fq and (T == 1 or ns): k(fq.pop(0))
            fq += delay; delay = []
            if p == 11 and t not in (0, 4):
                R = RP[ns]; ns += 1
                if t < 8:
                    ad = f"s_mul_i32 s29, s{40 + (t & 3)}, 3072\ns_add_u32 s29, s29, s62" + (f"\ns_add_u32 s29, s29, {4*3072}" if t >= 4 else "\ns_nop 0")
                    st_ = f"buffer_store_dwordx4 {v(R,4)}, v1, s[12:15], s29 offen offset:{((t & 3) - 1)*1024} sc1"
                else:
                    ad = "s_nop 2"; st_ = f"buffer_store_dwordx4 {v(R,4)}, v1, s[12:15], s52 offen sc1"
                pk = pack(t, R)
                delay = [ad + "\n" + pk[0]] + pk[1:5] + [pk[5] + "\n" + st_]
    for x in fq: k(x)
    k.mark(12)
    k("s_nop 5")
    for i, t in ((2, 8), (0, 0), (1, 4)):
        for T in range(2):
            k(f"ds_write_b128 v{XV}, {v(ACC+8*t+4*T,4)} offset:{(2*i+T)*1024}")
    k("s_waitcnt lgkmcnt(0)\ns_barrier")
```

```python
from mblib import *
ON_GPU = os.path.exists('/dev/kfd')
def mk(reuse, xch, order="AB", units=9):
    s = """
  s_load_dwordx2 s[4:5], s[0:1], 0
  s_load_dwordx2 s[6:7], s[0:1], 8
  v_lshrrev_b32 v1, 6, v0
  v_and_b32 v2, 63, v0
  v_lshlrev_b32 v2, 4, v2
  s_nop 0
  v_readfirstlane_b32 s20, v1
  s_waitcnt lgkmcnt(0)
  s_mov_b32 s8, s6
  s_mov_b32 s9, s7
  s_mov_b32 s10, 0x10000000
  s_mov_b32 s11, 0x20000
  s_lshl_b32 s36, s20, 17
  s_lshl_b32 s23, s20, 10
2:
  s_mov_b32 m0, s23
  s_add_u32 s24, s23, 0x400000
  buffer_load_dwordx4 v2, s[8:11], s24 offen lds
  s_add_u32 s23, s23, 8192
  s_cmp_lt_u32 s23, 147456
  s_cbranch_scc1 2b
"""
    for i in range(36):
        s += f"  s_add_u32 s28, s36, {i*1024}\n  buffer_load_dwordx4 v[{112+4*i}:{115+4*i}], v2, s[8:11], s28 offen\n"
    PF = 6
    nfr = 72 // reuse
    s += f"""
  s_lshr_b32 s21, s20, 2
  s_mul_i32 s21, s21, {18432 if reuse == 4 else 0}
  v_add_u32 v3, s21, v2
  s_lshl_b32 s21, s20, 11
  s_add_u32 s21, s21, 147456
  v_add_u32 v4, s21, v2
  s_waitcnt vmcnt(0)
  s_barrier
  s_memtime s[12:13]
  s_memrealtime s[30:31]
  s_waitcnt lgkmcnt(0)
  s_mov_b32 s27, {units}
  s_mov_b32 s29, 0
  v_mov_b32 v5, v3
"""
    for n in range(PF - 1): s += f"  ds_read_b128 v[{64+4*n}:{67+4*n}], v5 offset:{n*1024}\n"
    s += ".p2align 6\n1:\n"
    for j in range(nfr):
        s += f"  s_waitcnt lgkmcnt({PF-2})\n"
        if j == nfr - 6: s += "  s_barrier\n"
        ks, m = j // 2, j % 2
        for T in range(reuse):
            d = 16 + 4 * (m * reuse + T)
            h = 112 + 4 * (ks * reuse + T)
            c = "0" if ks == 0 else f"v[{d}:{d+3}]"
            w = f"v[{64+4*(j%PF)}:{67+4*(j%PF)}]"
            a, b = (w, f"v[{h}:{h+3}]") if order == "AB" else (f"v[{h}:{h+3}]", w)
            s += f"  v_mfma_f32_16x16x32_bf16 v[{d}:{d+3}], {a}, {b}, {c}\n"
            if T == 0:
                n = j + PF - 1
                s += f"  ds_read_b128 v[{64+4*(n%PF)}:{67+4*(n%PF)}], v5 offset:{(n % nfr)*1024}\n"
            if xch and T == 2 and j in (2, 3): s += f"  ds_write_b128 v4, v[{88+4*(j-2)}:{91+4*(j-2)}] offset:{(j-2)*1024}\n  ds_write_b128 v4, v[{96+4*(j-2)}:{99+4*(j-2)}] offset:{(j-2)*1024}\n"
            if xch and T == 2 and j in (13, 14): s += f"  ds_read_b128 v[{88+4*(j-13)}:{91+4*(j-13)}], v4 offset:{(j-13)*1024}\n  ds_read_b128 v[{96+4*(j-13)}:{99+4*(j-13)}], v4 offset:{(j-13)*1024}\n"
    s += f"""
  s_add_u32 s29, s29, 36864
  s_cmp_ge_u32 s29, 147456
  s_cselect_b32 s29, 0, s29
  v_add_u32 v5, s29, v3
  s_sub_u32 s27, s27, 1
  s_cmp_lg_u32 s27, 0
  s_cbranch_scc1 1b
  s_memtime s[14:15]
  s_memrealtime s[32:33]
  s_waitcnt lgkmcnt(0) vmcnt(0)
  s_lshl_b32 s16, s2, 4
  s_add_u32 s16, s16, s20
  s_lshl_b32 s16, s16, 4
  v_mov_b32 v3, s16
  v_mov_b32 v4, s12
  v_mov_b32 v5, s14
  v_mov_b32 v6, s30
  v_mov_b32 v7, s32
  s_mov_b64 exec, 1
  global_store_dwordx4 v3, v[4:7], s[4:5]
  s_waitcnt vmcnt(0)
"""
    return s
kernels = [dict(name=n + "_kernel", grid=256, block=512, lds=163840, body=mk(*a), vgpr=256) for n, a in
           (("r2", (2, 0)), ("r4", (4, 0)), ("r4x", (4, 1)), ("r2ba", (2, 0, "BA")), ("r4ba", (4, 0, "BA")))]
p = "mb23"
co = build(kernels, p)
if not ON_GPU:
    print("built"); raise SystemExit(0)
import cdna_launch as cl
launches = cl.launch_list_of(open(p + ".s").read(), True)
kl = cl.AsmKernelList(co, launches, check=False)
out = cl.DeviceBuffer(256 * 16 * 16)
rnd = (np.random.randn(8 << 20).astype(np.float32).view(np.uint32) >> 16).astype(np.uint16)
src = cl.DeviceBuffer(256 << 20); flush = cl.DeviceBuffer(256 << 20)
cl._check(cl._hip.hipMemcpy(src._ptr, rnd.ctypes.data_as(ctypes.c_void_p), rnd.nbytes, 1))
ka = cl.pack_ptr_kernargs([out.ptr, src.ptr] + [out.ptr] * 8)
res = {k['name']: [] for k in kernels}
for rep in range(12):
    for k in kernels:
        cl._check(cl._hip.hipMemsetAsync(flush._ptr, 0, 64 << 20, None))
        cl._launch_function(kl._funcs[k['name']], (256, 1, 1), (512, 1, 1), ka, k['lds'], None)
        cl._check(cl._hip.hipDeviceSynchronize())
        r = out.to_numpy(np.uint32, (256, 16, 4))[:, :8].astype(np.int64)
        span = (r[:, :, 1].max(axis=1) - r[:, :, 0].min(axis=1)); rt = (r[:, :, 3].max(axis=1) - r[:, :, 2].min(axis=1)) * 10
        res[k['name']].append((np.median(span), np.median(rt), rt.max()))
for k in kernels:
    a = np.array(res[k['name']])[2:]
    print(f"{k['name']:14s} cyc {np.median(a[:,0]):.0f} t_med {np.median(a[:,1]):.0f} t_max {np.median(a[:,2]):.0f} clk {np.median(a[:,0]/a[:,1]):.3f}")
```
